```python
import torch

def _softmax(x, axis=-1):
    return torch.softmax(x, dim=axis)

def _gelu(x):
    return torch.nn.functional.gelu(x, approximate='tanh')

def _silu(x):
    return torch.nn.functional.silu(x)

def _sigmoid(x):
    return torch.sigmoid(x)

def _layernorm(x, axis=-1, eps=1e-05):
    m = x.mean(dim=axis, keepdim=True)
    v = x.var(dim=axis, keepdim=True, unbiased=False)
    return (x - m) / torch.sqrt(v + eps)

def _scatter_add(tgt, idx, src, axis=0):
    return tgt.clone().index_add_(axis, idx, src)

def _segment_sum(src, seg, n):
    out = torch.zeros((n,) + src.shape[1:], dtype=src.dtype)
    return out.index_add_(0, seg, src)

def _pad(x, pw):
    flat = tuple((v for pair in reversed(pw) for v in pair))
    return torch.nn.functional.pad(x, flat)
kernel_name = 'parallel_sum__memory_aug_recurrent_mem_tr__dense_activation_relu__prompt'

def setup_inputs():

    _w = lambda a: (lambda t: t.to(torch.bfloat16) if t.is_floating_point() else t)(torch.as_tensor(a))

    def _A_setup():
        B, S, Dm = (1, 2048, 576)
        H, Dh = (32, 128)
        M, seg = (8, 32)
        seg = min(seg, S)
        S = S // seg * seg
        return {'x': _w((lambda *s: torch.randn(*s, dtype=torch.bfloat16) * 0.05)(B, S, Dm)), 'mem0': _w((lambda *s: torch.randn(*s, dtype=torch.bfloat16) * 1.6)(B, M, Dm)), 'Wq': _w((lambda *s: torch.randn(*s, dtype=torch.bfloat16) * 0.8)(Dm, H, Dh) * Dm ** (-0.5)), 'Wk': _w((lambda *s: torch.randn(*s, dtype=torch.bfloat16) * 0.8)(Dm, H, Dh) * Dm ** (-0.5)), 'Wv': _w((lambda *s: torch.randn(*s, dtype=torch.bfloat16) * 1.6)(Dm, H, Dh) * Dm ** (-0.5)), 'Wo': _w((lambda *s: torch.randn(*s, dtype=torch.bfloat16) * 1.6)(H, Dh, Dm) * (H * Dh) ** (-0.5)), 'seg_len': seg}
    _A_in = _A_setup()

    def _B_setup():
        B, S, D, Dff = (1, 2048, 576, 4608)
        return {'x': _w((lambda *s: torch.randn(*s, dtype=torch.bfloat16) * 0.05)(B, S, D)), 'w1': _w((lambda *s: torch.randn(*s, dtype=torch.bfloat16) * 0.05)(D, Dff)), 'w2': _w((lambda *s: torch.randn(*s, dtype=torch.bfloat16) * 0.05)(Dff, D))}
    _B_in = _B_setup()
    return {'A_x': _A_in['x'], 'A_mem0': _A_in['mem0'], 'A_Wq': _A_in['Wq'], 'A_Wk': _A_in['Wk'], 'A_Wv': _A_in['Wv'], 'A_Wo': _A_in['Wo'], 'A_seg_len': _A_in['seg_len'], 'B_x': _B_in['x'], 'B_w1': _B_in['w1'], 'B_w2': _B_in['w2']}

def reference(A_x, A_mem0, A_Wq, A_Wk, A_Wv, A_Wo, A_seg_len, B_x, B_w1, B_w2):

    def _A_ref(x, mem0, Wq, Wk, Wv, Wo, seg_len):
        B, S, Dm = x.shape
        H, Dh = (Wq.shape[1], Wq.shape[2])
        M = mem0.shape[1]
        scale = Dh ** (-0.5)
        n_seg = S // seg_len
        L = M + seg_len
        idx = torch.arange(L)
        mask = (idx[:, None] < M) | (idx[:, None] >= idx[None, :])
        mem = mem0
        outs = []
        for s in range(n_seg):
            xs = x[:, s * seg_len:(s + 1) * seg_len, :].clone()
            h = torch.concatenate([mem, xs], axis=1)
            q = torch.einsum('btd,dhe->bhte', h, Wq)
            k = torch.einsum('btd,dhe->bhte', h, Wk)
            v = torch.einsum('btd,dhe->bhte', h, Wv)
            scores = torch.einsum('bhqe,bhke->bhqk', q, k) * scale
            scores = torch.where(mask[None, None], scores, -1000000000.0)
            p = _softmax(scores, axis=-1)
            o = torch.einsum('bhqk,bhke->bhqe', p, v)
            o = torch.einsum('bhte,hed->btd', o, Wo)
            mem = o[:, :M, :].clone()
            outs.append(o[:, M:, :])
        return torch.concatenate(outs, axis=1)

    def _B_ref(x, w1, w2):
        h = torch.einsum('bsd,df->bsf', x, w1)
        zero = torch.zeros_like(h)
        h = torch.maximum(h, zero)
        return torch.einsum('bsf,fd->bsd', h, w2)
    x = A_x
    xn = _layernorm(x, axis=-1)
    return x + _A_ref(xn, A_mem0, A_Wq, A_Wk, A_Wv, A_Wo, A_seg_len) + _B_ref(xn, B_w1, B_w2)
```

```python
import re
from collections import defaultdict

VCC = (('s', 106), ('s', 107))
EXEC = (('s', 126), ('s', 127))
M0 = (('s', 124),)

_reg_re = re.compile(r'^(v|a|s)(\d+)$')
_rng_re = re.compile(r'^(v|a|s)\[(\d+):(\d+)\]$')


def regs_of(op):
    op = op.strip()
    neg = op.startswith('-')
    if neg:
        op = op[1:]
    if op.startswith('|') and op.endswith('|'):
        op = op[1:-1]
    m = _reg_re.match(op)
    if m:
        return [(m.group(1), int(m.group(2)))]
    m = _rng_re.match(op)
    if m:
        return [(m.group(1), i) for i in range(int(m.group(2)), int(m.group(3)) + 1)]
    if op == 'vcc':
        return list(VCC)
    if op == 'vcc_lo':
        return [VCC[0]]
    if op == 'vcc_hi':
        return [VCC[1]]
    if op == 'exec':
        return list(EXEC)
    if op == 'exec_lo':
        return [EXEC[0]]
    if op == 'exec_hi':
        return [EXEC[1]]
    if op == 'm0':
        return list(M0)
    return []


TRANS = ('v_exp_f32', 'v_log_f32', 'v_rcp_f32', 'v_rsq_f32', 'v_sqrt_f32', 'v_sin_f32', 'v_cos_f32',
         'v_rcp_iflag_f32', 'v_exp_f16', 'v_rcp_f16')
MFMA_PASSES = {
    'v_mfma_f32_16x16x32_bf16': 4, 'v_mfma_f32_16x16x16_bf16': 4, 'v_mfma_f32_16x16x16_bf16_1k': 4,
    'v_mfma_f32_16x16x16bf16_1k': 4,
    'v_mfma_f32_32x32x16_bf16': 8, 'v_smfmac_f32_16x16x64_bf16': 4, 'v_smfmac_f32_16x16x32_bf16': 4,
    'v_mfma_f32_16x16x4_f32': 8, 'v_mfma_f32_16x16x4f32': 8,
}


def split_ops(s):
    out, depth, cur = [], 0, ''
    for ch in s:
        if ch in '[(':
            depth += 1
        elif ch in '])':
            depth -= 1
        if ch == ',' and depth == 0:
            out.append(cur.strip())
            cur = ''
        else:
            cur += ch
    if cur.strip():
        out.append(cur.strip())
    return out


class Ins:
    __slots__ = ('text', 'mn', 'ops', 'mods', 'defs', 'uses', 'kind', 'tok_def', 'tok_use', 'label', 'target',
                 'passes', 'srcC', 'srcAB', 'dpp', 'wide_store', 'comment', 'valu_sdefs', 'lds_dma', 'raw')

    def __init__(self, text):
        self.text = text
        self.label = None
        self.target = None
        self.tok_def = []
        self.tok_use = []
        self.defs = []
        self.uses = []
        self.passes = 0
        self.srcC = []
        self.srcAB = []
        self.dpp = False
        self.wide_store = []
        self.valu_sdefs = []
        self.lds_dma = False
        self.kind = 'other'
        self.raw = False
        self.mn = ''
        self.ops = []
        self.mods = ''


def parse(text):
    ins = Ins(text)
    t = text.split(';')[0].strip()
    if t.endswith(':'):
        ins.label = t[:-1]
        ins.kind = 'label'
        return ins
    if t.startswith('.'):
        ins.kind = 'directive'
        return ins
    sp = t.split(None, 1)
    mn = sp[0]
    rest = sp[1] if len(sp) > 1 else ''
    ops = split_ops(rest)
    mods = ''
    if ops:
        last = ops[-1].split(None, 1)
        if len(last) > 1 and not ops[-1].startswith('hwreg') and not ops[-1].startswith('vmcnt') \
                and not ops[-1].startswith('lgkmcnt'):
            ops[-1] = last[0]
            mods = last[1]
    ins.mn, ins.ops, ins.mods = mn, ops, mods
    base = re.sub(r'_(e32|e64|dpp|sdwa)$', '', mn)
    R = [regs_of(o) for o in ops]

    def flat(lst):
        return [r for x in lst for r in x]

    if mn.startswith('v_mfma') or mn.startswith('v_smfmac'):
        ins.kind = 'mfma'
        ins.passes = MFMA_PASSES[base]
        ins.defs = R[0]
        if mn.startswith('v_smfmac'):
            ins.srcC = R[0]
            ins.srcAB = R[1] + R[2] + R[3]
        else:
            ins.srcC = R[3]
            ins.srcAB = R[1] + R[2]
        ins.uses = ins.srcC + ins.srcAB
    elif mn.startswith('v_'):
        ins.kind = 'valu'
        ins.dpp = ('row_' in mods or 'quad_perm' in mods or 'dpp' in mn or 'wave_' in mods or 'row_' in rest)
        if base.startswith('v_cmpx'):
            ins.defs = list(EXEC) + R[0]
            ins.uses = flat(R[1:])
        elif base.startswith('v_cmp'):
            ins.defs = R[0]
            ins.uses = flat(R[1:])
        elif base in ('v_add_co_u32', 'v_sub_co_u32', 'v_subrev_co_u32', 'v_addc_co_u32', 'v_subb_co_u32',
                      'v_mad_u64_u32', 'v_div_scale_f32'):
            ins.defs = R[0] + R[1]
            ins.uses = flat(R[2:])
        elif base in ('v_permlane32_swap_b32', 'v_permlane16_swap_b32', 'v_swap_b32'):
            ins.defs = R[0] + R[1]
            ins.uses = R[0] + R[1]
        elif base in ('v_fmac_f32', 'v_mac_f32', 'v_writelane_b32', 'v_pk_fmac_f16', 'v_dot2c_f32_bf16'):
            ins.defs = R[0]
            ins.uses = flat(R)
        elif base == 'v_nop':
            pass
        else:
            ins.defs = R[0]
            ins.uses = flat(R[1:])
            if ins.dpp:
                ins.uses = ins.uses + R[0]
        if base == 'v_cndmask_b32' and len(ops) == 3:
            ins.uses = ins.uses + list(VCC)
        ins.valu_sdefs = [r for r in ins.defs if r[0] == 's']
    elif mn.startswith('ds_'):
        ins.kind = 'lds'
        if mn.startswith('ds_read') or mn.startswith('ds_bpermute') or mn.startswith('ds_permute') \
                or mn.startswith('ds_swizzle') or '_rtn' in mn:
            ins.defs = R[0]
            ins.uses = flat(R[1:])
        else:
            ins.uses = flat(R)
    elif mn.startswith('buffer_') or mn.startswith('global_'):
        ins.kind = 'vmem'
        allmods = ' ' + mods + ' '
        is_lds = (' lds ' in allmods) or ('_lds_' in mn)
        if mn in ('buffer_wbl2', 'buffer_inv'):
            pass
        elif is_lds:
            ins.lds_dma = True
            ins.uses = flat(R) + list(M0)
        elif '_load' in mn:
            ins.defs = R[0]
            ins.uses = flat(R[1:])
        elif '_store' in mn:
            ins.uses = flat(R)
            data = R[0] if mn.startswith('buffer_') else R[1]
            if len(data) >= 3:
                ins.wide_store = data
        elif '_atomic' in mn:
            ret = ' sc0 ' in allmods
            if mn.startswith('buffer_'):
                ins.uses = flat(R)
                if ret:
                    n = len(R[0])
                    ins.defs = R[0][:n // 2] if 'cmpswap' in mn else R[0]
            else:
                if ret:
                    ins.defs = R[0]
                    ins.uses = flat(R[1:])
                else:
                    ins.uses = flat(R)
        else:
            raise ValueError('vmem? ' + text)
    elif mn.startswith('s_'):
        ins.kind = 'salu'
        if mn.startswith('s_load') or mn.startswith('s_buffer_load') or mn in ('s_memtime', 's_memrealtime'):
            ins.kind = 'smem'
            ins.defs = R[0]
            ins.uses = flat(R[1:])
        elif mn.startswith('s_cbranch') or mn == 's_branch':
            ins.kind = 'branch'
            ins.target = ops[0]
            if 'vcc' in mn:
                ins.uses = list(VCC)
            if 'exec' in mn:
                ins.uses = list(EXEC)
        elif mn == 's_endpgm':
            ins.kind = 'end'
        elif mn == 's_waitcnt':
            ins.kind = 'wait'
        elif mn == 's_nop':
            ins.kind = 'nop'
        elif mn in ('s_barrier', 's_setprio', 's_sleep', 's_sethalt'):
            pass
        elif mn.startswith('s_cmp') or mn.startswith('s_bitcmp'):
            ins.uses = flat(R)
        elif 'saveexec' in mn:
            ins.defs = R[0] + list(EXEC)
            ins.uses = flat(R[1:]) + list(EXEC)
        elif mn == 's_setreg_b32' or mn == 's_setreg_imm32_b32':
            ins.uses = flat(R[1:])
        else:
            ins.defs = R[0] if R else []
            ins.uses = flat(R[1:])
            if mn in ('s_addk_i32', 's_mulk_i32') or mn.startswith('s_cmov') or mn.startswith('s_bitset'):
                ins.uses = ins.uses + R[0]
    else:
        raise ValueError('cannot parse: ' + text)
    return ins


class Asm:
    def __init__(self):
        self.items = []
        self._uid = 0

    def uid(self, p='L'):
        self._uid += 1
        return f'{p}{self._uid}'

    def __call__(self, text, tok=None, need=None):
        lines = [l for l in text.split('\n') if l.split(';')[0].strip()]
        out = []
        for l in lines:
            out.append(parse(l.strip()))
        if need:
            out[0].tok_use = list(need) if isinstance(need, (list, tuple)) else [need]
        if tok:
            out[-1].tok_def = list(tok) if isinstance(tok, (list, tuple)) else [tok]
        self.items.extend(out)
        return out[-1] if out else None

    def rawins(self, text):
        i = Ins(text)
        i.kind = 'other'
        self.items.append(i)

    def label(self, name):
        self(name + ':')

    def need(self, *toks):
        i = Ins('')
        i.kind = 'pseudo'
        i.tok_use = list(toks)
        self.items.append(i)

    def comment(self, s):
        i = Ins('; ' + s)
        i.kind = 'comment'
        self.items.append(i)

    def add(self, ins_list):
        self.items.extend(ins_list)

    def _cfg(self, items):
        lab = {}
        for n, it in enumerate(items):
            if it.kind == 'label':
                lab[it.label] = n
        succ = [[] for _ in items]
        for n, it in enumerate(items):
            if it.kind == 'end':
                continue
            if it.kind == 'branch':
                succ[n].append(lab[it.target])
                if it.mn != 's_branch' and n + 1 < len(items):
                    succ[n].append(n + 1)
            elif n + 1 < len(items):
                succ[n].append(n + 1)
        return succ

    @staticmethod
    def _parse_wait(it):
        vm = lg = None
        t = it.text
        m = re.search(r'vmcnt\((\d+)\)', t)
        if m:
            vm = int(m.group(1))
        m = re.search(r'lgkmcnt\((\d+)\)', t)
        if m:
            lg = int(m.group(1))
        return vm, lg

    def _insert_waits(self, items):
        succ = self._cfg(items)
        n_items = len(items)
        leaders = {0}
        for n, it in enumerate(items):
            if it.kind == 'label':
                leaders.add(n)
            if it.kind in ('branch', 'end') and n + 1 < n_items:
                leaders.add(n + 1)
        leaders = sorted(leaders)
        blk_end = {}
        for i, l in enumerate(leaders):
            blk_end[l] = leaders[i + 1] if i + 1 < len(leaders) else n_items
        preds = defaultdict(list)
        for n in range(n_items):
            for s in succ[n]:
                preds[s].append(n)

        def transfer(l, st, waits):
            vm, lg, sm = dict(st[0]), dict(st[1]), set(st[2])
            for n in range(l, blk_end[l]):
                it = items[n]
                if it.kind in ('label', 'comment', 'directive'):
                    continue
                if it.kind == 'wait':
                    wv, wl = self._parse_wait(it)
                    if wv is not None:
                        vm = {k: v for k, v in vm.items() if v < wv}
                    if wl is not None:
                        if wl == 0:
                            lg, sm = {}, set()
                        elif not sm:
                            lg = {k: v for k, v in lg.items() if v < wl}
                    continue
                keys = list(it.uses) + list(it.defs) + [('t', t) for t in it.tok_use]
                if it.kind == 'vmem' and it.defs and '_load' in it.mn:
                    vkeys = list(it.uses) + [('t', t) for t in it.tok_use]
                else:
                    vkeys = keys
                needv = [vm[k] for k in vkeys if k in vm]
                needl = [lg[k] for k in keys if k in lg]
                needs = [k for k in keys if k in sm]
                wv = min(needv) if needv else None
                wl = min(needl) if needl else None
                if needs or (wl is not None and sm):
                    wl = 0
                if wv is not None:
                    vm = {k: v for k, v in vm.items() if v < wv}
                if wl is not None:
                    if wl == 0:
                        lg, sm = {}, set()
                    else:
                        lg = {k: v for k, v in lg.items() if v < wl}
                if waits is not None and (wv is not None or wl is not None):
                    waits[n] = (wv, wl)
                if it.kind == 'vmem':
                    vm = {k: v + 1 for k, v in vm.items() if v + 1 < 64}
                    for r in it.defs:
                        vm[r] = 0
                    for t in it.tok_def:
                        vm[('t', t)] = 0
                    vm[('t', '*vm')] = 0
                elif it.kind == 'lds':
                    lg = {k: v + 1 for k, v in lg.items()}
                    for k in list(lg):
                        if lg[k] > 15:
                            lg[k] = 15
                    for r in it.defs:
                        lg[r] = 0
                    for t in it.tok_def:
                        lg[('t', t)] = 0
                    lg[('t', '*lds')] = 0
                elif it.kind == 'smem':
                    for r in it.defs:
                        sm.add(r)
                    for t in it.tok_def:
                        sm.add(('t', t))
                    sm.add(('t', '*smem'))
            return vm, lg, sm

        def merge(a, b):
            if a is None:
                return (dict(b[0]), dict(b[1]), set(b[2])), True
            ch = False
            vm, lg, sm = a
            for src, dst in ((b[0], vm), (b[1], lg)):
                for k, v in src.items():
                    if k not in dst or v < dst[k]:
                        dst[k] = v
                        ch = True
            for k in b[2]:
                if k not in sm:
                    sm.add(k)
                    ch = True
            return (vm, lg, sm), ch

        state = {l: None for l in leaders}
        work = []
        for l in leaders:
            if l == 0 or not preds.get(l):
                state[l] = ({}, {}, set())
                work.append(l)
        inwork = set(work)
        while work:
            l = work.pop(0)
            inwork.discard(l)
            out = transfer(l, state[l], None)
            last = blk_end[l] - 1
            for s in succ[last]:
                new, ch = merge(state[s], out)
                state[s] = new
                if ch and s not in inwork:
                    work.append(s)
                    inwork.add(s)
        waits = {}
        for l in leaders:
            if state[l] is not None:
                transfer(l, state[l], waits)
        res = []
        for n, it in enumerate(items):
            if n in waits:
                wv, wl = waits[n]
                s = 's_waitcnt'
                if wv is not None:
                    s += f' vmcnt({min(wv, 63)})'
                if wl is not None:
                    s += f' lgkmcnt({min(wl, 15)})'
                res.append(parse(s))
            if it.kind != 'pseudo':
                res.append(it)
        return res

    @staticmethod
    def _req(p, c):
        req = 0
        if p.kind == 'mfma':
            pd = set(p.defs)
            xdl = {4: (6, 8), 8: (10, 12), 2: (4, 5), 16: (18, 20)}[p.passes]
            if c.kind == 'mfma':
                cc = c.srcC
                if pd & set(cc):
                    if not (cc == p.defs and c.passes == p.passes):
                        req = max(req, xdl[0])
                if pd & set(c.srcAB):
                    req = max(req, xdl[1])
                if pd & set(c.defs) and not (pd & set(cc)):
                    if c.passes != p.passes or c.defs != p.defs:
                        req = max(req, xdl[0])
            elif c.kind in ('valu', 'vmem', 'lds'):
                if pd & (set(c.uses) | set(c.defs)):
                    req = max(req, xdl[1])
                if c.kind == 'valu' and set(p.srcC) & set(c.defs):
                    req = max(req, {4: 3, 8: 7, 2: 1, 16: 15}[p.passes])
        elif p.kind == 'valu':
            pd = set(p.defs)
            vd = {r for r in pd if r[0] in 'va'}
            sd = set(p.valu_sdefs)
            base = re.sub(r'_(e32|e64|dpp|sdwa)$', '', p.mn)
            if c.kind == 'mfma':
                if vd & set(c.uses):
                    req = max(req, 2)
                if sd & set(EXEC):
                    req = max(req, 4)
            elif c.kind == 'valu':
                cb = re.sub(r'_(e32|e64|dpp|sdwa)$', '', c.mn)
                cu = set(c.uses)
                if c.dpp and vd & cu:
                    req = max(req, 2)
                if c.dpp and sd & set(EXEC):
                    req = max(req, 5)
                if cb.startswith('v_permlane') and vd & cu:
                    req = max(req, 2)
                if cb.startswith('v_permlane') and sd & set(EXEC):
                    req = max(req, 4)
                if cb in ('v_readfirstlane_b32', 'v_readlane_b32'):
                    if vd & cu:
                        req = max(req, 1)
                    if sd & set(EXEC):
                        req = max(req, 4)
                if sd & cu:
                    req = max(req, 4 if cb in ('v_readlane_b32', 'v_writelane_b32', 'v_div_fmas_f32') else 2)
                if base in TRANS and vd & cu:
                    req = max(req, 1)
                if (('op_sel' in p.mods and not p.mn.endswith('_f32')) or 'sdwa' in p.mn or 'dst_sel' in p.mods) and vd & (cu | set(c.defs)):
                    req = max(req, 1)
            elif c.kind == 'vmem':
                if sd & set(c.uses):
                    req = max(req, 5)
            elif c.kind == 'branch':
                if sd & set(c.uses):
                    req = max(req, 5)
            elif c.kind in ('salu', 'smem'):
                if c.kind == 'smem' and sd & set(c.uses):
                    req = max(req, 5)
        elif p.kind == 'vmem':
            if p.wide_store and set(p.wide_store) & set(c.defs):
                req = max(req, 2 if c.kind in ('valu', 'mfma') else 1)
        elif p.kind == 'salu':
            if set(p.defs) & set(M0) and (c.lds_dma or c.mn == 's_sendmsg'):
                req = max(req, 1)
        return req

    @staticmethod
    def _ws(it):
        if it.kind == 'nop':
            return int(it.ops[0], 0) + 1
        if it.kind in ('label', 'comment', 'directive', 'pseudo'):
            return 0
        return 1

    def _pad_hazards(self, items):
        MAXD = 21
        out = []
        succ = self._cfg(items)
        preds = defaultdict(list)
        for n in range(len(items)):
            for s in succ[n]:
                preds[s].append(n)
        extra = defaultdict(int)
        interesting = ('mfma', 'valu', 'vmem', 'lds', 'smem', 'branch', 'salu')
        for n, c in enumerate(items):
            if c.kind not in interesting:
                continue
            need = 0
            stack = [(p, extra[n]) for p in preds.get(n, [])]
            seen = {}
            while stack:
                p, d = stack.pop()
                if d >= MAXD:
                    continue
                if p in seen and seen[p] <= d:
                    continue
                seen[p] = d
                it = items[p]
                r = self._req(it, c)
                if r > d:
                    need = max(need, r - d)
                nd = d + self._ws(it) + extra[p]
                for q in preds.get(p, []):
                    stack.append((q, nd))
            extra[n] += need
        for n, it in enumerate(items):
            k = extra.get(n, 0)
            while k > 0:
                j = min(k, 16)
                out.append(parse(f's_nop {j - 1}'))
                k -= j
            out.append(it)
        return out

    def finalize(self):
        items = self._insert_waits(self.items)
        items = self._pad_hazards(items)
        lines = []
        for it in items:
            if it.kind == 'label':
                lines.append(it.text)
            elif it.kind == 'pseudo':
                continue
            else:
                lines.append(' ' + it.text)
        self.final_items = items
        return '\n'.join(lines) + '\n'


def interleave(main, fill, start=0, every=1, per=1):
    out, fi = [], 0
    for i, m in enumerate(main):
        out.append(m)
        if i >= start and (i - start) % every == 0:
            for _ in range(per):
                if fi < len(fill):
                    out.append(fill[fi])
                    fi += 1
    out.extend(fill[fi:])
    return out
```

```python
KNAME = 'parallel_sum__memory_aug_recurrent_mem_tr__dense_activation_relu__prompt_kernel'
WS_SIZE = 0x10000000
F_KV   = 0x0000
F_H    = 0x0200
F_F    = 0x0600
F_SH   = 0x0800
F_CH   = 0x0A00
F_END  = 0x1000
M2     = 0x9800000
STAMPS = 0x8000
C1     = 0x9810000
XN     = 0x0100000
KF     = 0x0400000
VF     = 0x1400000
KM     = 0x2400000
HH     = 0x3400000
FF     = 0x4600000
PART   = 0x5000000
WS_USED = 0x9900000
D_TICKET = 0
D_LN     = 32
D_CHB    = 64
D_STAMP  = 128

def slot_groups():
    g = {'chain': [], 'shadow': [], 'kv': [], 'ffn': [], 'spare': []}
    for x in range(8):
        for t in range(32):
            b = x*32 + t
            if x == 0: g['chain'].append(b)
            elif t < 12: g['ffn' if (t >> 2)*7 + x-1 < 18 else 'spare'].append(b)
            else:
                q = (t-12)*7 + x-1
                g['shadow' if q < 64 else 'kv' if q < 128 else 'spare'].append(b)
    return g
```

```python
import sys
from gen_base import *
import gen_bulk as B
import gen_shadow as SH
import gen_chain as CH

def build(roles=('ln', 'kv', 'f1'), out='k.s'):
    a = Asm()
    entry(a)
    stamp(a, 0)
    a(f's_lshl_b32 s33, s{S_X}, 5'); a(f's_add_u32 s33, s33, s{S_T}'); a('s_lshl_b32 s33, s33, 4')
    a('v_mov_b32 v2, 0'); a('v_mov_b32 v3, 0'); a('v_mov_b32 v4, 0'); a('v_mov_b32 v5, 0'); a('v_mov_b32 v6, 0')
    a('s_mov_b64 exec, 1')
    a(f'buffer_store_dwordx4 v[2:5], v6, s[{S_WS}:{S_WS+3}], s33 offen sc1')
    a('s_mov_b64 exec, -1')
    a(f's_cmp_eq_u32 s{S_X}, 0')
    a('s_cbranch_scc1 L_chain')
    a(f's_sub_u32 s38, s{S_X}, 1')
    a(f's_mul_i32 s39, s{S_T}, 7'); a('s_add_u32 s39, s39, s38')
    a('s_cmp_ge_u32 s39, 128'); a('s_cbranch_scc1 L_noln')
    B.ln_role(a, 39)
    a.label('L_noln')
    gbar_arrive(a)
    stamp(a, 1)
    a(f's_cmp_lt_u32 s{S_T}, 12'); a('s_cbranch_scc1 L_ffn')
    a(f's_sub_u32 s39, s{S_T}, 12'); a('s_mul_i32 s39, s39, 7'); a('s_add_u32 s39, s39, s38')
    a('s_cmp_ge_u32 s39, 128'); a('s_cbranch_scc1 L_spare')
    a('s_cmp_lt_u32 s39, 64'); a('s_cbranch_scc1 L_shadow')
    a('s_sub_u32 s39, s39, 64'); a('s_and_b32 s40, s39, 31'); a('s_lshr_b32 s41, s39, 5')
    if 'kv' in roles:
        B.ws_gemm(a, 'kv')
    a(f's_lshl_b32 s64, s41, 5'); a('s_add_u32 s64, s64, s40')
    a('s_branch L_fin')
    a.label('L_ffn')
    a(f's_lshr_b32 s39, s{S_T}, 2'); a('s_mul_i32 s39, s39, 7'); a('s_add_u32 s39, s39, s38')
    a('s_cmp_ge_u32 s39, 18'); a('s_cbranch_scc1 L_spare')
    a(f's_and_b32 s52, s{S_T}, 3'); a('s_lshl_b32 s39, s39, 2'); a('s_add_u32 s52, s52, s39')
    a('s_mul_i32 s41, s52, 3641'); a('s_lshr_b32 s41, s41, 16')
    a('s_mul_i32 s40, s41, 18'); a('s_sub_u32 s40, s52, s40')
    if 'f1' in roles:
        B.ws_gemm(a, 'f1')
    if 'f2' in roles:
        B.ffn2_role(a)
    a('s_add_u32 s64, s52, 64')
    a('s_branch L_fin')
    a.label('L_shadow')
    a('s_and_b32 s40, s39, 31'); a('s_lshr_b32 s41, s39, 5')
    if 'sh' in roles:
        SH.shadow_role(a)
    a('s_branch L_exit')
    a.label('L_spare')
    a(f's_cmp_lt_u32 s{S_T}, 12'); a('s_cbranch_scc0 L_spare2')
    a('s_sub_u32 s39, s39, 18'); a('s_lshl_b32 s39, s39, 2'); a(f's_and_b32 s33, s{S_T}, 3'); a('s_add_u32 s64, s39, s33')
    a('s_branch L_spare3')
    a.label('L_spare2')
    a('s_sub_u32 s64, s39, 116')
    a.label('L_spare3')
    a('s_add_u32 s64, s64, 136')
    gbar_wait(a)
    a.label('L_fin')
    if 'fin' in roles:
        SH.finisher_role(a)
    a('s_branch L_exit')
    a.label('L_chain')
    gbar_arrive(a)
    if 'ch' not in roles:
        gbar_wait(a)
        a(f's_lshl_b32 s33, s{S_W}, 7'); a(f's_lshl_b32 s34, s{S_T}, 2'); a('s_add_u32 s33, s33, s34'); a(f's_add_u32 s33, s33, {F_CH}')
        a('v_mov_b32 v2, 64'); a('v_mov_b32 v3, 0'); a('s_mov_b64 exec, 1')
        a(f'buffer_store_dword v2, v3, s[{S_WS}:{S_WS+3}], s33 offen sc1')
        a('s_mov_b64 exec, -1')
    else:
        CH.chain_role(a)
    a.label('L_exit')
    a('s_endpgm')
    txt = header() + a.finalize() + footer()
    open(out, 'w').write(txt)
    return txt

if __name__ == '__main__':
    roles = sys.argv[1].split(',') if len(sys.argv) > 1 else ('ln', 'kv', 'f1')
    t = build(roles)
    print(len(t), 'bytes')
```

```python
from asmgen import Asm, parse, interleave
from common import *

S_WS   = 4
S_DBG  = 8
S_X    = 12
S_T    = 13
S_W    = 14
S_BUD  = 15
S_A    = 16
S_B    = 20
S_C    = 24
S_D    = 28
S_FOREIGN = 32
V_TID = 0
V_LANE = 1

def srd(a, sreg, karg_off, size):
    a(f's_load_dwordx2 s[{sreg}:{sreg+1}], s[0:1], {karg_off}')
    a(f's_mov_b32 s{sreg+2}, {size:#x}')
    a(f's_mov_b32 s{sreg+3}, 0x20000')

def srd_fix(a, sreg):
    a(f's_and_b32 s{sreg+1}, s{sreg+1}, 0xffff')

def poll(a, load_text, cmp_text, name='poll', sleep=0):
    L = a.uid(name); D = a.uid(name + 'd')
    a.label(L)
    a(load_text)
    a('s_waitcnt vmcnt(0)')
    a(cmp_text)
    a('s_cmp_eq_u64 vcc, exec')
    a(f's_cbranch_scc1 {D}')
    a(f's_cmp_eq_u32 s{S_BUD}, 0')
    a(f's_cbranch_scc1 {D}')
    a(f's_sub_u32 s{S_BUD}, s{S_BUD}, 1')
    if sleep: a(f's_sleep {sleep}')
    a(f's_branch {L}')
    a.label(D)

def entry(a):
    a(f's_cmp_ge_u32 s2, 256')
    a('s_cbranch_scc1 L_exit')
    srd(a, S_WS, 96, WS_SIZE)
    srd(a, S_DBG, 88, 256)
    a(f's_getreg_b32 s{S_X}, hwreg(HW_REG_XCC_ID)')
    a(f's_and_b32 s{S_X}, s{S_X}, 7')
    a(f'v_lshrrev_b32 v2, 6, v0')
    a(f'v_and_b32 v{V_LANE}, 63, v0')
    a(f'v_readfirstlane_b32 s{S_W}, v2')
    a(f's_mov_b32 s{S_BUD}, 0x20000')
    a(f's_mov_b32 s{S_FOREIGN}, 0')
    a('s_waitcnt lgkmcnt(0)')
    srd_fix(a, S_WS); srd_fix(a, S_DBG)
    a(f's_cmp_lg_u32 s{S_W}, 0')
    a('s_cbranch_scc1 L_tk_wait')
    a(f's_lshl_b32 s33, s{S_X}, 2')
    a('v_mov_b32 v2, 1')
    a('v_mov_b32 v3, 0')
    a('s_mov_b64 exec, 1')
    a(f'buffer_atomic_add v2, v3, s[{S_DBG}:{S_DBG+3}], s33 offen sc0 sc1')
    a('s_waitcnt vmcnt(0)')
    a(f'v_readfirstlane_b32 s{S_T}, v2')
    a('s_mov_b64 exec, -1')
    a(f's_cmp_lt_u32 s{S_T}, 32')
    a('s_cbranch_scc1 L_tk_ok')
    a(f'v_lshlrev_b32 v3, 2, v{V_LANE}')
    a('v_and_b32 v3, 31, v3')
    a.label('L_ov_poll')
    a(f'buffer_load_dword v2, v3, s[{S_DBG}:{S_DBG+3}], 0 offen sc1')
    a('s_waitcnt vmcnt(0)')
    a('s_mov_b32 s33, 0')
    for i in range(8):
        a(f'v_readlane_b32 s{40+i}, v2, {i}')
    for i in range(8):
        a(f's_add_u32 s33, s33, s{40+i}')
    a('s_cmp_eq_u32 s33, 256')
    a('s_cbranch_scc1 L_ov_go')
    a(f's_cmp_eq_u32 s{S_BUD}, 0')
    a('s_cbranch_scc1 L_ov_go')
    a(f's_sub_u32 s{S_BUD}, s{S_BUD}, 1')
    a('s_branch L_ov_poll')
    a.label('L_ov_go')
    a(f's_sub_u32 s33, s{S_T}, 32')
    for i in range(8):
        a(f's_sub_u32 s34, s{40+i}, 32')
        a(f's_max_i32 s34, s34, 0')
        a(f's_cmp_gt_u32 s{S_X}, {i}')
        a(f's_cselect_b32 s34, s34, 0')
        a(f's_add_u32 s33, s33, s34')
    a(f's_mov_b32 s{S_FOREIGN}, 1')
    a(f's_mov_b32 s35, 0')
    a(f's_mov_b32 s36, 7')
    a(f's_mov_b32 s37, 31')
    for i in range(8):
        nx = a.uid('L_hn')
        a(f's_min_u32 s34, s{40+i}, 32')
        a(f's_sub_u32 s38, 32, s34')
        a(f's_cmp_eq_u32 s35, 0')
        a(f's_cbranch_scc0 {nx}')
        a(f's_cmp_lt_u32 s33, s38')
        a(f's_cselect_b32 s35, 1, 0')
        a(f's_add_u32 s39, s34, s33')
        a(f's_cmp_eq_u32 s35, 1')
        a(f's_cselect_b32 s36, {i}, s36')
        a(f's_cselect_b32 s37, s39, s37')
        a(f's_sub_u32 s33, s33, s38')
        a.label(nx)
    a(f's_mov_b32 s{S_X}, s36')
    a(f's_mov_b32 s{S_T}, s37')
    a.label('L_tk_ok')
    a(f's_lshl_b32 s33, s{S_X}, 5')
    a(f's_or_b32 s33, s33, s{S_T}')
    a(f's_lshl_b32 s34, s{S_FOREIGN}, 8')
    a(f's_or_b32 s33, s33, s34')
    a('v_mov_b32 v2, s33')
    a('v_mov_b32 v3, 0')
    a('ds_write_b32 v3, v2')
    a('s_waitcnt lgkmcnt(0)')
    a.label('L_tk_wait')
    a('s_barrier')
    a('v_mov_b32 v3, 0')
    a('ds_read_b32 v2, v3')
    a('s_waitcnt lgkmcnt(0)')
    a('v_readfirstlane_b32 s33, v2')
    a(f's_and_b32 s{S_T}, s33, 31')
    a(f's_bfe_u32 s{S_X}, s33, 0x30005')
    a(f's_bfe_u32 s{S_FOREIGN}, s33, 0x10008')
    a('s_barrier')

def gbar_arrive(a):
    a('s_waitcnt vmcnt(0)')
    a('s_barrier')
    sk = a.uid('L_ga')
    a(f's_cmp_lg_u32 s{S_W}, 0')
    a(f's_cbranch_scc1 {sk}')
    a(f's_lshl_b32 s33, s{S_X}, 2')
    a(f's_add_u32 s33, s33, {D_LN}')
    a('v_mov_b32 v2, 1')
    a('v_mov_b32 v3, 0')
    a('s_mov_b64 exec, 1')
    a(f'buffer_atomic_add v2, v3, s[{S_DBG}:{S_DBG+3}], s33 offen sc1')
    a('s_mov_b64 exec, -1')
    a.label(sk)

def gbar_wait(a, vt0=2, vt1=3):
    sk = a.uid('L_gw')
    a(f's_cmp_lg_u32 s{S_W}, 0')
    a(f's_cbranch_scc1 {sk}')
    a(f'v_lshlrev_b32 v{vt1}, 2, v{V_LANE}')
    a(f'v_and_b32 v{vt1}, 31, v{vt1}')
    poll(a, f'buffer_load_dword v{vt0}, v{vt1}, s[{S_DBG}:{S_DBG+3}], 0 offen offset:{D_LN} sc1',
         f'v_cmp_le_u32 vcc, 32, v{vt0}', sleep=4)
    a.label(sk)
    a('s_barrier')

def header(lds=163840, grid=256):
    return f'''; generated by dev/gen.py (own generator)
; @launch grid=({grid},1,1) block=(256,1,1) lds={lds}
.amdgcn_target "amdgcn-amd-amdhsa--gfx950"
.text
.globl {KNAME}
.p2align 8
.type {KNAME},@function
{KNAME}:
'''

def footer(nv=512, acc=256):
    return f'''.section .rodata,"a"
.p2align 6
.amdhsa_kernel {KNAME}
  .amdhsa_next_free_vgpr {nv}
  .amdhsa_next_free_sgpr 102
  .amdhsa_accum_offset {acc}
  .amdhsa_group_segment_fixed_size 0
  .amdhsa_kernarg_size 104
  .amdhsa_user_sgpr_count 2
  .amdhsa_user_sgpr_kernarg_segment_ptr 1
  .amdhsa_system_sgpr_workgroup_id_x 1
.end_amdhsa_kernel
'''

STAMPS = 0x8000
DEV_STAMPS = True
def stamp(a, idx, wave=0):
    if not DEV_STAMPS:
        return
    sk = a.uid('L_st')
    a(f's_cmp_lg_u32 s{S_W}, {wave}'); a(f's_cbranch_scc1 {sk}')
    a('s_memrealtime s[98:99]')
    a('s_memtime s[96:97]')
    a(f's_lshl_b32 s100, s{S_X}, 5'); a(f's_add_u32 s100, s100, s{S_T}'); a('s_lshl_b32 s100, s100, 7')
    a(f's_add_u32 s100, s100, {STAMPS + 8*idx}')
    a('s_waitcnt lgkmcnt(0)')
    a('v_mov_b32 v78, s98'); a('v_mov_b32 v79, s99'); a('v_mov_b32 v77, 0')
    a('s_mov_b64 exec, 1')
    a(f'buffer_store_dwordx2 v[78:79], v77, s[{S_WS}:{S_WS+3}], s100 offen')
    a('v_mov_b32 v78, s96'); a('v_mov_b32 v79, s97')
    a(f'buffer_store_dwordx2 v[78:79], v77, s[{S_WS}:{S_WS+3}], s100 offen offset:64')
    a('s_mov_b64 exec, -1')
    a.label(sk)
```

```python
from gen_base import *

def ln_role(a, s_tile, mid=None):
    srd(a, S_A, 0, 2048 * 1152)
    a(f'v_lshrrev_b32 v2, 4, v{V_LANE}')
    a(f'v_and_b32 v3, 15, v{V_LANE}')
    a(f's_lshl_b32 s33, s{S_W}, 2')
    a(f'v_add_u32 v2, s33, v2')
    a(f's_lshl_b32 s34, s{s_tile}, 4')
    a(f'v_add_u32 v4, s34, v2')
    a(f'v_mul_u32_u24 v4, 1152, v4')
    a(f'v_lshl_add_u32 v4, v3, 4, v4')
    a('s_waitcnt lgkmcnt(0)')
    srd_fix(a, S_A)
    for i in range(5):
        a(f'buffer_load_dwordx4 v[{8+4*i}:{11+4*i}], v4, s[{S_A}:{S_A+3}], 0 offen offset:{256*i}')
    if mid: mid()
    a('v_lshrrev_b32 v5, 2, v3')
    a('v_lshlrev_b32 v5, 10, v5')
    a('v_and_b32 v6, 3, v3')
    a('v_lshl_add_u32 v5, v6, 8, v5')
    a('v_lshl_add_u32 v5, v2, 4, v5')
    a(f's_mul_i32 s34, s{s_tile}, 18432')
    a(f's_add_u32 s34, s34, {XN}')
    a('v_cmp_gt_u32 vcc, 8, v3')
    a('v_cndmask_b32 v7, 0, 1.0, vcc')
    X = 30
    for i in range(5):
        for r in range(4):
            a(f'v_lshlrev_b32 v{X+8*i+2*r}, 16, v{8+4*i+r}')
            a(f'v_and_b32 v{X+8*i+2*r+1}, 0xffff0000, v{8+4*i+r}')
    def reduce(vals_main, vals_tail, acc, dst):
        for k in range(4):
            a(f'v_add_f32 v{acc+k}, v{vals_main[k]}, v{vals_main[k+4]}')
        for n in range(8, 32):
            a(f'v_add_f32 v{acc+(n&3)}, v{acc+(n&3)}, v{vals_main[n]}')
        a(f'v_add_f32 v{acc}, v{acc}, v{acc+1}')
        a(f'v_add_f32 v{acc+2}, v{acc+2}, v{acc+3}')
        a(f'v_add_f32 v{acc}, v{acc}, v{acc+2}')
        a(f'v_add_f32 v{acc+1}, v{vals_tail[0]}, v{vals_tail[1]}')
        for n in range(2, 8):
            a(f'v_add_f32 v{acc+1}, v{acc+1}, v{vals_tail[n]}')
        a(f'v_fmac_f32 v{acc}, v{acc+1}, v7')
        for sh in (8, 4, 2, 1):
            a(f'v_add_f32_dpp v{acc}, v{acc}, v{acc} row_ror:{sh} row_mask:0xf bank_mask:0xf')
        a(f'v_mov_b32 v{dst}, v{acc}')
    reduce([X+n for n in range(32)], [X+32+n for n in range(8)], 72, 76)
    a(f'v_mul_f32 v76, {1.0/576.0!r}, v76')
    for n in range(40):
        a(f'v_sub_f32 v{X+n}, v{X+n}, v76')
    Q = 80
    for n in range(40):
        a(f'v_mul_f32 v{Q+n}, v{X+n}, v{X+n}')
    reduce([Q+n for n in range(32)], [Q+32+n for n in range(8)], 72, 77)
    a(f'v_mov_b32 v78, 0x3727c5ac')
    a(f'v_fmac_f32 v78, {1.0/576.0!r}, v77')
    a('v_rsq_f32 v78, v78')
    for n in range(40):
        a(f'v_mul_f32 v{X+n}, v{X+n}, v78')
    for n in range(20):
        a(f'v_cvt_pk_bf16_f32 v{8+n}, v{X+2*n}, v{X+2*n+1}')
    for i in range(4):
        a(f's_add_u32 s35, s34, {4096*i}')
        a(f'buffer_store_dwordx4 v[{8+4*i}:{11+4*i}], v5, s[{S_WS}:{S_WS+3}], s35 offen sc1')
    a(f's_add_u32 s35, s34, {4096*4}')
    a('s_mov_b32 s36, 0x00ff00ff')
    a('s_mov_b32 exec_lo, s36')
    a('s_mov_b32 exec_hi, s36')
    a(f'buffer_store_dwordx4 v[24:27], v5, s[{S_WS}:{S_WS+3}], s35 offen sc1')
    a('s_mov_b64 exec, -1')


def wreg(f):
    if f < 64:
        return f'a[{4*f}:{4*f+3}]'
    b = 224 + 4 * (f - 64)
    return f'v[{b}:{b+3}]'

def wreg_half(f, hf):
    if f < 64:
        return f'a[{4*f+2*hf}:{4*f+2*hf+1}]'
    b = 224 + 4 * (f - 64) + 2 * hf
    return f'v[{b}:{b+1}]'

def load_weights_128(a, srds, soffs, row_stride, frag_of, ntile, tile_col):
    raise NotImplementedError

def ws_prologue(a, mats, row_stride):
    a(f'v_lshrrev_b32 v2, 4, v{V_LANE}')
    a(f'v_and_b32 v3, 15, v{V_LANE}')
    a(f'v_lshlrev_b32 v4, 1, v2')
    a(f'v_xor_b32 v5, v3, v4')
    a(f'v_xor_b32 v6, 8, v5')
    a(f'v_mul_u32_u24 v2, {row_stride}, v2')
    a(f'v_lshl_add_u32 v5, v5, 4, v2')
    a(f'v_lshl_add_u32 v6, v6, 4, v2')
    a(f'v_lshrrev_b32 v7, 4, v{V_LANE}')
    a(f'v_bfe_u32 v8, v{V_LANE}, 2, 2')
    a(f'v_and_b32 v9, 3, v{V_LANE}')
    a(f'v_and_b32 v10, 1, v7')
    a(f'v_lshl_or_b32 v10, v10, 2, v8')
    a(f'v_lshlrev_b32 v10, 1, v10')
    a(f'v_lshrrev_b32 v11, 1, v9')
    a(f's_lshl_b32 s33, s{S_W}, 2')
    a(f'v_add_u32 v11, s33, v11')
    a(f'v_add_u32 v12, 2, v11')
    a(f'v_xor_b32 v11, v11, v10')
    a(f'v_xor_b32 v12, v12, v10')
    a(f'v_lshl_add_u32 v13, v7, 3, v8')
    a(f'v_lshlrev_b32 v13, 8, v13')
    a(f'v_and_b32 v9, 1, v9')
    a(f'v_lshl_add_u32 v13, v9, 3, v13')
    a(f'v_lshl_add_u32 v11, v11, 4, v13')
    a(f'v_lshl_add_u32 v12, v12, 4, v13')
    a(f'v_add_u32 v14, {73728}, v11')
    a(f'v_add_u32 v15, {73728}, v12')
    for n, r in enumerate((11, 12, 14, 15)):
        a(f'v_add_u32 v{18+n}, {65536}, v{r}')
    def dma(q):
        m, hf = q >> 1, q & 1
        sr, so = mats[m]
        buf = (q & 1) * 73728
        a(f's_mul_i32 s33, s{S_W}, {18*1024}')
        a(f's_add_u32 s33, s33, {buf}')
        a(f's_mul_i32 s34, s{S_W}, {18*4*row_stride}')
        a(f's_add_u32 s34, s34, s{so}')
        a(f's_add_u32 s34, s34, {hf*288*row_stride}')
        a(f's_bitcmp1_b32 s{S_W}, 0')
        a(f's_cselect_b64 vcc, -1, 0')
        a(f'v_cndmask_b32 v16, v5, v6, vcc')
        a(f'v_cndmask_b32 v17, v6, v5, vcc')
        for n in range(18):
            a('s_mov_b32 m0, s33')
            vr = 16 if ((n >> 1) & 1) == 0 else 17
            a(f'buffer_load_dwordx4 v{vr}, s[{sr}:{sr+3}], s34 offen lds', tok=f'wq{q}')
            if n < 17:
                a('s_add_u32 s33, s33, 1024')
                a(f's_add_u32 s34, s34, {4*row_stride}')
    def trread(q):
        m, hf = q >> 1, q & 1
        for kk in range(9):
            k = hf * 9 + kk
            for c in range(2):
                f = k * 4 + m * 2 + c
                ad = (11 + c) if (q & 1) == 0 else (14 + c)
                for h2 in range(2):
                    if kk == 8:
                        ad2 = {11: 18, 12: 19, 14: 20, 15: 21}[ad]
                        a(f'ds_read_b64_tr_b16 {wreg_half(f, h2)}, v{ad2} offset:{h2*1024}')
                    else:
                        a(f'ds_read_b64_tr_b16 {wreg_half(f, h2)}, v{ad} offset:{kk*8192 + h2*1024}')
    dma(0); dma(1)
    for q in range(4):
        a.need(f'wq{q}')
        a('s_barrier')
        trread(q)
        if q + 2 < 4:
            a('s_waitcnt lgkmcnt(0)')
            a('s_barrier')
            dma(q + 2)
    a('s_waitcnt lgkmcnt(0)')
    a('s_barrier')


def ws_gemm(a, kind):
    NIT = 32 if kind == 'kv' else 16
    if kind == 'kv':
        srd(a, S_A, 24, 576 * 8192)
        srd(a, S_B, 32, 576 * 8192)
        a('s_lshl_b32 s42, s40, 8')
        a('s_mov_b32 s43, s42')
        a('s_waitcnt lgkmcnt(0)')
        srd_fix(a, S_A); srd_fix(a, S_B)
        ws_prologue(a, [(S_A, 42), (S_B, 43)], 8192)
    else:
        srd(a, S_A, 64, 576 * 9216)
        a('s_lshl_b32 s42, s40, 9')
        a('s_add_u32 s43, s42, 256')
        a('s_waitcnt lgkmcnt(0)')
        srd_fix(a, S_A)
        ws_prologue(a, [(S_A, 42), (S_A, 43)], 9216)
    stamp(a, 2)
    gbar_wait(a)
    stamp(a, 3)
    V_L16, V_RD = 2, 3
    XR, ACC, EP = 96, 128, 80
    a(f'v_lshlrev_b32 v{V_L16}, 4, v{V_LANE}')
    S_IT, S_BUF, S_SEG = 44, 45, 46
    def seg_of(dst, it):
        if kind == 'kv':
            a(f's_lshl_b32 s{dst}, s{it}, 1')
            a(f's_add_u32 s{dst}, s{dst}, s41')
        else:
            a(f's_lshr_b32 s{dst}, s{it}, 3')
            a(f's_lshl_b32 s{dst}, s{dst}, 5')
            a(f's_and_b32 s47, s{it}, 7')
            a(f's_add_u32 s{dst}, s{dst}, s47')
            a(f's_lshl_b32 s47, s41, 3')
            a(f's_add_u32 s{dst}, s{dst}, s47')
    def xdma(it_sreg, buf_sreg):
        seg_of(48, it_sreg)
        a(f's_min_u32 s48, s48, 63')
        a(f's_mul_i32 s48, s48, 36864')
        a(f's_mul_i32 s49, s{S_W}, 9216')
        a(f's_add_u32 s48, s48, s49')
        a(f's_add_u32 s48, s48, {XN}')
        a(f's_add_u32 s49, s49, s{buf_sreg}')
        for grp, cnt in ((0, 4), (1, 4), (2, 1)):
            a('s_mov_b32 m0, s49')
            for n in range(cnt):
                a(f'buffer_load_dwordx4 v{V_L16}, s[{S_WS}:{S_WS+3}], s48 offen offset:{1024*n} lds')
            if grp < 2:
                a('s_add_u32 s49, s49, 4096')
                a('s_add_u32 s48, s48, 4096')
    a(f's_mov_b32 s{S_IT}, 0'); a(f's_mov_b32 s{S_BUF}, 0')
    xdma(S_IT, S_BUF)
    a(f's_mov_b32 s{S_IT}, 1'); a(f's_mov_b32 s{S_BUF}, 36864')
    xdma(S_IT, S_BUF)
    a(f's_mov_b32 s{S_IT}, 0'); a(f's_mov_b32 s{S_BUF}, 0')
    a('s_waitcnt vmcnt(9)')
    L = a.uid('L_ws')
    a.label(L)
    a('s_waitcnt vmcnt(13)')
    a('s_barrier')
    sk = a.uid('L_wsf')
    a(f's_cmp_lg_u32 s{S_W}, 0'); a(f's_cbranch_scc1 {sk}')
    a(f's_cmp_lt_u32 s{S_IT}, 2'); a(f's_cbranch_scc1 {sk}')
    ws_flag(a, kind, f's_sub_u32 s47, s{S_IT}, 1')
    a.label(sk)
    a(f's_add_u32 s50, s{S_IT}, 2')
    a(f's_add_u32 s51, s{S_BUF}, {2*36864}')
    a(f's_cmp_ge_u32 s51, {3*36864}')
    a(f's_cselect_b32 s47, {3*36864}, 0')
    a(f's_sub_u32 s51, s51, s47')
    xdma(50, 51)
    a(f'v_add_u32 v{V_RD}, s{S_BUF}, v{V_L16}')
    reads = []
    for k in range(18):
        for tau in range(2):
            slot = (2 * k + tau) % 8
            reads.append(f'ds_read_b128 v[{XR+4*slot}:{XR+4*slot+3}], v{V_RD} offset:{tau*18432 + k*1024}')
    for r in reads[:6]:
        a(r)
    ri = 6
    for k in range(18):
        for m in range(2):
            for c in range(2):
                for tau in range(2):
                    slot = (2 * k + tau) % 8
                    x = f'v[{XR+4*slot}:{XR+4*slot+3}]'
                    w = wreg(k * 4 + m * 2 + c)
                    t = ACC + 4 * (m * 4 + c * 2 + tau)
                    acc = f'v[{t}:{t+3}]'
                    cin = '0' if k == 0 else acc
                    if m == 1 and kind == 'kv':
                        a(f'v_mfma_f32_16x16x32_bf16 {acc}, {x}, {w}, {cin}')
                    else:
                        a(f'v_mfma_f32_16x16x32_bf16 {acc}, {w}, {x}, {cin}')
            if m == 0 and ri < len(reads):
                a(reads[ri]); a(reads[ri + 1]); ri += 2
    seg_of(S_SEG, S_IT)
    def T(m, c, tau): return ACC + 4 * (m * 4 + c * 2 + tau)
    outs = []
    for m in range(2):
        for z in range(2):
            d = EP + 4 * (m * 2 + z)
            if m == 1 and kind == 'kv':
                srcs = (T(1, z, 0), T(1, z, 1))
            else:
                srcs = (T(m, 0, z), T(m, 1, z))
            if kind == 'f1':
                for sr in srcs:
                    for r in range(4):
                        a(f'v_max_f32 v{sr+r}, 0, v{sr+r}')
            a(f'v_cvt_pk_bf16_f32 v{d}, v{srcs[0]}, v{srcs[0]+1}')
            a(f'v_cvt_pk_bf16_f32 v{d+1}, v{srcs[0]+2}, v{srcs[0]+3}')
            a(f'v_cvt_pk_bf16_f32 v{d+2}, v{srcs[1]}, v{srcs[1]+1}')
            a(f'v_cvt_pk_bf16_f32 v{d+3}, v{srcs[1]+2}, v{srcs[1]+3}')
            outs.append((m, z, d))
    if kind == 'kv':
        a(f's_lshl_b32 s47, s{S_SEG}, 5'); a('s_add_u32 s47, s47, s40')
        a(f's_lshl_b32 s47, s47, 2'); a(f's_add_u32 s47, s47, s{S_W}')
        a('s_lshl_b32 s47, s47, 11')
        a(f's_add_u32 s48, s47, {KF}'); a(f's_add_u32 s49, s47, {VF}')
        for m, z, d in outs:
            a(f'buffer_store_dwordx4 v[{d}:{d+3}], v{V_L16}, s[{S_WS}:{S_WS+3}], s{48+m} offen offset:{1024*z} sc1')
    else:
        a(f's_mul_i32 s47, s{S_SEG}, {2*144}')
        a(f's_lshl_b32 s48, s40, 3'); a('s_add_u32 s47, s47, s48'); a(f's_add_u32 s47, s47, s{S_W}')
        a('s_lshl_b32 s47, s47, 10'); a(f's_add_u32 s47, s47, {HH}')
        for m, z, d in outs:
            a(f's_add_u32 s48, s47, {(z*144 + 4*m)*1024}')
            a(f'buffer_store_dwordx4 v[{d}:{d+3}], v{V_L16}, s[{S_WS}:{S_WS+3}], s48 offen sc1')
    a(f's_add_u32 s{S_BUF}, s{S_BUF}, 36864')
    a(f's_cmp_ge_u32 s{S_BUF}, {3*36864}')
    a(f's_cselect_b32 s{S_BUF}, 0, s{S_BUF}')
    a(f's_add_u32 s{S_IT}, s{S_IT}, 1')
    a(f's_cmp_lt_u32 s{S_IT}, {NIT}')
    a(f's_cbranch_scc1 {L}')
    a('s_waitcnt vmcnt(0)')
    a('s_barrier')
    sk = a.uid('L_wsf')
    a(f's_cmp_lg_u32 s{S_W}, 0'); a(f's_cbranch_scc1 {sk}')
    ws_flag(a, kind, f's_mov_b32 s47, {NIT}')
    a.label(sk)
    stamp(a, 4)

def ws_flag(a, kind, valtext):
    a(valtext)
    a('s_lshl_b32 s48, s41, 7')
    a('s_lshl_b32 s49, s40, 2')
    a('s_add_u32 s48, s48, s49')
    a(f's_add_u32 s48, s48, {F_KV if kind == "kv" else F_H}')
    a('v_mov_b32 v4, s47')
    a('v_mov_b32 v5, 0')
    a('s_mov_b64 exec, 1')
    a(f'buffer_store_dword v4, v5, s[{S_WS}:{S_WS+3}], s48 offen sc1')
    a('s_mov_b64 exec, -1')


def ffn2_role(a):
    done = a.uid('L_f2x')
    a('s_cmp_ge_u32 s52, 64'); a(f's_cbranch_scc1 {done}')
    srd(a, S_A, 72, 4608 * 1152)
    a('s_and_b32 s53, s52, 3')
    a('s_bfe_u32 s54, s52, 0x10002')
    a('s_lshr_b32 s55, s52, 3')
    V_L16, V_TR = 2, 3
    VD = 4
    HR, WR = 16, 80
    a(f'v_lshlrev_b32 v{V_L16}, 4, v{V_LANE}')
    for n in range(9):
        a(f's_mul_i32 s33, s{S_W}, {9*64}')
        a(f's_add_u32 s33, s33, {64*n}')
        a(f'v_add_u32 v13, s33, v{V_LANE}')
        a(f'v_mul_u32_u24 v14, 3641, v13')
        a(f'v_lshrrev_b32 v14, 16, v14')
        a(f'v_mul_u32_u24 v15, 18, v14')
        a(f'v_sub_u32 v15, v13, v15')
        a(f'v_mul_u32_u24 v14, 1152, v14')
        a(f'v_lshl_add_u32 v{VD+n}, v15, 4, v14')
    a(f'v_lshrrev_b32 v13, 4, v{V_LANE}')
    a(f'v_bfe_u32 v14, v{V_LANE}, 2, 2')
    a(f'v_lshl_add_u32 v13, v13, 2, v14')
    a(f'v_mul_u32_u24 v13, 288, v13')
    a(f'v_and_b32 v14, 3, v{V_LANE}')
    a(f'v_lshl_add_u32 v13, v14, 3, v13')
    a('s_waitcnt lgkmcnt(0)')
    srd_fix(a, S_A)
    S_SRC, S_LB, S_IT = 56, 57, 58
    a(f's_mul_i32 s{S_SRC}, s54, {2304*1152}')
    a(f's_mul_i32 s33, s53, 288')
    a(f's_add_u32 s{S_SRC}, s{S_SRC}, s33')
    def dma(lbuf_sreg):
        a(f's_mul_i32 s33, s{S_W}, 9216')
        a(f's_add_u32 s33, s33, s{lbuf_sreg}')
        for n in range(9):
            a('s_mov_b32 m0, s33')
            a(f'buffer_load_dwordx4 v{VD+n}, s[{S_A}:{S_A+3}], s{S_SRC} offen lds')
            if n < 8:
                a('s_add_u32 s33, s33, 1024')
        a(f's_add_u32 s{S_SRC}, s{S_SRC}, {128*1152}')
    a('s_mov_b32 s59, 0'); dma(59)
    a('s_mov_b32 s59, 36864'); dma(59)
    sk = a.uid('L_f2w')
    a(f's_cmp_lg_u32 s{S_W}, 0'); a(f's_cbranch_scc1 {sk}')
    a('s_and_b32 s33, s55, 3'); a('s_lshl_b32 s33, s33, 7')
    a('s_mul_i32 s34, s54, 36'); a('s_add_u32 s33, s33, s34'); a(f's_add_u32 s33, s33, {F_H}')
    a('s_lshr_b32 s34, s55, 2'); a('s_add_u32 s34, s34, 1'); a('s_lshl_b32 s34, s34, 3')
    a(f'v_lshlrev_b32 v15, 2, v{V_LANE}')
    a('s_mov_b64 exec, 0x1ff')
    poll(a, f'buffer_load_dword v14, v15, s[{S_WS}:{S_WS+3}], s33 offen sc1', 'v_cmp_le_u32 vcc, s34, v14')
    a('s_mov_b64 exec, -1')
    a.label(sk)
    a('s_barrier')
    SH = 60
    a('s_lshl_b32 s33, s55, 4'); a(f's_lshl_b32 s34, s{S_W}, 2'); a('s_add_u32 s33, s33, s34')
    a('s_mul_i32 s33, s33, 144'); a('s_mul_i32 s34, s54, 72'); a('s_add_u32 s33, s33, s34')
    a('s_lshl_b32 s33, s33, 10'); a(f's_add_u32 s{SH}, s33, {HH}')
    for i in range(1, 4):
        a(f's_add_u32 s{SH+i}, s{SH}, {i*144*1024}')
    def hload(kk):
        for i in range(4):
            d = HR + 16 * (kk % 4) + 4 * i
            a(f'buffer_load_dwordx4 v[{d}:{d+3}], v{V_L16}, s[{S_WS}:{S_WS+3}], s{SH+i} offen offset:{(kk%4)*1024} sc1')
    for kk in range(4):
        hload(kk)
    for i in range(4):
        a(f's_add_u32 s{SH+i}, s{SH+i}, 4096')
    for n in range(144):
        a(f'v_accvgpr_write_b32 a{n}, 0')
    a(f's_mov_b32 s{S_IT}, 0'); a(f's_mov_b32 s{S_LB}, 0')
    a('s_waitcnt vmcnt(25)')
    L = a.uid('L_f2')
    a.label(L)
    a('s_waitcnt vmcnt(41)')
    a('s_barrier')
    a(f's_add_u32 s59, s{S_LB}, {2*36864}')
    a(f's_cmp_ge_u32 s59, {4*36864}')
    a(f's_cselect_b32 s33, {4*36864}, 0')
    a(f's_sub_u32 s59, s59, s33')
    dma(59)
    a(f'v_add_u32 v{V_TR}, s{S_LB}, v13')
    def wread(q):
        kk, ct = divmod(q, 9)
        d = WR + 4 * (q % 4)
        return [f'ds_read_b64_tr_b16 v[{d}:{d+1}], v{V_TR} offset:{kk*32*288 + ct*32}',
                f'ds_read_b64_tr_b16 v[{d+2}:{d+3}], v{V_TR} offset:{kk*32*288 + 16*288 + ct*32}']
    for q in range(3):
        for t in wread(q): a(t)
    for q in range(36):
        kk, ct = divmod(q, 9)
        w = WR + 4 * (q % 4)
        for i in range(4):
            h = HR + 16 * kk + 4 * i
            t = 4 * (ct * 4 + i)
            a(f'v_mfma_f32_16x16x32_bf16 a[{t}:{t+3}], v[{w}:{w+3}], v[{h}:{h+3}], a[{t}:{t+3}]')
            if i == 0 and q + 3 < 36:
                for tx in wread(q + 3): a(tx)
        if ct == 8:
            hload(kk)
    for i in range(4):
        a(f's_add_u32 s{SH+i}, s{SH+i}, 4096')
    a(f's_add_u32 s{S_LB}, s{S_LB}, 36864')
    a(f's_cmp_ge_u32 s{S_LB}, {4*36864}')
    a(f's_cselect_b32 s{S_LB}, 0, s{S_LB}')
    a(f's_add_u32 s{S_IT}, s{S_IT}, 1')
    a(f's_cmp_lt_u32 s{S_IT}, 18')
    a(f's_cbranch_scc1 {L}')
    a(f'v_and_b32 v14, 15, v{V_LANE}')
    a(f'v_mul_u32_u24 v14, 2304, v14')
    a(f'v_lshrrev_b32 v15, 4, v{V_LANE}')
    a(f'v_lshl_add_u32 v14, v15, 4, v14')
    a(f's_mul_i32 s33, s54, {2048*2304}')
    a('s_lshl_b32 s34, s55, 8'); a(f's_lshl_b32 s59, s{S_W}, 6'); a('s_add_u32 s34, s34, s59')
    a('s_mul_i32 s34, s34, 2304'); a('s_add_u32 s33, s33, s34')
    a('s_mul_i32 s34, s53, 576'); a('s_add_u32 s33, s33, s34'); a(f's_add_u32 s33, s33, {FF}')
    for i in range(4):
        for ct in range(9):
            t = 4 * (ct * 4 + i)
            a(f'buffer_store_dwordx4 a[{t}:{t+3}], v14, s[{S_WS}:{S_WS+3}], s33 offen offset:{ct*64} sc1')
        a(f's_add_u32 s33, s33, {16*2304}')
    a('s_waitcnt vmcnt(0)')
    a('s_barrier')
    sk = a.uid('L_f2f')
    a(f's_cmp_lg_u32 s{S_W}, 0'); a(f's_cbranch_scc1 {sk}')
    a('s_lshl_b32 s33, s52, 2'); a(f's_add_u32 s33, s33, {F_F}')
    a('v_mov_b32 v14, 1'); a('v_mov_b32 v15, 0')
    a('s_mov_b64 exec, 1')
    a(f'buffer_store_dword v14, v15, s[{S_WS}:{S_WS+3}], s33 offen sc1')
    a('s_mov_b64 exec, -1')
    a.label(sk)
    stamp(a, 5)
    a.label(done)
```

```python
from gen_base import *
import struct
def f2u(x): return struct.unpack('<I', struct.pack('<f', x))[0]

EXB = 147456
X_MEM, X_TOK, X_SM, X_O = 0, 9216, 13312, 14336
V_EX, V_RES, V_EXW, V_C1, V_C1S, V_IDX, V_SEL = 0, 1, 2, 3, 4, 5, 6
AR, LR = 8, 24
QA, QB, KA, KB, VA, VB = 40, 44, 48, 52, 56, 60
KX, VX = 64, 72
PROF = 0x20000
PROF_STEP = None

RESIDENT = [('Q', 0), ('K', 3), ('Q', 6), ('V', 1), ('V', 6), ('O', 2, 0), ('O', 2, 1), ('O', 3, 0), ('O', 3, 1)]
REGIMG = [(m, c) for c in range(9) for m in 'QKV' if (m, c) not in RESIDENT] + \
         [('O', 0, 0), ('O', 0, 1), ('O', 1, 0), ('O', 1, 1), ('S',)]
assert len(REGIMG) == 27
def opbase(k):
    return ('a', 8 * k) if k < 32 else ('v', 80 + 8 * (k - 32))
def opreg(img, tau):
    k = 2 * REGIMG.index(img) + tau
    f, b = opbase(k)
    return f'{f}[{b}:{b+7}]'

S_H, S_S = 40, 41
S_O0, S_O1, S_O2 = 42, 43, 44
S_MR = 45
S_MB = 46
S_CP = 47
S_CS = 48
S_CR = 49
S_K0, S_K1 = 50, 51
S_HB, S_B = 52, 53
S_C = 54
S_NM = 56
S_SEGO = 58
S_SMW = 59
S_OW = 60
S_CSS = 61
T0, T1, T2, T3 = 33, 34, 35, 36
PS = 62

def prof(a, k):
    if PROF_STEP is None: return
    sk = a.uid('L_pf')
    a(f's_cmp_lg_u32 s{S_S}, {PROF_STEP + (1 if k >= 12 else 0)}'); a(f's_cbranch_scc1 {sk}')
    a.rawins(f's_memtime s[{PS+2*k}:{PS+2*k+1}]')
    a.label(sk)

def smf(d, av, b):
    return f'v_smfmac_f32_16x16x64_bf16 v[{d}:{d+3}], v[{av}:{av+3}], {b}, v{V_IDX}'

def lread(slot, dst, tau=None, half=None):
    return [f'ds_read_b128 v[{dst+4*q}:{dst+4*q+3}], v{V_RES} offset:{slot*4096 + q*1024}' for q in range(4)]

def setup(a):
    W = S_W
    a(f's_mov_b32 s{S_H}, s{S_T}')
    srd(a, S_A, 16, 576 * 8192); srd(a, S_B_, 24, 576 * 8192); srd(a, S_C_, 32, 576 * 8192); srd(a, S_D, 40, 32 * 147456)
    a(f'v_mov_b32 v79, v{V_LANE}')
    L = 79
    a(f'v_lshlrev_b32 v8, 4, v{L}')
    a(f'v_add_u32 v{V_EX}, {EXB}, v8')
    a(f's_mul_i32 s{T0}, s{W}, 36864'); a(f'v_add_u32 v{V_RES}, s{T0}, v8')
    a(f's_lshl_b32 s{T0}, s{W}, 10'); a(f'v_add_u32 v{V_EXW}, s{T0}, v{V_EX}')
    a(f'v_bfe_u32 v9, v{L}, 3, 1'); a('v_lshlrev_b32 v9, 12, v9')
    a(f'v_and_b32 v10, 7, v{L}'); a('v_lshl_add_u32 v9, v10, 4, v9')
    a(f'v_bfe_u32 v10, v{L}, 4, 1'); a('v_lshl_add_u32 v9, v10, 3, v9')
    a(f'v_lshrrev_b32 v10, 5, v{L}')
    a(f'v_lshl_add_u32 v{V_C1}, v10, 13, v9'); a(f'v_lshl_add_u32 v{V_C1S}, v10, 2, v9')
    a(f'v_bfe_u32 v10, v{L}, 3, 1'); a('v_mul_u32_u24 v10, 0xaaaa, v10'); a(f'v_add_u32 v{V_IDX}, 0x4444, v10')
    a(f'v_and_b32 v9, 7, v{L}'); a(f'v_bfe_u32 v10, v{L}, 4, 1'); a('v_lshlrev_b32 v10, 2, v10')
    a('v_sub_u32 v9, v9, v10')
    for r in range(2):
        a(f'v_mov_b32 v11, 0'); a('v_mov_b32 v12, 0x3f80'); a(f'v_cmp_eq_u32 vcc, {2*r}, v9'); a('v_cndmask_b32 v11, v11, v12, vcc')
        a('v_mov_b32 v12, 0x3f800000'); a(f'v_cmp_eq_u32 vcc, {2*r+1}, v9'); a(f'v_cndmask_b32 v{V_SEL+r}, v11, v12, vcc')
    a(f's_mov_b32 s{S_C}, {f2u(128 ** -0.5 * 1.4426950408889634):#x}'); a(f's_mov_b32 s{S_C+1}, s{S_C}')
    a(f's_mov_b32 s{S_NM}, 0x00ff00ff'); a(f's_mov_b32 s{S_NM+1}, 0x00ff00ff')
    a(f's_lshl_b32 s{T0}, s{W}, 10'); a(f's_add_u32 s{S_MR}, s{T0}, {M2 - EXB}')
    a(f's_lshl_b32 s{S_B}, s{W}, 5'); a(f's_add_u32 s{S_B}, s{S_B}, s{S_H}')
    a(f's_cmp_lt_u32 s{S_B}, 72'); a(f's_cselect_b32 s{S_HB}, 1, 0')
    a(f's_cmp_eq_u32 s{W}, 3'); a(f's_cselect_b32 s{S_HB}, 0, s{S_HB}')
    a(f's_min_u32 s{S_B}, s{S_B}, 71')
    a(f's_lshl_b32 s{T0}, s{S_B}, 7'); a(f's_add_u32 s{S_MB}, s{T0}, {M2}')
    a(f's_lshl_b32 s{T0}, s{S_B}, 12'); a(f's_add_u32 s{S_CR}, s{T0}, {C1 - EXB}')
    a(f's_lshl_b32 s{T0}, s{W}, 14'); a(f's_lshl_b32 s{T1}, s{S_H}, 7'); a(f's_add_u32 s{T0}, s{T0}, s{T1}')
    a(f's_add_u32 s{S_CS}, s{T0}, {C1}')
    a(f's_lshl_b32 s{T0}, s{W}, 13'); a(f's_add_u32 s{T0}, s{T0}, s{T1}'); a(f's_add_u32 s{S_CSS}, s{T0}, {C1 + 64*4096}')
    a(f's_lshr_b32 s{T0}, s{W}, 1'); a(f's_and_b32 s{T1}, s{W}, 1')
    a(f's_lshl_b32 s{S_SMW}, s{T0}, 9'); a(f's_lshl_b32 s{T2}, s{T1}, 7'); a(f's_add_u32 s{S_SMW}, s{S_SMW}, s{T2}')
    a(f's_lshl_b32 s{S_OW}, s{T0}, 10'); a(f's_add_u32 s{S_OW}, s{S_OW}, s{T2}')
    a(f's_mov_b32 s{S_K0}, 0'); a(f's_mov_b32 s{S_K1}, 0')
    a('s_waitcnt lgkmcnt(0)')
    for s_ in (S_A, S_B_, S_C_, S_D): srd_fix(a, s_)
    sk = a.uid('L_np')
    a(f's_cmp_eq_u32 s{S_HB}, 0'); a(f's_cbranch_scc1 {sk}')
    for r in range(4): a(f'v_mov_b32 v{8+r}, -1')
    for par in range(2):
        a(f's_add_u32 s{T0}, s{S_CR}, {par*294912}')
        for i in range(4):
            a(f'buffer_store_dwordx4 v[8:11], v{V_EX}, s[{S_WS}:{S_WS+3}], s{T0} offen offset:{i*1024} sc1')
    a(f'v_and_b32 v12, 0xfff, v{V_C1S}'); a(f's_add_u32 s{T0}, s{S_MB}, 9216')
    a(f'buffer_store_dword v8, v12, s[{S_WS}:{S_WS+3}], s{T0} offen sc1')
    a.label(sk)
    u0, p0, tau, p2, p3, p1 = 8, 9, 10, 11, 12, 13
    a(f'v_and_b32 v{u0}, 1, v{L}'); a(f'v_bfe_u32 v{p0}, v{L}, 4, 1'); a(f'v_bfe_u32 v{tau}, v{L}, 1, 1'); a(f'v_xor_b32 v{tau}, v{tau}, v{p0}')
    a(f'v_bfe_u32 v{p2}, v{L}, 2, 1'); a(f'v_bfe_u32 v{p3}, v{L}, 3, 1'); a(f'v_bfe_u32 v{p1}, v{L}, 5, 1')
    VQ, VO, VS_, VT0, VT1 = 20, 21, 22, 23, 24
    a(f'v_lshlrev_b32 v14, 5, v{tau}'); a(f'v_lshl_add_u32 v14, v{u0}, 4, v14'); a(f's_lshl_b32 s{T0}, s{W}, 6'); a(f'v_add_u32 v14, s{T0}, v14')
    a(f'v_lshl_add_u32 v15, v{p1}, 1, v{p0}')
    a(f'v_lshl_add_u32 v16, v{p2}, 2, v15'); a(f'v_lshl_add_u32 v16, v{p3}, 3, v16')
    a(f'v_lshl_add_u32 v{VQ}, v16, 13, v14')
    a(f'v_lshl_add_u32 v16, v{p2}, 4, v15'); a(f'v_lshl_add_u32 v16, v{p3}, 5, v16')
    a(f'v_mul_u32_u24 v17, 1152, v16'); a(f'v_add_u32 v{VO}, v17, v14')
    a(f'v_lshl_add_u32 v16, v{tau}, 6, v16'); a('v_mul_u32_u24 v17, 1152, v16')
    a(f'v_lshlrev_b32 v18, 4, v{u0}'); a(f's_lshl_b32 s{T0}, s{W}, 5'); a(f's_add_u32 s{T0}, s{T0}, 1024')
    a(f'v_add_u32 v18, s{T0}, v18'); a(f'v_add_u32 v{VS_}, v17, v18')
    a(f'v_bfe_u32 v{u0}, v{L}, 1, 1'); a(f'v_bfe_u32 v{p0}, v{L}, 2, 1'); a(f'v_bfe_u32 v{p3}, v{L}, 3, 1')
    a(f'v_bfe_u32 v{p2}, v{L}, 4, 1'); a(f'v_bfe_u32 v14, v{L}, 5, 1')
    a(f'v_lshl_add_u32 v15, v{p2}, 2, v{u0}'); a(f'v_lshl_add_u32 v15, v{p3}, 3, v15'); a(f'v_lshl_add_u32 v15, v{p0}, 4, v15')
    a('v_lshl_add_u32 v15, v14, 6, v15')
    a(f'v_lshl_add_u32 v16, v{p0}, 1, v15')
    a(f'v_xor_b32 v17, 2, v16')
    a(f'v_and_b32 v18, 1, v{L}'); a('v_lshlrev_b32 v18, 3, v18'); a(f's_mul_i32 s{T0}, s{W}, 36864'); a(f'v_add_u32 v18, s{T0}, v18')
    a(f'v_lshl_add_u32 v{VT0}, v16, 4, v18'); a(f'v_lshl_add_u32 v{VT1}, v17, 4, v18')
    a(f's_lshl_b32 s{T2}, s{S_H}, 8')
    a(f's_mul_i32 s{T3}, s{S_H}, 147456')
    a(f's_mul_i32 s37, s{W}, 36864')
    imgs = REGIMG + RESIDENT
    def dma(i):
        img = imgs[i]; slot = i % 9
        if img[0] in 'QKV':
            sr = {'Q': S_A, 'K': S_B_, 'V': S_C_}[img[0]]; vo = VQ; base = T2; c0 = img[1] * 64 * 8192; st = 16 * 8192
        elif img[0] == 'O':
            sr = S_D; vo = VO; base = T3; c0 = img[2] * 64 * 1152 + img[1] * 256; st = 4 * 1152
        else:
            sr = S_D; vo = VS_; base = T3; c0 = 0; st = 4 * 1152
        for n in range(4):
            a(f's_add_u32 m0, s37, {slot*4096 + n*1024}')
            a(f's_add_u32 s38, s{base}, {c0 + n*st}')
            a(f'buffer_load_dwordx4 v{vo}, s[{sr}:{sr+3}], s38 offen lds', tok=f'cw{i}')
    def trread(i):
        slot = i % 9
        for t in range(2):
            if i < 27:
                f, b = opbase(2 * i + t)
            else:
                f, b = 'v', 32 + 8 * t
            for hb in range(2):
                for rd in range(2):
                    r = b + 4 * hb + 2 * rd
                    a(f'ds_read_b64_tr_b16 {f}[{r}:{r+1}], v{VT0+t} offset:{slot*4096 + hb*2048 + rd*512}')
    for i in range(9): dma(i)
    for i in range(36):
        a.need(f'cw{i}')
        trread(i)
        a('s_waitcnt lgkmcnt(0)')
        if i + 9 < 36:
            dma(i + 9)
        if i >= 27:
            slot = i % 9
            for q in range(4):
                a(f'ds_write_b128 v{V_RES}, v[{32+4*q}:{32+4*q+3}] offset:{slot*4096 + q*1024}')
    a('s_waitcnt lgkmcnt(0)')

S_B_, S_C_ = 20, 24

def team_barrier(a):
    a('s_waitcnt vmcnt(0)')
    a('s_barrier')
    sk = a.uid('L_tb')
    a(f's_cmp_lg_u32 s{S_W}, 0'); a(f's_cbranch_scc1 {sk}')
    a(f's_lshl_b32 s{T0}, s{S_FOREIGN}, 16'); a(f's_add_u32 s{T0}, s{T0}, 1')
    a(f'v_mov_b32 v8, s{T0}'); a('v_mov_b32 v9, 0')
    a('s_mov_b64 exec, 1')
    a(f'buffer_atomic_add v8, v9, s[{S_DBG}:{S_DBG+3}], 0 offen offset:{D_CHB} sc1')
    a('s_mov_b64 exec, -1')
    a.label(sk)
    a('v_mov_b32 v9, 0'); a('v_mov_b32 v11, 32')
    poll(a, f'buffer_load_dword v8, v9, s[{S_DBG}:{S_DBG+3}], 0 offen offset:{D_CHB} sc1',
         'v_and_b32 v10, 0xffff, v8\nv_cmp_le_u32 vcc, v11, v10')
    a('v_lshrrev_b32 v8, 16, v8')
    a(f'v_readfirstlane_b32 s{S_FOREIGN}, v8')

def loop(a, sc, tag):
    WS = f's[{S_WS}:{S_WS+3}]'
    LS = f'L_cs{tag}'
    a.label(LS)
    prof(a, 12)
    prof(a, 0)
    for r in range(QA, QA + 24): a(f'v_mov_b32 v{r}, 0')
    for t in lread(0, LR): a(t)
    a(f's_lshl_b32 s{S_SEGO}, s{S_S}, 5'); a(f's_add_u32 s{S_SEGO}, s{S_SEGO}, s{S_H}'); a(f's_lshl_b32 s{S_SEGO}, s{S_SEGO}, 13')
    a(f's_lshl_b32 s{T0}, s{S_W}, 11'); a(f's_add_u32 s{S_SEGO}, s{S_SEGO}, s{T0}'); a(f's_sub_u32 s{S_SEGO}, s{S_SEGO}, {EXB}')
    IO, M0L, JOIN = f'L_io{tag}', f'L_m0{tag}', f'L_j{tag}'
    a(f's_cmp_eq_u32 s{S_W}, 3'); a(f's_cbranch_scc1 {IO}')
    a(f's_cmp_eq_u32 s{S_S}, 0'); a(f's_cbranch_scc1 {M0L}')
    a(f's_add_u32 s{T0}, s{S_MR}, s{S_O0}'); a(f's_add_u32 s{T1}, s{T0}, 4096')
    PL, PD = f'L_pm{tag}', f'L_pmd{tag}'
    a.label(PL)
    a(f'buffer_load_dwordx4 v[8:11], v{V_EX}, {WS}, s{T0} offen sc1')
    a(f'buffer_load_dwordx4 v[12:15], v{V_EX}, {WS}, s{T0} offen offset:3072 sc1')
    a(f'buffer_load_dwordx4 v[16:19], v{V_EX}, {WS}, s{T1} offen offset:2048 sc1')
    a(f'v_max3_u32 v20, v8, v9, v10')
    a(f'ds_write_b128 v{V_EXW}, v[8:11] offset:{X_MEM}')
    a(f'v_max3_u32 v20, v20, v11, v12'); a(f'v_max3_u32 v21, v13, v14, v15')
    a(f'ds_write_b128 v{V_EXW}, v[12:15] offset:{X_MEM + 3072}')
    a(f'v_max3_u32 v20, v20, v16, v17'); a(f'v_max3_u32 v21, v21, v18, v19')
    a(f'ds_write_b128 v{V_EXW}, v[16:19] offset:{X_MEM + 6144}')
    a('v_max_u32 v20, v20, v21')
    a('v_cmp_eq_u32 vcc, -1, v20')
    a('s_cmp_eq_u64 vcc, 0'); a(f's_cbranch_scc1 {PD}')
    a(f's_cmp_eq_u32 s{S_BUD}, 0'); a(f's_cbranch_scc1 {PD}')
    a(f's_sub_u32 s{S_BUD}, s{S_BUD}, 1'); a(f's_branch {PL}')
    a.label(PD)
    a(f's_branch {JOIN}')
    a.label(M0L)
    srd(a, S_A, 8, 9216)
    a(f'v_sub_u32 v20, v{V_EX}, v{V_EX}')
    a(f'v_subrev_u32 v21, {EXB}, v{V_EX}'); a('v_lshrrev_b32 v21, 4, v21')
    a('v_and_b32 v22, 7, v21'); a('v_mul_u32_u24 v22, 1152, v22')
    a('v_lshrrev_b32 v23, 3, v21'); a('v_lshl_add_u32 v22, v23, 4, v22')
    a(f's_lshl_b32 s{T0}, s{S_W}, 7')
    a('s_waitcnt lgkmcnt(0)')
    srd_fix(a, S_A)
    for k in range(3):
        a(f'buffer_load_dwordx4 v[{8+4*k}:{11+4*k}], v22, s[{S_A}:{S_A+3}], s{T0} offen offset:{k*384}')
    for k in range(3):
        a(f'ds_write_b128 v{V_EXW}, v[{8+4*k}:{11+4*k}] offset:{X_MEM + 3072*k}')
    a(f's_branch {JOIN}')
    a.label(IO)
    a('s_waitcnt vmcnt(0)')
    a(f'v_subrev_u32 v9, {EXB}, v{V_EX}'); a('v_lshlrev_b32 v9, 3, v9')
    a(f's_lshr_b32 s{T1}, s{S_S}, 1'); a(f's_add_u32 s{T1}, s{T1}, 1')
    a(f's_add_u32 s{T2}, s{T1}, 1'); a(f's_min_u32 s{T2}, s{T2}, 32')
    a(f's_bitcmp1_b32 s{S_S}, 0'); a(f's_cselect_b32 s{T0}, s{S_K1}, s{S_K0}')
    WARM, FL = f'L_wm{tag}', f'L_fl{tag}'
    a(f's_cmp_ge_u32 s{T0}, s{T2}'); a(f's_cbranch_scc1 {WARM}')
    a(f's_lshl_b32 s{T3}, s{S_H}, 2'); a(f's_add_u32 s{T3}, s{T3}, {F_KV}')
    a.label(FL)
    a('s_mov_b64 exec, 3')
    a(f'buffer_load_dword v8, v9, {WS}, s{T3} offen sc1')
    a('s_mov_b64 exec, -1')
    a(f'v_readlane_b32 s{S_K0}, v8, 0'); a(f'v_readlane_b32 s{S_K1}, v8, 1')
    a(f's_bitcmp1_b32 s{S_S}, 0'); a(f's_cselect_b32 s{T0}, s{S_K1}, s{S_K0}')
    a(f's_cmp_ge_u32 s{T0}, s{T1}'); a(f's_cbranch_scc1 {WARM}')
    a(f's_cmp_eq_u32 s{S_BUD}, 0'); a(f's_cbranch_scc1 {WARM}')
    a(f's_sub_u32 s{S_BUD}, s{S_BUD}, 1'); a(f's_branch {FL}')
    a.label(WARM)
    a(f's_add_u32 s{T1}, s{T1}, 1'); a(f's_cmp_ge_u32 s{T0}, s{T1}'); a(f's_cbranch_scc0 {JOIN}')
    a(f's_add_u32 s{T0}, s{S_S}, 2'); a(f's_lshl_b32 s{T0}, s{T0}, 5'); a(f's_add_u32 s{T0}, s{T0}, s{S_H}'); a(f's_lshl_b32 s{T0}, s{T0}, 13')
    a(f's_add_u32 s{T1}, s{T0}, {KF}'); a(f's_add_u32 s{T2}, s{T0}, {VF}')
    a(f'buffer_load_dword v64, v9, {WS}, s{T1} offen')
    a(f'buffer_load_dword v65, v9, {WS}, s{T2} offen')
    a.label(JOIN)
    prof(a, 1)
    a('s_waitcnt lgkmcnt(0)')
    a('s_barrier')
    prof(a, 2)
    def aread(c, slot): return f'ds_read_b128 v[{AR+4*slot}:{AR+4*slot+3}], v{V_EX} offset:{X_MEM + c*1024}'
    for c in range(4): a(aread(c, c))
    a(f's_add_u32 s{T0}, s{S_SEGO}, {KF}'); a(f's_add_u32 s{T1}, s{S_SEGO}, {VF}')
    for k in range(2):
        a(f'buffer_load_dwordx4 v[{KX+4*k}:{KX+4*k+3}], v{V_EX}, {WS}, s{T0} offen offset:{k*1024}')
    for k in range(2):
        a(f'buffer_load_dwordx4 v[{VX+4*k}:{VX+4*k+3}], v{V_EX}, {WS}, s{T1} offen offset:{k*1024}')
    sk = a.uid('L_x'); sk2 = a.uid('L_x')
    a(f's_cmp_eq_u32 s{S_W}, 3'); a(f's_cbranch_scc1 {sk}')
    a(f's_cmp_eq_u32 s{S_HB}, 0'); a(f's_cbranch_scc1 {sk2}')
    a(f'v_and_b32 v60, 0xfff, v{V_C1S}'); a('v_mov_b32 v61, -1'); a(f's_add_u32 s{T2}, s{S_MB}, s{S_O2}')
    a(f'buffer_store_dword v61, v60, {WS}, s{T2} offen{sc}')
    a('v_mov_b32 v60, 0'); a('v_mov_b32 v61, 0')
    a(f's_branch {sk2}')
    a.label(sk)
    a(f'v_subrev_u32 v60, {EXB}, v{V_EX}'); a('v_lshlrev_b32 v60, 3, v60'); a(f'v_mov_b32 v61, s{S_S}')
    a(f's_lshl_b32 s{T2}, s{S_H}, 2'); a(f's_add_u32 s{T2}, s{T2}, {F_CH}')
    a('s_mov_b64 exec, 15')
    a(f'buffer_store_dword v61, v60, {WS}, s{T2} offen sc1')
    a('s_mov_b64 exec, -1')
    a('v_mov_b32 v60, 0'); a('v_mov_b32 v61, 0')
    a.label(sk2)
    acc = {'Q': (QA, QB), 'K': (KA, KB), 'V': (VA, VB)}
    def W(m, c, t):
        if (m, c) in RESIDENT: return f'v[{LR+8*t}:{LR+8*t+7}]'
        return opreg((m, c), t)
    def mm(m, c, slot):
        for t in range(2): a(smf(acc[m][t], AR + 4*slot, W(m, c, t)))
    def lr(img):
        for t in lread(RESIDENT.index(img), LR): a(t)
    for c in range(7):
        order = 'QK' if c in (0, 3) else 'KQ' if c == 6 else 'QK'
        if c == 3: order = 'QK'
        for m in order:
            mm(m, c, c % 4)
            if (m, c) == ('Q', 0): lr(('K', 3))
            if (m, c) == ('K', 3): lr(('Q', 6))
            if (m, c) == ('Q', 6): lr(('V', 6))
        if c + 4 <= 8: a(aread(c + 4, c % 4))
    mm('Q', 7, 3); mm('Q', 8, 0); mm('K', 7, 3); mm('K', 8, 0)
    prof(a, 3)
    def cvt2(d, s0):
        a(f'v_cvt_pk_bf16_f32 v{d}, v{s0}, v{s0+1}'); a(f'v_cvt_pk_bf16_f32 v{d+1}, v{s0+2}, v{s0+3}')
    def tr(d):
        a(f'v_mfma_f32_16x16x16_bf16 v[{d}:{d+3}], v[{d}:{d+1}], v[{V_SEL}:{V_SEL+1}], 0')
    mm('V', 5, 1); a(aread(0, 1))
    cvt2(QA, QA); cvt2(QB, QB)
    tr(QA); tr(QB)
    cvt2(KA, KA); cvt2(KB, KB)
    tr(KA); tr(KB)
    mm('V', 6, 2); a(aread(1, 2)); lr(('V', 1))
    cvt2(QA, QA); cvt2(QA + 2, QB)
    a(f'v_mfma_f32_16x16x32_bf16 v[{KX}:{KX+3}], v[{KX}:{KX+3}], v[{QA}:{QA+3}], 0')
    a(f'v_mfma_f32_16x16x32_bf16 v[{KX+4}:{KX+7}], v[{KX+4}:{KX+7}], v[{QA}:{QA+3}], 0')
    cvt2(KA, KA); cvt2(KA + 2, KB)
    a(f'v_mfma_f32_16x16x32_bf16 v[{QB}:{QB+3}], v[{KA}:{KA+3}], v[{QA}:{QA+3}], 0')
    mm('V', 7, 3); a(aread(2, 3))
    a(f'v_and_b32 v{KB}, 0xfffffd7f, v{V_EX}')
    a(f'v_add_u32 v{KB+1}, s{S_SMW}, v{KB}')
    for r in range(4):
        a(f'v_mov_b32_dpp v{KX+r}, v{KX+4+r} quad_perm:[0,1,2,3] row_mask:0xf bank_mask:0xc')
    a(f'ds_write_b128 v{V_EXW}, v[{KX}:{KX+3}] offset:{X_TOK}')
    a(f'ds_write_b128 v{KB+1}, v[{QB}:{QB+3}] offset:{X_SM}')
    mm('V', 8, 0); a(aread(3, 0))
    a(f's_add_u32 s{T0}, s{S_SEGO}, {KM}')
    a(f'buffer_store_dwordx4 v[{KA}:{KA+3}], v{V_EX}, {WS}, s{T0} offen sc1')
    mm('V', 0, 1); a(aread(4, 1))
    mm('V', 1, 2)
    a(f'v_mov_b32 v{KX+4}, v{KB}')
    prof(a, 4)
    a('s_waitcnt lgkmcnt(0)')
    a('s_barrier')
    prof(a, 5)
    for k in range(4):
        a(f'ds_read_b128 v[{40+4*k}:{43+4*k}], v{V_EX} offset:{X_TOK + k*1024}')
    MP = [24, 28, 32, 36]
    for k in range(4):
        a(f'ds_read_b128 v[{MP[k]}:{MP[k]+3}], v{KX+4} offset:{X_SM + (k>>1)*512 + (k&1)*128}')
    mm('V', 2, 3); mm('V', 3, 0); mm('V', 4, 1)
    def pka(d, x, y): a(f'v_pk_add_f32 v[{d}:{d+1}], v[{x}:{x+1}], v[{y}:{y+1}]')
    pka(40, 40, 44); pka(42, 42, 46); pka(48, 48, 52); pka(50, 50, 54); pka(40, 40, 48); pka(42, 42, 50)
    pka(24, 24, 28); pka(26, 26, 30); pka(32, 32, 36); pka(34, 34, 38); pka(64, 24, 32); pka(66, 26, 34)
    a('v_max3_f32 v68, v40, v41, v42'); a('v_max3_f32 v69, v43, v64, v65'); a('v_max3_f32 v68, v68, v66, v67'); a('v_max_f32 v68, v68, v69')
    pre = lread(5, 8) + lread(6, 24)
    a(pre[0]); a(pre[1])
    a('v_max_f32_dpp v68, v68, v68 row_ror:8 row_mask:0xf bank_mask:0xf')
    a('v_mov_b32 v69, v68'); a(pre[2]); a(pre[3])
    a('v_permlane32_swap_b32 v68, v69'); a('v_max_f32 v68, v68, v69')
    a('v_mov_b32 v69, v68'); a(pre[4]); a(pre[5])
    a('v_permlane16_swap_b32 v68, v69'); a('v_max_f32 v68, v68, v69')
    a(f'v_mul_f32 v68, s{S_C}, v68'); a(pre[6]); a(pre[7])
    for d in (64, 66, 40, 42):
        a(f'v_pk_fma_f32 v[{d}:{d+1}], v[{d}:{d+1}], s[{S_C}:{S_C+1}], v[68:69] op_sel_hi:[1,1,0] neg_lo:[0,0,1] neg_hi:[0,0,1]')
    for d in (64, 65, 66, 67, 40, 41, 42, 43):
        a(f'v_exp_f32 v{d}, v{d}')
    cvt2(VA, VA); cvt2(VA + 2, VB)
    a(f's_add_u32 s{T0}, s{S_SEGO}, {KM}')
    a(f'buffer_store_dwordx4 v[{VA}:{VA+3}], v{V_EX}, {WS}, s{T0} offen offset:1024 sc1')
    a(f's_cmp_eq_u32 s{S_S}, 63'); a(f's_cbranch_scc1 L_chx')
    cvt2(48, 64)
    cvt2(44, 40)
    a(f'v_mfma_f32_16x16x16_bf16 v[52:55], v[{VA}:{VA+1}], v[48:49], 0')
    a(f'v_mfma_f32_16x16x16_bf16 v[60:63], v[{VA+2}:{VA+3}], v[48:49], 0')
    a('v_mov_b32_dpp v46, v44 row_ror:8 row_mask:0xf bank_mask:0xf'); a('v_mov_b32_dpp v47, v45 row_ror:8 row_mask:0xf bank_mask:0xf')
    pka(40, 40, 42); pka(64, 64, 66)
    a(f'v_mfma_f32_16x16x32_bf16 v[52:55], v[{VX}:{VX+3}], v[44:47], v[52:55]')
    a(f'v_mfma_f32_16x16x32_bf16 v[60:63], v[{VX+4}:{VX+7}], v[44:47], v[60:63]')
    a('v_add_f32 v40, v40, v41'); a('v_add_f32 v64, v64, v65'); a('v_fmac_f32 v40, 0.25, v64')
    a(f'v_add_u32 v70, s{S_OW}, v{V_EX}')
    a('v_add_f32_dpp v40, v40, v40 row_ror:8 row_mask:0xf bank_mask:0xf')
    a('v_mov_b32 v41, v40'); a('v_permlane32_swap_b32 v40, v41'); a('v_add_f32 v40, v40, v41')
    a('v_mov_b32 v41, v40'); a('v_permlane16_swap_b32 v40, v41'); a('v_add_f32 v40, v40, v41')
    a('v_rcp_f32 v40, v40')
    for d in (52, 54, 60, 62):
        a(f'v_pk_mul_f32 v[{d}:{d+1}], v[{d}:{d+1}], v[40:41] op_sel_hi:[1,0]')
    cvt2(64, 52); cvt2(66, 60)
    a(f's_mov_b64 exec, s[{S_NM}:{S_NM+1}]')
    a(f'ds_write_b128 v70, v[64:67] offset:{X_O}')
    a('s_mov_b64 exec, -1')
    for r in list(range(40, 64)) + list(range(72, 76)): a(f'v_mov_b32 v{r}, 0')
    prof(a, 6)
    a('s_waitcnt lgkmcnt(0)')
    a('s_barrier')
    prof(a, 7)
    for jj in range(2):
        a(f'ds_read_b128 v[{64+4*jj}:{67+4*jj}], v{V_EX} offset:{X_O + jj*1024}')
    a(f's_add_u32 s{T0}, s{S_CS}, s{S_CP}'); a(f's_add_u32 s{T1}, s{S_CSS}, s{S_CP}')
    def epi(t, i2):
        u = t + 4
        for i in range(4): a(f'v_permlane32_swap_b32 v{t+i}, v{u+i}')
        pka(t, t, u); pka(t + 2, t + 2, u + 2)
        cvt2(t, t)
        a(f's_add_u32 s{T2}, s{T0}, {i2*65536}')
        a(f'buffer_store_dwordx2 v[{t}:{t+1}], v{V_C1}, {WS}, s{T2} offen{sc}')
    ring = [8, 16, 24, 32]
    nxt = lread(7, 8) + lread(8, 24)
    for q, (jj, t) in enumerate([(0, 0), (0, 1), (1, 0), (1, 1)]):
        a(smf(40 + 4*t, 64 + 4*jj, f'v[{ring[q]}:{ring[q]+7}]'))
        a(nxt[2*q]); a(nxt[2*q+1])
    for jj in range(2):
        for t in range(2): a(smf(48 + 4*t, 64 + 4*jj, opreg(('O', 0, jj), t)))
    epi(40, 2)
    for jj in range(2):
        for t in range(2): a(smf(56 + 4*t, 64 + 4*jj, opreg(('O', 1, jj), t)))
    for r in range(40, 48): a(f'v_mov_b32 v{r}, 0')
    epi(48, 0)
    for q, (jj, t) in enumerate([(0, 0), (0, 1), (1, 0), (1, 1)]):
        a(smf(40 + 4*t, 64 + 4*jj, f'v[{ring[q]}:{ring[q]+7}]'))
    for jj in range(2): a(smf(72, 64 + 4*jj, opreg(('S',), jj)))
    epi(56, 1)
    epi(40, 3)
    a('v_permlane32_swap_b32 v72, v74'); a('v_permlane32_swap_b32 v73, v75'); pka(72, 72, 74)
    a('v_cvt_pk_bf16_f32 v72, v72, v73')
    a(f'buffer_store_dword v72, v{V_C1S}, {WS}, s{T1} offen{sc}')
    prof(a, 8)
    NR = f'L_nr{tag}'
    a(f's_cmp_eq_u32 s{S_HB}, 0'); a(f's_cbranch_scc1 {NR}')
    a(f's_add_u32 s{T0}, s{S_CR}, s{S_CP}')
    a(f'v_mov_b32 v24, v{V_SEL}'); a(f'v_mov_b32 v26, v{V_SEL}'); a(f'v_mov_b32 v25, v{V_SEL+1}'); a(f'v_mov_b32 v27, v{V_SEL+1}')
    a('v_permlane16_swap_b32 v24, v26'); a('v_permlane16_swap_b32 v25, v27')
    a(f'v_and_b32 v32, 0xfff, v{V_C1S}'); a(f's_add_u32 s{T1}, s{S_MB}, s{S_O1}')
    for r in range(36, 40): a(f'v_mov_b32 v{r}, -1')
    RL, RD = f'L_rp{tag}', f'L_rpd{tag}'
    a.label(RL)
    for i in range(4):
        a(f'buffer_load_dwordx4 v[{8+4*i}:{11+4*i}], v{V_EX}, {WS}, s{T0} offen offset:{i*1024} sc1')
    for i in range(4):
        a(f'v_mfma_f32_16x16x32_bf16 v[28:31], v[{8+4*i}:{11+4*i}], v[24:27], {"0" if i == 0 else "v[28:31]"}')
        if i == 0: a('v_max3_u32 v33, v8, v9, v10'); a('v_max3_u32 v34, v11, v8, v8')
        else:
            b = 8 + 4*i
            a(f'v_max3_u32 v33, v33, v{b}, v{b+1}'); a(f'v_max3_u32 v34, v34, v{b+2}, v{b+3}')
    a('v_max_u32 v33, v33, v34')
    a('v_cmp_eq_u32 vcc, -1, v33')
    a('s_cmp_eq_u64 vcc, 0'); a(f's_cbranch_scc1 {RD}')
    a(f's_cmp_eq_u32 s{S_BUD}, 0'); a(f's_cbranch_scc1 {RD}')
    a(f's_sub_u32 s{S_BUD}, s{S_BUD}, 1'); a(f's_branch {RL}')
    a.label(RD)
    a('v_permlane32_swap_b32 v28, v30'); a('v_permlane32_swap_b32 v29, v31'); pka(28, 28, 30)
    a('v_cvt_pk_bf16_f32 v28, v28, v29')
    a(f'buffer_store_dword v28, v32, {WS}, s{T1} offen{sc}')
    for i in range(4):
        a(f'buffer_store_dwordx4 v[36:39], v{V_EX}, {WS}, s{T0} offen offset:{i*1024}{sc}')
    a.label(NR)
    prof(a, 9)
    a(f's_mov_b32 s{T0}, s{S_O0}'); a(f's_mov_b32 s{S_O0}, s{S_O1}'); a(f's_mov_b32 s{S_O1}, s{S_O2}'); a(f's_mov_b32 s{S_O2}, s{T0}')
    a(f's_xor_b32 s{S_CP}, s{S_CP}, 294912')
    a(f's_add_u32 s{S_S}, s{S_S}, 1')
    a(f's_branch {LS}')

def chain_role(a):
    setup(a)
    stamp(a, 2)
    team_barrier(a)
    gbar_wait(a, 8, 9)
    stamp(a, 3)
    a(f's_mov_b32 s{S_S}, 0'); a(f's_mov_b32 s{S_O0}, 0'); a(f's_mov_b32 s{S_O1}, 9216'); a(f's_mov_b32 s{S_O2}, 18432')
    a(f's_mov_b32 s{S_CP}, 0')
    variants = getattr(chain_role, 'variants', 'both')
    if variants == 'both':
        a(f's_cmp_lg_u32 s{S_FOREIGN}, 0'); a('s_cbranch_scc1 L_csf')
        loop(a, '', 'l'); loop(a, ' sc1', 'f')
    elif variants == 'loc':
        loop(a, '', 'l')
    else:
        loop(a, ' sc1', 'f')
    a.label('L_chx')
    WS = f's[{S_WS}:{S_WS+3}]'
    a('s_waitcnt vmcnt(0)')
    a('s_barrier')
    sk = a.uid('L_x')
    a(f's_cmp_lg_u32 s{S_W}, 3'); a(f's_cbranch_scc1 {sk}')
    a(f'v_subrev_u32 v60, {EXB}, v{V_EX}'); a('v_lshlrev_b32 v60, 3, v60'); a('v_mov_b32 v61, 64')
    a(f's_lshl_b32 s{T2}, s{S_H}, 2'); a(f's_add_u32 s{T2}, s{T2}, {F_CH}')
    a('s_mov_b64 exec, 15')
    a(f'buffer_store_dword v61, v60, {WS}, s{T2} offen sc1')
    a('s_mov_b64 exec, -1')
    a.label(sk)
    if PROF_STEP is not None:
        a('s_waitcnt lgkmcnt(0)')
        a(f's_lshl_b32 s{T0}, s{S_H}, 2'); a(f's_add_u32 s{T0}, s{T0}, s{S_W}'); a(f's_lshl_b32 s{T0}, s{T0}, 7'); a(f's_add_u32 s{T0}, s{T0}, {PROF}')
        a('v_mov_b32 v10, 0'); a('s_mov_b64 exec, 1')
        for k in range(13):
            a(f'v_mov_b32 v8, s{PS+2*k}'); a(f'v_mov_b32 v9, s{PS+2*k+1}')
            a(f'buffer_store_dwordx2 v[8:9], v10, {WS}, s{T0} offen offset:{8*k}')
        a('s_mov_b64 exec, -1')
    stamp(a, 4)
```

```python
from gen_base import *
from gen_bulk import ws_flag

NEG = 0xff800000
def wreg(f):
    if f < 64:
        return f'a[{4*f}:{4*f+3}]'
    b = 208 + 4 * (f - 64)
    return f'v[{b}:{b+3}]'
def wreg_half(f, hf):
    if f < 64:
        return f'a[{4*f+2*hf}:{4*f+2*hf+1}]'
    b = 208 + 4 * (f - 64) + 2 * hf
    return f'v[{b}:{b+1}]'
def fq(k, c): return k * 2 + c
def fo(pp, ab, ke): return 36 + (pp * 2 + ab) * 4 + ke

def shadow_role(a):
    srd(a, S_A, 16, 576 * 8192)
    srd(a, S_B, 40, 32 * 147456)
    a('s_lshl_b32 s42, s40, 8')
    a(f'v_lshrrev_b32 v2, 4, v{V_LANE}'); a(f'v_and_b32 v3, 15, v{V_LANE}')
    a(f'v_lshlrev_b32 v4, 1, v2'); a(f'v_xor_b32 v5, v3, v4'); a(f'v_xor_b32 v6, 8, v5')
    a(f'v_mul_u32_u24 v2, 8192, v2'); a(f'v_lshl_add_u32 v5, v5, 4, v2'); a(f'v_lshl_add_u32 v6, v6, 4, v2')
    a(f'v_lshrrev_b32 v7, 4, v{V_LANE}'); a(f'v_bfe_u32 v8, v{V_LANE}, 2, 2'); a(f'v_and_b32 v9, 3, v{V_LANE}')
    a(f'v_and_b32 v10, 1, v7'); a(f'v_lshl_or_b32 v10, v10, 2, v8'); a(f'v_lshlrev_b32 v10, 1, v10')
    a(f'v_lshrrev_b32 v11, 1, v9'); a(f's_lshl_b32 s33, s{S_W}, 2'); a(f'v_add_u32 v11, s33, v11')
    a(f'v_add_u32 v12, 2, v11'); a(f'v_xor_b32 v11, v11, v10'); a(f'v_xor_b32 v12, v12, v10')
    a(f'v_lshl_add_u32 v13, v7, 3, v8'); a(f'v_lshlrev_b32 v13, 8, v13'); a(f'v_and_b32 v9, 1, v9')
    a(f'v_lshl_add_u32 v13, v9, 3, v13'); a(f'v_lshl_add_u32 v11, v11, 4, v13'); a(f'v_lshl_add_u32 v12, v12, 4, v13')
    a(f'v_add_u32 v14, {73728}, v11'); a(f'v_add_u32 v15, {73728}, v12')
    for n, r in enumerate((11, 12, 14, 15)):
        a(f'v_add_u32 v{18+n}, {65536}, v{r}')
    a('s_waitcnt lgkmcnt(0)')
    srd_fix(a, S_A); srd_fix(a, S_B)
    a(f's_bitcmp1_b32 s{S_W}, 0'); a(f's_cselect_b64 vcc, -1, 0')
    a(f'v_cndmask_b32 v16, v5, v6, vcc'); a(f'v_cndmask_b32 v17, v6, v5, vcc')
    for hf in range(2):
        a(f's_mul_i32 s33, s{S_W}, {18*1024}'); a(f's_add_u32 s33, s33, {hf*73728}')
        a(f's_mul_i32 s34, s{S_W}, {18*4*8192}'); a('s_add_u32 s34, s34, s42'); a(f's_add_u32 s34, s34, {hf*288*8192}')
        for n in range(18):
            a('s_mov_b32 m0, s33')
            a(f'buffer_load_dwordx4 v{16 if ((n>>1)&1)==0 else 17}, s[{S_A}:{S_A+3}], s34 offen lds', tok=f'sq{hf}')
            if n < 17:
                a('s_add_u32 s33, s33, 1024'); a(f's_add_u32 s34, s34, {4*8192}')
    def tr_q(hf):
        for kk in range(9):
            k = hf * 9 + kk
            for c in range(2):
                ad = (11 + c) if hf == 0 else (14 + c)
                for h2 in range(2):
                    if kk == 8:
                        a(f'ds_read_b64_tr_b16 {wreg_half(fq(k,c), h2)}, v{ {11:18,12:19,14:20,15:21}[ad] } offset:{h2*1024}')
                    else:
                        a(f'ds_read_b64_tr_b16 {wreg_half(fq(k,c), h2)}, v{ad} offset:{kk*8192 + h2*1024}')
    def dma_o(hf):
        a(f's_mul_i32 s33, s{S_W}, {18*1024}')
        a(f's_mul_i32 s34, s40, 147456'); a('s_add_u32 s34, s34, s33'); a(f's_add_u32 s34, s34, {hf*73728}')
        a(f's_add_u32 s33, s33, {hf*73728}')
        for n in range(18):
            a('s_mov_b32 m0, s33')
            a(f'buffer_load_dwordx4 v22, s[{S_B}:{S_B+3}], s34 offen lds', tok=f'so{hf}')
            if n < 17:
                a('s_add_u32 s33, s33, 1024'); a('s_add_u32 s34, s34, 1024')
    a(f'v_lshlrev_b32 v22, 4, v{V_LANE}')
    a(f'v_lshrrev_b32 v23, 4, v{V_LANE}'); a(f'v_bfe_u32 v24, v{V_LANE}, 2, 2')
    a(f'v_lshl_add_u32 v23, v23, 2, v24'); a(f'v_mul_u32_u24 v23, 1152, v23')
    a(f'v_and_b32 v24, 3, v{V_LANE}'); a(f'v_lshl_add_u32 v23, v24, 4, v23')
    a(f's_mul_i32 s33, s{S_W}, 9'); a('s_lshr_b32 s43, s33, 1')
    a('s_lshl_b32 s33, s43, 6'); a('v_add_u32 v23, s33, v23')
    a(f'v_add_u32 v24, {73728}, v23')
    def tr_o(hf):
        for k2 in range(2):
            ke = hf * 2 + k2
            for pp in range(5):
                for ab in range(2):
                    for h2 in range(2):
                        off = k2 * 32 * 1152 + h2 * 16 * 1152 + pp * 64 + ab * 8
                        a(f'ds_read_b64_tr_b16 {wreg_half(fo(pp, ab, ke), h2)}, v{23+hf} offset:{off}')
    a.need('sq0'); a('s_barrier'); tr_q(0); a('s_waitcnt lgkmcnt(0)'); a('s_barrier'); dma_o(0)
    a.need('sq1'); a('s_barrier'); tr_q(1); a('s_waitcnt lgkmcnt(0)'); a('s_barrier'); dma_o(1)
    a.need('so0'); a('s_barrier'); tr_o(0)
    a.need('so1'); a('s_waitcnt lgkmcnt(0)'); a('s_barrier'); tr_o(1); a('s_waitcnt lgkmcnt(0)'); a('s_barrier')
    stamp(a, 2)
    gbar_wait(a)
    stamp(a, 3)
    V_L16, V_RD, V_QW, V_QR, V_OW, V_OR = 2, 3, 4, 5, 6, 7
    BIAS = 8
    XR = 16
    QA = 48
    KF_ = 64
    KMF = 96
    VF_ = 112
    VMF = 128
    OA = 136
    LQ = 3 * 36864
    LO = LQ + 8192
    S_IT, S_BUF, S_SEG, S_KVP, S_CHP = 44, 45, 46, 53, 54
    a(f'v_lshlrev_b32 v{V_L16}, 4, v{V_LANE}')
    a(f's_lshl_b32 s33, s{S_W}, 10'); a(f's_add_u32 s33, s33, {LQ}'); a(f'v_add_u32 v{V_QW}, s33, v{V_L16}')
    a(f's_and_b32 s55, s{S_W}, 1'); a(f's_lshr_b32 s56, s{S_W}, 1')
    a('s_lshl_b32 s33, s55, 12'); a(f's_add_u32 s33, s33, {LQ}'); a(f'v_add_u32 v{V_QR}, s33, v{V_L16}')
    a('s_lshl_b32 s33, s55, 12'); a('s_lshl_b32 s34, s56, 11'); a('s_add_u32 s33, s33, s34'); a(f's_add_u32 s33, s33, {LO}')
    a(f'v_add_u32 v{V_OW}, s33, v{V_L16}')
    a(f'v_add_u32 v{V_OR}, {LO}, v{V_L16}')
    a(f'v_and_b32 v48, 15, v{V_LANE}'); a('s_lshl_b32 s33, s55, 4'); a('v_add_u32 v48, s33, v48')
    a(f'v_lshrrev_b32 v49, 4, v{V_LANE}'); a('v_lshlrev_b32 v49, 2, v49')
    a(f'v_mov_b32 v50, {NEG:#x}')
    for kap in range(2):
        for i in range(4):
            a(f'v_add_u32 v51, {16*kap+i}, v49')
            a('v_cmp_le_u32 vcc, v51, v48')
            a(f'v_cndmask_b32 v{BIAS+4*kap+i}, v50, 0, vcc') if False else None
            a(f'v_cndmask_b32 v{BIAS+4*kap+i}, v50, v52, vcc') if False else None
            a(f'v_mov_b32 v52, 0')
            a(f'v_cndmask_b32 v{BIAS+4*kap+i}, v50, v52, vcc')
    def xdma(it_sreg, buf_sreg):
        a(f's_lshl_b32 s48, s{it_sreg}, 1'); a('s_add_u32 s48, s48, s41'); a('s_min_u32 s48, s48, 63')
        a('s_mul_i32 s48, s48, 36864'); a(f's_mul_i32 s49, s{S_W}, 9216'); a('s_add_u32 s48, s48, s49')
        a(f's_add_u32 s48, s48, {XN}'); a(f's_add_u32 s49, s49, s{buf_sreg}')
        for grp, cnt in ((0, 4), (1, 4), (2, 1)):
            a('s_mov_b32 m0, s49')
            for n in range(cnt):
                a(f'buffer_load_dwordx4 v{V_L16}, s[{S_WS}:{S_WS+3}], s48 offen offset:{1024*n} lds')
            if grp < 2:
                a('s_add_u32 s49, s49, 4096'); a('s_add_u32 s48, s48, 4096')
    a(f's_mov_b32 s{S_IT}, 0'); a(f's_mov_b32 s{S_BUF}, 0'); xdma(S_IT, S_BUF)
    a(f's_mov_b32 s{S_IT}, 1'); a(f's_mov_b32 s{S_BUF}, 36864'); xdma(S_IT, S_BUF)
    a(f's_mov_b32 s{S_IT}, 0'); a(f's_mov_b32 s{S_BUF}, 0')
    a(f's_mov_b32 s{S_KVP}, 0'); a(f's_mov_b32 s{S_CHP}, 0')
    a('s_waitcnt vmcnt(0)')
    L = a.uid('L_sh')
    a.label(L)
    a('s_barrier')
    a(f's_lshl_b32 s{S_SEG}, s{S_IT}, 1'); a(f's_add_u32 s{S_SEG}, s{S_SEG}, s41')
    sk = a.uid('L_kvok')
    a(f's_cmp_gt_u32 s{S_KVP}, s{S_IT}'); a(f's_cbranch_scc1 {sk}')
    a('s_lshl_b32 s33, s41, 7'); a('s_lshl_b32 s34, s40, 2'); a('s_add_u32 s33, s33, s34'); a(f's_add_u32 s33, s33, {F_KV}')
    a(f's_add_u32 s34, s{S_IT}, 1'); a('v_mov_b32 v51, 0')
    poll(a, f'buffer_load_dword v50, v51, s[{S_WS}:{S_WS+3}], s33 offen sc1', 'v_cmp_le_u32 vcc, s34, v50')
    a(f'v_readfirstlane_b32 s{S_KVP}, v50')
    a.label(sk)
    a(f's_lshl_b32 s47, s{S_SEG}, 5'); a('s_add_u32 s47, s47, s40'); a('s_lshl_b32 s47, s47, 13')
    a(f's_add_u32 s48, s47, {KF}')
    for sl in range(4):
        for kap in range(2):
            d = KF_ + 4 * (sl * 2 + kap)
            o = sl * 2048 + kap * 1024
            if o == 4096: a('s_add_u32 s48, s48, 4096')
            a(f'buffer_load_dwordx4 v[{d}:{d+3}], v{V_L16}, s[{S_WS}:{S_WS+3}], s48 offen offset:{o % 4096} sc1')
    a('s_lshl_b32 s49, s56, 12'); a('s_add_u32 s49, s49, s47'); a(f's_add_u32 s49, s49, {VF}')
    for z in range(4):
        d = VF_ + 4 * z
        a(f'buffer_load_dwordx4 v[{d}:{d+3}], v{V_L16}, s[{S_WS}:{S_WS+3}], s49 offen offset:{z*1024} sc1')
    a(f's_add_u32 s50, s{S_IT}, 2'); a(f's_add_u32 s51, s{S_BUF}, {2*36864}'); a(f's_cmp_ge_u32 s51, {3*36864}')
    a(f's_cselect_b32 s47, {3*36864}, 0'); a('s_sub_u32 s51, s51, s47')
    xdma(50, 51)
    a(f'v_add_u32 v{V_RD}, s{S_BUF}, v{V_L16}')
    reads = []
    for k in range(18):
        for tau in range(2):
            slot = (2 * k + tau) % 8
            reads.append(f'ds_read_b128 v[{XR+4*slot}:{XR+4*slot+3}], v{V_RD} offset:{tau*18432 + k*1024}')
    for r in reads[:6]: a(r)
    ri = 6
    for k in range(18):
        for c in range(2):
            for tau in range(2):
                slot = (2 * k + tau) % 8
                t = QA + 4 * (c * 2 + tau)
                a(f'v_mfma_f32_16x16x32_bf16 v[{t}:{t+3}], {wreg(fq(k,c))}, v[{XR+4*slot}:{XR+4*slot+3}], {"0" if k == 0 else f"v[{t}:{t+3}]"}')
            if c == 0 and ri < len(reads):
                a(reads[ri]); a(reads[ri+1]); ri += 2
    for tau in range(2):
        d = XR + 4 * tau
        s0, s1 = QA + 4 * tau, QA + 4 * (2 + tau)
        a(f'v_cvt_pk_bf16_f32 v{d}, v{s0}, v{s0+1}'); a(f'v_cvt_pk_bf16_f32 v{d+1}, v{s0+2}, v{s0+3}')
        a(f'v_cvt_pk_bf16_f32 v{d+2}, v{s1}, v{s1+1}'); a(f'v_cvt_pk_bf16_f32 v{d+3}, v{s1+2}, v{s1+3}')
        a(f'ds_write_b128 v{V_QW}, v[{d}:{d+3}] offset:{tau*4096}')
    a('s_waitcnt vmcnt(0) lgkmcnt(0)')
    a('s_barrier')
    sk = a.uid('L_shf')
    a(f's_cmp_lg_u32 s{S_W}, 0'); a(f's_cbranch_scc1 {sk}')
    a(f's_cmp_eq_u32 s{S_IT}, 0'); a(f's_cbranch_scc1 {sk}')
    sh_flag(a, f's_mov_b32 s47, s{S_IT}')
    a.label(sk)
    for sl in range(4):
        d = XR + 4 * sl
        a(f'ds_read_b128 v[{d}:{d+3}], v{V_QR} offset:{sl*1024}')
    S0 = QA
    for sl in range(4):
        for kap in range(2):
            t = S0 + 4 * kap
            kf = KF_ + 4 * (sl * 2 + kap)
            a(f'v_mfma_f32_16x16x32_bf16 v[{t}:{t+3}], v[{kf}:{kf+3}], v[{XR+4*sl}:{XR+4*sl+3}], {"0" if sl == 0 else f"v[{t}:{t+3}]"}')
    sk = a.uid('L_chok')
    a(f's_cmp_gt_u32 s{S_CHP}, s{S_SEG}'); a(f's_cbranch_scc1 {sk}')
    a('s_lshl_b32 s33, s40, 2'); a(f's_add_u32 s33, s33, {F_CH}'); a(f's_add_u32 s34, s{S_SEG}, 1')
    a(f'v_and_b32 v61, 3, v{V_LANE}'); a('v_lshlrev_b32 v61, 7, v61')
    poll(a, f'buffer_load_dword v60, v61, s[{S_WS}:{S_WS+3}], s33 offen sc1', 'v_cmp_le_u32 vcc, s34, v60')
    a('v_mov_b32 v61, v60'); a('v_min_u32_dpp v60, v61, v61 quad_perm:[1,0,3,2] row_mask:0xf bank_mask:0xf')
    a('v_min_u32 v60, v60, v61'); a('v_mov_b32 v61, v60')
    a('v_min_u32_dpp v60, v61, v61 quad_perm:[2,3,0,1] row_mask:0xf bank_mask:0xf'); a('v_min_u32 v60, v60, v61')
    a(f'v_readfirstlane_b32 s{S_CHP}, v60')
    a.label(sk)
    a(f's_lshl_b32 s47, s{S_SEG}, 5'); a('s_add_u32 s47, s47, s40'); a('s_lshl_b32 s47, s47, 13'); a(f's_add_u32 s47, s47, {KM}')
    for sl in range(4):
        d = KMF + 4 * sl
        o = sl * 2048
        if o == 4096: a('s_add_u32 s47, s47, 4096')
        a(f'buffer_load_dwordx4 v[{d}:{d+3}], v{V_L16}, s[{S_WS}:{S_WS+3}], s47 offen offset:{o % 4096} sc1')
    a('s_sub_u32 s47, s47, 4096'); a('s_lshl_b32 s48, s56, 12'); a('s_add_u32 s47, s47, s48')
    for z in range(2):
        d = VMF + 4 * z
        a(f'buffer_load_dwordx4 v[{d}:{d+3}], v{V_L16}, s[{S_WS}:{S_WS+3}], s47 offen offset:{1024 + z*2048} sc1')
    t = S0 + 8
    for sl in range(4):
        a(f'v_mfma_f32_16x16x32_bf16 v[{t}:{t+3}], v[{KMF+4*sl}:{KMF+4*sl+3}], v[{XR+4*sl}:{XR+4*sl+3}], {"0" if sl == 0 else f"v[{t}:{t+3}]"}')
    for n in range(8):
        a(f'v_add_f32 v{S0+n}, v{S0+n}, v{BIAS+n}')
    a(f'v_max3_f32 v60, v{S0}, v{S0+1}, v{S0+2}'); a(f'v_max3_f32 v61, v{S0+3}, v{S0+4}, v{S0+5}')
    a(f'v_max3_f32 v60, v60, v{S0+6}, v{S0+7}'); a(f'v_max3_f32 v61, v61, v{S0+8}, v{S0+9}')
    a(f'v_max3_f32 v60, v60, v{S0+10}, v{S0+11}'); a('v_max_f32 v60, v60, v61')
    a('v_mov_b32 v61, v60'); a('v_permlane32_swap_b32 v60, v61'); a('v_max_f32 v60, v60, v61')
    a('v_mov_b32 v61, v60'); a('v_permlane16_swap_b32 v60, v61'); a('v_max_f32 v60, v60, v61')
    C = 128 ** -0.5 * 1.4426950408889634
    a(f's_mov_b32 s33, {f2u(C):#x}')
    a('v_mul_f32 v60, s33, v60')
    for n in range(12):
        a(f'v_fma_f32 v{S0+n}, v{S0+n}, s33, -v60')
    for n in range(12):
        a(f'v_exp_f32 v{S0+n}, v{S0+n}')
    P, PM = XR, XR + 4
    for n in range(4):
        a(f'v_cvt_pk_bf16_f32 v{P+n}, v{S0+2*n}, v{S0+2*n+1}')
    a(f'v_cvt_pk_bf16_f32 v{PM}, v{S0+8}, v{S0+9}'); a(f'v_cvt_pk_bf16_f32 v{PM+1}, v{S0+10}, v{S0+11}')
    ONE, HALF = XR + 8, XR + 12
    for n in range(4): a(f'v_mov_b32 v{ONE+n}, 0x3f803f80')
    for n in range(2): a(f'v_mov_b32 v{HALF+n}, 0x3f003f00')
    SUM = 60
    a(f'v_mfma_f32_16x16x32_bf16 v[{SUM}:{SUM+3}], v[{ONE}:{ONE+3}], v[{P}:{P+3}], 0')
    OT = S0
    OT = KF_
    for z in range(4):
        t = OT + 4 * z
        a(f'v_mfma_f32_16x16x32_bf16 v[{t}:{t+3}], v[{VF_+4*z}:{VF_+4*z+3}], v[{P}:{P+3}], 0')
    a(f'v_mfma_f32_16x16x16_bf16 v[{SUM}:{SUM+3}], v[{HALF}:{HALF+1}], v[{PM}:{PM+1}], v[{SUM}:{SUM+3}]')
    for z in range(4):
        t = OT + 4 * z
        vm = VMF + 4 * (z >> 1) + 2 * (z & 1)
        a(f'v_mfma_f32_16x16x16_bf16 v[{t}:{t+3}], v[{vm}:{vm+1}], v[{PM}:{PM+1}], v[{t}:{t+3}]')
    a(f'v_rcp_f32 v{SUM}, v{SUM}')
    for n in range(16):
        a(f'v_mul_f32 v{OT+n}, v{OT+n}, v{SUM}')
    for zz in range(2):
        d = XR + 16 + 4 * zz
        s0, s1 = OT + 8 * zz, OT + 8 * zz + 4
        a(f'v_cvt_pk_bf16_f32 v{d}, v{s0}, v{s0+1}'); a(f'v_cvt_pk_bf16_f32 v{d+1}, v{s0+2}, v{s0+3}')
        a(f'v_cvt_pk_bf16_f32 v{d+2}, v{s1}, v{s1+1}'); a(f'v_cvt_pk_bf16_f32 v{d+3}, v{s1+2}, v{s1+3}')
        a(f'ds_write_b128 v{V_OW}, v[{d}:{d+3}] offset:{zz*1024}')
    a('s_waitcnt lgkmcnt(0)')
    a('s_barrier')
    for tau in range(2):
        for ke in range(4):
            d = XR + 4 * (tau * 4 + ke)
            a(f'ds_read_b128 v[{d}:{d+3}], v{V_OR} offset:{tau*4096 + ke*1024}')
    for odd in range(2):
        lab = a.uid('L_op')
        if odd == 0:
            a(f's_bitcmp1_b32 s{S_W}, 0'); a(f's_cbranch_scc1 {lab}_odd')
            first = lab
        units = [(pp, tau) for pp in range(4) for tau in range(2)] + [(4, 0)] if odd == 0 else \
                [(0, 1)] + [(pp, tau) for pp in range(1, 5) for tau in range(2)]
        for ke in range(4):
            for u, (pp, tau) in enumerate(units):
                for ab in range(2):
                    t = OA + 8 * u + 4 * ab
                    o = XR + 4 * (tau * 4 + ke)
                    a(f'v_mfma_f32_16x16x32_bf16 v[{t}:{t+3}], {wreg(fo(pp, ab, ke))}, v[{o}:{o+3}], {"0" if ke == 0 else f"v[{t}:{t+3}]"}')
        a(f's_lshl_b32 s47, s{S_SEG}, 5'); a('s_add_u32 s47, s47, s40'); a('s_mul_i32 s47, s47, 36864')
        a('s_lshl_b32 s48, s43, 10'); a('s_add_u32 s47, s47, s48'); a(f's_add_u32 s47, s47, {PART}')
        for u, (pp, tau) in enumerate(units):
            t = OA + 8 * u
            d = KF_ + 4 * u
            a(f'v_cvt_pk_bf16_f32 v{d}, v{t}, v{t+1}'); a(f'v_cvt_pk_bf16_f32 v{d+1}, v{t+2}, v{t+3}')
            a(f'v_cvt_pk_bf16_f32 v{d+2}, v{t+4}, v{t+5}'); a(f'v_cvt_pk_bf16_f32 v{d+3}, v{t+6}, v{t+7}')
            a(f's_add_u32 s48, s47, {tau*18432 + pp*1024}')
            a(f'buffer_store_dwordx4 v[{d}:{d+3}], v{V_L16}, s[{S_WS}:{S_WS+3}], s48 offen sc1')
        if odd == 0:
            a(f's_branch {first}_join')
            a.label(f'{first}_odd')
    a.label(f'{first}_join')
    a(f's_add_u32 s{S_BUF}, s{S_BUF}, 36864'); a(f's_cmp_ge_u32 s{S_BUF}, {3*36864}'); a(f's_cselect_b32 s{S_BUF}, 0, s{S_BUF}')
    a(f's_add_u32 s{S_IT}, s{S_IT}, 1'); a(f's_cmp_lt_u32 s{S_IT}, 32'); a(f's_cbranch_scc1 {L}')
    a('s_waitcnt vmcnt(0)')
    a('s_barrier')
    sk = a.uid('L_shf')
    a(f's_cmp_lg_u32 s{S_W}, 0'); a(f's_cbranch_scc1 {sk}')
    sh_flag(a, 's_mov_b32 s47, 32')
    a.label(sk)
    stamp(a, 4)

import struct
def f2u(x): return struct.unpack('<I', struct.pack('<f', x))[0]

def sh_flag(a, valtext):
    a(valtext)
    a('s_lshl_b32 s48, s41, 7'); a('s_lshl_b32 s49, s40, 2'); a('s_add_u32 s48, s48, s49'); a(f's_add_u32 s48, s48, {F_SH}')
    a('v_mov_b32 v62, s47'); a('v_mov_b32 v63, 0')
    a('s_mov_b64 exec, 1')
    a(f'buffer_store_dword v62, v63, s[{S_WS}:{S_WS+3}], s48 offen sc1')
    a('s_mov_b64 exec, -1')


NFW = 640
def finisher_role(a):
    srd(a, S_A, 0, 2048 * 1152)
    srd(a, S_B, 80, 2048 * 1152)
    S_TK, S_S = 65, 66
    a(f's_lshl_b32 s{S_TK}, s64, 2'); a(f's_add_u32 s{S_TK}, s{S_TK}, s{S_W}')
    n_, g_ = 2, 3
    a(f'v_and_b32 v{n_}, 15, v{V_LANE}'); a(f'v_lshrrev_b32 v{g_}, 4, v{V_LANE}')
    a(f'v_and_b32 v4, 1, v{g_}'); a('v_mul_u32_u24 v4, 36864, v4')
    a(f'v_lshrrev_b32 v5, 1, v{g_}'); a(f'v_lshl_add_u32 v5, v5, 4, v{n_}'); a('v_lshl_add_u32 v4, v5, 4, v4')
    a(f'v_lshrrev_b32 v5, 1, v{g_}'); a(f'v_lshrrev_b32 v6, 3, v{n_}'); a('v_cmp_eq_u32 s[68:69], v5, v6')
    a(f'v_and_b32 v5, 7, v{n_}')
    for r in range(4):
        a(f'v_cmp_eq_u32 vcc, {2*r}, v5'); a(f'v_mov_b32 v6, 0'); a(f'v_mov_b32 v7, 0x3f80'); a(f'v_cndmask_b32 v6, v6, v7, vcc')
        a(f'v_cmp_eq_u32 vcc, {2*r+1}, v5'); a(f'v_mov_b32 v7, 0x3f800000'); a(f'v_cndmask_b32 v6, v6, v7, vcc')
        a(f'v_mov_b32 v7, 0'); a(f'v_cndmask_b32 v{8+r}, v7, v6, s[68:69]')
    a(f'v_mul_u32_u24 v12, 2304, v{n_}'); a(f'v_lshl_add_u32 v12, v{g_}, 4, v12')
    a(f'v_mul_u32_u24 v13, 1152, v{n_}'); a(f'v_lshl_add_u32 v13, v{g_}, 3, v13')
    a(f'v_lshlrev_b32 v14, 2, v{V_LANE}')
    a('s_waitcnt lgkmcnt(0)')
    srd_fix(a, S_A); srd_fix(a, S_B)
    a('s_mov_b32 s67, -1')
    L = a.uid('L_fin'); E = a.uid('L_finx')
    a.label(L)
    a(f's_cmp_ge_u32 s{S_TK}, {64*72}'); a(f's_cbranch_scc1 {E}')
    a(f's_mul_i32 s{S_S}, s{S_TK}, 58255'); a(f's_lshr_b32 s{S_S}, s{S_S}, 22')
    a(f's_mul_i32 s33, s{S_S}, 72'); a(f's_sub_u32 s70, s{S_TK}, s33')
    a('s_cmp_ge_u32 s70, 36'); a('s_cselect_b32 s71, 1, 0')
    a('s_mul_i32 s33, s71, 36'); a('s_sub_u32 s70, s70, s33')
    a('s_lshr_b32 s72, s70, 1'); a('s_and_b32 s73, s70, 1')
    sk = a.uid('L_fok')
    a(f's_cmp_eq_u32 s67, s{S_S}'); a(f's_cbranch_scc1 {sk}')
    a(f's_and_b32 s33, s{S_S}, 1'); a('s_lshl_b32 s33, s33, 7'); a(f's_add_u32 s33, s33, {F_SH}')
    a(f's_lshr_b32 s34, s{S_S}, 3'); a('s_lshl_b32 s34, s34, 5'); a(f's_add_u32 s34, s34, {F_F - 128}')
    a(f's_lshr_b32 s35, s{S_S}, 1'); a('s_add_u32 s35, s35, 1')
    a(f'v_cmp_gt_u32 vcc, 32, v{V_LANE}')
    a('v_mov_b32 v15, s34'); a('v_mov_b32 v16, s33'); a('v_cndmask_b32 v15, v15, v16, vcc'); a('v_add_u32 v15, v15, v14')
    a('v_mov_b32 v17, 1'); a('v_mov_b32 v16, s35'); a('v_cndmask_b32 v17, v17, v16, vcc')
    a('s_mov_b32 exec_lo, -1'); a('s_mov_b32 exec_hi, 0xff')
    poll(a, f'buffer_load_dword v16, v15, s[{S_WS}:{S_WS+3}], 0 offen sc1', 'v_cmp_le_u32 vcc, v17, v16')
    a('s_mov_b64 exec, -1')
    a(f's_mov_b32 s67, s{S_S}')
    a.label(sk)
    a(f's_lshl_b32 s33, s{S_S}, 5'); a('s_mul_i32 s33, s33, 36864'); a('s_mul_i32 s34, s71, 18432'); a('s_add_u32 s33, s33, s34')
    a('s_lshl_b32 s34, s72, 10'); a('s_add_u32 s33, s33, s34'); a('s_lshl_b32 s34, s73, 9'); a('s_add_u32 s33, s33, s34')
    a(f's_add_u32 s33, s33, {PART}')
    D = 32
    for i in range(16):
        a(f'buffer_load_dwordx4 v[{D+4*i}:{D+4*i+3}], v4, s[{S_WS}:{S_WS+3}], s33 offen sc1')
        if i < 15: a(f's_add_u32 s33, s33, {2*36864}')
    a(f's_lshl_b32 s33, s{S_S}, 5'); a('s_lshl_b32 s34, s71, 4'); a('s_add_u32 s33, s33, s34')
    a('s_lshl_b32 s34, s72, 5'); a('s_lshl_b32 s35, s73, 4'); a('s_add_u32 s34, s34, s35')
    a('s_mul_i32 s35, s33, 2304'); a('s_lshl_b32 s36, s34, 2'); a('s_add_u32 s35, s35, s36'); a(f's_add_u32 s35, s35, {FF}')
    a(f'buffer_load_dwordx4 v[20:23], v12, s[{S_WS}:{S_WS+3}], s35 offen sc1')
    a(f's_add_u32 s35, s35, {2048*2304}')
    a(f'buffer_load_dwordx4 v[24:27], v12, s[{S_WS}:{S_WS+3}], s35 offen sc1')
    a('s_mul_i32 s35, s33, 1152'); a('s_lshl_b32 s36, s34, 1'); a('s_add_u32 s35, s35, s36')
    a(f'buffer_load_dwordx2 v[28:29], v13, s[{S_A}:{S_A+3}], s35 offen')
    for i in range(16):
        a(f'v_mfma_f32_16x16x32_bf16 v[100:103], v[8:11], v[{D+4*i}:{D+4*i+3}], {"0" if i == 0 else "v[100:103]"}')
    for r in range(4):
        a(f'v_add_f32 v{20+r}, v{20+r}, v{24+r}')
    a('v_lshlrev_b32 v24, 16, v28'); a('v_and_b32 v25, 0xffff0000, v28'); a('v_lshlrev_b32 v26, 16, v29'); a('v_and_b32 v27, 0xffff0000, v29')
    for r in range(4):
        a(f'v_add_f32 v{20+r}, v{20+r}, v{24+r}')
    for r in range(4):
        a(f'v_add_f32 v{20+r}, v{20+r}, v{100+r}')
    a('v_cvt_pk_bf16_f32 v20, v20, v21'); a('v_cvt_pk_bf16_f32 v21, v22, v23')
    a(f'buffer_store_dwordx2 v[20:21], v13, s[{S_B}:{S_B+3}], s35 offen')
    a(f's_add_u32 s{S_TK}, s{S_TK}, {NFW}')
    a(f's_branch {L}')
    a.label(E)
    stamp(a, 7)
```

```python
import sys, gen_base
gen_base.DEV_STAMPS = False
import gen_chain
gen_chain.PROF_STEP = None
import gen
out = sys.argv[1] if len(sys.argv) > 1 else 'parallel_sum__memory_aug_recurrent_mem_tr__dense_activation_relu__prompt.s'
t = gen.build(('ln','kv','f1','f2','sh','fin','ch'), out)
assert 's_memtime' not in t and 's_memrealtime' not in t
print(len(t))
```

```python
import re
from collections import defaultdict

VCC = (('s', 106), ('s', 107))
EXEC = (('s', 126), ('s', 127))
M0 = (('s', 124),)

_reg_re = re.compile(r'^(v|a|s)(\d+)$')
_rng_re = re.compile(r'^(v|a|s)\[(\d+):(\d+)\]$')


def regs_of(op):
    op = op.strip()
    neg = op.startswith('-')
    if neg:
        op = op[1:]
    if op.startswith('|') and op.endswith('|'):
        op = op[1:-1]
    m = _reg_re.match(op)
    if m:
        return [(m.group(1), int(m.group(2)))]
    m = _rng_re.match(op)
    if m:
        return [(m.group(1), i) for i in range(int(m.group(2)), int(m.group(3)) + 1)]
    if op == 'vcc':
        return list(VCC)
    if op == 'vcc_lo':
        return [VCC[0]]
    if op == 'vcc_hi':
        return [VCC[1]]
    if op == 'exec':
        return list(EXEC)
    if op == 'exec_lo':
        return [EXEC[0]]
    if op == 'exec_hi':
        return [EXEC[1]]
    if op == 'm0':
        return list(M0)
    return []


TRANS = ('v_exp_f32', 'v_log_f32', 'v_rcp_f32', 'v_rsq_f32', 'v_sqrt_f32', 'v_sin_f32', 'v_cos_f32',
         'v_rcp_iflag_f32', 'v_exp_f16', 'v_rcp_f16')
MFMA_PASSES = {
    'v_mfma_f32_16x16x32_bf16': 4, 'v_mfma_f32_16x16x16_bf16': 4, 'v_mfma_f32_16x16x16_bf16_1k': 4,
    'v_mfma_f32_16x16x16bf16_1k': 4,
    'v_mfma_f32_32x32x16_bf16': 8, 'v_smfmac_f32_16x16x64_bf16': 4, 'v_smfmac_f32_16x16x32_bf16': 4,
    'v_mfma_f32_16x16x4_f32': 8, 'v_mfma_f32_16x16x4f32': 8,
}


def split_ops(s):
    out, depth, cur = [], 0, ''
    for ch in s:
        if ch in '[(':
            depth += 1
        elif ch in '])':
            depth -= 1
        if ch == ',' and depth == 0:
            out.append(cur.strip())
            cur = ''
        else:
            cur += ch
    if cur.strip():
        out.append(cur.strip())
    return out


class Ins:
    __slots__ = ('text', 'mn', 'ops', 'mods', 'defs', 'uses', 'kind', 'tok_def', 'tok_use', 'label', 'target',
                 'passes', 'srcC', 'srcAB', 'dpp', 'wide_store', 'comment', 'valu_sdefs', 'lds_dma', 'raw')

    def __init__(self, text):
        self.text = text
        self.label = None
        self.target = None
        self.tok_def = []
        self.tok_use = []
        self.defs = []
        self.uses = []
        self.passes = 0
        self.srcC = []
        self.srcAB = []
        self.dpp = False
        self.wide_store = []
        self.valu_sdefs = []
        self.lds_dma = False
        self.kind = 'other'
        self.raw = False
        self.mn = ''
        self.ops = []
        self.mods = ''


def parse(text):
    ins = Ins(text)
    t = text.split(';')[0].strip()
    if t.endswith(':'):
        ins.label = t[:-1]
        ins.kind = 'label'
        return ins
    if t.startswith('.'):
        ins.kind = 'directive'
        return ins
    sp = t.split(None, 1)
    mn = sp[0]
    rest = sp[1] if len(sp) > 1 else ''
    ops = split_ops(rest)
    mods = ''
    if ops:
        last = ops[-1].split(None, 1)
        if len(last) > 1 and not ops[-1].startswith('hwreg') and not ops[-1].startswith('vmcnt') \
                and not ops[-1].startswith('lgkmcnt'):
            ops[-1] = last[0]
            mods = last[1]
    ins.mn, ins.ops, ins.mods = mn, ops, mods
    base = re.sub(r'_(e32|e64|dpp|sdwa)$', '', mn)
    R = [regs_of(o) for o in ops]

    def flat(lst):
        return [r for x in lst for r in x]

    if mn.startswith('v_mfma') or mn.startswith('v_smfmac'):
        ins.kind = 'mfma'
        ins.passes = MFMA_PASSES[base]
        ins.defs = R[0]
        if mn.startswith('v_smfmac'):
            ins.srcC = R[0]
            ins.srcAB = R[1] + R[2] + R[3]
        else:
            ins.srcC = R[3]
            ins.srcAB = R[1] + R[2]
        ins.uses = ins.srcC + ins.srcAB
    elif mn.startswith('v_'):
        ins.kind = 'valu'
        ins.dpp = ('row_' in mods or 'quad_perm' in mods or 'dpp' in mn or 'wave_' in mods or 'row_' in rest)
        if base.startswith('v_cmpx'):
            ins.defs = list(EXEC) + R[0]
            ins.uses = flat(R[1:])
        elif base.startswith('v_cmp'):
            ins.defs = R[0]
            ins.uses = flat(R[1:])
        elif base in ('v_add_co_u32', 'v_sub_co_u32', 'v_subrev_co_u32', 'v_addc_co_u32', 'v_subb_co_u32',
                      'v_mad_u64_u32', 'v_div_scale_f32'):
            ins.defs = R[0] + R[1]
            ins.uses = flat(R[2:])
        elif base in ('v_permlane32_swap_b32', 'v_permlane16_swap_b32', 'v_swap_b32'):
            ins.defs = R[0] + R[1]
            ins.uses = R[0] + R[1]
        elif base in ('v_fmac_f32', 'v_mac_f32', 'v_writelane_b32', 'v_pk_fmac_f16', 'v_dot2c_f32_bf16'):
            ins.defs = R[0]
            ins.uses = flat(R)
        elif base == 'v_nop':
            pass
        else:
            ins.defs = R[0]
            ins.uses = flat(R[1:])
            if ins.dpp:
                ins.uses = ins.uses + R[0]
        if base == 'v_cndmask_b32' and len(ops) == 3:
            ins.uses = ins.uses + list(VCC)
        ins.valu_sdefs = [r for r in ins.defs if r[0] == 's']
    elif mn.startswith('ds_'):
        ins.kind = 'lds'
        if mn.startswith('ds_read') or mn.startswith('ds_bpermute') or mn.startswith('ds_permute') \
                or mn.startswith('ds_swizzle') or '_rtn' in mn:
            ins.defs = R[0]
            ins.uses = flat(R[1:])
        else:
            ins.uses = flat(R)
    elif mn.startswith('buffer_') or mn.startswith('global_'):
        ins.kind = 'vmem'
        allmods = ' ' + mods + ' '
        is_lds = (' lds ' in allmods) or ('_lds_' in mn)
        if mn in ('buffer_wbl2', 'buffer_inv'):
            pass
        elif is_lds:
            ins.lds_dma = True
            ins.uses = flat(R) + list(M0)
        elif '_load' in mn:
            ins.defs = R[0]
            ins.uses = flat(R[1:])
        elif '_store' in mn:
            ins.uses = flat(R)
            data = R[0] if mn.startswith('buffer_') else R[1]
            if len(data) >= 3:
                ins.wide_store = data
        elif '_atomic' in mn:
            ret = ' sc0 ' in allmods
            if mn.startswith('buffer_'):
                ins.uses = flat(R)
                if ret:
                    n = len(R[0])
                    ins.defs = R[0][:n // 2] if 'cmpswap' in mn else R[0]
            else:
                if ret:
                    ins.defs = R[0]
                    ins.uses = flat(R[1:])
                else:
                    ins.uses = flat(R)
        else:
            raise ValueError('vmem? ' + text)
    elif mn.startswith('s_'):
        ins.kind = 'salu'
        if mn.startswith('s_load') or mn.startswith('s_buffer_load') or mn in ('s_memtime', 's_memrealtime'):
            ins.kind = 'smem'
            ins.defs = R[0]
            ins.uses = flat(R[1:])
        elif mn.startswith('s_cbranch') or mn == 's_branch':
            ins.kind = 'branch'
            ins.target = ops[0]
            if 'vcc' in mn:
                ins.uses = list(VCC)
            if 'exec' in mn:
                ins.uses = list(EXEC)
        elif mn == 's_endpgm':
            ins.kind = 'end'
        elif mn == 's_waitcnt':
            ins.kind = 'wait'
        elif mn == 's_nop':
            ins.kind = 'nop'
        elif mn in ('s_barrier', 's_setprio', 's_sleep', 's_sethalt'):
            pass
        elif mn.startswith('s_cmp') or mn.startswith('s_bitcmp'):
            ins.uses = flat(R)
        elif 'saveexec' in mn:
            ins.defs = R[0] + list(EXEC)
            ins.uses = flat(R[1:]) + list(EXEC)
        elif mn == 's_setreg_b32' or mn == 's_setreg_imm32_b32':
            ins.uses = flat(R[1:])
        else:
            ins.defs = R[0] if R else []
            ins.uses = flat(R[1:])
            if mn in ('s_addk_i32', 's_mulk_i32') or mn.startswith('s_cmov') or mn.startswith('s_bitset'):
                ins.uses = ins.uses + R[0]
    else:
        raise ValueError('cannot parse: ' + text)
    return ins


class Asm:
    def __init__(self):
        self.items = []
        self._uid = 0
        self.time_aware = True

    def uid(self, p='L'):
        self._uid += 1
        return f'{p}{self._uid}'

    def __call__(self, text, tok=None, need=None):
        lines = [l for l in text.split('\n') if l.split(';')[0].strip()]
        out = []
        for l in lines:
            out.append(parse(l.strip()))
        if need:
            out[0].tok_use = list(need) if isinstance(need, (list, tuple)) else [need]
        if tok:
            out[-1].tok_def = list(tok) if isinstance(tok, (list, tuple)) else [tok]
        self.items.extend(out)
        return out[-1] if out else None

    def rawins(self, text):
        i = Ins(text)
        i.kind = 'other'
        self.items.append(i)

    def label(self, name):
        self(name + ':')

    def need(self, *toks):
        i = Ins('')
        i.kind = 'pseudo'
        i.tok_use = list(toks)
        self.items.append(i)

    def comment(self, s):
        i = Ins('; ' + s)
        i.kind = 'comment'
        self.items.append(i)

    def add(self, ins_list):
        self.items.extend(ins_list)

    def _cfg(self, items):
        lab = {}
        for n, it in enumerate(items):
            if it.kind == 'label':
                lab[it.label] = n
        succ = [[] for _ in items]
        for n, it in enumerate(items):
            if it.kind == 'end':
                continue
            if it.kind == 'branch':
                succ[n].append(lab[it.target])
                if it.mn != 's_branch' and n + 1 < len(items):
                    succ[n].append(n + 1)
            elif n + 1 < len(items):
                succ[n].append(n + 1)
        return succ

    @staticmethod
    def _parse_wait(it):
        vm = lg = None
        t = it.text
        m = re.search(r'vmcnt\((\d+)\)', t)
        if m:
            vm = int(m.group(1))
        m = re.search(r'lgkmcnt\((\d+)\)', t)
        if m:
            lg = int(m.group(1))
        return vm, lg

    def _insert_waits(self, items):
        succ = self._cfg(items)
        n_items = len(items)
        leaders = {0}
        for n, it in enumerate(items):
            if it.kind == 'label':
                leaders.add(n)
            if it.kind in ('branch', 'end') and n + 1 < n_items:
                leaders.add(n + 1)
        leaders = sorted(leaders)
        blk_end = {}
        for i, l in enumerate(leaders):
            blk_end[l] = leaders[i + 1] if i + 1 < len(leaders) else n_items
        preds = defaultdict(list)
        for n in range(n_items):
            for s in succ[n]:
                preds[s].append(n)

        def transfer(l, st, waits):
            vm, lg, sm = dict(st[0]), dict(st[1]), set(st[2])
            for n in range(l, blk_end[l]):
                it = items[n]
                if it.kind in ('label', 'comment', 'directive'):
                    continue
                if it.kind == 'wait':
                    wv, wl = self._parse_wait(it)
                    if wv is not None:
                        vm = {k: v for k, v in vm.items() if v < wv}
                    if wl is not None:
                        if wl == 0:
                            lg, sm = {}, set()
                        elif not sm:
                            lg = {k: v for k, v in lg.items() if v < wl}
                    continue
                keys = list(it.uses) + list(it.defs) + [('t', t) for t in it.tok_use]
                if it.kind == 'vmem' and it.defs and '_load' in it.mn:
                    vkeys = list(it.uses) + [('t', t) for t in it.tok_use]
                else:
                    vkeys = keys
                needv = [vm[k] for k in vkeys if k in vm]
                needl = [lg[k] for k in keys if k in lg]
                needs = [k for k in keys if k in sm]
                wv = min(needv) if needv else None
                wl = min(needl) if needl else None
                if needs or (wl is not None and sm):
                    wl = 0
                if wv is not None:
                    vm = {k: v for k, v in vm.items() if v < wv}
                if wl is not None:
                    if wl == 0:
                        lg, sm = {}, set()
                    else:
                        lg = {k: v for k, v in lg.items() if v < wl}
                if waits is not None and (wv is not None or wl is not None):
                    waits[n] = (wv, wl)
                if it.kind == 'vmem':
                    vm = {k: v + 1 for k, v in vm.items() if v + 1 < 64}
                    for r in it.defs:
                        vm[r] = 0
                    for t in it.tok_def:
                        vm[('t', t)] = 0
                    vm[('t', '*vm')] = 0
                elif it.kind == 'lds':
                    lg = {k: v + 1 for k, v in lg.items()}
                    for k in list(lg):
                        if lg[k] > 15:
                            lg[k] = 15
                    for r in it.defs:
                        lg[r] = 0
                    for t in it.tok_def:
                        lg[('t', t)] = 0
                    lg[('t', '*lds')] = 0
                elif it.kind == 'smem':
                    for r in it.defs:
                        sm.add(r)
                    for t in it.tok_def:
                        sm.add(('t', t))
                    sm.add(('t', '*smem'))
            return vm, lg, sm

        def merge(a, b):
            if a is None:
                return (dict(b[0]), dict(b[1]), set(b[2])), True
            ch = False
            vm, lg, sm = a
            for src, dst in ((b[0], vm), (b[1], lg)):
                for k, v in src.items():
                    if k not in dst or v < dst[k]:
                        dst[k] = v
                        ch = True
            for k in b[2]:
                if k not in sm:
                    sm.add(k)
                    ch = True
            return (vm, lg, sm), ch

        state = {l: None for l in leaders}
        work = []
        for l in leaders:
            if l == 0 or not preds.get(l):
                state[l] = ({}, {}, set())
                work.append(l)
        inwork = set(work)
        while work:
            l = work.pop(0)
            inwork.discard(l)
            out = transfer(l, state[l], None)
            last = blk_end[l] - 1
            for s in succ[last]:
                new, ch = merge(state[s], out)
                state[s] = new
                if ch and s not in inwork:
                    work.append(s)
                    inwork.add(s)
        waits = {}
        for l in leaders:
            if state[l] is not None:
                transfer(l, state[l], waits)
        res = []
        for n, it in enumerate(items):
            if n in waits:
                wv, wl = waits[n]
                s = 's_waitcnt'
                if wv is not None:
                    s += f' vmcnt({min(wv, 63)})'
                if wl is not None:
                    s += f' lgkmcnt({min(wl, 15)})'
                res.append(parse(s))
            if it.kind != 'pseudo':
                res.append(it)
        return res

    @staticmethod
    def _req(p, c):
        req = 0
        if p.kind == 'mfma':
            pd = set(p.defs)
            xdl = {4: (6, 8), 8: (10, 12), 2: (4, 5), 16: (18, 20)}[p.passes]
            if c.kind == 'mfma':
                cc = c.srcC
                if pd & set(cc):
                    if not (cc == p.defs and c.passes == p.passes):
                        req = max(req, xdl[0])
                if pd & set(c.srcAB):
                    req = max(req, xdl[1])
                if pd & set(c.defs) and not (pd & set(cc)):
                    if c.passes != p.passes or c.defs != p.defs:
                        req = max(req, xdl[0])
            elif c.kind in ('valu', 'vmem', 'lds'):
                if pd & (set(c.uses) | set(c.defs)):
                    req = max(req, xdl[1])
                if c.kind == 'valu' and set(p.srcC) & set(c.defs):
                    req = max(req, {4: 3, 8: 7, 2: 1, 16: 15}[p.passes])
        elif p.kind == 'valu':
            pd = set(p.defs)
            vd = {r for r in pd if r[0] in 'va'}
            sd = set(p.valu_sdefs)
            base = re.sub(r'_(e32|e64|dpp|sdwa)$', '', p.mn)
            if c.kind == 'mfma':
                if vd & set(c.uses):
                    req = max(req, 2)
                if sd & set(EXEC):
                    req = max(req, 4)
            elif c.kind == 'valu':
                cb = re.sub(r'_(e32|e64|dpp|sdwa)$', '', c.mn)
                cu = set(c.uses)
                if c.dpp and vd & cu:
                    req = max(req, 2)
                if c.dpp and sd & set(EXEC):
                    req = max(req, 5)
                if cb.startswith('v_permlane') and vd & cu:
                    req = max(req, 2)
                if cb.startswith('v_permlane') and sd & set(EXEC):
                    req = max(req, 4)
                if cb in ('v_readfirstlane_b32', 'v_readlane_b32'):
                    if vd & cu:
                        req = max(req, 1)
                    if sd & set(EXEC):
                        req = max(req, 4)
                if sd & cu:
                    req = max(req, 4 if cb in ('v_readlane_b32', 'v_writelane_b32', 'v_div_fmas_f32') else 2)
                if base in TRANS and vd & cu:
                    req = max(req, 1)
                if (('op_sel' in p.mods and not p.mn.endswith('_f32')) or 'sdwa' in p.mn or 'dst_sel' in p.mods) and vd & (cu | set(c.defs)):
                    req = max(req, 1)
            elif c.kind == 'vmem':
                if sd & set(c.uses):
                    req = max(req, 5)
            elif c.kind == 'branch':
                if sd & set(c.uses):
                    req = max(req, 5)
            elif c.kind in ('salu', 'smem'):
                if c.kind == 'smem' and sd & set(c.uses):
                    req = max(req, 5)
        elif p.kind == 'vmem':
            if p.wide_store and set(p.wide_store) & set(c.defs):
                req = max(req, 2 if c.kind in ('valu', 'mfma') else 1)
        elif p.kind == 'salu':
            if set(p.defs) & set(M0) and (c.lds_dma or c.mn == 's_sendmsg'):
                req = max(req, 1)
        return req

    @staticmethod
    def _ws(it):
        if it.kind == 'nop':
            return int(it.ops[0], 0) + 1
        if it.kind in ('label', 'comment', 'directive', 'pseudo'):
            return 0
        return 1

    def _pad_hazards(self, items):
        MAXD = 21
        out = []
        succ = self._cfg(items)
        preds = defaultdict(list)
        for n in range(len(items)):
            for s in succ[n]:
                preds[s].append(n)
        extra = defaultdict(int)
        interesting = ('mfma', 'valu', 'vmem', 'lds', 'smem', 'branch', 'salu')
        def elapsed(p, path, c, k):
            t = 0
            pit = items[p]
            pipe = pit.passes if (pit.kind == 'mfma' and self.time_aware) else 0
            for q in path:
                it = items[q]
                t += extra[q]
                w = self._ws(it)
                if w == 0:
                    continue
                t += w
                if it.kind == 'mfma' and self.time_aware:
                    t = max(t, pipe)
                    pipe = t + it.passes
            t += k + 1
            if c.kind == 'mfma' and self.time_aware:
                t = max(t, pipe)
            return t - 1
        for n, c in enumerate(items):
            if c.kind not in interesting:
                continue
            need = 0
            stack = [(p, 0, ()) for p in preds.get(n, [])]
            seen = {}
            while stack:
                p, d, path = stack.pop()
                if d >= MAXD:
                    continue
                sig = (p,) + tuple((items[q].kind == 'mfma', self._ws(items[q]), extra[q]) for q in path if self._ws(items[q]) or extra[q])
                if sig in seen or p in path:
                    continue
                seen[sig] = d
                it = items[p]
                r = self._req(it, c)
                if r > d:
                    k = 0
                    while elapsed(p, path, c, k) < r:
                        k += 1
                    need = max(need, k)
                nd = d + self._ws(it) + extra[p]
                for q in preds.get(p, []):
                    stack.append((q, nd, (p,) + path))
            extra[n] += need
        for n, it in enumerate(items):
            k = extra.get(n, 0)
            while k > 0:
                j = min(k, 16)
                out.append(parse(f's_nop {j - 1}'))
                k -= j
            out.append(it)
        return out

    def finalize(self):
        items = self._insert_waits(self.items)
        items = self._pad_hazards(items)
        lines = []
        for it in items:
            if it.kind == 'label':
                lines.append(it.text)
            elif it.kind == 'pseudo':
                continue
            else:
                lines.append(' ' + it.text)
        self.final_items = items
        return '\n'.join(lines) + '\n'


def interleave(main, fill, start=0, every=1, per=1):
    out, fi = [], 0
    for i, m in enumerate(main):
        out.append(m)
        if i >= start and (i - start) % every == 0:
            for _ in range(per):
                if fi < len(fill):
                    out.append(fill[fi])
                    fi += 1
    out.extend(fill[fi:])
    return out
```

```python
from gen_base import *
import struct
def f2u(x): return struct.unpack('<I', struct.pack('<f', x))[0]

EXB = 147456
X_MEM, X_TOK, X_SM, X_O = 0, 9216, 13312, 14336
V_EX, V_RES, V_EXW, V_C1, V_M2O, V_IDX, V_SEL = 0, 1, 2, 3, 4, 5, 6
AR, LR = 8, 24
QA, QB, KA, KB, VA, VB = 40, 44, 48, 52, 56, 60
KX, VX = 64, 72
PROF = 0x20000
PROF_STEP = None
PROF_REAL = False
EXP = set()

RESIDENT = [('Q', 0), ('K', 3), ('Q', 8), ('K', 8), ('V', 7), ('O', 2, 0), ('O', 2, 1), ('O', 3, 0), ('O', 3, 1)]
REGIMG = [(m, c) for c in range(9) for m in 'QKV' if (m, c) not in RESIDENT] + \
         [('O', 0, 0), ('O', 0, 1), ('O', 1, 0), ('O', 1, 1), ('S',)]
assert len(REGIMG) == 27
def opbase(k):
    return ('a', 8 * k) if k < 32 else ('v', 80 + 8 * (k - 32))
def opreg(img, tau):
    k = 2 * REGIMG.index(img) + tau
    f, b = opbase(k)
    return f'{f}[{b}:{b+7}]'

S_H, S_S = 40, 41
S_O0, S_O1, S_O2 = 42, 43, 44
S_MR = 45
S_MB = 46
S_CP = 47
S_CS = 48
S_CR = 49
S_K0, S_K1 = 50, 51
S_HB, S_B = 52, 53
S_C = 54
S_NM = 56
S_SEGO = 58
S_SMW = 59
S_OW = 60
S_CSS = 61
S_WOK, S_WA = 38, 39
T0, T1, T2, T3 = 33, 34, 35, 36
PS = 62

def prof(a, k):
    if PROF_STEP is None: return
    sk = a.uid('L_pf')
    a(f's_cmp_lg_u32 s{S_S}, {PROF_STEP + (1 if k >= 12 else 0)}'); a(f's_cbranch_scc1 {sk}')
    a.rawins(f's_mem{"real" if PROF_REAL else ""}time s[{PS+2*k}:{PS+2*k+1}]')
    a.label(sk)

def smf(d, av, b):
    return f'v_smfmac_f32_16x16x64_bf16 v[{d}:{d+3}], v[{av}:{av+3}], {b}, v{V_IDX}'

def lread(slot, dst, tau=None, half=None):
    return [f'ds_read_b128 v[{dst+4*q}:{dst+4*q+3}], v{V_RES} offset:{slot*4096 + q*1024}' for q in range(4)]

def setup(a):
    W = S_W
    a(f's_mov_b32 s{S_H}, s{S_T}')
    srd(a, S_A, 16, 576 * 8192); srd(a, S_B_, 24, 576 * 8192); srd(a, S_C_, 32, 576 * 8192); srd(a, S_D, 40, 32 * 147456)
    a(f'v_mov_b32 v79, v{V_LANE}')
    L = 79
    a(f'v_lshlrev_b32 v8, 4, v{L}')
    a(f'v_add_u32 v{V_EX}, {EXB}, v8')
    a(f's_mul_i32 s{T0}, s{W}, 36864'); a(f'v_add_u32 v{V_RES}, s{T0}, v8')
    a(f's_lshl_b32 s{T0}, s{W}, 10'); a(f'v_add_u32 v{V_EXW}, s{T0}, v{V_EX}')
    a(f'v_bfe_u32 v9, v{L}, 3, 1'); a('v_lshlrev_b32 v9, 12, v9')
    a(f'v_bfe_u32 v10, v{L}, 0, 1'); a('v_lshl_add_u32 v9, v10, 4, v9')
    a(f'v_bfe_u32 v10, v{L}, 1, 1'); a('v_lshl_add_u32 v9, v10, 3, v9')
    a(f'v_bfe_u32 v10, v{L}, 2, 1'); a('v_lshl_add_u32 v9, v10, 5, v9')
    a(f'v_bfe_u32 v10, v{L}, 4, 1'); a('v_lshl_add_u32 v9, v10, 6, v9')
    a(f'v_lshrrev_b32 v10, 5, v{L}')
    a(f'v_lshl_add_u32 v{V_C1}, v10, 13, v9')
    a(f'v_and_b32 v9, 3, v{L}'); a('v_lshlrev_b32 v9, 4, v9')
    a(f'v_bfe_u32 v10, v{L}, 4, 1'); a('v_lshl_add_u32 v9, v10, 6, v9')
    a(f'v_bfe_u32 v10, v{L}, 2, 1'); a('v_lshl_add_u32 v9, v10, 2, v9')
    a(f'v_lshrrev_b32 v10, 5, v{L}'); a(f'v_lshl_add_u32 v{V_M2O}, v10, 3, v9')
    a(f'v_bfe_u32 v10, v{L}, 3, 1'); a('v_mul_u32_u24 v10, 0xaaaa, v10'); a(f'v_add_u32 v{V_IDX}, 0x4444, v10')
    a(f'v_and_b32 v9, 7, v{L}'); a(f'v_bfe_u32 v10, v{L}, 4, 1'); a('v_lshlrev_b32 v10, 2, v10')
    a('v_sub_u32 v9, v9, v10')
    for r in range(2):
        a(f'v_mov_b32 v11, 0'); a('v_mov_b32 v12, 0x3f80'); a(f'v_cmp_eq_u32 vcc, {2*r}, v9'); a('v_cndmask_b32 v11, v11, v12, vcc')
        a('v_mov_b32 v12, 0x3f800000'); a(f'v_cmp_eq_u32 vcc, {2*r+1}, v9'); a(f'v_cndmask_b32 v{V_SEL+r}, v11, v12, vcc')
    a(f's_mov_b32 s{S_C}, {f2u(128 ** -0.5 * 1.4426950408889634):#x}'); a(f's_mov_b32 s{S_C+1}, s{S_C}')
    a(f's_mov_b32 s{S_NM}, 0x00ff00ff'); a(f's_mov_b32 s{S_NM+1}, 0x00ff00ff')
    a(f's_lshl_b32 s{T0}, s{W}, 10'); a(f's_add_u32 s{S_MR}, s{T0}, {M2 - EXB}')
    a(f's_lshl_b32 s{S_B}, s{W}, 5'); a(f's_add_u32 s{S_B}, s{S_B}, s{S_H}')
    a(f's_cmp_lt_u32 s{S_B}, 72'); a(f's_cselect_b32 s{S_HB}, 1, 0')
    a(f's_cmp_eq_u32 s{W}, 3'); a(f's_cselect_b32 s{S_HB}, 0, s{S_HB}')
    a(f's_min_u32 s{S_B}, s{S_B}, 71')
    a(f's_lshl_b32 s{T0}, s{S_B}, 7'); a(f's_add_u32 s{S_MB}, s{T0}, {M2}')
    a(f's_lshl_b32 s{T0}, s{S_B}, 12'); a(f's_add_u32 s{S_CR}, s{T0}, {C1 - EXB}')
    a(f's_lshl_b32 s{T0}, s{W}, 14'); a(f's_lshl_b32 s{T1}, s{S_H}, 7'); a(f's_add_u32 s{T0}, s{T0}, s{T1}')
    a(f's_add_u32 s{S_CS}, s{T0}, {C1}')
    a(f's_lshl_b32 s{T0}, s{W}, 13'); a(f's_add_u32 s{T0}, s{T0}, s{T1}'); a(f's_add_u32 s{S_CSS}, s{T0}, {C1 + 64*4096}')
    a(f's_lshr_b32 s{T0}, s{W}, 1'); a(f's_and_b32 s{T1}, s{W}, 1')
    a(f's_lshl_b32 s{S_SMW}, s{T0}, 9'); a(f's_lshl_b32 s{T2}, s{T1}, 7'); a(f's_add_u32 s{S_SMW}, s{S_SMW}, s{T2}')
    a(f's_lshl_b32 s{S_OW}, s{T0}, 10'); a(f's_add_u32 s{S_OW}, s{S_OW}, s{T2}')
    a(f's_mov_b32 s{S_K0}, 0'); a(f's_mov_b32 s{S_K1}, 0')
    a('s_waitcnt lgkmcnt(0)')
    for s_ in (S_A, S_B_, S_C_, S_D): srd_fix(a, s_)
    sk = a.uid('L_np')
    a(f's_cmp_eq_u32 s{S_HB}, 0'); a(f's_cbranch_scc1 {sk}')
    for r in range(4): a(f'v_mov_b32 v{8+r}, -1')
    for par in range(2):
        a(f's_add_u32 s{T0}, s{S_CR}, {par*294912}')
        for i in range(4):
            a(f'buffer_store_dwordx4 v[8:11], v{V_EX}, s[{S_WS}:{S_WS+3}], s{T0} offen offset:{i*1024} sc1')
    a(f's_add_u32 s{T0}, s{S_MB}, 9216')
    a(f'buffer_store_dword v8, v{V_M2O}, s[{S_WS}:{S_WS+3}], s{T0} offen sc1')
    a.label(sk)
    u0, p0, tau, p2, p3, p1 = 8, 9, 10, 11, 12, 13
    a(f'v_and_b32 v{u0}, 1, v{L}'); a(f'v_bfe_u32 v{p0}, v{L}, 4, 1'); a(f'v_bfe_u32 v{tau}, v{L}, 1, 1'); a(f'v_xor_b32 v{tau}, v{tau}, v{p0}')
    a(f'v_bfe_u32 v{p2}, v{L}, 2, 1'); a(f'v_bfe_u32 v{p3}, v{L}, 3, 1'); a(f'v_bfe_u32 v{p1}, v{L}, 5, 1')
    VQ, VO, VS_, VT0, VT1 = 20, 21, 22, 23, 24
    a(f'v_lshlrev_b32 v14, 5, v{tau}'); a(f'v_lshl_add_u32 v14, v{u0}, 4, v14'); a(f's_lshl_b32 s{T0}, s{W}, 6'); a(f'v_add_u32 v14, s{T0}, v14')
    a(f'v_lshl_add_u32 v15, v{p1}, 1, v{p0}')
    a(f'v_lshl_add_u32 v16, v{p2}, 2, v15'); a(f'v_lshl_add_u32 v16, v{p3}, 3, v16')
    a(f'v_lshl_add_u32 v{VQ}, v16, 13, v14')
    a(f'v_lshl_add_u32 v16, v{p2}, 4, v15'); a(f'v_lshl_add_u32 v16, v{p3}, 5, v16')
    a(f'v_mul_u32_u24 v17, 1152, v16'); a(f'v_add_u32 v{VO}, v17, v14')
    a(f'v_lshl_add_u32 v16, v{tau}, 6, v16'); a('v_mul_u32_u24 v17, 1152, v16')
    a(f'v_lshlrev_b32 v18, 4, v{u0}'); a(f's_lshl_b32 s{T0}, s{W}, 5'); a(f's_add_u32 s{T0}, s{T0}, 1024')
    a(f'v_add_u32 v18, s{T0}, v18'); a(f'v_add_u32 v{VS_}, v17, v18')
    a(f'v_bfe_u32 v{u0}, v{L}, 1, 1'); a(f'v_bfe_u32 v{p0}, v{L}, 2, 1'); a(f'v_bfe_u32 v{p3}, v{L}, 3, 1')
    a(f'v_bfe_u32 v{p2}, v{L}, 4, 1'); a(f'v_bfe_u32 v14, v{L}, 5, 1')
    a(f'v_lshl_add_u32 v15, v{p2}, 2, v{u0}'); a(f'v_lshl_add_u32 v15, v{p3}, 3, v15'); a(f'v_lshl_add_u32 v15, v{p0}, 4, v15')
    a('v_lshl_add_u32 v15, v14, 6, v15')
    a(f'v_lshl_add_u32 v16, v{p0}, 1, v15')
    a(f'v_xor_b32 v17, 2, v16')
    a(f'v_and_b32 v18, 1, v{L}'); a('v_lshlrev_b32 v18, 3, v18'); a(f's_mul_i32 s{T0}, s{W}, 36864'); a(f'v_add_u32 v18, s{T0}, v18')
    a(f'v_lshl_add_u32 v{VT0}, v16, 4, v18'); a(f'v_lshl_add_u32 v{VT1}, v17, 4, v18')
    a(f's_lshl_b32 s{T2}, s{S_H}, 8')
    a(f's_mul_i32 s{T3}, s{S_H}, 147456')
    a(f's_mul_i32 s37, s{W}, 36864')
    imgs = REGIMG + RESIDENT
    def dma(i):
        img = imgs[i]; slot = i % 9
        if img[0] in 'QKV':
            sr = {'Q': S_A, 'K': S_B_, 'V': S_C_}[img[0]]; vo = VQ; base = T2; c0 = img[1] * 64 * 8192; st = 16 * 8192
        elif img[0] == 'O':
            sr = S_D; vo = VO; base = T3; c0 = img[2] * 64 * 1152 + img[1] * 256; st = 4 * 1152
        else:
            sr = S_D; vo = VS_; base = T3; c0 = 0; st = 4 * 1152
        for n in range(4):
            a(f's_add_u32 m0, s37, {slot*4096 + n*1024}')
            a(f's_add_u32 s38, s{base}, {c0 + n*st}')
            a(f'buffer_load_dwordx4 v{vo}, s[{sr}:{sr+3}], s38 offen lds', tok=f'cw{i}')
    def trread(i):
        slot = i % 9
        for t in range(2):
            if i < 27:
                f, b = opbase(2 * i + t)
            else:
                f, b = 'v', 32 + 8 * t
            for hb in range(2):
                for rd in range(2):
                    r = b + 4 * hb + 2 * rd
                    a(f'ds_read_b64_tr_b16 {f}[{r}:{r+1}], v{VT0+t} offset:{slot*4096 + hb*2048 + rd*512}')
    for i in range(9): dma(i)
    for i in range(36):
        a.need(f'cw{i}')
        trread(i)
        a('s_waitcnt lgkmcnt(0)')
        if i + 9 < 36:
            dma(i + 9)
        if i >= 27:
            slot = i % 9
            for q in range(4):
                a(f'ds_write_b128 v{V_RES}, v[{32+4*q}:{32+4*q+3}] offset:{slot*4096 + q*1024}')
    a('s_waitcnt lgkmcnt(0)')

S_B_, S_C_ = 20, 24

def team_barrier(a):
    a('s_waitcnt vmcnt(0)')
    a('s_barrier')
    sk = a.uid('L_tb')
    a(f's_cmp_lg_u32 s{S_W}, 0'); a(f's_cbranch_scc1 {sk}')
    a(f's_lshl_b32 s{T0}, s{S_FOREIGN}, 16'); a(f's_add_u32 s{T0}, s{T0}, 1')
    a(f'v_mov_b32 v8, s{T0}'); a('v_mov_b32 v9, 0')
    a('s_mov_b64 exec, 1')
    a(f'buffer_atomic_add v8, v9, s[{S_DBG}:{S_DBG+3}], 0 offen offset:{D_CHB} sc1')
    a('s_mov_b64 exec, -1')
    a.label(sk)
    a('v_mov_b32 v9, 0'); a('v_mov_b32 v11, 32')
    poll(a, f'buffer_load_dword v8, v9, s[{S_DBG}:{S_DBG+3}], 0 offen offset:{D_CHB} sc1',
         'v_and_b32 v10, 0xffff, v8\nv_cmp_le_u32 vcc, v11, v10')
    a('v_lshrrev_b32 v8, 16, v8')
    a(f'v_readfirstlane_b32 s{S_FOREIGN}, v8')

def loop(a, sc, tag, io):
    WS = f's[{S_WS}:{S_WS+3}]'
    t_ = tag + ('i' if io else 'r')
    LS = f'L_cs{t_}'
    acc = {'Q': (QA, QB), 'K': (KA, KB), 'V': (VA, VB)}
    def W(m, c, t):
        if (m, c) in RESIDENT: return f'v[{LR+8*t}:{LR+8*t+7}]'
        return opreg((m, c), t)
    def mm1(m, c, t, slot): return smf(acc[m][t], AR + 4*slot, W(m, c, t))
    def lr(img): return lread(RESIDENT.index(img), LR)
    def aread(c, slot): return f'ds_read_b128 v[{AR+4*slot}:{AR+4*slot+3}], v{V_EX} offset:{X_MEM + c*1024}'
    def cvt(d, s0): return f'v_cvt_pk_bf16_f32 v{d}, v{s0}, v{s0+1}'
    def tr(d): return f'v_mfma_f32_16x16x16_bf16 v[{d}:{d+3}], v[{d}:{d+1}], v[{V_SEL}:{V_SEL+1}], 0'
    def pka(d, x, y): return f'v_pk_add_f32 v[{d}:{d+1}], v[{x}:{x+1}], v[{y}:{y+1}]'
    def zero(r): return f'v_mov_b64 v[{r}:{r+1}], 0'
    def em(*xs):
        for x in xs:
            if isinstance(x, (list, tuple)): em(*x)
            else: a(x)

    a.label(LS)
    prof(a, 12)
    prof(a, 0)
    B6, B1 = f'L_b6{t_}', f'L_b1{t_}'
    def sego():
        em(f's_lshl_b32 s{S_SEGO}, s{S_S}, 5', f's_add_u32 s{S_SEGO}, s{S_SEGO}, s{S_H}', f's_lshl_b32 s{S_SEGO}, s{S_SEGO}, 13',
           f's_lshl_b32 s{T0}, s{S_W}, 11', f's_add_u32 s{S_SEGO}, s{S_SEGO}, s{T0}', f's_sub_u32 s{S_SEGO}, s{S_SEGO}, {EXB}')
    if io:
        if 'steps' in EXP:
            em('s_memtime s[62:63]', f's_lshl_b32 s{T0}, s{S_H}, 6', f's_add_u32 s{T0}, s{T0}, s{S_S}', f's_lshl_b32 s{T0}, s{T0}, 3',
               f's_add_u32 s{T0}, s{T0}, {PROF + 0x10000}', 's_waitcnt lgkmcnt(0)', 'v_mov_b32 v8, s62', 'v_mov_b32 v9, s63', 'v_mov_b32 v10, 0',
               's_mov_b64 exec, 1', f'buffer_store_dwordx2 v[8:9], v10, {WS}, s{T0} offen', 's_mov_b64 exec, -1')
        em([zero(r) for r in range(QA, QA + 24, 2)], lr(('Q', 0)))
        sego()
        em(f's_lshr_b32 s{T1}, s{S_S}, 1', f's_add_u32 s{T1}, s{T1}, 1')
        em(f's_add_u32 s{T2}, s{T1}, 1', f's_min_u32 s{T2}, s{T2}, 32')
        em(f's_bitcmp1_b32 s{S_S}, 0', f's_cselect_b32 s{T0}, s{S_K1}, s{S_K0}')
        OK, FL = f'L_ok{t_}', f'L_fl{t_}'
        em(f's_cmp_ge_u32 s{T0}, s{T2}', f's_cbranch_scc1 {OK}')
        em(f'v_subrev_u32 v9, {EXB}, v{V_EX}', 'v_lshlrev_b32 v9, 3, v9')
        em(f's_lshl_b32 s{T3}, s{S_H}, 2', f's_add_u32 s{T3}, s{T3}, {F_KV}')
        a.label(FL)
        em('s_mov_b64 exec, 3', f'buffer_load_dword v8, v9, {WS}, s{T3} offen sc1', 's_mov_b64 exec, -1')
        em(f'v_readlane_b32 s{S_K0}, v8, 0', f'v_readlane_b32 s{S_K1}, v8, 1')
        em(f's_bitcmp1_b32 s{S_S}, 0', f's_cselect_b32 s{T0}, s{S_K1}, s{S_K0}')
        em(f's_cmp_ge_u32 s{T0}, s{T1}', f's_cbranch_scc1 {OK}')
        em(f's_cmp_eq_u32 s{S_BUD}, 0', f's_cbranch_scc1 {OK}')
        em(f's_sub_u32 s{S_BUD}, s{S_BUD}, 1', f's_branch {FL}')
        a.label(OK)
        em(f's_add_u32 s{T1}, s{T1}, 1', f's_cmp_ge_u32 s{T0}, s{T1}', f's_cselect_b32 s{S_WOK}, 1, 0')
        em(f's_add_u32 s{T0}, s{S_S}, 2', f's_lshl_b32 s{T0}, s{T0}, 5', f's_add_u32 s{T0}, s{T0}, s{S_H}', f's_lshl_b32 s{S_WA}, s{T0}, 13')
        prof(a, 9)
        a('s_barrier')
        a.need('kmvm')
        prof(a, 1)
    else:
        NR = f'L_nr{t_}'
        em(f's_cmp_eq_u32 s{S_HB}, 0', f's_cbranch_scc1 {NR}', f's_cmp_eq_u32 s{S_S}, 0', f's_cbranch_scc1 {NR}')
        em(f's_xor_b32 s{T0}, s{S_CP}, 294912', f's_add_u32 s{T0}, s{T0}, s{S_CR}')
        def cload(base):
            if 'noload' in EXP: return []
            return [f'buffer_load_dwordx4 v[{base+4*i}:{base+4*i+3}], v{V_EX}, {WS}, s{T0} offen offset:{i*1024} sc1' for i in range(4)]
        SEL8, RA, RT = 56, 60, 54
        em(cload(8))
        em(f'v_mov_b32 v{SEL8}, v{V_SEL}', f'v_mov_b32 v{SEL8+2}, v{V_SEL}', f'v_mov_b32 v{SEL8+1}, v{V_SEL+1}', f'v_mov_b32 v{SEL8+3}, v{V_SEL+1}')
        em(f's_add_u32 s{T1}, s{S_MB}, s{S_O0}')
        em(zero(40), f'v_permlane16_swap_b32 v{SEL8}, v{SEL8+2}', f'v_permlane16_swap_b32 v{SEL8+1}, v{SEL8+3}')
        em([zero(r) for r in range(42, 54, 2)], lr(('Q', 0)))
        def creduce(base):
            for i in range(4):
                b = base + 4*i
                a(f'v_mfma_f32_16x16x32_bf16 v[{RA}:{RA+3}], v[{b}:{b+3}], v[{SEL8}:{SEL8+3}], {"0" if i == 0 else f"v[{RA}:{RA+3}]"}')
                if i == 0: em(f'v_max3_u32 v{RT}, v{b}, v{b+1}, v{b+2}', f'v_mov_b32 v{RT+1}, v{b+3}')
                else: em(f'v_max3_u32 v{RT}, v{RT}, v{b}, v{b+1}', f'v_max3_u32 v{RT+1}, v{RT+1}, v{b+2}, v{b+3}')
            em(f'v_max_u32 v{RT}, v{RT}, v{RT+1}', f'v_cmp_eq_u32 vcc, -1, v{RT}', 's_cmp_eq_u64 vcc, 0')
            if 'nocheck' in EXP or 'nocheck6' in EXP: a('s_cmp_eq_u32 s15, s15')
        RL, RD = f'L_rp{t_}', f'L_rpd{t_}'
        if 'deep6' in EXP:
            em(cload(64))
            a.label(RL)
            creduce(8); em(f's_cbranch_scc1 {RD}')
            em(cload(8))
            creduce(64); em(f's_cbranch_scc1 {RD}')
            em(cload(64))
            em(f's_cmp_eq_u32 s{S_BUD}, 0', f's_cbranch_scc1 {RD}', f's_sub_u32 s{S_BUD}, s{S_BUD}, 1', f's_branch {RL}')
        else:
            a.label(RL)
            creduce(8); em(f's_cbranch_scc1 {RD}')
            em(f's_cmp_eq_u32 s{S_BUD}, 0', f's_cbranch_scc1 {RD}', f's_sub_u32 s{S_BUD}, s{S_BUD}, 1')
            em(cload(8), f's_branch {RL}')
        a.label(RD)
        em(f'v_permlane32_swap_b32 v{RA}, v{RA+2}', f'v_permlane32_swap_b32 v{RA+1}, v{RA+3}', pka(RA, RA, RA + 2), cvt(RA, RA))
        em(f'buffer_store_dword v{RA}, v{V_M2O}, {WS}, s{T1} offen{sc}')
        em(zero(54))
        em(f's_branch {B6}')
        a.label(NR)
        em([zero(r) for r in range(40, 56, 2)], lr(('Q', 0)))
        a.label(B6)
        prof(a, 9)
        a('s_barrier')
        M0L = f'L_m0{t_}'
        em(f's_cmp_eq_u32 s{S_S}, 0', f's_cbranch_scc1 {M0L}')
        em(f's_add_u32 s{T0}, s{S_MR}, s{S_O0}', f's_add_u32 s{T1}, s{T0}, 4096')
        def mload(r):
            if 'noload' in EXP: return []
            return [f'buffer_load_dwordx4 v[{r[0]}:{r[0]+3}], v{V_EX}, {WS}, s{T0} offen sc1',
                    f'buffer_load_dwordx4 v[{r[1]}:{r[1]+3}], v{V_EX}, {WS}, s{T0} offen offset:3072 sc1',
                    f'buffer_load_dwordx4 v[{r[2]}:{r[2]+3}], v{V_EX}, {WS}, s{T1} offen offset:2048 sc1']
        def mcheck(r):
            x, y, z = r
            em(f'ds_write_b128 v{V_EXW}, v[{x}:{x+3}] offset:{X_MEM}',
               f'v_max3_u32 v20, v{x}, v{x+1}, v{x+2}',
               f'ds_write_b128 v{V_EXW}, v[{y}:{y+3}] offset:{X_MEM + 3072}',
               f'v_max3_u32 v20, v20, v{x+3}, v{y}', f'v_max3_u32 v21, v{y+1}, v{y+2}, v{y+3}',
               f'ds_write_b128 v{V_EXW}, v[{z}:{z+3}] offset:{X_MEM + 6144}',
               f'v_max3_u32 v20, v20, v{z}, v{z+1}', f'v_max3_u32 v21, v21, v{z+2}, v{z+3}',
               'v_max_u32 v20, v20, v21', 'v_cmp_eq_u32 vcc, -1, v20', 's_cmp_eq_u64 vcc, 0')
            if 'nocheck' in EXP or 'nocheck0' in EXP: a('s_cmp_eq_u32 s15, s15')
        R1, R2 = (64, 68, 72), (56, 60, 76)
        PL, PD = f'L_pm{t_}', f'L_pmd{t_}'
        em(mload(R1))
        if 'deep0' in EXP:
            sego()
            em(mload(R2))
            a.label(PL)
            mcheck(R1); em(f's_cbranch_scc1 {PD}')
            em(mload(R1))
            mcheck(R2); em(f's_cbranch_scc1 {PD}')
            em(mload(R2))
            em(f's_cmp_eq_u32 s{S_BUD}, 0', f's_cbranch_scc1 {PD}', f's_sub_u32 s{S_BUD}, s{S_BUD}, 1', f's_branch {PL}')
        else:
            sego()
            a.label(PL)
            mcheck(R1); em(f's_cbranch_scc1 {PD}')
            em(f's_cmp_eq_u32 s{S_BUD}, 0', f's_cbranch_scc1 {PD}', f's_sub_u32 s{S_BUD}, s{S_BUD}, 1')
            em(f's_add_u32 s{T0}, s{S_MR}, s{S_O0}', f's_add_u32 s{T1}, s{T0}, 4096')
            em(mload(R1), f's_branch {PL}')
        a.label(PD)
        em(f's_branch {B1}')
        a.label(M0L)
        sego()
        srd(a, S_A, 8, 9216)
        a(f'v_subrev_u32 v21, {EXB}, v{V_EX}'); a('v_lshrrev_b32 v21, 4, v21')
        a('v_and_b32 v22, 7, v21'); a('v_mul_u32_u24 v22, 1152, v22')
        a('v_lshrrev_b32 v23, 3, v21'); a('v_lshl_add_u32 v22, v23, 4, v22')
        a(f's_lshl_b32 s{T0}, s{S_W}, 7')
        a('s_waitcnt lgkmcnt(0)')
        srd_fix(a, S_A)
        for k in range(3):
            a(f'buffer_load_dwordx4 v[{8+4*k}:{11+4*k}], v22, s[{S_A}:{S_A+3}], s{T0} offen offset:{k*384}')
        for k in range(3):
            a(f'ds_write_b128 v{V_EXW}, v[{8+4*k}:{11+4*k}] offset:{X_MEM + 3072*k}')
        a.label(B1)
        prof(a, 1)
        a('s_waitcnt lgkmcnt(0)')
    a('s_barrier')
    prof(a, 2)
    em([aread(c, c) for c in range(4)])
    em(f's_add_u32 s{T0}, s{S_SEGO}, {KF}', f's_add_u32 s{T1}, s{S_SEGO}, {VF}')
    for k in range(2):
        a(f'buffer_load_dwordx4 v[{KX+4*k}:{KX+4*k+3}], v{V_EX}, {WS}, s{T0} offen offset:{k*1024}')
    for k in range(2):
        a(f'buffer_load_dwordx4 v[{VX+4*k}:{VX+4*k+3}], v{V_EX}, {WS}, s{T1} offen offset:{k*1024}')
    if io:
        em(f'v_subrev_u32 v60, {EXB}, v{V_EX}', 'v_lshlrev_b32 v60, 3, v60', f'v_mov_b32 v61, s{S_S}')
        em(f's_lshl_b32 s{T2}, s{S_H}, 2', f's_add_u32 s{T2}, s{T2}, {F_CH}')
        em('s_mov_b64 exec, 15', f'buffer_store_dword v61, v60, {WS}, s{T2} offen sc1', 's_mov_b64 exec, -1')
        NW = f'L_nw{t_}'
        em(f's_cmp_eq_u32 s{S_WOK}, 0', f's_cbranch_scc1 {NW}')
        em(f's_add_u32 s{T1}, s{S_WA}, {KF}', f's_add_u32 s{T2}, s{S_WA}, {VF}')
        em(f'buffer_load_dword v{V_M2O}, v60, {WS}, s{T1} offen', f'buffer_load_dword v{V_M2O}, v60, {WS}, s{T2} offen')
        a.label(NW)
    q = lambda c, t, sl: mm1('Q', c, t, sl)
    k = lambda c, t, sl: mm1('K', c, t, sl)
    v = lambda c, t, sl: mm1('V', c, t, sl)
    em(q(0, 0, 0), q(0, 1, 0), lr(('K', 3)), k(0, 0, 0), k(0, 1, 0), aread(4, 0))
    em(q(1, 0, 1), q(1, 1, 1), k(1, 0, 1), k(1, 1, 1), aread(5, 1))
    em(q(2, 0, 2), q(2, 1, 2), k(2, 0, 2), k(2, 1, 2), aread(6, 2))
    em(q(3, 0, 3), q(3, 1, 3), k(3, 0, 3), k(3, 1, 3), lr(('Q', 8)), aread(7, 3))
    em(q(4, 0, 0), q(4, 1, 0), zero(56), zero(58), k(4, 0, 0), zero(60), zero(62), k(4, 1, 0), aread(8, 0))
    em(q(5, 0, 1), q(5, 1, 1), q(6, 0, 2), q(6, 1, 2), q(7, 0, 3), q(7, 1, 3), q(8, 0, 0), q(8, 1, 0), lr(('K', 8)))
    em(k(5, 0, 1), cvt(QA, QA), cvt(QA + 1, QA + 2), k(5, 1, 1), cvt(QB, QB), cvt(QB + 1, QB + 2), k(6, 0, 2))
    em(tr(QA), tr(QB), k(6, 1, 2), k(7, 0, 3))
    em(cvt(QA, QA), cvt(QA + 1, QA + 2), k(7, 1, 3), cvt(QA + 2, QB), cvt(QA + 3, QB + 2))
    em(k(8, 0, 0), k(8, 1, 0), lr(('V', 7)))
    prof(a, 3)
    em(f'v_mfma_f32_16x16x32_bf16 v[{KX}:{KX+3}], v[{KX}:{KX+3}], v[{QA}:{QA+3}], 0')
    em(cvt(KA, KA), cvt(KA + 1, KA + 2))
    em(f'v_mfma_f32_16x16x32_bf16 v[{KX+4}:{KX+7}], v[{KX+4}:{KX+7}], v[{QA}:{QA+3}], 0')
    em(cvt(KB, KB), cvt(KB + 1, KB + 2))
    em(tr(KA), f's_add_u32 s{T0}, s{S_SEGO}, {KM}', tr(KB))
    for r in range(4):
        a(f'v_mov_b32_dpp v{KX+r}, v{KX+4+r} quad_perm:[0,1,2,3] row_mask:0xf bank_mask:0xc')
    em(v(5, 0, 1), f'ds_write_b128 v{V_EXW}, v[{KX}:{KX+3}] offset:{X_TOK}')
    em(cvt(KA, KA), cvt(KA + 1, KA + 2), v(5, 1, 1), cvt(KA + 2, KB), cvt(KA + 3, KB + 2))
    em(aread(0, 1), f'v_and_b32 v{KX+4}, 0xfffffd7f, v{V_EX}')
    em(f'v_mfma_f32_16x16x32_bf16 v[{QB}:{QB+3}], v[{KA}:{KA+3}], v[{QA}:{QA+3}], 0')
    em(f'v_add_u32 v{KB+1}, s{S_SMW}, v{KX+4}')
    em(f'buffer_store_dwordx4 v[{KA}:{KA+3}], v{V_EX}, {WS}, s{T0} offen sc1')
    em(v(6, 0, 2), v(6, 1, 2), aread(1, 2))
    em(f'ds_write_b128 v{KB+1}, v[{QB}:{QB+3}] offset:{X_SM}')
    em(v(7, 0, 3), v(7, 1, 3), aread(2, 3), v(8, 0, 0), v(8, 1, 0), aread(3, 0))
    prof(a, 4)
    a('s_waitcnt lgkmcnt(2)')
    a('s_barrier')
    prof(a, 5)
    for kk in range(4):
        a(f'ds_read_b128 v[{40+4*kk}:{43+4*kk}], v{V_EX} offset:{X_TOK + kk*1024}')
    MP = [24, 28, 32, 36]
    for kk in range(4):
        a(f'ds_read_b128 v[{MP[kk]}:{MP[kk]+3}], v{KX+4} offset:{X_SM + (kk>>1)*512 + (kk&1)*128}')
    em(v(0, 0, 1), v(0, 1, 1), aread(4, 1), v(1, 0, 2), v(1, 1, 2), v(2, 0, 3), v(2, 1, 3))
    em(pka(40, 40, 44), pka(42, 42, 46), pka(48, 48, 52), v(3, 0, 0), pka(50, 50, 54), pka(40, 40, 48), pka(42, 42, 50), v(3, 1, 0))
    em(pka(24, 24, 28), pka(26, 26, 30), pka(32, 32, 36), v(4, 0, 1), pka(34, 34, 38), pka(64, 24, 32), pka(66, 26, 34), v(4, 1, 1))
    em('v_max3_f32 v68, v40, v41, v42', 'v_max3_f32 v69, v43, v64, v65', 'v_max3_f32 v68, v68, v66, v67', 'v_max_f32 v68, v68, v69')
    pre = lread(5, 8) + lread(6, 24)
    em(pre[4], pre[5])
    em('v_max_f32_dpp v68, v68, v68 row_ror:8 row_mask:0xf bank_mask:0xf', 'v_mov_b32 v69, v68')
    em(pre[6], pre[7])
    em('v_permlane32_swap_b32 v68, v69', 'v_max_f32 v68, v68, v69', 'v_mov_b32 v69, v68')
    em(pre[0], pre[1])
    em('v_permlane16_swap_b32 v68, v69', 'v_max_f32 v68, v68, v69', f'v_mul_f32 v68, s{S_C}, v68')
    em(pre[2], pre[3])
    for d in (64, 66, 40, 42):
        a(f'v_pk_fma_f32 v[{d}:{d+1}], v[{d}:{d+1}], s[{S_C}:{S_C+1}], v[68:69] op_sel_hi:[1,1,0] neg_lo:[0,0,1] neg_hi:[0,0,1]')
    em('v_exp_f32 v64, v64', cvt(VA, VA), 'v_exp_f32 v65, v65', cvt(VA + 1, VA + 2), 'v_exp_f32 v66, v66', cvt(VA + 2, VB),
       'v_exp_f32 v67, v67', cvt(VA + 3, VB + 2), 'v_exp_f32 v40, v40', f's_add_u32 s{T0}, s{S_SEGO}, {KM}', 'v_exp_f32 v41, v41')
    a(f'buffer_store_dwordx4 v[{VA}:{VA+3}], v{V_EX}, {WS}, s{T0} offen offset:1024 sc1', tok='kmvm')
    em('v_exp_f32 v42, v42', f's_cmp_eq_u32 s{S_S}, 63', 'v_exp_f32 v43, v43', 's_cbranch_scc1 L_chx')
    em(cvt(48, 64), cvt(49, 66), cvt(44, 40), cvt(45, 42))
    em(pka(40, 40, 42), pka(64, 64, 66))
    em(f'v_mfma_f32_16x16x16_bf16 v[52:55], v[{VA}:{VA+1}], v[48:49], 0')
    em('v_mov_b32_dpp v46, v44 row_ror:8 row_mask:0xf bank_mask:0xf', 'v_mov_b32_dpp v47, v45 row_ror:8 row_mask:0xf bank_mask:0xf')
    em('v_add_f32 v40, v40, v41')
    em(f'v_mfma_f32_16x16x16_bf16 v[60:63], v[{VA+2}:{VA+3}], v[48:49], 0')
    em('v_add_f32 v64, v64, v65', 'v_fmac_f32 v40, 0.25, v64', f'v_add_u32 v70, s{S_OW}, v{V_EX}')
    em(f'v_mfma_f32_16x16x32_bf16 v[52:55], v[{VX}:{VX+3}], v[44:47], v[52:55]')
    em('v_add_f32_dpp v40, v40, v40 row_ror:8 row_mask:0xf bank_mask:0xf', 'v_mov_b32 v41, v40', zero(48))
    em(f'v_mfma_f32_16x16x32_bf16 v[60:63], v[{VX+4}:{VX+7}], v[44:47], v[60:63]')
    em('v_permlane32_swap_b32 v40, v41', 'v_add_f32 v40, v40, v41', 'v_mov_b32 v41, v40', zero(50), zero(56))
    em('v_permlane16_swap_b32 v40, v41', 'v_add_f32 v40, v40, v41', 'v_rcp_f32 v40, v40', zero(58))
    for d in (52, 54, 60, 62):
        a(f'v_pk_mul_f32 v[{d}:{d+1}], v[{d}:{d+1}], v[40:41] op_sel_hi:[1,0]')
    em(cvt(64, 52), cvt(65, 54), cvt(66, 60), cvt(67, 62))
    em(f's_mov_b64 exec, s[{S_NM}:{S_NM+1}]', f'ds_write_b128 v70, v[64:67] offset:{X_O}', 's_mov_b64 exec, -1')
    if not io:
        NP = f'L_npz{t_}'
        em(f's_cmp_eq_u32 s{S_HB}, 0', f's_cbranch_scc1 {NP}')
        em('v_mov_b64 v[76:77], -1', 'v_mov_b64 v[78:79], -1')
        em(f's_xor_b32 s{T0}, s{S_CP}, 294912', f's_add_u32 s{T0}, s{T0}, s{S_CR}', f's_add_u32 s{T1}, s{S_MB}, s{S_O2}')
        for i in range(4):
            a(f'buffer_store_dwordx4 v[76:79], v{V_EX}, {WS}, s{T0} offen offset:{i*1024}{sc}')
        a(f'buffer_store_dword v76, v{V_M2O}, {WS}, s{T1} offen{sc}')
        a.label(NP)
    prof(a, 6)
    a('s_waitcnt lgkmcnt(0)')
    a('s_barrier')
    prof(a, 7)
    for jj in range(2):
        a(f'ds_read_b128 v[{64+4*jj}:{67+4*jj}], v{V_EX} offset:{X_O + jj*1024}')
    em([zero(r) for r in (40, 42, 44, 46, 52, 54, 60, 62, 72, 74, 76, 78)])
    em(f's_add_u32 s{T0}, s{S_CS}, s{S_CP}', f's_add_u32 s{T1}, s{S_CSS}, s{S_CP}')
    def epi(t, i2):
        u = t + 4
        return [f'v_permlane32_swap_b32 v{t+i}, v{u+i}' for i in range(4)] + \
               [pka(t, t, u), pka(t + 2, t + 2, u + 2), cvt(t, t), cvt(t + 1, t + 2), f's_add_u32 s{T2}, s{T0}, {i2*65536}',
                f'buffer_store_dwordx2 v[{t}:{t+1}], v{V_C1}, {WS}, s{T2} offen{sc}']
    ring = [8, 16, 24, 32]
    nxt = lread(7, 8) + lread(8, 24)
    JT = [(0, 0), (0, 1), (1, 0), (1, 1)]
    GA, GB, GC, GD, GS = 40, 48, 56, 72, 40
    for qq, (jj, t) in enumerate(JT):
        em(smf(GA + 4*t, 64 + 4*jj, f'v[{ring[qq]}:{ring[qq]+7}]'), nxt[2*qq], nxt[2*qq+1])
    def grp(g, img): return [smf(g + 4*t, 64 + 4*jj, opreg(('O', img, jj), t)) for jj, t in JT]
    b_, c_ = grp(GB, 0), grp(GC, 1)
    d_ = [smf(GD + 4*t, 64 + 4*jj, f'v[{ring[qq]}:{ring[qq]+7}]') for qq, (jj, t) in enumerate(JT)]
    s_ = [smf(GS, 64 + 4*jj, opreg(('S',), jj)) for jj in range(2)]
    e = epi(GA, 2)
    em(b_[0], b_[1], e[0:3], b_[2], e[3:6], b_[3], e[6:10])
    e = epi(GB, 0)
    em(c_[0], zero(GS), c_[1], e[0:3], c_[2], zero(GS + 2), e[3:6], c_[3], e[6:10])
    e = epi(GC, 1)
    em(d_[0], d_[1], e[0:3], d_[2], e[3:6], d_[3], e[6:10])
    e = epi(GD, 3)
    em(s_[0], s_[1], e)
    em(f'v_permlane32_swap_b32 v{GS}, v{GS+2}', f'v_permlane32_swap_b32 v{GS+1}, v{GS+3}', pka(GS, GS, GS + 2), cvt(GS, GS))
    em(f'v_mov_b32 v{GS+1}, v{GS}', f'v_and_b32 v{GS+2}, 0x1fff, v{V_C1}')
    em(f's_mov_b32 s{T0}, s{S_O0}', f's_mov_b32 s{S_O0}, s{S_O1}')
    em(f'v_permlane32_swap_b32 v{GS}, v{GS+1}')
    em(f'buffer_store_dwordx2 v[{GS}:{GS+1}], v{GS+2}, {WS}, s{T1} offen{sc}')
    em(f's_mov_b32 s{S_O1}, s{S_O2}', f's_mov_b32 s{S_O2}, s{T0}')
    em(f's_xor_b32 s{S_CP}, s{S_CP}, 294912', f's_add_u32 s{S_S}, s{S_S}, 1')
    prof(a, 8)
    a(f's_branch {LS}')

def chain_role(a):
    setup(a)
    stamp(a, 2)
    team_barrier(a)
    gbar_wait(a, 8, 9)
    stamp(a, 3)
    a(f's_mov_b32 s{S_S}, 0'); a(f's_mov_b32 s{S_O0}, 0'); a(f's_mov_b32 s{S_O1}, 9216'); a(f's_mov_b32 s{S_O2}, 18432')
    a(f's_mov_b32 s{S_CP}, 0')
    variants = getattr(chain_role, 'variants', 'both')
    vs = {'both': [('', 'l'), (' sc1', 'f')], 'loc': [('', 'l')], 'for': [(' sc1', 'f')]}[variants]
    if variants == 'both':
        a(f's_cmp_lg_u32 s{S_FOREIGN}, 0'); a('s_cbranch_scc1 L_cdf')
    for sc, tag in vs:
        a.label(f'L_cd{tag}')
        a(f's_cmp_eq_u32 s{S_W}, 3'); a(f's_cbranch_scc1 L_cs{tag}i')
        loop(a, sc, tag, False)
        loop(a, sc, tag, True)
    a.label('L_chx')
    WS = f's[{S_WS}:{S_WS+3}]'
    a('s_waitcnt vmcnt(0)')
    a('s_barrier')
    sk = a.uid('L_x')
    a(f's_cmp_lg_u32 s{S_W}, 3'); a(f's_cbranch_scc1 {sk}')
    a(f'v_subrev_u32 v60, {EXB}, v{V_EX}'); a('v_lshlrev_b32 v60, 3, v60'); a('v_mov_b32 v61, 64')
    a(f's_lshl_b32 s{T2}, s{S_H}, 2'); a(f's_add_u32 s{T2}, s{T2}, {F_CH}')
    a('s_mov_b64 exec, 15')
    a(f'buffer_store_dword v61, v60, {WS}, s{T2} offen sc1')
    a('s_mov_b64 exec, -1')
    a.label(sk)
    if PROF_STEP is not None:
        a('s_waitcnt lgkmcnt(0)')
        a(f's_lshl_b32 s{T0}, s{S_H}, 2'); a(f's_add_u32 s{T0}, s{T0}, s{S_W}'); a(f's_lshl_b32 s{T0}, s{T0}, 7'); a(f's_add_u32 s{T0}, s{T0}, {PROF}')
        a('v_mov_b32 v10, 0'); a('s_mov_b64 exec, 1')
        for k in range(13):
            a(f'v_mov_b32 v8, s{PS+2*k}'); a(f'v_mov_b32 v9, s{PS+2*k+1}')
            a(f'buffer_store_dwordx2 v[8:9], v10, {WS}, s{T0} offen offset:{8*k}')
        a('s_mov_b64 exec, -1')
    stamp(a, 4)
```

```python
KNAME = 'parallel_sum__memory_aug_recurrent_mem_tr__dense_activation_relu__prompt_kernel'
WS_SIZE = 0x10000000
F_KV   = 0x0000
F_H    = 0x0200
F_F    = 0x0600
F_SH   = 0x0800
F_CH   = 0x1000
F_END  = 0x2000
M2     = 0x9800000
STAMPS = 0x8000
C1     = 0x9810000
XN     = 0x0100000
KF     = 0x0400000
VF     = 0x1400000
KM     = 0x2400000
HH     = 0x3400000
FF     = 0x4600000
PART   = 0x5000000
QF     = 0x9A00000
WS_USED = 0xAA00000
D_TICKET = 0
D_LN     = 32
D_CHB    = 64
D_STAMP  = 128

def slot_groups():
    g = {'chain': [], 'shadow': [], 'kv': [], 'ffn': [], 'spare': []}
    for x in range(8):
        for t in range(32):
            b = x*32 + t
            if x == 0: g['chain'].append(b)
            elif t < 12: g['ffn' if (t >> 2)*7 + x-1 < 18 else 'spare'].append(b)
            else:
                q = (t-12)*7 + x-1
                g['shadow' if q < 64 else 'kv' if q < 128 else 'spare'].append(b)
    return g
```

```python
import sys
from gen_base import *
import gen_bulk as B
import gen_shadow as SH
import gen_chain as CH

def build(roles=('ln', 'kv', 'f1'), out='k.s'):
    a = Asm()
    entry(a)
    stamp(a, 0)
    a(f's_lshl_b32 s33, s{S_X}, 5'); a(f's_add_u32 s33, s33, s{S_T}'); a('s_lshl_b32 s33, s33, 5')
    a('v_mov_b32 v2, 0'); a('v_mov_b32 v3, 0'); a('v_mov_b32 v4, 0'); a('v_mov_b32 v5, 0'); a(f'v_lshlrev_b32 v6, 4, v{V_LANE}')
    a('s_mov_b64 exec, 3')
    a(f'buffer_store_dwordx4 v[2:5], v6, s[{S_WS}:{S_WS+3}], s33 offen sc1')
    a('s_mov_b64 exec, -1')
    a(f's_cmp_eq_u32 s{S_X}, 0')
    a('s_cbranch_scc1 L_chain')
    a(f's_sub_u32 s38, s{S_X}, 1')
    a(f's_mul_i32 s39, s{S_T}, 7'); a('s_add_u32 s39, s39, s38')
    a('s_cmp_ge_u32 s39, 128'); a('s_cbranch_scc1 L_noln')
    B.ln_role(a, 39)
    a.label('L_noln')
    gbar_arrive(a)
    stamp(a, 1)
    a(f's_cmp_lt_u32 s{S_T}, 12'); a('s_cbranch_scc1 L_ffn')
    a(f's_sub_u32 s39, s{S_T}, 12'); a('s_mul_i32 s39, s39, 7'); a('s_add_u32 s39, s39, s38')
    a('s_cmp_ge_u32 s39, 128'); a('s_cbranch_scc1 L_spare')
    a('s_cmp_lt_u32 s39, 64'); a('s_cbranch_scc1 L_shadow')
    a('s_sub_u32 s39, s39, 64'); a('s_and_b32 s40, s39, 31'); a('s_lshr_b32 s41, s39, 5')
    if 'kv' in roles:
        B.ws_gemm(a, 'kv')
    a(f's_lshl_b32 s64, s41, 5'); a('s_add_u32 s64, s64, s40')
    a('s_branch L_fin')
    a.label('L_ffn')
    a(f's_lshr_b32 s39, s{S_T}, 2'); a('s_mul_i32 s39, s39, 7'); a('s_add_u32 s39, s39, s38')
    a('s_cmp_ge_u32 s39, 18'); a('s_cbranch_scc1 L_spare')
    a(f's_and_b32 s52, s{S_T}, 3'); a('s_lshl_b32 s39, s39, 2'); a('s_add_u32 s52, s52, s39')
    a('s_mul_i32 s41, s52, 3641'); a('s_lshr_b32 s41, s41, 16')
    a('s_mul_i32 s40, s41, 18'); a('s_sub_u32 s40, s52, s40')
    if 'f1' in roles:
        B.ws_gemm(a, 'f1')
    if 'f2' in roles:
        B.ffn2_role(a)
    a('s_add_u32 s64, s52, 64')
    a('s_branch L_fin')
    a.label('L_shadow')
    a('s_and_b32 s40, s39, 31'); a('s_lshr_b32 s41, s39, 5')
    if 'sh' in roles:
        SH.shadow_role(a)
    a('s_branch L_exit')
    a.label('L_spare')
    a(f's_cmp_lt_u32 s{S_T}, 12'); a('s_cbranch_scc0 L_spare2')
    a('s_sub_u32 s39, s39, 18'); a('s_lshl_b32 s39, s39, 2'); a(f's_and_b32 s33, s{S_T}, 3'); a('s_add_u32 s64, s39, s33')
    a('s_branch L_spare3')
    a.label('L_spare2')
    a('s_sub_u32 s64, s39, 116')
    a.label('L_spare3')
    a('s_add_u32 s64, s64, 136')
    gbar_wait(a)
    a.label('L_fin')
    if 'fin' in roles:
        SH.finisher_role(a)
    a('s_branch L_exit')
    a.label('L_chain')
    gbar_arrive(a)
    if 'ch' not in roles:
        gbar_wait(a)
        a(f's_lshl_b32 s33, s{S_T}, 7'); a(f's_add_u32 s33, s33, {F_CH}')
        a('v_mov_b32 v2, 64'); a('v_mov_b32 v3, 0'); a('s_mov_b64 exec, 1')
        a(f'buffer_store_dword v2, v3, s[{S_WS}:{S_WS+3}], s33 offen sc1')
        a('s_mov_b64 exec, -1')
    else:
        CH.chain_role(a)
    a.label('L_exit')
    a('s_endpgm')
    txt = header() + a.finalize() + footer()
    open(out, 'w').write(txt)
    return txt

if __name__ == '__main__':
    roles = sys.argv[1].split(',') if len(sys.argv) > 1 else ('ln', 'kv', 'f1')
    t = build(roles)
    print(len(t), 'bytes')
```

```python
from gen_base import *
import struct
def f2u(x): return struct.unpack('<I', struct.pack('<f', x))[0]

EXB = 147456
X_MEM, X_TOK, X_SM, X_O = 0, 9216, 13312, 14336
V_EX, V_RES, V_EXW, V_C1, V_M2O, V_IDX, V_SEL = 0, 1, 2, 3, 4, 5, 6
AR, LR = 8, 24
QA, QB, KA, KB, VA, VB = 40, 44, 48, 52, 56, 60
KX, VX = 64, 72
PROF = 0x20000
PROF_STEP = None
PROF_REAL = False
EXP = set()

RESIDENT = [('Q', 0), ('K', 3), ('Q', 8), ('K', 8), ('V', 7), ('O', 2, 0), ('O', 2, 1), ('O', 3, 0), ('O', 3, 1)]
REGIMG = [(m, c) for c in range(9) for m in 'QKV' if (m, c) not in RESIDENT] + \
         [('O', 0, 0), ('O', 0, 1), ('O', 1, 0), ('O', 1, 1), ('S',)]
assert len(REGIMG) == 27
def opbase(k):
    return ('a', 8 * k) if k < 32 else ('v', 80 + 8 * (k - 32))
def opreg(img, tau):
    k = 2 * REGIMG.index(img) + tau
    f, b = opbase(k)
    return f'{f}[{b}:{b+7}]'

S_H, S_S = 40, 41
S_O0, S_O1, S_O2 = 42, 43, 44
S_MR = 45
S_MB = 46
S_CP = 47
S_CS = 48
S_CR = 49
S_K0, S_K1 = 50, 51
S_HB, S_B = 52, 53
S_C = 54
S_NM = 56
S_SEGO = 58
S_SMW = 59
S_OW = 60
S_CSS = 61
S_WOK, S_WA = 38, 39
T0, T1, T2, T3 = 33, 34, 35, 36
PS = 62

def prof(a, k):
    if PROF_STEP is None: return
    sk = a.uid('L_pf')
    a(f's_cmp_lg_u32 s{S_S}, {PROF_STEP + (1 if k >= 12 else 0)}'); a(f's_cbranch_scc1 {sk}')
    a.rawins(f's_mem{"real" if PROF_REAL else ""}time s[{PS+2*k}:{PS+2*k+1}]')
    a.label(sk)

def smf(d, av, b):
    return f'v_smfmac_f32_16x16x64_bf16 v[{d}:{d+3}], v[{av}:{av+3}], {b}, v{V_IDX}'

def lread(slot, dst, tau=None, half=None):
    return [f'ds_read_b128 v[{dst+4*q}:{dst+4*q+3}], v{V_RES} offset:{slot*4096 + q*1024}' for q in range(4)]

def setup(a):
    W = S_W
    a(f's_mov_b32 s{S_H}, s{S_T}')
    srd(a, S_A, 16, 576 * 8192); srd(a, S_B_, 24, 576 * 8192); srd(a, S_C_, 32, 576 * 8192); srd(a, S_D, 40, 32 * 147456)
    a(f'v_mov_b32 v79, v{V_LANE}')
    L = 79
    a(f'v_lshlrev_b32 v8, 4, v{L}')
    a(f'v_add_u32 v{V_EX}, {EXB}, v8')
    a(f's_mul_i32 s{T0}, s{W}, 36864'); a(f'v_add_u32 v{V_RES}, s{T0}, v8')
    a(f's_lshl_b32 s{T0}, s{W}, 10'); a(f'v_add_u32 v{V_EXW}, s{T0}, v{V_EX}')
    a(f'v_bfe_u32 v9, v{L}, 3, 1'); a('v_lshlrev_b32 v9, 12, v9')
    a(f'v_bfe_u32 v10, v{L}, 0, 1'); a('v_lshl_add_u32 v9, v10, 4, v9')
    a(f'v_bfe_u32 v10, v{L}, 1, 1'); a('v_lshl_add_u32 v9, v10, 3, v9')
    a(f'v_bfe_u32 v10, v{L}, 2, 1'); a('v_lshl_add_u32 v9, v10, 5, v9')
    a(f'v_bfe_u32 v10, v{L}, 4, 1'); a('v_lshl_add_u32 v9, v10, 6, v9')
    a(f'v_lshrrev_b32 v10, 5, v{L}')
    a(f'v_lshl_add_u32 v{V_C1}, v10, 13, v9')
    a(f'v_and_b32 v9, 3, v{L}'); a('v_lshlrev_b32 v9, 4, v9')
    a(f'v_bfe_u32 v10, v{L}, 4, 1'); a('v_lshl_add_u32 v9, v10, 6, v9')
    a(f'v_bfe_u32 v10, v{L}, 2, 1'); a('v_lshl_add_u32 v9, v10, 2, v9')
    a(f'v_lshrrev_b32 v10, 5, v{L}'); a(f'v_lshl_add_u32 v{V_M2O}, v10, 3, v9')
    a(f'v_bfe_u32 v10, v{L}, 3, 1'); a('v_mul_u32_u24 v10, 0xaaaa, v10'); a(f'v_add_u32 v{V_IDX}, 0x4444, v10')
    a(f'v_and_b32 v9, 7, v{L}'); a(f'v_bfe_u32 v10, v{L}, 4, 1'); a('v_lshlrev_b32 v10, 2, v10')
    a('v_sub_u32 v9, v9, v10')
    for r in range(2):
        a(f'v_mov_b32 v11, 0'); a('v_mov_b32 v12, 0x3f80'); a(f'v_cmp_eq_u32 vcc, {2*r}, v9'); a('v_cndmask_b32 v11, v11, v12, vcc')
        a('v_mov_b32 v12, 0x3f800000'); a(f'v_cmp_eq_u32 vcc, {2*r+1}, v9'); a(f'v_cndmask_b32 v{V_SEL+r}, v11, v12, vcc')
    a(f's_mov_b32 s{S_C}, {f2u(128 ** -0.5 * 1.4426950408889634):#x}'); a(f's_mov_b32 s{S_C+1}, s{S_C}')
    a(f's_mov_b32 s{S_NM}, 0x00ff00ff'); a(f's_mov_b32 s{S_NM+1}, 0x00ff00ff')
    a(f's_lshl_b32 s{T0}, s{W}, 10'); a(f's_add_u32 s{S_MR}, s{T0}, {M2 - EXB}')
    a(f's_lshl_b32 s{S_B}, s{W}, 5'); a(f's_add_u32 s{S_B}, s{S_B}, s{S_H}')
    a(f's_cmp_lt_u32 s{S_B}, 72'); a(f's_cselect_b32 s{S_HB}, 1, 0')
    a(f's_cmp_eq_u32 s{W}, 3'); a(f's_cselect_b32 s{S_HB}, 0, s{S_HB}')
    a(f's_min_u32 s{S_B}, s{S_B}, 71')
    a(f's_lshl_b32 s{T0}, s{S_B}, 7'); a(f's_add_u32 s{S_MB}, s{T0}, {M2}')
    a(f's_lshl_b32 s{T0}, s{S_B}, 12'); a(f's_add_u32 s{S_CR}, s{T0}, {C1 - EXB}')
    a(f's_lshl_b32 s{T0}, s{W}, 14'); a(f's_lshl_b32 s{T1}, s{S_H}, 7'); a(f's_add_u32 s{T0}, s{T0}, s{T1}')
    a(f's_add_u32 s{S_CS}, s{T0}, {C1}')
    a(f's_lshl_b32 s{T0}, s{W}, 13'); a(f's_add_u32 s{T0}, s{T0}, s{T1}'); a(f's_add_u32 s{S_CSS}, s{T0}, {C1 + 64*4096}')
    a(f's_lshr_b32 s{T0}, s{W}, 1'); a(f's_and_b32 s{T1}, s{W}, 1')
    a(f's_lshl_b32 s{S_SMW}, s{T0}, 9'); a(f's_lshl_b32 s{T2}, s{T1}, 7'); a(f's_add_u32 s{S_SMW}, s{S_SMW}, s{T2}')
    a(f's_lshl_b32 s{S_OW}, s{T0}, 10'); a(f's_add_u32 s{S_OW}, s{S_OW}, s{T2}')
    a(f's_mov_b32 s{S_K0}, 0'); a(f's_mov_b32 s{S_K1}, 0')
    a('s_waitcnt lgkmcnt(0)')
    for s_ in (S_A, S_B_, S_C_, S_D): srd_fix(a, s_)
    sk = a.uid('L_np')
    a(f's_cmp_eq_u32 s{S_HB}, 0'); a(f's_cbranch_scc1 {sk}')
    for r in range(4): a(f'v_mov_b32 v{8+r}, -1')
    for par in range(2):
        a(f's_add_u32 s{T0}, s{S_CR}, {par*294912}')
        for i in range(4):
            a(f'buffer_store_dwordx4 v[8:11], v{V_EX}, s[{S_WS}:{S_WS+3}], s{T0} offen offset:{i*1024} sc1')
    a(f's_add_u32 s{T0}, s{S_MB}, 9216')
    a(f'buffer_store_dword v8, v{V_M2O}, s[{S_WS}:{S_WS+3}], s{T0} offen sc1')
    a.label(sk)
    u0, p0, tau, p2, p3, p1 = 8, 9, 10, 11, 12, 13
    a(f'v_and_b32 v{u0}, 1, v{L}'); a(f'v_bfe_u32 v{p0}, v{L}, 4, 1'); a(f'v_bfe_u32 v{tau}, v{L}, 1, 1'); a(f'v_xor_b32 v{tau}, v{tau}, v{p0}')
    a(f'v_bfe_u32 v{p2}, v{L}, 2, 1'); a(f'v_bfe_u32 v{p3}, v{L}, 3, 1'); a(f'v_bfe_u32 v{p1}, v{L}, 5, 1')
    VQ, VO, VS_, VT0, VT1 = 20, 21, 22, 23, 24
    a(f'v_lshlrev_b32 v14, 5, v{tau}'); a(f'v_lshl_add_u32 v14, v{u0}, 4, v14'); a(f's_lshl_b32 s{T0}, s{W}, 6'); a(f'v_add_u32 v14, s{T0}, v14')
    a(f'v_lshl_add_u32 v15, v{p1}, 1, v{p0}')
    a(f'v_lshl_add_u32 v16, v{p2}, 2, v15'); a(f'v_lshl_add_u32 v16, v{p3}, 3, v16')
    a(f'v_lshl_add_u32 v{VQ}, v16, 13, v14')
    a(f'v_lshl_add_u32 v16, v{p2}, 4, v15'); a(f'v_lshl_add_u32 v16, v{p3}, 5, v16')
    a(f'v_mul_u32_u24 v17, 1152, v16'); a(f'v_add_u32 v{VO}, v17, v14')
    a(f'v_lshl_add_u32 v16, v{tau}, 6, v16'); a('v_mul_u32_u24 v17, 1152, v16')
    a(f'v_lshlrev_b32 v18, 4, v{u0}'); a(f's_lshl_b32 s{T0}, s{W}, 5'); a(f's_add_u32 s{T0}, s{T0}, 1024')
    a(f'v_add_u32 v18, s{T0}, v18'); a(f'v_add_u32 v{VS_}, v17, v18')
    a(f'v_bfe_u32 v{u0}, v{L}, 1, 1'); a(f'v_bfe_u32 v{p0}, v{L}, 2, 1'); a(f'v_bfe_u32 v{p3}, v{L}, 3, 1')
    a(f'v_bfe_u32 v{p2}, v{L}, 4, 1'); a(f'v_bfe_u32 v14, v{L}, 5, 1')
    a(f'v_lshl_add_u32 v15, v{p2}, 2, v{u0}'); a(f'v_lshl_add_u32 v15, v{p3}, 3, v15'); a(f'v_lshl_add_u32 v15, v{p0}, 4, v15')
    a('v_lshl_add_u32 v15, v14, 6, v15')
    a(f'v_lshl_add_u32 v16, v{p0}, 1, v15')
    a(f'v_xor_b32 v17, 2, v16')
    a(f'v_and_b32 v18, 1, v{L}'); a('v_lshlrev_b32 v18, 3, v18'); a(f's_mul_i32 s{T0}, s{W}, 36864'); a(f'v_add_u32 v18, s{T0}, v18')
    a(f'v_lshl_add_u32 v{VT0}, v16, 4, v18'); a(f'v_lshl_add_u32 v{VT1}, v17, 4, v18')
    a(f's_lshl_b32 s{T2}, s{S_H}, 8')
    a(f's_mul_i32 s{T3}, s{S_H}, 147456')
    a(f's_mul_i32 s37, s{W}, 36864')
    imgs = REGIMG + RESIDENT
    def dma(i):
        img = imgs[i]; slot = i % 9
        if img[0] in 'QKV':
            sr = {'Q': S_A, 'K': S_B_, 'V': S_C_}[img[0]]; vo = VQ; base = T2; c0 = img[1] * 64 * 8192; st = 16 * 8192
        elif img[0] == 'O':
            sr = S_D; vo = VO; base = T3; c0 = img[2] * 64 * 1152 + img[1] * 256; st = 4 * 1152
        else:
            sr = S_D; vo = VS_; base = T3; c0 = 0; st = 4 * 1152
        for n in range(4):
            a(f's_add_u32 m0, s37, {slot*4096 + n*1024}')
            a(f's_add_u32 s38, s{base}, {c0 + n*st}')
            a(f'buffer_load_dwordx4 v{vo}, s[{sr}:{sr+3}], s38 offen lds', tok=f'cw{i}')
    def trread(i):
        slot = i % 9
        for t in range(2):
            if i < 27:
                f, b = opbase(2 * i + t)
            else:
                f, b = 'v', 32 + 8 * t
            for hb in range(2):
                for rd in range(2):
                    r = b + 4 * hb + 2 * rd
                    a(f'ds_read_b64_tr_b16 {f}[{r}:{r+1}], v{VT0+t} offset:{slot*4096 + hb*2048 + rd*512}')
    for i in range(9): dma(i)
    for i in range(36):
        a.need(f'cw{i}')
        trread(i)
        a('s_waitcnt lgkmcnt(0)')
        if i + 9 < 36:
            dma(i + 9)
        if i >= 27:
            slot = i % 9
            for q in range(4):
                a(f'ds_write_b128 v{V_RES}, v[{32+4*q}:{32+4*q+3}] offset:{slot*4096 + q*1024}')
    a('s_waitcnt lgkmcnt(0)')

S_B_, S_C_ = 20, 24

def team_barrier(a):
    a('s_waitcnt vmcnt(0)')
    a('s_barrier')
    sk = a.uid('L_tb')
    a(f's_cmp_lg_u32 s{S_W}, 0'); a(f's_cbranch_scc1 {sk}')
    a(f's_lshl_b32 s{T0}, s{S_FOREIGN}, 16'); a(f's_add_u32 s{T0}, s{T0}, 1')
    a(f'v_mov_b32 v8, s{T0}'); a('v_mov_b32 v9, 0')
    a('s_mov_b64 exec, 1')
    a(f'buffer_atomic_add v8, v9, s[{S_DBG}:{S_DBG+3}], 0 offen offset:{D_CHB} sc1')
    a('s_mov_b64 exec, -1')
    a.label(sk)
    a('v_mov_b32 v9, 0'); a('v_mov_b32 v11, 32')
    poll(a, f'buffer_load_dword v8, v9, s[{S_DBG}:{S_DBG+3}], 0 offen offset:{D_CHB} sc1',
         'v_and_b32 v10, 0xffff, v8\nv_cmp_le_u32 vcc, v11, v10')
    a('v_lshrrev_b32 v8, 16, v8')
    a(f'v_readfirstlane_b32 s{S_FOREIGN}, v8')

def loop(a, sc, tag, io):
    WS = f's[{S_WS}:{S_WS+3}]'
    t_ = tag + ('i' if io else 'r')
    LS = f'L_cs{t_}'
    acc = {'Q': (QA, QB), 'K': (KA, KB), 'V': (VA, VB)}
    def W(m, c, t):
        if (m, c) in RESIDENT: return f'v[{LR+8*t}:{LR+8*t+7}]'
        return opreg((m, c), t)
    def mm1(m, c, t, slot): return smf(acc[m][t], AR + 4*slot, W(m, c, t))
    def lr(img): return lread(RESIDENT.index(img), LR)
    def aread(c, slot): return f'ds_read_b128 v[{AR+4*slot}:{AR+4*slot+3}], v{V_EX} offset:{X_MEM + c*1024}'
    def cvt(d, s0): return f'v_cvt_pk_bf16_f32 v{d}, v{s0}, v{s0+1}'
    def tr(d): return f'v_mfma_f32_16x16x16_bf16 v[{d}:{d+3}], v[{d}:{d+1}], v[{V_SEL}:{V_SEL+1}], 0'
    def pka(d, x, y): return f'v_pk_add_f32 v[{d}:{d+1}], v[{x}:{x+1}], v[{y}:{y+1}]'
    def zero(r): return f'v_mov_b64 v[{r}:{r+1}], 0'
    def em(*xs):
        for x in xs:
            if isinstance(x, (list, tuple)): em(*x)
            else: a(x)

    a.label(LS)
    prof(a, 12)
    prof(a, 0)
    B6, B1 = f'L_b6{t_}', f'L_b1{t_}'
    def sego():
        em(f's_lshl_b32 s{S_SEGO}, s{S_S}, 5', f's_add_u32 s{S_SEGO}, s{S_SEGO}, s{S_H}', f's_lshl_b32 s{S_SEGO}, s{S_SEGO}, 13',
           f's_lshl_b32 s{T0}, s{S_W}, 11', f's_add_u32 s{S_SEGO}, s{S_SEGO}, s{T0}', f's_sub_u32 s{S_SEGO}, s{S_SEGO}, {EXB}')
    if io:
        if 'steps' in EXP:
            em('s_memtime s[62:63]', f's_lshl_b32 s{T0}, s{S_H}, 6', f's_add_u32 s{T0}, s{T0}, s{S_S}', f's_lshl_b32 s{T0}, s{T0}, 3',
               f's_add_u32 s{T0}, s{T0}, {PROF + 0x10000}', 's_waitcnt lgkmcnt(0)', 'v_mov_b32 v8, s62', 'v_mov_b32 v9, s63', 'v_mov_b32 v10, 0',
               's_mov_b64 exec, 1', f'buffer_store_dwordx2 v[8:9], v10, {WS}, s{T0} offen', 's_mov_b64 exec, -1')
        em([zero(r) for r in range(QA, QA + 24, 2)], lr(('Q', 0)))
        sego()
        em(f's_lshr_b32 s{T1}, s{S_S}, 1', f's_add_u32 s{T1}, s{T1}, 1')
        em(f's_add_u32 s{T2}, s{T1}, 1', f's_min_u32 s{T2}, s{T2}, 32')
        em(f's_bitcmp1_b32 s{S_S}, 0', f's_cselect_b32 s{T0}, s{S_K1}, s{S_K0}')
        OK, FL = f'L_ok{t_}', f'L_fl{t_}'
        em(f's_cmp_ge_u32 s{T0}, s{T2}', f's_cbranch_scc1 {OK}')
        em(f'v_subrev_u32 v9, {EXB}, v{V_EX}', 'v_lshlrev_b32 v9, 3, v9')
        em(f's_lshl_b32 s{T3}, s{S_H}, 2', f's_add_u32 s{T3}, s{T3}, {F_KV}')
        a.label(FL)
        em('s_mov_b64 exec, 3', f'buffer_load_dword v8, v9, {WS}, s{T3} offen sc1', 's_mov_b64 exec, -1')
        em(f'v_readlane_b32 s{S_K0}, v8, 0', f'v_readlane_b32 s{S_K1}, v8, 1')
        em(f's_bitcmp1_b32 s{S_S}, 0', f's_cselect_b32 s{T0}, s{S_K1}, s{S_K0}')
        em(f's_cmp_ge_u32 s{T0}, s{T1}', f's_cbranch_scc1 {OK}')
        em(f's_cmp_eq_u32 s{S_BUD}, 0', f's_cbranch_scc1 {OK}')
        em(f's_sub_u32 s{S_BUD}, s{S_BUD}, 1', f's_branch {FL}')
        a.label(OK)
        em(f's_add_u32 s{T1}, s{T1}, 1', f's_cmp_ge_u32 s{T0}, s{T1}', f's_cselect_b32 s{S_WOK}, 1, 0')
        em(f's_add_u32 s{T0}, s{S_S}, 2', f's_lshl_b32 s{T0}, s{T0}, 5', f's_add_u32 s{T0}, s{T0}, s{S_H}', f's_lshl_b32 s{S_WA}, s{T0}, 13')
        prof(a, 9)
        a('s_barrier')
        a.need('kmvm')
        prof(a, 1)
    else:
        NR = f'L_nr{t_}'
        em(f's_cmp_eq_u32 s{S_HB}, 0', f's_cbranch_scc1 {NR}', f's_cmp_eq_u32 s{S_S}, 0', f's_cbranch_scc1 {NR}')
        em(f's_xor_b32 s{T0}, s{S_CP}, 294912', f's_add_u32 s{T0}, s{T0}, s{S_CR}')
        def cload(base):
            if 'noload' in EXP: return []
            return [f'buffer_load_dwordx4 v[{base+4*i}:{base+4*i+3}], v{V_EX}, {WS}, s{T0} offen offset:{i*1024} sc1' for i in range(4)]
        SEL8, RA, RT = 56, 60, 54
        em(cload(8))
        em(f'v_mov_b32 v{SEL8}, v{V_SEL}', f'v_mov_b32 v{SEL8+2}, v{V_SEL}', f'v_mov_b32 v{SEL8+1}, v{V_SEL+1}', f'v_mov_b32 v{SEL8+3}, v{V_SEL+1}')
        em(f's_add_u32 s{T1}, s{S_MB}, s{S_O0}')
        em(zero(40), f'v_permlane16_swap_b32 v{SEL8}, v{SEL8+2}', f'v_permlane16_swap_b32 v{SEL8+1}, v{SEL8+3}')
        em([zero(r) for r in range(42, 54, 2)], lr(('Q', 0)))
        def creduce(base):
            for i in range(4):
                b = base + 4*i
                a(f'v_mfma_f32_16x16x32_bf16 v[{RA}:{RA+3}], v[{b}:{b+3}], v[{SEL8}:{SEL8+3}], {"0" if i == 0 else f"v[{RA}:{RA+3}]"}')
                if i == 0: em(f'v_max3_u32 v{RT}, v{b}, v{b+1}, v{b+2}', f'v_mov_b32 v{RT+1}, v{b+3}')
                else: em(f'v_max3_u32 v{RT}, v{RT}, v{b}, v{b+1}', f'v_max3_u32 v{RT+1}, v{RT+1}, v{b+2}, v{b+3}')
            em(f'v_max_u32 v{RT}, v{RT}, v{RT+1}', f'v_cmp_eq_u32 vcc, -1, v{RT}', 's_cmp_eq_u64 vcc, 0')
            if 'nocheck' in EXP or 'nocheck6' in EXP: a('s_cmp_eq_u32 s15, s15')
        RL, RD = f'L_rp{t_}', f'L_rpd{t_}'
        if 'deep6' in EXP:
            em(cload(64))
            a.label(RL)
            creduce(8); em(f's_cbranch_scc1 {RD}')
            em(cload(8))
            creduce(64); em(f's_cbranch_scc1 {RD}')
            em(cload(64))
            em(f's_cmp_eq_u32 s{S_BUD}, 0', f's_cbranch_scc1 {RD}', f's_sub_u32 s{S_BUD}, s{S_BUD}, 1', f's_branch {RL}')
        else:
            a.label(RL)
            creduce(8); em(f's_cbranch_scc1 {RD}')
            em(f's_cmp_eq_u32 s{S_BUD}, 0', f's_cbranch_scc1 {RD}', f's_sub_u32 s{S_BUD}, s{S_BUD}, 1')
            em(cload(8), f's_branch {RL}')
        a.label(RD)
        em(f'v_permlane32_swap_b32 v{RA}, v{RA+2}', f'v_permlane32_swap_b32 v{RA+1}, v{RA+3}', pka(RA, RA, RA + 2), cvt(RA, RA))
        em(f'buffer_store_dword v{RA}, v{V_M2O}, {WS}, s{T1} offen{sc}')
        em(zero(54))
        em(f's_branch {B6}')
        a.label(NR)
        em([zero(r) for r in range(40, 56, 2)], lr(('Q', 0)))
        a.label(B6)
        prof(a, 9)
        a('s_barrier')
        M0L = f'L_m0{t_}'
        em(f's_cmp_eq_u32 s{S_S}, 0', f's_cbranch_scc1 {M0L}')
        em(f's_add_u32 s{T0}, s{S_MR}, s{S_O0}', f's_add_u32 s{T1}, s{T0}, 4096')
        def mload(r):
            if 'noload' in EXP: return []
            return [f'buffer_load_dwordx4 v[{r[0]}:{r[0]+3}], v{V_EX}, {WS}, s{T0} offen sc1',
                    f'buffer_load_dwordx4 v[{r[1]}:{r[1]+3}], v{V_EX}, {WS}, s{T0} offen offset:3072 sc1',
                    f'buffer_load_dwordx4 v[{r[2]}:{r[2]+3}], v{V_EX}, {WS}, s{T1} offen offset:2048 sc1']
        def mcheck(r):
            x, y, z = r
            em(f'ds_write_b128 v{V_EXW}, v[{x}:{x+3}] offset:{X_MEM}',
               f'v_max3_u32 v20, v{x}, v{x+1}, v{x+2}',
               f'ds_write_b128 v{V_EXW}, v[{y}:{y+3}] offset:{X_MEM + 3072}',
               f'v_max3_u32 v20, v20, v{x+3}, v{y}', f'v_max3_u32 v21, v{y+1}, v{y+2}, v{y+3}',
               f'ds_write_b128 v{V_EXW}, v[{z}:{z+3}] offset:{X_MEM + 6144}',
               f'v_max3_u32 v20, v20, v{z}, v{z+1}', f'v_max3_u32 v21, v21, v{z+2}, v{z+3}',
               'v_max_u32 v20, v20, v21', 'v_cmp_eq_u32 vcc, -1, v20', 's_cmp_eq_u64 vcc, 0')
            if 'nocheck' in EXP or 'nocheck0' in EXP: a('s_cmp_eq_u32 s15, s15')
        R1, R2 = (64, 68, 72), (56, 60, 76)
        PL, PD = f'L_pm{t_}', f'L_pmd{t_}'
        em(mload(R1))
        if 'deep0' in EXP:
            sego()
            em(mload(R2))
            a.label(PL)
            mcheck(R1); em(f's_cbranch_scc1 {PD}')
            em(mload(R1))
            mcheck(R2); em(f's_cbranch_scc1 {PD}')
            em(mload(R2))
            em(f's_cmp_eq_u32 s{S_BUD}, 0', f's_cbranch_scc1 {PD}', f's_sub_u32 s{S_BUD}, s{S_BUD}, 1', f's_branch {PL}')
        else:
            sego()
            a.label(PL)
            mcheck(R1); em(f's_cbranch_scc1 {PD}')
            em(f's_cmp_eq_u32 s{S_BUD}, 0', f's_cbranch_scc1 {PD}', f's_sub_u32 s{S_BUD}, s{S_BUD}, 1')
            em(f's_add_u32 s{T0}, s{S_MR}, s{S_O0}', f's_add_u32 s{T1}, s{T0}, 4096')
            em(mload(R1), f's_branch {PL}')
        a.label(PD)
        em(f's_branch {B1}')
        a.label(M0L)
        sego()
        srd(a, S_A, 8, 9216)
        a(f'v_subrev_u32 v21, {EXB}, v{V_EX}'); a('v_lshrrev_b32 v21, 4, v21')
        a('v_and_b32 v22, 7, v21'); a('v_mul_u32_u24 v22, 1152, v22')
        a('v_lshrrev_b32 v23, 3, v21'); a('v_lshl_add_u32 v22, v23, 4, v22')
        a(f's_lshl_b32 s{T0}, s{S_W}, 7')
        a('s_waitcnt lgkmcnt(0)')
        srd_fix(a, S_A)
        for k in range(3):
            a(f'buffer_load_dwordx4 v[{8+4*k}:{11+4*k}], v22, s[{S_A}:{S_A+3}], s{T0} offen offset:{k*384}')
        for k in range(3):
            a(f'ds_write_b128 v{V_EXW}, v[{8+4*k}:{11+4*k}] offset:{X_MEM + 3072*k}')
        a.label(B1)
        prof(a, 1)
        a('s_waitcnt lgkmcnt(0)')
    a('s_barrier')
    prof(a, 2)
    em([aread(c, c) for c in range(4)])
    em(f's_add_u32 s{T0}, s{S_SEGO}, {KF}', f's_add_u32 s{T1}, s{S_SEGO}, {VF}')
    for k in range(2):
        a(f'buffer_load_dwordx4 v[{KX+4*k}:{KX+4*k+3}], v{V_EX}, {WS}, s{T0} offen offset:{k*1024}')
    for k in range(2):
        a(f'buffer_load_dwordx4 v[{VX+4*k}:{VX+4*k+3}], v{V_EX}, {WS}, s{T1} offen offset:{k*1024}')
    if io:
        em(f'v_subrev_u32 v60, {EXB}, v{V_EX}', 'v_lshlrev_b32 v60, 3, v60', f'v_mov_b32 v61, s{S_S}')
        em(f's_lshl_b32 s{T2}, s{S_H}, 7', f's_add_u32 s{T2}, s{T2}, {F_CH}')
        em('s_mov_b64 exec, 1', f'buffer_store_dword v61, v60, {WS}, s{T2} offen sc1', 's_mov_b64 exec, -1')
        NW = f'L_nw{t_}'
        em(f's_cmp_eq_u32 s{S_WOK}, 0', f's_cbranch_scc1 {NW}')
        em(f's_add_u32 s{T1}, s{S_WA}, {KF}', f's_add_u32 s{T2}, s{S_WA}, {VF}')
        em(f'buffer_load_dword v{V_M2O}, v60, {WS}, s{T1} offen', f'buffer_load_dword v{V_M2O}, v60, {WS}, s{T2} offen')
        a.label(NW)
    q = lambda c, t, sl: mm1('Q', c, t, sl)
    k = lambda c, t, sl: mm1('K', c, t, sl)
    v = lambda c, t, sl: mm1('V', c, t, sl)
    em(q(0, 0, 0), q(0, 1, 0), lr(('K', 3)), k(0, 0, 0), k(0, 1, 0), aread(4, 0))
    em(q(1, 0, 1), q(1, 1, 1), k(1, 0, 1), k(1, 1, 1), aread(5, 1))
    em(q(2, 0, 2), q(2, 1, 2), k(2, 0, 2), k(2, 1, 2), aread(6, 2))
    em(q(3, 0, 3), q(3, 1, 3), k(3, 0, 3), k(3, 1, 3), lr(('Q', 8)), aread(7, 3))
    em(q(4, 0, 0), q(4, 1, 0), zero(56), zero(58), k(4, 0, 0), zero(60), zero(62), k(4, 1, 0), aread(8, 0))
    em(q(5, 0, 1), q(5, 1, 1), q(6, 0, 2), q(6, 1, 2), q(7, 0, 3), q(7, 1, 3), q(8, 0, 0), q(8, 1, 0), lr(('K', 8)))
    em(k(5, 0, 1), cvt(QA, QA), cvt(QA + 1, QA + 2), k(5, 1, 1), cvt(QB, QB), cvt(QB + 1, QB + 2), k(6, 0, 2))
    em(tr(QA), tr(QB), k(6, 1, 2), k(7, 0, 3))
    em(cvt(QA, QA), cvt(QA + 1, QA + 2), k(7, 1, 3), cvt(QA + 2, QB), cvt(QA + 3, QB + 2))
    em(k(8, 0, 0), k(8, 1, 0), lr(('V', 7)))
    prof(a, 3)
    em(f'v_mfma_f32_16x16x32_bf16 v[{KX}:{KX+3}], v[{KX}:{KX+3}], v[{QA}:{QA+3}], 0')
    em(cvt(KA, KA), cvt(KA + 1, KA + 2))
    em(f'v_mfma_f32_16x16x32_bf16 v[{KX+4}:{KX+7}], v[{KX+4}:{KX+7}], v[{QA}:{QA+3}], 0')
    em(cvt(KB, KB), cvt(KB + 1, KB + 2))
    em(tr(KA), f's_add_u32 s{T0}, s{S_SEGO}, {KM}', tr(KB))
    for r in range(4):
        a(f'v_mov_b32_dpp v{KX+r}, v{KX+4+r} quad_perm:[0,1,2,3] row_mask:0xf bank_mask:0xc')
    em(v(5, 0, 1), f'ds_write_b128 v{V_EXW}, v[{KX}:{KX+3}] offset:{X_TOK}')
    em(cvt(KA, KA), cvt(KA + 1, KA + 2), v(5, 1, 1), cvt(KA + 2, KB), cvt(KA + 3, KB + 2))
    em(aread(0, 1), f'v_and_b32 v{KX+4}, 0xfffffd7f, v{V_EX}')
    em(f'v_mfma_f32_16x16x32_bf16 v[{QB}:{QB+3}], v[{KA}:{KA+3}], v[{QA}:{QA+3}], 0')
    em(f'v_add_u32 v{KB+1}, s{S_SMW}, v{KX+4}')
    em(f'buffer_store_dwordx4 v[{KA}:{KA+3}], v{V_EX}, {WS}, s{T0} offen sc1')
    em(v(6, 0, 2), v(6, 1, 2), aread(1, 2))
    em(f'ds_write_b128 v{KB+1}, v[{QB}:{QB+3}] offset:{X_SM}')
    em(v(7, 0, 3), v(7, 1, 3), aread(2, 3), v(8, 0, 0), v(8, 1, 0), aread(3, 0))
    prof(a, 4)
    a('s_waitcnt lgkmcnt(2)')
    a('s_barrier')
    prof(a, 5)
    for kk in range(4):
        a(f'ds_read_b128 v[{40+4*kk}:{43+4*kk}], v{V_EX} offset:{X_TOK + kk*1024}')
    MP = [24, 28, 32, 36]
    for kk in range(4):
        a(f'ds_read_b128 v[{MP[kk]}:{MP[kk]+3}], v{KX+4} offset:{X_SM + (kk>>1)*512 + (kk&1)*128}')
    em(v(0, 0, 1), v(0, 1, 1), aread(4, 1), v(1, 0, 2), v(1, 1, 2), v(2, 0, 3), v(2, 1, 3))
    em(pka(40, 40, 44), pka(42, 42, 46), pka(48, 48, 52), v(3, 0, 0), pka(50, 50, 54), pka(40, 40, 48), pka(42, 42, 50), v(3, 1, 0))
    em(pka(24, 24, 28), pka(26, 26, 30), pka(32, 32, 36), v(4, 0, 1), pka(34, 34, 38), pka(64, 24, 32), pka(66, 26, 34), v(4, 1, 1))
    em('v_max3_f32 v68, v40, v41, v42', 'v_max3_f32 v69, v43, v64, v65', 'v_max3_f32 v68, v68, v66, v67', 'v_max_f32 v68, v68, v69')
    pre = lread(5, 8) + lread(6, 24)
    em(pre[4], pre[5])
    em('v_max_f32_dpp v68, v68, v68 row_ror:8 row_mask:0xf bank_mask:0xf', 'v_mov_b32 v69, v68')
    em(pre[6], pre[7])
    em('v_permlane32_swap_b32 v68, v69', 'v_max_f32 v68, v68, v69', 'v_mov_b32 v69, v68')
    em(pre[0], pre[1])
    em('v_permlane16_swap_b32 v68, v69', 'v_max_f32 v68, v68, v69', f'v_mul_f32 v68, s{S_C}, v68')
    em(pre[2], pre[3])
    for d in (64, 66, 40, 42):
        a(f'v_pk_fma_f32 v[{d}:{d+1}], v[{d}:{d+1}], s[{S_C}:{S_C+1}], v[68:69] op_sel_hi:[1,1,0] neg_lo:[0,0,1] neg_hi:[0,0,1]')
    em('v_exp_f32 v64, v64', cvt(VA, VA), 'v_exp_f32 v65, v65', cvt(VA + 1, VA + 2), 'v_exp_f32 v66, v66', cvt(VA + 2, VB),
       'v_exp_f32 v67, v67', cvt(VA + 3, VB + 2), 'v_exp_f32 v40, v40', f's_add_u32 s{T0}, s{S_SEGO}, {KM}', 'v_exp_f32 v41, v41')
    a(f'buffer_store_dwordx4 v[{VA}:{VA+3}], v{V_EX}, {WS}, s{T0} offen offset:1024 sc1', tok='kmvm')
    em('v_exp_f32 v42, v42', f's_cmp_eq_u32 s{S_S}, 63', 'v_exp_f32 v43, v43', 's_cbranch_scc1 L_chx')
    em(cvt(48, 64), cvt(49, 66), cvt(44, 40), cvt(45, 42))
    em(pka(40, 40, 42), pka(64, 64, 66))
    em(f'v_mfma_f32_16x16x16_bf16 v[52:55], v[{VA}:{VA+1}], v[48:49], 0')
    em('v_mov_b32_dpp v46, v44 row_ror:8 row_mask:0xf bank_mask:0xf', 'v_mov_b32_dpp v47, v45 row_ror:8 row_mask:0xf bank_mask:0xf')
    em('v_add_f32 v40, v40, v41')
    em(f'v_mfma_f32_16x16x16_bf16 v[60:63], v[{VA+2}:{VA+3}], v[48:49], 0')
    em('v_add_f32 v64, v64, v65', 'v_fmac_f32 v40, 0.25, v64', f'v_add_u32 v70, s{S_OW}, v{V_EX}')
    em(f'v_mfma_f32_16x16x32_bf16 v[52:55], v[{VX}:{VX+3}], v[44:47], v[52:55]')
    em('v_add_f32_dpp v40, v40, v40 row_ror:8 row_mask:0xf bank_mask:0xf', 'v_mov_b32 v41, v40', zero(48))
    em(f'v_mfma_f32_16x16x32_bf16 v[60:63], v[{VX+4}:{VX+7}], v[44:47], v[60:63]')
    em('v_permlane32_swap_b32 v40, v41', 'v_add_f32 v40, v40, v41', 'v_mov_b32 v41, v40', zero(50), zero(56))
    em('v_permlane16_swap_b32 v40, v41', 'v_add_f32 v40, v40, v41', 'v_rcp_f32 v40, v40', zero(58))
    for d in (52, 54, 60, 62):
        a(f'v_pk_mul_f32 v[{d}:{d+1}], v[{d}:{d+1}], v[40:41] op_sel_hi:[1,0]')
    em(cvt(64, 52), cvt(65, 54), cvt(66, 60), cvt(67, 62))
    em(f's_mov_b64 exec, s[{S_NM}:{S_NM+1}]', f'ds_write_b128 v70, v[64:67] offset:{X_O}', 's_mov_b64 exec, -1')
    if not io:
        NP = f'L_npz{t_}'
        em(f's_cmp_eq_u32 s{S_HB}, 0', f's_cbranch_scc1 {NP}')
        em('v_mov_b64 v[76:77], -1', 'v_mov_b64 v[78:79], -1')
        em(f's_xor_b32 s{T0}, s{S_CP}, 294912', f's_add_u32 s{T0}, s{T0}, s{S_CR}', f's_add_u32 s{T1}, s{S_MB}, s{S_O2}')
        for i in range(4):
            a(f'buffer_store_dwordx4 v[76:79], v{V_EX}, {WS}, s{T0} offen offset:{i*1024}{sc}')
        a(f'buffer_store_dword v76, v{V_M2O}, {WS}, s{T1} offen{sc}')
        a.label(NP)
    prof(a, 6)
    a('s_waitcnt lgkmcnt(0)')
    a('s_barrier')
    prof(a, 7)
    for jj in range(2):
        a(f'ds_read_b128 v[{64+4*jj}:{67+4*jj}], v{V_EX} offset:{X_O + jj*1024}')
    em([zero(r) for r in (40, 42, 44, 46, 52, 54, 60, 62, 72, 74, 76, 78)])
    em(f's_add_u32 s{T0}, s{S_CS}, s{S_CP}', f's_add_u32 s{T1}, s{S_CSS}, s{S_CP}')
    def epi(t, i2):
        u = t + 4
        return [f'v_permlane32_swap_b32 v{t+i}, v{u+i}' for i in range(4)] + \
               [pka(t, t, u), pka(t + 2, t + 2, u + 2), cvt(t, t), cvt(t + 1, t + 2), f's_add_u32 s{T2}, s{T0}, {i2*65536}',
                f'buffer_store_dwordx2 v[{t}:{t+1}], v{V_C1}, {WS}, s{T2} offen{sc}']
    ring = [8, 16, 24, 32]
    nxt = lread(7, 8) + lread(8, 24)
    JT = [(0, 0), (0, 1), (1, 0), (1, 1)]
    GA, GB, GC, GD, GS = 40, 48, 56, 72, 40
    for qq, (jj, t) in enumerate(JT):
        em(smf(GA + 4*t, 64 + 4*jj, f'v[{ring[qq]}:{ring[qq]+7}]'), nxt[2*qq], nxt[2*qq+1])
    def grp(g, img): return [smf(g + 4*t, 64 + 4*jj, opreg(('O', img, jj), t)) for jj, t in JT]
    b_, c_ = grp(GB, 0), grp(GC, 1)
    d_ = [smf(GD + 4*t, 64 + 4*jj, f'v[{ring[qq]}:{ring[qq]+7}]') for qq, (jj, t) in enumerate(JT)]
    s_ = [smf(GS, 64 + 4*jj, opreg(('S',), jj)) for jj in range(2)]
    e = epi(GA, 2)
    em(b_[0], b_[1], e[0:3], b_[2], e[3:6], b_[3], e[6:10])
    e = epi(GB, 0)
    em(c_[0], zero(GS), c_[1], e[0:3], c_[2], zero(GS + 2), e[3:6], c_[3], e[6:10])
    e = epi(GC, 1)
    em(d_[0], d_[1], e[0:3], d_[2], e[3:6], d_[3], e[6:10])
    e = epi(GD, 3)
    em(s_[0], s_[1], e)
    em(f'v_permlane32_swap_b32 v{GS}, v{GS+2}', f'v_permlane32_swap_b32 v{GS+1}, v{GS+3}', pka(GS, GS, GS + 2), cvt(GS, GS))
    em(f'v_mov_b32 v{GS+1}, v{GS}', f'v_and_b32 v{GS+2}, 0x1fff, v{V_C1}')
    em(f's_mov_b32 s{T0}, s{S_O0}', f's_mov_b32 s{S_O0}, s{S_O1}')
    em(f'v_permlane32_swap_b32 v{GS}, v{GS+1}')
    em(f'buffer_store_dwordx2 v[{GS}:{GS+1}], v{GS+2}, {WS}, s{T1} offen{sc}')
    em(f's_mov_b32 s{S_O1}, s{S_O2}', f's_mov_b32 s{S_O2}, s{T0}')
    em(f's_xor_b32 s{S_CP}, s{S_CP}, 294912', f's_add_u32 s{S_S}, s{S_S}, 1')
    prof(a, 8)
    a(f's_branch {LS}')

def chain_role(a):
    setup(a)
    stamp(a, 2)
    team_barrier(a)
    gbar_wait(a, 8, 9)
    stamp(a, 3)
    a(f's_mov_b32 s{S_S}, 0'); a(f's_mov_b32 s{S_O0}, 0'); a(f's_mov_b32 s{S_O1}, 9216'); a(f's_mov_b32 s{S_O2}, 18432')
    a(f's_mov_b32 s{S_CP}, 0')
    variants = getattr(chain_role, 'variants', 'both')
    vs = {'both': [('', 'l'), (' sc1', 'f')], 'loc': [('', 'l')], 'for': [(' sc1', 'f')]}[variants]
    if variants == 'both':
        a(f's_cmp_lg_u32 s{S_FOREIGN}, 0'); a('s_cbranch_scc1 L_cdf')
    for sc, tag in vs:
        a.label(f'L_cd{tag}')
        a(f's_cmp_eq_u32 s{S_W}, 3'); a(f's_cbranch_scc1 L_cs{tag}i')
        loop(a, sc, tag, False)
        loop(a, sc, tag, True)
    a.label('L_chx')
    WS = f's[{S_WS}:{S_WS+3}]'
    a('s_waitcnt vmcnt(0)')
    a('s_barrier')
    sk = a.uid('L_x')
    a(f's_cmp_lg_u32 s{S_W}, 3'); a(f's_cbranch_scc1 {sk}')
    a(f'v_subrev_u32 v60, {EXB}, v{V_EX}'); a('v_lshlrev_b32 v60, 3, v60'); a('v_mov_b32 v61, 64')
    a(f's_lshl_b32 s{T2}, s{S_H}, 7'); a(f's_add_u32 s{T2}, s{T2}, {F_CH}')
    a('s_mov_b64 exec, 1')
    a(f'buffer_store_dword v61, v60, {WS}, s{T2} offen sc1')
    a('s_mov_b64 exec, -1')
    a.label(sk)
    if PROF_STEP is not None:
        a('s_waitcnt lgkmcnt(0)')
        a(f's_lshl_b32 s{T0}, s{S_H}, 2'); a(f's_add_u32 s{T0}, s{T0}, s{S_W}'); a(f's_lshl_b32 s{T0}, s{T0}, 7'); a(f's_add_u32 s{T0}, s{T0}, {PROF}')
        a('v_mov_b32 v10, 0'); a('s_mov_b64 exec, 1')
        for k in range(13):
            a(f'v_mov_b32 v8, s{PS+2*k}'); a(f'v_mov_b32 v9, s{PS+2*k+1}')
            a(f'buffer_store_dwordx2 v[8:9], v10, {WS}, s{T0} offen offset:{8*k}')
        a('s_mov_b64 exec, -1')
    stamp(a, 4)
```

```python
from gen_base import *
from gen_bulk import ws_flag

NEG = 0xff800000
def wreg(f):
    if f < 64:
        return f'a[{4*f}:{4*f+3}]'
    b = 208 + 4 * (f - 64)
    return f'v[{b}:{b+3}]'
def wreg_half(f, hf):
    if f < 64:
        return f'a[{4*f+2*hf}:{4*f+2*hf+1}]'
    b = 208 + 4 * (f - 64) + 2 * hf
    return f'v[{b}:{b+1}]'
def fq(k, c): return k * 2 + c
def fo(pp, ab, ke): return 36 + (pp * 2 + ab) * 4 + ke

PROF_IT = None
EXP = set()
def sprof(a, k):
    if PROF_IT is None: return
    sk = a.uid('L_sp')
    a(f's_cmp_lg_u32 s44, {PROF_IT + (1 if k == 11 else 0)}'); a(f's_cbranch_scc1 {sk}')
    a.rawins(f's_memtime s[{64+2*k}:{65+2*k}]')
    a.label(sk)

def shadow_role(a):
    srd(a, S_A, 16, 576 * 8192)
    srd(a, S_B, 40, 32 * 147456)
    a('s_lshl_b32 s42, s40, 8')
    a(f'v_lshrrev_b32 v2, 4, v{V_LANE}'); a(f'v_and_b32 v3, 15, v{V_LANE}')
    a(f'v_lshlrev_b32 v4, 1, v2'); a(f'v_xor_b32 v5, v3, v4'); a(f'v_xor_b32 v6, 8, v5')
    a(f'v_mul_u32_u24 v2, 8192, v2'); a(f'v_lshl_add_u32 v5, v5, 4, v2'); a(f'v_lshl_add_u32 v6, v6, 4, v2')
    a(f'v_lshrrev_b32 v7, 4, v{V_LANE}'); a(f'v_bfe_u32 v8, v{V_LANE}, 2, 2'); a(f'v_and_b32 v9, 3, v{V_LANE}')
    a(f'v_and_b32 v10, 1, v7'); a(f'v_lshl_or_b32 v10, v10, 2, v8'); a(f'v_lshlrev_b32 v10, 1, v10')
    a(f'v_lshrrev_b32 v11, 1, v9'); a(f's_lshl_b32 s33, s{S_W}, 2'); a(f'v_add_u32 v11, s33, v11')
    a(f'v_add_u32 v12, 2, v11'); a(f'v_xor_b32 v11, v11, v10'); a(f'v_xor_b32 v12, v12, v10')
    a(f'v_lshl_add_u32 v13, v7, 3, v8'); a(f'v_lshlrev_b32 v13, 8, v13'); a(f'v_and_b32 v9, 1, v9')
    a(f'v_lshl_add_u32 v13, v9, 3, v13'); a(f'v_lshl_add_u32 v11, v11, 4, v13'); a(f'v_lshl_add_u32 v12, v12, 4, v13')
    a(f'v_add_u32 v14, {73728}, v11'); a(f'v_add_u32 v15, {73728}, v12')
    for n, r in enumerate((11, 12, 14, 15)):
        a(f'v_add_u32 v{18+n}, {65536}, v{r}')
    a('s_waitcnt lgkmcnt(0)')
    srd_fix(a, S_A); srd_fix(a, S_B)
    a(f's_bitcmp1_b32 s{S_W}, 0'); a(f's_cselect_b64 vcc, -1, 0')
    a(f'v_cndmask_b32 v16, v5, v6, vcc'); a(f'v_cndmask_b32 v17, v6, v5, vcc')
    for hf in range(2):
        a(f's_mul_i32 s33, s{S_W}, {18*1024}'); a(f's_add_u32 s33, s33, {hf*73728}')
        a(f's_mul_i32 s34, s{S_W}, {18*4*8192}'); a('s_add_u32 s34, s34, s42'); a(f's_add_u32 s34, s34, {hf*288*8192}')
        for n in range(18):
            a('s_mov_b32 m0, s33')
            a(f'buffer_load_dwordx4 v{16 if ((n>>1)&1)==0 else 17}, s[{S_A}:{S_A+3}], s34 offen lds', tok=f'sq{hf}')
            if n < 17:
                a('s_add_u32 s33, s33, 1024'); a(f's_add_u32 s34, s34, {4*8192}')
    def tr_q(hf):
        for kk in range(9):
            k = hf * 9 + kk
            for c in range(2):
                ad = (11 + c) if hf == 0 else (14 + c)
                for h2 in range(2):
                    if kk == 8:
                        a(f'ds_read_b64_tr_b16 {wreg_half(fq(k,c), h2)}, v{ {11:18,12:19,14:20,15:21}[ad] } offset:{h2*1024}')
                    else:
                        a(f'ds_read_b64_tr_b16 {wreg_half(fq(k,c), h2)}, v{ad} offset:{kk*8192 + h2*1024}')
    def dma_o(hf):
        a(f's_mul_i32 s33, s{S_W}, {18*1024}')
        a(f's_mul_i32 s34, s40, 147456'); a('s_add_u32 s34, s34, s33'); a(f's_add_u32 s34, s34, {hf*73728}')
        a(f's_add_u32 s33, s33, {hf*73728}')
        for n in range(18):
            a('s_mov_b32 m0, s33')
            a(f'buffer_load_dwordx4 v22, s[{S_B}:{S_B+3}], s34 offen lds', tok=f'so{hf}')
            if n < 17:
                a('s_add_u32 s33, s33, 1024'); a('s_add_u32 s34, s34, 1024')
    a(f'v_lshlrev_b32 v22, 4, v{V_LANE}')
    a(f'v_lshrrev_b32 v23, 4, v{V_LANE}'); a(f'v_bfe_u32 v24, v{V_LANE}, 2, 2')
    a(f'v_lshl_add_u32 v23, v23, 2, v24'); a(f'v_mul_u32_u24 v23, 1152, v23')
    a(f'v_and_b32 v24, 3, v{V_LANE}'); a(f'v_lshl_add_u32 v23, v24, 4, v23')
    a(f's_mul_i32 s33, s{S_W}, 9'); a('s_lshr_b32 s43, s33, 1')
    a('s_lshl_b32 s33, s43, 6'); a('v_add_u32 v23, s33, v23')
    a(f'v_add_u32 v24, {73728}, v23')
    def tr_o(hf):
        for k2 in range(2):
            ke = hf * 2 + k2
            for pp in range(5):
                for ab in range(2):
                    for h2 in range(2):
                        off = k2 * 32 * 1152 + h2 * 16 * 1152 + pp * 64 + ab * 8
                        a(f'ds_read_b64_tr_b16 {wreg_half(fo(pp, ab, ke), h2)}, v{23+hf} offset:{off}')
    a.need('sq0'); a('s_barrier'); tr_q(0); a('s_waitcnt lgkmcnt(0)'); a('s_barrier'); dma_o(0)
    a.need('sq1'); a('s_barrier'); tr_q(1); a('s_waitcnt lgkmcnt(0)'); a('s_barrier'); dma_o(1)
    a.need('so0'); a('s_barrier'); tr_o(0)
    a.need('so1'); a('s_waitcnt lgkmcnt(0)'); a('s_barrier'); tr_o(1); a('s_waitcnt lgkmcnt(0)'); a('s_barrier')
    stamp(a, 2)
    gbar_wait(a)
    stamp(a, 3)
    V_L16, V_SET, V_SQ, V_SE, V_OW = 2, 3, 4, 5, 6
    V_RD = 3
    V_Z, V_FL = 0, 1
    BIAS = 8
    XR = 16
    QA = 48
    KF_ = 64
    KMF = 96
    VF_ = 112
    VMF = 128
    OA = 136
    S_IT, S_BUF, S_SEG, S_KVP, S_CHP = 44, 45, 46, 53, 54
    S_E, S_NS, S_FA = 57, 58, 59
    WS = f's[{S_WS}:{S_WS+3}]'
    def em(xs):
        for x in xs: a(x)
    def dma(src_sreg, off=0):
        return f'buffer_load_dwordx4 v{V_L16}, {WS}, s{src_sreg} offen offset:{off} lds'
    def grouped(xs):
        groups = []; cur = []
        for x in xs:
            cur.append(x)
            if x.startswith('buffer_'):
                groups.append(cur); cur = []
        assert not cur
        return groups
    a(f'v_lshlrev_b32 v{V_L16}, 4, v{V_LANE}')
    a(f's_and_b32 s55, s{S_W}, 1'); a(f's_lshr_b32 s56, s{S_W}, 1')
    def x_dma(it_sreg, buf_sreg):
        o = [f's_lshl_b32 s48, s{it_sreg}, 1', 's_add_u32 s48, s48, s41', 's_min_u32 s48, s48, 63', 's_mul_i32 s48, s48, 36864',
             f's_mul_i32 s49, s{S_W}, 9216', 's_add_u32 s48, s48, s49', f's_add_u32 s48, s48, {XN}', f's_add_u32 s49, s49, s{buf_sreg}']
        for grp, cnt in ((0, 4), (1, 4), (2, 1)):
            o.append('s_mov_b32 m0, s49')
            o += [dma(48, 1024 * n) for n in range(cnt)]
            if grp < 2: o += ['s_add_u32 s49, s49, 4096', 's_add_u32 s48, s48, 4096']
        return o
    a(f's_mov_b32 s{S_IT}, 0'); a(f's_mov_b32 s{S_BUF}, 0'); em(x_dma(S_IT, S_BUF))
    a(f's_mov_b32 s{S_IT}, 1'); a(f's_mov_b32 s{S_BUF}, 36864'); em(x_dma(S_IT, S_BUF))
    a(f's_mov_b32 s{S_IT}, 0'); a(f's_mov_b32 s{S_BUF}, 0')
    a('s_waitcnt vmcnt(9)')
    L1 = a.uid('L_sq')
    a.label(L1)
    a('s_waitcnt vmcnt(11)')
    a('s_barrier')
    a(f'v_add_u32 v{V_RD}, s{S_BUF}, v{V_L16}')
    reads = []
    for k in range(18):
        for tau in range(2):
            slot = (2 * k + tau) % 8
            reads.append(f'ds_read_b128 v[{XR+4*slot}:{XR+4*slot+3}], v{V_RD} offset:{tau*18432 + k*1024}')
    for r in reads[:6]: a(r)
    a(f's_add_u32 s50, s{S_IT}, 2'); a(f's_add_u32 s51, s{S_BUF}, {2*36864}'); a(f's_cmp_ge_u32 s51, {3*36864}')
    a(f's_cselect_b32 s47, {3*36864}, 0'); a('s_sub_u32 s51, s51, s47')
    groups = grouped(x_dma(50, 51))
    ri = 6
    for k in range(18):
        for c in range(2):
            for tau in range(2):
                slot = (2 * k + tau) % 8
                t = QA + 4 * (c * 2 + tau)
                a(f'v_mfma_f32_16x16x32_bf16 v[{t}:{t+3}], {wreg(fq(k,c))}, v[{XR+4*slot}:{XR+4*slot+3}], {"0" if k == 0 else f"v[{t}:{t+3}]"}')
            if c == 0 and ri < len(reads):
                a(reads[ri]); a(reads[ri+1]); ri += 2
            if c == 1 and k % 2 == 0 and groups: em(groups.pop(0))
    assert not groups
    a(f's_lshl_b32 s47, s{S_IT}, 1'); a('s_add_u32 s47, s47, s41'); a('s_lshl_b32 s47, s47, 5'); a('s_add_u32 s47, s47, s40')
    a('s_lshl_b32 s47, s47, 13'); a(f's_lshl_b32 s48, s{S_W}, 10'); a('s_add_u32 s47, s47, s48'); a(f's_add_u32 s47, s47, {QF}')
    a('s_add_u32 s48, s47, 4096')
    for tau in range(2):
        d = KF_ + 4 * tau
        s0, s1 = QA + 4 * tau, QA + 4 * (2 + tau)
        a(f'v_cvt_pk_bf16_f32 v{d}, v{s0}, v{s0+1}'); a(f'v_cvt_pk_bf16_f32 v{d+1}, v{s0+2}, v{s0+3}')
        a(f'v_cvt_pk_bf16_f32 v{d+2}, v{s1}, v{s1+1}'); a(f'v_cvt_pk_bf16_f32 v{d+3}, v{s1+2}, v{s1+3}')
        a(f'buffer_store_dwordx4 v[{d}:{d+3}], v{V_L16}, {WS}, s{47+tau} offen')
    a(f's_add_u32 s{S_BUF}, s{S_BUF}, 36864'); a(f's_cmp_ge_u32 s{S_BUF}, {3*36864}'); a(f's_cselect_b32 s{S_BUF}, 0, s{S_BUF}')
    a(f's_add_u32 s{S_IT}, s{S_IT}, 1'); a(f's_cmp_lt_u32 s{S_IT}, 32'); a(f's_cbranch_scc1 {L1}')
    a('s_waitcnt vmcnt(0)')
    a('s_barrier')
    stamp(a, 5)
    LO, LS = 0, 8192
    LE = 73728
    OQ, OK, OV, OM = 0, 8192, 16384, 24576
    a(f'v_add_u32 v{V_SET}, {LS}, v{V_L16}')
    a('s_lshl_b32 s33, s55, 12'); a(f'v_add_u32 v{V_SQ}, s33, v{V_SET}')
    a('s_lshl_b32 s33, s56, 12'); a(f'v_add_u32 v{V_SE}, s33, v{V_SET}')
    a(f'v_add_u32 v7, s33, v{V_L16}')
    a('s_lshl_b32 s33, s55, 12'); a('s_lshl_b32 s34, s56, 11'); a('s_add_u32 s33, s33, s34'); a(f's_add_u32 s33, s33, {LO}')
    a(f'v_add_u32 v{V_OW}, s33, v{V_L16}')
    a(f'v_and_b32 v48, 15, v{V_LANE}'); a('s_lshl_b32 s33, s55, 4'); a('v_add_u32 v48, s33, v48')
    a(f'v_lshrrev_b32 v49, 4, v{V_LANE}'); a('v_lshlrev_b32 v49, 2, v49')
    a(f'v_mov_b32 v50, {NEG:#x}'); a('v_mov_b32 v52, 0')
    for kap in range(2):
        for i in range(4):
            a(f'v_add_u32 v51, {16*kap+i}, v49')
            a('v_cmp_le_u32 vcc, v51, v48')
            a(f'v_cndmask_b32 v{BIAS+4*kap+i}, v50, v52, vcc')
    a(f'v_mov_b32 v{V_Z}, 0')
    def seg_base(seg, lset):
        return [f's_lshl_b32 s50, s{seg}, 5', 's_add_u32 s50, s50, s40', 's_lshl_b32 s50, s50, 13', f's_lshl_b32 s51, s{S_W}, 11',
                's_add_u32 s50, s50, s51', f's_add_u32 s51, s51, s{lset}']
    def set_dma(lbase, gbase):
        return [f's_add_u32 m0, s51, {lbase}', f's_add_u32 s52, s50, {gbase}', dma(52, 0), dma(52, 1024)]
    def kv_wait(it_sreg):
        sk = a.uid('L_kvok')
        a(f's_min_u32 s34, s{it_sreg}, 31')
        a(f's_cmp_gt_u32 s{S_KVP}, s34'); a(f's_cbranch_scc1 {sk}')
        a('s_add_u32 s34, s34, 1')
        a('s_lshl_b32 s33, s41, 7'); a('s_lshl_b32 s35, s40, 2'); a('s_add_u32 s33, s33, s35'); a(f's_add_u32 s33, s33, {F_KV}')
        poll(a, f'buffer_load_dword v62, v{V_Z}, {WS}, s33 offen sc1', 'v_cmp_le_u32 vcc, s34, v62', sleep=2)
        a(f'v_readfirstlane_b32 s{S_KVP}, v62')
        a.label(sk)
    a(f's_lshl_b32 s{S_FA}, s40, 7'); a(f's_add_u32 s{S_FA}, s{S_FA}, {F_CH}')
    a(f's_mov_b32 s{S_IT}, 0'); a(f's_mov_b32 s{S_BUF}, {LS}')
    a(f's_mov_b32 s{S_KVP}, 0'); a(f's_mov_b32 s{S_CHP}, 0'); a(f's_mov_b32 s{S_E}, 0')
    a(f's_mov_b32 s{S_SEG}, s41')
    kv_wait(S_IT)
    em(seg_base(S_SEG, S_BUF)); em(set_dma(OQ, QF)); em(set_dma(OK, KF)); em(set_dma(OV, VF))
    a('s_waitcnt vmcnt(0)')
    def units_of(odd):
        return [(pp, tau) for pp in range(4) for tau in range(2)] + [(4, 0)] if odd == 0 else \
               [(0, 1)] + [(pp, tau) for pp in range(1, 5) for tau in range(2)]
    S_PB = 60
    L = a.uid('L_sh')
    a.label(L)
    sprof(a, 11); sprof(a, 0)
    a('s_waitcnt vmcnt(9)')
    a('s_barrier')
    sprof(a, 1)
    for sl in range(4):
        d = XR + 4 * sl
        a(f'ds_read_b128 v[{d}:{d+3}], v{V_SQ} offset:{OQ + sl*1024}')
        for kap in range(2):
            a(f'ds_read_b128 v[{KF_+4*(sl*2+kap)}:{KF_+4*(sl*2+kap)+3}], v{V_SET} offset:{OK + sl*2048 + kap*1024}')
    a(f's_add_u32 s{S_NS}, s{S_SEG}, 2'); a('s_add_u32 s33, s41, 62'); a(f's_min_u32 s{S_NS}, s{S_NS}, s33')
    S0 = QA
    sk = a.uid('L_chok'); sk2 = a.uid('L_late'); sk3 = a.uid('L_chok')
    for sl in range(4):
        for kap in range(2):
            t = S0 + 4 * kap
            kf = KF_ + 4 * (sl * 2 + kap)
            cin = f'v[{BIAS+4*kap}:{BIAS+4*kap+3}]' if sl == 0 else f'v[{t}:{t+3}]'
            a(f'v_mfma_f32_16x16x32_bf16 v[{t}:{t+3}], v[{kf}:{kf+3}], v[{XR+4*sl}:{XR+4*sl+3}], {cin}')
        if sl == 1:
            a(f's_cmp_eq_u32 s{S_E}, 0'); a(f's_cbranch_scc1 {sk2}')
            for s2 in range(4):
                a(f'ds_read_b128 v[{KMF+4*s2}:{KMF+4*s2+3}], v{V_SET} offset:{OM + s2*2048}')
            for z in range(2):
                a(f'ds_read_b128 v[{VMF+4*z}:{VMF+4*z+3}], v{V_SE} offset:{OM + 1024 + z*2048}')
            a.label(sk2)
    for z in range(4):
        a(f'ds_read_b128 v[{VF_+4*z}:{VF_+4*z+3}], v{V_SE} offset:{OV + z*1024}')
    sprof(a, 2)
    a(f's_add_u32 s37, s{S_IT}, 1')
    kv_wait(37)
    skf = a.uid('L_nofl')
    a(f's_cmp_lg_u32 s{S_W}, 0'); a(f's_cbranch_scc1 {skf}')
    a(f'buffer_load_dword v{V_FL}, v{V_Z}, {WS}, s{S_FA} offen sc1')
    a.label(skf)
    a(f's_xor_b32 s36, s{S_BUF}, 32768')
    em(seg_base(S_NS, 36)); em(set_dma(OQ, QF)); em(set_dma(OK, KF)); em(set_dma(OV, VF))
    sprof(a, 3)
    a(f's_cmp_lg_u32 s{S_E}, 0'); a(f's_cbranch_scc1 {sk}')
    a(f's_cmp_gt_u32 s{S_CHP}, s{S_SEG}'); a(f's_cbranch_scc1 {sk3}')
    a(f's_add_u32 s34, s{S_SEG}, 1')
    poll(a, f'buffer_load_dword v60, v{V_Z}, {WS}, s{S_FA} offen sc1', 'v_cmp_le_u32 vcc, s34, v60', sleep=1)
    a(f'v_readfirstlane_b32 s{S_CHP}, v60')
    a.label(sk3)
    a(f's_lshl_b32 s47, s{S_SEG}, 5'); a('s_add_u32 s47, s47, s40'); a('s_lshl_b32 s47, s47, 13'); a(f's_add_u32 s47, s47, {KM}')
    a('s_add_u32 s48, s47, 4096')
    for sl in range(4):
        d = KMF + 4 * sl
        o = sl * 2048
        a(f'buffer_load_dwordx4 v[{d}:{d+3}], v{V_L16}, {WS}, s{47 + o // 4096} offen offset:{o % 4096}')
    for z in range(2):
        d = VMF + 4 * z
        a(f'buffer_load_dwordx4 v[{d}:{d+3}], v7, {WS}, s47 offen offset:{1024 + z*2048}')
    a('s_waitcnt vmcnt(0)')
    a.label(sk)
    t = S0 + 8
    for sl in range(4):
        a(f'v_mfma_f32_16x16x32_bf16 v[{t}:{t+3}], v[{KMF+4*sl}:{KMF+4*sl+3}], v[{XR+4*sl}:{XR+4*sl+3}], {"0" if sl == 0 else f"v[{t}:{t+3}]"}')
    sprof(a, 4)
    a(f'v_max3_f32 v60, v{S0}, v{S0+1}, v{S0+2}'); a(f'v_max3_f32 v61, v{S0+3}, v{S0+4}, v{S0+5}')
    a(f'v_max3_f32 v60, v60, v{S0+6}, v{S0+7}')
    C = 128 ** -0.5 * 1.4426950408889634
    a(f's_mov_b32 s34, {f2u(C):#x}'); a('s_mov_b32 s35, s34')
    a(f'v_max3_f32 v61, v61, v{S0+8}, v{S0+9}')
    a(f'v_max3_f32 v60, v60, v{S0+10}, v{S0+11}'); a('v_max_f32 v60, v60, v61')
    a('v_mov_b32 v61, v60'); a('v_permlane32_swap_b32 v60, v61'); a('v_max_f32 v60, v60, v61')
    a('v_mov_b32 v61, v60'); a('v_permlane16_swap_b32 v60, v61'); a('v_max_f32 v60, v60, v61')
    a('v_mul_f32 v60, s34, v60')
    for n in range(0, 12, 2):
        a(f'v_pk_fma_f32 v[{S0+n}:{S0+n+1}], v[{S0+n}:{S0+n+1}], s[34:35], v[60:61] op_sel_hi:[1,1,0] neg_lo:[0,0,1] neg_hi:[0,0,1]')
    P, PM = XR + 16, XR + 20
    ONE, HALF = XR + 24, XR + 28
    fill = [f'v_mov_b32 v{ONE+n}, 0x3f803f80' for n in range(4)] + [f'v_mov_b32 v{HALF+n}, 0x3f003f00' for n in range(2)]
    cv = [f'v_cvt_pk_bf16_f32 v{P+n}, v{S0+2*n}, v{S0+2*n+1}' for n in range(4)] + \
         [f'v_cvt_pk_bf16_f32 v{PM}, v{S0+8}, v{S0+9}', f'v_cvt_pk_bf16_f32 v{PM+1}, v{S0+10}, v{S0+11}']
    seq = [fill[0], fill[1], fill[2], cv[0], fill[3], cv[1], fill[4], cv[2], fill[5], cv[3], None, cv[4]]
    for n in range(12):
        a(f'v_exp_f32 v{S0+n}, v{S0+n}')
        if seq[n]: a(seq[n])
    a(cv[5])
    SUM = 56
    OT = KF_
    def pv(z): return f'v_mfma_f32_16x16x32_bf16 v[{OT+4*z}:{OT+4*z+3}], v[{VF_+4*z}:{VF_+4*z+3}], v[{P}:{P+3}], 0'
    def pm(z):
        vm = VMF + 4 * (z >> 1) + 2 * (z & 1)
        return f'v_mfma_f32_16x16x16_bf16 v[{OT+4*z}:{OT+4*z+3}], v[{vm}:{vm+1}], v[{PM}:{PM+1}], v[{OT+4*z}:{OT+4*z+3}]'
    a(f'v_mfma_f32_16x16x32_bf16 v[{SUM}:{SUM+3}], v[{ONE}:{ONE+3}], v[{P}:{P+3}], 0')
    a(pv(0))
    a(f'v_mfma_f32_16x16x16_bf16 v[{SUM}:{SUM+3}], v[{HALF}:{HALF+1}], v[{PM}:{PM+1}], v[{SUM}:{SUM+3}]')
    a(pv(1)); a(pv(2)); a(pv(3)); a(pm(0)); a(f'v_rcp_f32 v{SUM}, v{SUM}'); a(pm(1)); a(pm(2)); a(pm(3))
    sprof(a, 5)
    for zz in range(2):
        for n in range(0, 8, 2):
            r = OT + 8 * zz + n
            a(f'v_pk_mul_f32 v[{r}:{r+1}], v[{r}:{r+1}], v[{SUM}:{SUM+1}] op_sel_hi:[1,0]')
        d = XR + 4 * zz
        s0, s1 = OT + 8 * zz, OT + 8 * zz + 4
        a(f'v_cvt_pk_bf16_f32 v{d}, v{s0}, v{s0+1}'); a(f'v_cvt_pk_bf16_f32 v{d+1}, v{s0+2}, v{s0+3}')
        a(f'v_cvt_pk_bf16_f32 v{d+2}, v{s1}, v{s1+1}'); a(f'v_cvt_pk_bf16_f32 v{d+3}, v{s1+2}, v{s1+3}')
        a(f'ds_write_b128 v{V_OW}, v[{d}:{d+3}] offset:{zz*1024}')
    sprof(a, 6)
    a('s_waitcnt vmcnt(6)')
    skf = a.uid('L_nofl')
    a(f'v_mov_b32 v61, {LE}')
    a(f's_cmp_lg_u32 s{S_W}, 0'); a(f's_cbranch_scc1 {skf}')
    a(f'v_max_u32 v{V_FL}, s{S_CHP}, v{V_FL}')
    a(f'ds_write_b32 v61, v{V_FL}')
    a.label(skf)
    a(f's_lshl_b32 s47, s{S_SEG}, 5'); a('s_add_u32 s47, s47, s40'); a('s_mul_i32 s47, s47, 36864')
    a('s_lshl_b32 s48, s43, 10'); a('s_add_u32 s47, s47, s48'); a(f's_add_u32 s{S_PB}, s47, {PART}')
    sprof(a, 8)
    a('s_waitcnt lgkmcnt(0)')
    a('s_barrier')
    sprof(a, 9)
    for odd in range(2):
        lab = a.uid('L_op')
        if odd == 0:
            a(f's_bitcmp1_b32 s{S_W}, 0'); a(f's_cbranch_scc1 {lab}_odd')
            first = lab
        units = units_of(odd)
        for tau in ((0, 1) if odd == 0 else (1, 0)):
            for ke in range(4):
                d = XR + 4 * (tau * 4 + ke)
                a(f'ds_read_b128 v[{d}:{d+3}], v{V_L16} offset:{LO + tau*4096 + ke*1024}')
        a(f'ds_read_b32 v{V_FL}, v61')
        if odd == 0:
            sk = a.uid('L_shf')
            a(f's_cmp_lg_u32 s{S_W}, 0'); a(f's_cbranch_scc1 {sk}')
            a(f's_cmp_eq_u32 s{S_IT}, 0'); a(f's_cbranch_scc1 {sk}')
            sh_flag(a, f's_mov_b32 s47, s{S_IT}')
            a.label(sk)
        sk = a.uid('L_noe')
        a(f'v_readfirstlane_b32 s33, v{V_FL}')
        a(f's_max_u32 s{S_CHP}, s{S_CHP}, s33')
        a(f's_cmp_gt_u32 s33, s{S_NS}'); a(f's_cselect_b32 s{S_E}, 1, 0')
        a(f's_cmp_eq_u32 s{S_IT}, 31'); a(f's_cselect_b32 s{S_E}, 0, s{S_E}')
        a(f's_cmp_eq_u32 s{S_E}, 0'); a(f's_cbranch_scc1 {sk}')
        a(f's_xor_b32 s36, s{S_BUF}, 32768')
        em(seg_base(S_NS, 36)); em(set_dma(OM, KM))
        a.label(sk)
        def epi(u):
            pp, tau = units[u]
            t = OA + 8 * u
            return [f'v_cvt_pk_bf16_f32 v{t}, v{t}, v{t+1}', f'v_cvt_pk_bf16_f32 v{t+1}, v{t+2}, v{t+3}',
                    f'v_cvt_pk_bf16_f32 v{t+2}, v{t+4}, v{t+5}', f'v_cvt_pk_bf16_f32 v{t+3}, v{t+6}, v{t+7}',
                    f's_add_u32 s48, s{S_PB}, {tau*18432 + pp*1024}',
                    f'buffer_store_dwordx4 v[{t}:{t+3}], v{V_L16}, {WS}, s48 offen sc1']
        for u, (pp, tau) in enumerate(units):
            e = epi(u - 1) if u > 0 else []
            n = 0
            for ke in range(4):
                for ab in range(2):
                    t = OA + 8 * u + 4 * ab
                    o = XR + 4 * (tau * 4 + ke)
                    a(f'v_mfma_f32_16x16x32_bf16 v[{t}:{t+3}], {wreg(fo(pp, ab, ke))}, v[{o}:{o+3}], {"0" if ke == 0 else f"v[{t}:{t+3}]"}')
                    n += 1
                    if e and n == 3: a(e[0]); a(e[1])
                    if e and n == 4: a(e[2]); a(e[3])
                    if e and n == 5: a(e[4]); a(e[5])
        for x in epi(len(units) - 1): a(x)
        if odd == 0:
            a(f's_branch {first}_join')
            a.label(f'{first}_odd')
    a.label(f'{first}_join')
    sprof(a, 10)
    a(f's_xor_b32 s{S_BUF}, s{S_BUF}, 32768')
    for r in (V_SET, V_SQ, V_SE): a(f'v_xor_b32 v{r}, 32768, v{r}')
    a(f's_mov_b32 s{S_SEG}, s{S_NS}')
    a(f's_add_u32 s{S_IT}, s{S_IT}, 1'); a(f's_cmp_lt_u32 s{S_IT}, 32'); a(f's_cbranch_scc1 {L}')
    a('s_waitcnt vmcnt(0)')
    a('s_barrier')
    sk = a.uid('L_shf')
    a(f's_cmp_lg_u32 s{S_W}, 0'); a(f's_cbranch_scc1 {sk}')
    sh_flag(a, 's_mov_b32 s47, 32')
    a.label(sk)
    if PROF_IT is not None:
        a('s_waitcnt lgkmcnt(0)')
        a('s_lshl_b32 s33, s41, 5'); a('s_add_u32 s33, s33, s40'); a('s_lshl_b32 s33, s33, 2'); a(f's_add_u32 s33, s33, s{S_W}')
        a('s_lshl_b32 s33, s33, 7'); a(f's_add_u32 s33, s33, {0x40000}')
        a('v_mov_b32 v10, 0'); a('s_mov_b64 exec, 1')
        for k in range(12):
            a(f'v_mov_b32 v8, s{64+2*k}'); a(f'v_mov_b32 v9, s{65+2*k}')
            a(f'buffer_store_dwordx2 v[8:9], v10, {WS}, s33 offen offset:{8*k}')
        a('s_mov_b64 exec, -1')
    stamp(a, 4)

import struct
def f2u(x): return struct.unpack('<I', struct.pack('<f', x))[0]

def sh_flag(a, valtext):
    a(valtext)
    a('s_lshl_b32 s48, s41, 7'); a('s_lshl_b32 s49, s40, 2'); a('s_add_u32 s48, s48, s49'); a(f's_add_u32 s48, s48, {F_SH}')
    a('v_mov_b32 v62, s47'); a('v_mov_b32 v63, 0')
    a('s_mov_b64 exec, 1')
    a(f'buffer_store_dword v62, v63, s[{S_WS}:{S_WS+3}], s48 offen sc1')
    a('s_mov_b64 exec, -1')


NFW = 640
def finisher_role(a):
    srd(a, S_A, 0, 2048 * 1152)
    srd(a, S_B, 80, 2048 * 1152)
    S_TK, S_S = 65, 66
    a(f's_lshl_b32 s{S_TK}, s64, 2'); a(f's_add_u32 s{S_TK}, s{S_TK}, s{S_W}')
    n_, g_ = 2, 3
    a(f'v_and_b32 v{n_}, 15, v{V_LANE}'); a(f'v_lshrrev_b32 v{g_}, 4, v{V_LANE}')
    a(f'v_and_b32 v4, 1, v{g_}'); a('v_mul_u32_u24 v4, 36864, v4')
    a(f'v_lshrrev_b32 v5, 1, v{g_}'); a(f'v_lshl_add_u32 v5, v5, 4, v{n_}'); a('v_lshl_add_u32 v4, v5, 4, v4')
    a(f'v_lshrrev_b32 v5, 1, v{g_}'); a(f'v_lshrrev_b32 v6, 3, v{n_}'); a('v_cmp_eq_u32 s[68:69], v5, v6')
    a(f'v_and_b32 v5, 7, v{n_}')
    for r in range(4):
        a(f'v_cmp_eq_u32 vcc, {2*r}, v5'); a(f'v_mov_b32 v6, 0'); a(f'v_mov_b32 v7, 0x3f80'); a(f'v_cndmask_b32 v6, v6, v7, vcc')
        a(f'v_cmp_eq_u32 vcc, {2*r+1}, v5'); a(f'v_mov_b32 v7, 0x3f800000'); a(f'v_cndmask_b32 v6, v6, v7, vcc')
        a(f'v_mov_b32 v7, 0'); a(f'v_cndmask_b32 v{8+r}, v7, v6, s[68:69]')
    a(f'v_mul_u32_u24 v12, 2304, v{n_}'); a(f'v_lshl_add_u32 v12, v{g_}, 4, v12')
    a(f'v_mul_u32_u24 v13, 1152, v{n_}'); a(f'v_lshl_add_u32 v13, v{g_}, 3, v13')
    a(f'v_lshlrev_b32 v14, 2, v{V_LANE}')
    a('s_waitcnt lgkmcnt(0)')
    srd_fix(a, S_A); srd_fix(a, S_B)
    a('s_mov_b32 s67, -1')
    L = a.uid('L_fin'); E = a.uid('L_finx')
    a.label(L)
    a(f's_cmp_ge_u32 s{S_TK}, {64*72}'); a(f's_cbranch_scc1 {E}')
    a(f's_mul_i32 s{S_S}, s{S_TK}, 58255'); a(f's_lshr_b32 s{S_S}, s{S_S}, 22')
    a(f's_mul_i32 s33, s{S_S}, 72'); a(f's_sub_u32 s70, s{S_TK}, s33')
    a('s_cmp_ge_u32 s70, 36'); a('s_cselect_b32 s71, 1, 0')
    a('s_mul_i32 s33, s71, 36'); a('s_sub_u32 s70, s70, s33')
    a('s_lshr_b32 s72, s70, 1'); a('s_and_b32 s73, s70, 1')
    sk = a.uid('L_fok'); sw = a.uid('L_fw')
    a(f's_cmp_eq_u32 s67, s{S_S}'); a(f's_cbranch_scc1 {sk}')
    a(f's_cmp_lg_u32 s{S_W}, 0'); a(f's_cbranch_scc1 {sw}')
    a(f's_and_b32 s33, s{S_S}, 1'); a('s_lshl_b32 s33, s33, 7'); a(f's_add_u32 s33, s33, {F_SH}')
    a(f's_lshr_b32 s34, s{S_S}, 3'); a('s_lshl_b32 s34, s34, 5'); a(f's_add_u32 s34, s34, {F_F - 128}')
    a(f's_lshr_b32 s35, s{S_S}, 1'); a('s_add_u32 s35, s35, 1')
    a(f'v_cmp_gt_u32 vcc, 32, v{V_LANE}')
    a('v_mov_b32 v15, s34'); a('v_mov_b32 v16, s33'); a('v_cndmask_b32 v15, v15, v16, vcc'); a('v_add_u32 v15, v15, v14')
    a('v_mov_b32 v17, 1'); a('v_mov_b32 v16, s35'); a('v_cndmask_b32 v17, v17, v16, vcc')
    a('s_mov_b32 exec_lo, -1'); a('s_mov_b32 exec_hi, 0xff')
    PL, PD, PS_ = a.uid('L_fp'), a.uid('L_fpd'), a.uid('L_fps')
    a.label(PL)
    a(f'buffer_load_dword v16, v15, s[{S_WS}:{S_WS+3}], 0 offen sc1')
    a('s_waitcnt vmcnt(0)')
    a('v_cmp_le_u32 vcc, v17, v16')
    a('s_cmp_eq_u64 vcc, exec'); a(f's_cbranch_scc1 {PD}')
    a(f's_cmp_eq_u32 s{S_BUD}, 0'); a(f's_cbranch_scc1 {PD}')
    a(f's_sub_u32 s{S_BUD}, s{S_BUD}, 1')
    a('v_add_u32 v18, 1, v16'); a('v_cmp_le_u32 vcc, v17, v18')
    a('s_cmp_eq_u64 vcc, exec'); a(f's_cbranch_scc1 {PS_}')
    a('s_sleep 24')
    a.label(PS_)
    a('s_sleep 2')
    a(f's_branch {PL}')
    a.label(PD)
    a('s_mov_b64 exec, -1')
    a.label(sw)
    a('s_barrier')
    a(f's_mov_b32 s67, s{S_S}')
    a.label(sk)
    a(f's_lshl_b32 s33, s{S_S}, 5'); a('s_mul_i32 s33, s33, 36864'); a('s_mul_i32 s34, s71, 18432'); a('s_add_u32 s33, s33, s34')
    a('s_lshl_b32 s34, s72, 10'); a('s_add_u32 s33, s33, s34'); a('s_lshl_b32 s34, s73, 9'); a('s_add_u32 s33, s33, s34')
    a(f's_add_u32 s33, s33, {PART}')
    D = 32
    for i in range(16):
        a(f'buffer_load_dwordx4 v[{D+4*i}:{D+4*i+3}], v4, s[{S_WS}:{S_WS+3}], s33 offen sc1')
        if i < 15: a(f's_add_u32 s33, s33, {2*36864}')
    a(f's_lshl_b32 s33, s{S_S}, 5'); a('s_lshl_b32 s34, s71, 4'); a('s_add_u32 s33, s33, s34')
    a('s_lshl_b32 s34, s72, 5'); a('s_lshl_b32 s35, s73, 4'); a('s_add_u32 s34, s34, s35')
    a('s_mul_i32 s35, s33, 2304'); a('s_lshl_b32 s36, s34, 2'); a('s_add_u32 s35, s35, s36'); a(f's_add_u32 s35, s35, {FF}')
    a(f'buffer_load_dwordx4 v[20:23], v12, s[{S_WS}:{S_WS+3}], s35 offen sc1')
    a(f's_add_u32 s35, s35, {2048*2304}')
    a(f'buffer_load_dwordx4 v[24:27], v12, s[{S_WS}:{S_WS+3}], s35 offen sc1')
    a('s_mul_i32 s35, s33, 1152'); a('s_lshl_b32 s36, s34, 1'); a('s_add_u32 s35, s35, s36')
    a(f'buffer_load_dwordx2 v[28:29], v13, s[{S_A}:{S_A+3}], s35 offen')
    for i in range(16):
        a(f'v_mfma_f32_16x16x32_bf16 v[100:103], v[8:11], v[{D+4*i}:{D+4*i+3}], {"0" if i == 0 else "v[100:103]"}')
    for r in range(4):
        a(f'v_add_f32 v{20+r}, v{20+r}, v{24+r}')
    a('v_lshlrev_b32 v24, 16, v28'); a('v_and_b32 v25, 0xffff0000, v28'); a('v_lshlrev_b32 v26, 16, v29'); a('v_and_b32 v27, 0xffff0000, v29')
    for r in range(4):
        a(f'v_add_f32 v{20+r}, v{20+r}, v{24+r}')
    for r in range(4):
        a(f'v_add_f32 v{20+r}, v{20+r}, v{100+r}')
    a('v_cvt_pk_bf16_f32 v20, v20, v21'); a('v_cvt_pk_bf16_f32 v21, v22, v23')
    a(f'buffer_store_dwordx2 v[20:21], v13, s[{S_B}:{S_B+3}], s35 offen')
    a(f's_add_u32 s{S_TK}, s{S_TK}, {NFW}')
    a(f's_branch {L}')
    a.label(E)
    stamp(a, 7)
```

```python
import sys
from gen_base import *
import gen_bulk as B
import gen_shadow as SH
import gen_chain as CH

def build(roles=('ln', 'kv', 'f1'), out='k.s'):
    a = Asm()
    entry(a)
    stamp(a, 0)
    a(f's_lshl_b32 s33, s{S_X}, 5'); a(f's_add_u32 s33, s33, s{S_T}'); a('s_lshl_b32 s33, s33, 5')
    a('v_mov_b32 v2, 0'); a('v_mov_b32 v3, 0'); a('v_mov_b32 v4, 0'); a('v_mov_b32 v5, 0'); a(f'v_lshlrev_b32 v6, 4, v{V_LANE}')
    a('s_mov_b64 exec, 3')
    a(f'buffer_store_dwordx4 v[2:5], v6, s[{S_WS}:{S_WS+3}], s33 offen sc1')
    a('s_mov_b64 exec, -1')
    a(f's_cmp_eq_u32 s{S_X}, 0')
    a('s_cbranch_scc1 L_chain')
    if 'setuponly' in roles:
        gbar_arrive(a); a('s_branch L_exit')
    a(f's_sub_u32 s38, s{S_X}, 1')
    a(f's_mul_i32 s39, s{S_T}, 7'); a('s_add_u32 s39, s39, s38')
    a('s_cmp_ge_u32 s39, 128'); a('s_cbranch_scc1 L_noln')
    B.ln_role(a, 39)
    a.label('L_noln')
    gbar_arrive(a)
    stamp(a, 1)
    a(f's_cmp_lt_u32 s{S_T}, 12'); a('s_cbranch_scc1 L_ffn')
    a(f's_sub_u32 s39, s{S_T}, 12'); a('s_mul_i32 s39, s39, 7'); a('s_add_u32 s39, s39, s38')
    a('s_cmp_ge_u32 s39, 128'); a('s_cbranch_scc1 L_spare')
    a('s_cmp_lt_u32 s39, 64'); a('s_cbranch_scc1 L_shadow')
    a('s_sub_u32 s39, s39, 64'); a('s_and_b32 s40, s39, 31'); a('s_lshr_b32 s41, s39, 5')
    if 'kv' in roles:
        B.ws_gemm(a, 'kv')
    a(f's_lshl_b32 s64, s41, 5'); a('s_add_u32 s64, s64, s40')
    a('s_branch L_fin')
    a.label('L_ffn')
    a(f's_lshr_b32 s39, s{S_T}, 2'); a('s_mul_i32 s39, s39, 7'); a('s_add_u32 s39, s39, s38')
    a('s_cmp_ge_u32 s39, 18'); a('s_cbranch_scc1 L_spare')
    a(f's_and_b32 s52, s{S_T}, 3'); a('s_lshl_b32 s39, s39, 2'); a('s_add_u32 s52, s52, s39')
    a('s_mul_i32 s41, s52, 3641'); a('s_lshr_b32 s41, s41, 16')
    a('s_mul_i32 s40, s41, 18'); a('s_sub_u32 s40, s52, s40')
    if 'f1' in roles:
        B.ws_gemm(a, 'f1')
    if 'f2' in roles:
        B.ffn2_role(a)
    a('s_add_u32 s64, s52, 64')
    a('s_branch L_fin')
    a.label('L_shadow')
    a('s_and_b32 s40, s39, 31'); a('s_lshr_b32 s41, s39, 5')
    if 'sh' in roles:
        SH.shadow_role(a)
    a('s_branch L_exit')
    a.label('L_spare')
    a(f's_cmp_lt_u32 s{S_T}, 12'); a('s_cbranch_scc0 L_spare2')
    a('s_sub_u32 s39, s39, 18'); a('s_lshl_b32 s39, s39, 2'); a(f's_and_b32 s33, s{S_T}, 3'); a('s_add_u32 s64, s39, s33')
    a('s_branch L_spare3')
    a.label('L_spare2')
    a('s_sub_u32 s64, s39, 116')
    a.label('L_spare3')
    a('s_add_u32 s64, s64, 136')
    gbar_wait(a)
    a.label('L_fin')
    if 'fin' in roles:
        SH.finisher_role(a)
    a('s_branch L_exit')
    a.label('L_chain')
    if 'ch' not in roles:
        gbar_arrive(a)
        gbar_wait(a)
        a(f's_lshl_b32 s33, s{S_T}, 7'); a(f's_add_u32 s33, s33, {F_CH}')
        a('v_mov_b32 v2, 64'); a('v_mov_b32 v3, 0'); a('s_mov_b64 exec, 1')
        a(f'buffer_store_dword v2, v3, s[{S_WS}:{S_WS+3}], s33 offen sc1')
        a('s_mov_b64 exec, -1')
    else:
        CH.chain_role(a)
    a.label('L_exit')
    a('s_endpgm')
    txt = header() + a.finalize() + footer()
    open(out, 'w').write(txt)
    return txt

if __name__ == '__main__':
    roles = sys.argv[1].split(',') if len(sys.argv) > 1 else ('ln', 'kv', 'f1')
    t = build(roles)
    print(len(t), 'bytes')
```

```python
from gen_base import *
import struct
def f2u(x): return struct.unpack('<I', struct.pack('<f', x))[0]

X_MEM, X_TOK, X_SM, X_O, RESB = 0, 9216, 13312, 14336, 16384
V_EX, V_RES, V_CS, V_C1, V_M2O, V_IDX, V_SEL = 0, 1, 2, 3, 4, 5, 6
AR, LR = 8, 24
QA, QB, KA, KB, VA, VB = 40, 44, 48, 52, 56, 60
KX, VX = 64, 72
PROF = 0x20000
PROF_STEP = None
PROF_REAL = False
EXP = set()

REAL = [[2, 3, 4, 5, 6, 7, 8, 0, 1], [0, 1, 2, 3, 4, 5, 6, 7, 8], [6, 7, 8, 0, 1, 2, 3, 4, 5], [4, 5, 8, 6, 7, 0, 1, 2, 3]]
def knob(name, dflt=0):
    for x in EXP:
        if x.startswith(name + '='): return int(x[len(name)+1:])
    return dflt
def delay(a, n):
    while n > 0:
        a.rawins(f's_nop {min(n, 16) - 1}'); n -= 16
RESIDENT = [('Q', 0), ('K', 2), ('K', 4), ('K', 5), ('V', 5), ('O', 2, 0), ('O', 2, 1), ('O', 3, 0), ('O', 3, 1)]
REGIMG = [(m, c) for c in range(9) for m in 'QKV' if (m, c) not in RESIDENT] + \
         [('O', 0, 0), ('O', 0, 1), ('O', 1, 0), ('O', 1, 1), ('S',)]
assert len(REGIMG) == 27
def opbase(k):
    return ('a', 8 * k) if k < 32 else ('v', 80 + 8 * (k - 32))
def opreg(img, tau):
    k = 2 * REGIMG.index(img) + tau
    f, b = opbase(k)
    return f'{f}[{b}:{b+7}]'

S_CRD = 37
S_WOK, S_WA = 38, 39
S_H, S_S = 40, 41
S_O0, S_O1, S_O2 = 42, 43, 44
S_MR = 45
S_MB = 46
S_CP = 47
S_CS = 48
S_CR = 49
S_K0, S_K1 = 50, 51
S_HB, S_B = 52, 53
S_C = 54
S_NM = 56
S_SEGO = 58
S_CSS = 59
S_GM = 60
S_RM = 62
S_Q4 = 70
S_ONE = 72
T0, T1, T2, T3 = 33, 34, 35, 36
PS = 74

def prof(a, k):
    if PROF_STEP is None: return
    sk = a.uid('L_pf')
    a(f's_cmp_lg_u32 s{S_S}, {PROF_STEP + (1 if k >= 12 else 0)}'); a(f's_cbranch_scc1 {sk}')
    a.rawins(f's_mem{"real" if PROF_REAL else ""}time s[{PS+2*k}:{PS+2*k+1}]')
    a.label(sk)

def smf(d, av, b):
    return f'v_smfmac_f32_16x16x64_bf16 v[{d}:{d+3}], v[{av}:{av+3}], {b}, v{V_IDX}'

def lread(slot, dst):
    return [f'ds_read_b128 v[{dst+4*q}:{dst+4*q+3}], v{V_RES} offset:{slot*4096 + q*1024}' for q in range(4)]

S_B_, S_C_ = 20, 24

def setup(a):
    W = S_W
    WS = f's[{S_WS}:{S_WS+3}]'
    if 'hx' in EXP: a(f's_xor_b32 s{S_H}, s{S_T}, 1')
    else: a(f's_mov_b32 s{S_H}, s{S_T}')
    srd(a, S_A, 16, 576 * 8192); srd(a, S_B_, 24, 576 * 8192); srd(a, S_C_, 32, 576 * 8192); srd(a, S_D, 40, 32 * 147456)
    a(f'v_mov_b32 v79, v{V_LANE}')
    L = 79
    a(f'v_lshlrev_b32 v{V_EX}, 4, v{L}')
    a(f's_mul_i32 s{T0}, s{W}, 36864'); a(f's_add_u32 s{T0}, s{T0}, {RESB}'); a(f'v_add_u32 v{V_RES}, s{T0}, v{V_EX}')
    a(f'v_bfe_u32 v9, v{L}, 3, 1'); a('v_lshlrev_b32 v9, 12, v9')
    a(f'v_and_b32 v10, 7, v{L}'); a('v_lshl_add_u32 v9, v10, 3, v9')
    a(f'v_bfe_u32 v10, v{L}, 4, 1'); a('v_lshl_add_u32 v9, v10, 6, v9')
    a(f'v_lshrrev_b32 v10, 5, v{L}')
    a(f'v_lshl_add_u32 v{V_C1}, v10, 13, v9')
    a(f'v_lshl_add_u32 v{V_CS}, v10, 2, v9')
    a(f'v_bfe_u32 v9, v{L}, 2, 1'); a('v_lshlrev_b32 v9, 2, v9'); a(f'v_lshrrev_b32 v10, 4, v{L}'); a('v_add_u32 v9, v9, v10')
    a(f'v_and_b32 v10, 3, v{L}'); a('v_lshlrev_b32 v10, 2, v10'); a(f'v_lshl_add_u32 v{V_M2O}, v9, 4, v10')
    a(f'v_bfe_u32 v10, v{L}, 3, 1'); a('v_mul_u32_u24 v10, 0xaaaa, v10'); a(f'v_add_u32 v{V_IDX}, 0x4444, v10')
    a(f'v_and_b32 v9, 7, v{L}'); a(f'v_bfe_u32 v10, v{L}, 4, 1'); a('v_lshlrev_b32 v10, 2, v10')
    a('v_sub_u32 v9, v9, v10')
    for r in range(2):
        a(f'v_mov_b32 v11, 0'); a('v_mov_b32 v12, 0x3f80'); a(f'v_cmp_eq_u32 vcc, {2*r}, v9'); a('v_cndmask_b32 v11, v11, v12, vcc')
        a('v_mov_b32 v12, 0x3f800000'); a(f'v_cmp_eq_u32 vcc, {2*r+1}, v9'); a(f'v_cndmask_b32 v{V_SEL+r}, v11, v12, vcc')
    a(f's_mov_b32 s{S_C}, {f2u(128 ** -0.5 * 1.4426950408889634):#x}'); a(f's_mov_b32 s{S_C+1}, s{S_C}')
    a(f's_mov_b32 s{S_NM}, 0x00ff00ff'); a(f's_mov_b32 s{S_NM+1}, 0x00ff00ff')
    a(f's_mov_b32 s{S_GM}, 0'); a(f's_mov_b32 s{S_GM+1}, -1')
    for r, m in enumerate((0x0011, 0x1100, 0x0022, 0x2200)):
        a(f's_mov_b32 s{S_RM+2*r}, {m * 0x10001:#x}'); a(f's_mov_b32 s{S_RM+2*r+1}, {m * 0x10001:#x}')
    a(f's_mov_b32 s{S_Q4}, 0x3e803e80'); a(f's_mov_b32 s{S_Q4+1}, 0x3e803e80')
    a(f's_mov_b32 s{S_ONE}, 0x3f803f80'); a(f's_mov_b32 s{S_ONE+1}, 0x3f803f80')
    a(f's_lshl_b32 s{T0}, s{W}, 11')
    a(f's_lshl_b32 s{T1}, s{S_H}, 13'); a(f's_add_u32 s{S_SEGO}, s{T0}, s{T1}')
    a(f's_cmp_lt_u32 s{S_H}, 16')
    a(f's_cselect_b32 s{T0}, 32, -16'); a(f's_cselect_b32 s{T1}, 16, 32')
    a(f's_cmp_eq_u32 s{W}, 1'); a(f's_cselect_b32 s{T0}, s{T1}, s{T0}')
    a(f's_cmp_eq_u32 s{W}, 2'); a(f's_cselect_b32 s{T0}, 64, s{T0}')
    a(f's_add_u32 s{S_B}, s{T0}, s{S_H}')
    a(f's_cmp_lt_u32 s{S_H}, 8'); a(f's_cselect_b32 s{S_HB}, 1, 0')
    a(f's_cmp_lt_u32 s{W}, 2'); a(f's_cselect_b32 s{S_HB}, 1, s{S_HB}')
    a(f's_cmp_eq_u32 s{W}, 3'); a(f's_cselect_b32 s{S_HB}, 0, s{S_HB}')
    a(f's_min_u32 s{S_B}, s{S_B}, 71')
    a(f's_lshl_b32 s{T0}, s{S_B}, 7'); a(f's_add_u32 s{S_MB}, s{T0}, {M2}')
    a(f's_lshl_b32 s{T0}, s{S_B}, 12'); a(f's_add_u32 s{S_CR}, s{T0}, {C1}')
    a(f's_lshl_b32 s{T0}, s{W}, 14'); a(f's_lshl_b32 s{T1}, s{S_H}, 7'); a(f's_add_u32 s{T0}, s{T0}, s{T1}')
    a(f's_add_u32 s{S_CS}, s{T0}, {C1}')
    a(f's_lshl_b32 s{T0}, s{W}, 13'); a(f's_add_u32 s{T0}, s{T0}, s{T1}'); a(f's_add_u32 s{S_CSS}, s{T0}, {C1 + 64*4096}')
    a(f's_mov_b32 s{S_K0}, 0'); a(f's_mov_b32 s{S_K1}, 0')
    a('s_waitcnt lgkmcnt(0)')
    for s_ in (S_A, S_B_, S_C_, S_D): srd_fix(a, s_)
    u0, p0, tau, p2, p3, p1 = 8, 9, 10, 11, 12, 13
    a(f'v_and_b32 v{u0}, 1, v{L}'); a(f'v_bfe_u32 v{p0}, v{L}, 4, 1'); a(f'v_bfe_u32 v{tau}, v{L}, 1, 1')
    a(f'v_bfe_u32 v{p2}, v{L}, 2, 1'); a(f'v_bfe_u32 v{p3}, v{L}, 3, 1'); a(f'v_bfe_u32 v{p1}, v{L}, 5, 1')
    VQ, VO, VS_, VT0, VT1, VU0, VU1 = 20, 21, 22, 23, 24, 25, 26
    a(f'v_lshlrev_b32 v14, 5, v{tau}'); a(f'v_lshl_add_u32 v14, v{u0}, 4, v14'); a(f's_lshl_b32 s{T0}, s{W}, 6'); a(f'v_add_u32 v14, s{T0}, v14')
    a(f'v_lshl_add_u32 v16, v{p1}, 1, v{p3}'); a(f'v_lshl_add_u32 v16, v{p2}, 4, v16'); a(f'v_lshl_add_u32 v16, v{p0}, 5, v16')
    a(f'v_mul_u32_u24 v17, 1152, v16'); a(f'v_add_u32 v{VO}, v17, v14')
    a(f'v_xor_b32 v{tau}, v{tau}, v{p0}')
    a(f'v_lshlrev_b32 v14, 5, v{tau}'); a(f'v_lshl_add_u32 v14, v{u0}, 4, v14'); a(f's_lshl_b32 s{T0}, s{W}, 6'); a(f'v_add_u32 v14, s{T0}, v14')
    a(f'v_lshl_add_u32 v15, v{p1}, 1, v{p0}')
    a(f'v_lshl_add_u32 v16, v{p2}, 2, v15'); a(f'v_lshl_add_u32 v16, v{p3}, 3, v16')
    a(f'v_lshl_add_u32 v{VQ}, v16, 13, v14')
    if 'pB' in EXP:
        a(f'v_lshrrev_b32 v16, 4, v{L}'); a(f's_lshl_b32 s{T0}, s{W}, 4'); a(f'v_add_u32 v16, s{T0}, v16')
        a(f'v_and_b32 v14, 15, v{L}'); a('v_lshlrev_b32 v14, 4, v14'); a(f'v_lshl_add_u32 v{VQ}, v16, 13, v14')
    a(f'v_lshl_add_u32 v16, v{p2}, 4, v15'); a(f'v_lshl_add_u32 v16, v{p3}, 5, v16')
    a(f'v_lshl_add_u32 v16, v{tau}, 6, v16'); a('v_mul_u32_u24 v17, 1152, v16')
    a(f'v_lshlrev_b32 v18, 4, v{u0}'); a(f's_lshl_b32 s{T0}, s{W}, 5'); a(f's_add_u32 s{T0}, s{T0}, 1024')
    a(f'v_add_u32 v18, s{T0}, v18'); a(f'v_add_u32 v{VS_}, v17, v18')
    a(f'v_bfe_u32 v{u0}, v{L}, 1, 1'); a(f'v_bfe_u32 v{p0}, v{L}, 2, 1'); a(f'v_bfe_u32 v{p3}, v{L}, 3, 1')
    a(f'v_bfe_u32 v{p2}, v{L}, 4, 1'); a(f'v_bfe_u32 v14, v{L}, 5, 1')
    a(f'v_and_b32 v18, 1, v{L}'); a('v_lshlrev_b32 v18, 3, v18'); a(f's_mul_i32 s{T0}, s{W}, 36864'); a(f's_add_u32 s37, s{T0}, {RESB}')
    a('v_add_u32 v18, s37, v18')
    a(f'v_lshl_add_u32 v15, v{p2}, 2, v{u0}'); a(f'v_lshl_add_u32 v15, v{p3}, 3, v15'); a(f'v_lshl_add_u32 v15, v{p0}, 4, v15')
    a('v_lshl_add_u32 v15, v14, 6, v15')
    a(f'v_lshl_add_u32 v16, v{p0}, 1, v15')
    a(f'v_xor_b32 v17, 2, v16')
    a(f'v_lshl_add_u32 v{VT0}, v16, 4, v18'); a(f'v_lshl_add_u32 v{VT1}, v17, 4, v18')
    a(f'v_lshl_add_u32 v15, v{p3}, 1, v{u0}'); a(f'v_lshl_add_u32 v15, v{p2}, 2, v15'); a(f'v_lshl_add_u32 v15, v{p0}, 3, v15')
    a('v_lshl_add_u32 v15, v14, 6, v15')
    a(f'v_lshl_add_u32 v{VU0}, v15, 4, v18'); a(f'v_add_u32 v{VU1}, 256, v{VU0}')
    a(f's_lshl_b32 s{T2}, s{S_H}, 8')
    a(f's_mul_i32 s{T3}, s{S_H}, 147456')
    def poison():
        sk = a.uid('L_np')
        a(f's_cmp_eq_u32 s{S_HB}, 0'); a(f's_cbranch_scc1 {sk}')
        if 'nopoison' in EXP: a(f's_branch {sk}')
        for r in range(4): a(f'v_mov_b32 v{8+r}, -1')
        for par in range(2):
            a(f's_add_u32 s{T0}, s{S_CR}, {par*294912}')
            for i in range(4):
                a(f'buffer_store_dwordx4 v[8:11], v{V_EX}, {WS}, s{T0} offen offset:{i*1024} sc1')
        for k in (1, 2):
            a(f's_add_u32 s{T0}, s{S_MB}, {9216*k}')
            a(f'buffer_store_dword v8, v{V_M2O}, {WS}, s{T0} offen sc1')
        a.label(sk)

    def wload(w):
        order = [('O', 0, 0), ('O', 0, 1), ('O', 1, 0), ('O', 1, 1), ('S',)] + \
                [(m, REAL[w].index(r)) for r in range(9) for m in 'QKV'] + [x for x in RESIDENT if x[0] == 'O']
        if 'qkv1' in EXP: order = order[5:32] + order[:5] + order[32:]
        assert sorted(map(str, order)) == sorted(map(str, REGIMG + RESIDENT))
        pos = {img: i for i, img in enumerate(order)}
        free = set(range(9)); slot_of = {}
        st_ = {'nxt': 0}
        def dma(i, slot):
            img = order[i]
            if img[0] in 'QKV':
                sr = {'Q': S_A, 'K': S_B_, 'V': S_C_}[img[0]]; vo = VQ; st = 16 * 8192
                if 'pB' in EXP: st = 4 * 8192
                a(f's_add_u32 s53, s{T2}, {REAL[w][img[1]] << 19}')
            elif img[0] == 'O':
                sr = S_D; vo = VO; st = 4 * 1152
                a(f's_add_u32 s53, s{T3}, {img[2] * 64 * 1152 + img[1] * 256}')
            else:
                sr = S_D; vo = VS_; st = 4 * 1152
                a(f's_mov_b32 s53, s{T3}')
            for n in range(4):
                a(f's_add_u32 m0, s37, {slot*4096 + n*1024}')
                a(f's_add_u32 s38, s53, {n*st}')
                a(f'buffer_load_dwordx4 v{vo}, s[{sr}:{sr+3}], s38 offen{" nt" if "wnt" in EXP else ""}{" sc1" if "wsc1" in EXP else ""} lds', tok=f'cw{w}_{i}')
        def issue():
            while st_['nxt'] < 36:
                i = st_['nxt']; img = order[i]
                if img in RESIDENT:
                    sl = RESIDENT.index(img)
                    if sl not in free: return
                else:
                    cand = [j for j in free if pos[RESIDENT[j]] > i]
                    if not cand: return
                    sl = max(cand, key=lambda j: pos[RESIDENT[j]])
                free.discard(sl); slot_of[i] = sl
                dma(i, sl); st_['nxt'] += 1
        if 'wst2' in EXP and w == 0: stamp(a, 5)
        issue()
        if 'wst2' in EXP and w == 0: stamp(a, 6)
        poison()
        for i in range(36):
            img = order[i]; slot = slot_of[i]
            a.need(f'cw{w}_{i}')
            if w == 0 and i == 0:
                a(f's_lshl_b32 s53, s{S_X}, 2'); a(f's_add_u32 s53, s53, {D_LN}')
                a('v_mov_b32 v8, 1'); a('v_mov_b32 v9, 0'); a('s_mov_b64 exec, 1')
                a(f'buffer_atomic_add v8, v9, s[{S_DBG}:{S_DBG+3}], s53 offen sc1')
                a('s_mov_b64 exec, -1')
            vt = VU0 if img[0] == 'O' else VT0
            for t in range(2):
                if img in RESIDENT: f, b = 'v', 32 + 8 * t
                else: f, b = opbase(2 * REGIMG.index(img) + t)
                for hb in range(2):
                    for rd in range(2):
                        r = b + 4 * hb + 2 * rd
                        a(f'ds_read_b64_tr_b16 {f}[{r}:{r+1}], v{vt+t} offset:{slot*4096 + hb*2048 + rd*512}')
            a('s_waitcnt lgkmcnt(0)')
            if img in RESIDENT:
                for q in range(4):
                    a(f'ds_write_b128 v{V_RES}, v[{32+4*q}:{32+4*q+3}] offset:{slot*4096 + q*1024}')
            else:
                free.add(slot)
            issue()
            if 'wst2' in EXP and w == 0 and i == 0: stamp(a, 7)
            if 'wst' in EXP and w == 0 and i in (4, 18, 31): stamp(a, {4: 5, 18: 6, 31: 7}[i])
        a('s_waitcnt lgkmcnt(0)')
    done = a.uid('L_wl')
    lbl = [a.uid('L_wl') for _ in range(4)]
    if 'half' in EXP:
        a(f's_bitcmp1_b32 s{S_H}, 1'); a(f's_cbranch_scc1 {done}')
    for w in range(1, 4):
        a(f's_cmp_eq_u32 s{W}, {w}'); a(f's_cbranch_scc1 {lbl[w]}')
    for w in range(4):
        a.label(lbl[w])
        wload(w)
        if w < 3: a(f's_branch {done}')
    a.label(done)

def team_barrier(a):
    a('s_waitcnt vmcnt(0)')
    a('s_barrier')
    sk = a.uid('L_tb')
    a(f's_cmp_lg_u32 s{S_W}, 0'); a(f's_cbranch_scc1 {sk}')
    a(f's_lshl_b32 s{T0}, s{S_FOREIGN}, 16'); a(f's_add_u32 s{T0}, s{T0}, 1')
    a(f'v_mov_b32 v8, s{T0}'); a('v_mov_b32 v9, 0')
    a('s_mov_b64 exec, 1')
    a(f'buffer_atomic_add v8, v9, s[{S_DBG}:{S_DBG+3}], 0 offen offset:{D_CHB} sc1')
    a('s_mov_b64 exec, -1')
    a('v_mov_b32 v9, 0'); a('v_mov_b32 v11, 32')
    poll(a, f'buffer_load_dword v8, v9, s[{S_DBG}:{S_DBG+3}], 0 offen offset:{D_CHB} sc1',
         'v_and_b32 v10, 0xffff, v8\nv_cmp_le_u32 vcc, v11, v10', sleep=6)
    a('v_lshrrev_b32 v8, 16, v8')
    a('ds_write_b32 v9, v8')
    a('s_waitcnt lgkmcnt(0)')
    a.label(sk)
    a('s_barrier')
    a('v_mov_b32 v9, 0')
    a('ds_read_b32 v8, v9')
    a('s_waitcnt lgkmcnt(0)')
    a(f'v_readfirstlane_b32 s{S_FOREIGN}, v8')
    a('s_barrier')

def loop(a, sc, tag, role):
    WS = f's[{S_WS}:{S_WS+3}]'
    w = {'r0': 0, 'r1': 1, 'r2': 2, 'n2': 2, 'io': 3}[role]
    red = role[0] == 'r'
    io = role == 'io'
    t_ = tag + role
    LS, LE = f'L_cs{t_}', f'L_ce{t_}'
    acc = {'Q': (QA, QB), 'K': (KA, KB), 'V': (VA, VB)}
    SL = lambda i: AR + 4*i
    def W(m, c, t):
        if (m, c) in RESIDENT: return f'v[{LR+8*t}:{LR+8*t+7}]'
        return opreg((m, c), t)
    def mm1(m, c, t, slot): return smf(acc[m][t], SL(slot), W(m, c, t))
    def lr(img): return lread(RESIDENT.index(img), LR)
    def aread(c, slot): return f'ds_read_b128 v[{SL(slot)}:{SL(slot)+3}], v{V_EX} offset:{X_MEM + REAL[w][c]*1024}'
    def awrite(c): return f'ds_write_b128 v{V_EX}, v[{SL(c)}:{SL(c)+3}] offset:{X_MEM + REAL[w][c]*1024}'
    def cvt(d, s0): return f'v_cvt_pk_bf16_f32 v{d}, v{s0}, v{s0+1}'
    def tr(d): return f'v_mfma_f32_16x16x16_bf16 v[{d}:{d+3}], v[{d}:{d+1}], v[{V_SEL}:{V_SEL+1}], 0'
    def pka(d, x, y): return f'v_pk_add_f32 v[{d}:{d+1}], v[{x}:{x+1}], v[{y}:{y+1}]'
    def zero(r): return f'v_mov_b64 v[{r}:{r+1}], 0'
    def em(*xs):
        for x in xs:
            if isinstance(x, (list, tuple)): em(*x)
            else: a(x)
    nown = 3 if io else 2
    def prep(): return [[zero(r) for r in range(QA, QA + 24, 2)], lr(('Q', 0))]
    B1 = f'L_b1{t_}'

    def kvcheck():
        u = a.uid('')
        em(f's_lshr_b32 s{T1}, s{S_S}, 1', f's_add_u32 s{T1}, s{T1}, 1')
        em(f's_add_u32 s{T2}, s{T1}, 1', f's_min_u32 s{T2}, s{T2}, 32')
        em(f's_bitcmp1_b32 s{S_S}, 0', f's_cselect_b32 s{T0}, s{S_K1}, s{S_K0}')
        OK, FL = f'L_ok{t_}{u}', f'L_fl{t_}{u}'
        em(f's_cmp_ge_u32 s{T0}, s{T2}', f's_cbranch_scc1 {OK}')
        em(f'v_lshlrev_b32 v9, 3, v{V_EX}')
        em(f's_lshl_b32 s{T3}, s{S_H}, 2', f's_add_u32 s{T3}, s{T3}, {F_KV}')
        a.label(FL)
        em('s_mov_b64 exec, 3', f'buffer_load_dword v8, v9, {WS}, s{T3} offen sc1', 's_mov_b64 exec, -1')
        em(f'v_readlane_b32 s{S_K0}, v8, 0', f'v_readlane_b32 s{S_K1}, v8, 1')
        em(f's_bitcmp1_b32 s{S_S}, 0', f's_cselect_b32 s{T0}, s{S_K1}, s{S_K0}')
        em(f's_cmp_ge_u32 s{T0}, s{T1}', f's_cbranch_scc1 {OK}')
        em(f's_cmp_eq_u32 s{S_BUD}, 0', f's_cbranch_scc1 {OK}')
        em(f's_sub_u32 s{S_BUD}, s{S_BUD}, 1', f's_branch {FL}')
        a.label(OK)
        em(f's_add_u32 s{T1}, s{T1}, 1', f's_cmp_ge_u32 s{T0}, s{T1}', f's_cselect_b32 s{S_WOK}, 1, 0')
        em(f's_add_u32 s{T0}, s{S_S}, 2', f's_lshl_b32 s{T0}, s{T0}, 5', f's_add_u32 s{T0}, s{T0}, s{S_H}', f's_lshl_b32 s{S_WA}, s{T0}, 13')

    def kvloads():
        em(f's_add_u32 s{T1}, s{S_SEGO}, {KF}', f's_add_u32 s{T2}, s{S_SEGO}, {VF}')
        for k in range(2):
            a(f'buffer_load_dwordx4 v[{KX+4*k}:{KX+4*k+3}], v{V_EX}, {WS}, s{T1} offen offset:{k*1024}')
        for k in range(2):
            a(f'buffer_load_dwordx4 v[{VX+4*k}:{VX+4*k+3}], v{V_EX}, {WS}, s{T2} offen offset:{k*1024}')

    a.label(LE)
    em(prep())
    if io: kvcheck()
    srd(a, S_A, 8, 9216)
    a(f'v_lshrrev_b32 v21, 4, v{V_EX}')
    a('v_and_b32 v22, 7, v21'); a('v_mul_u32_u24 v22, 1152, v22')
    a('v_lshrrev_b32 v23, 3, v21'); a('v_lshl_add_u32 v22, v23, 4, v22')
    a('s_waitcnt lgkmcnt(0)')
    srd_fix(a, S_A)
    a('s_barrier')
    for c in range(nown):
        a(f'buffer_load_dwordx4 v[{SL(c)}:{SL(c)+3}], v22, s[{S_A}:{S_A+3}], 0 offen offset:{REAL[w][c]*128}')
    if red: em(f's_add_u32 s{S_CRD}, s{S_CR}, 294912')
    em([awrite(c) for c in range(nown)])
    em(f's_branch {B1}')

    a.label(LS)
    prof(a, 12)
    prof(a, 0)
    if io:
        if 'steps' in EXP:
            em('s_memtime s[74:75]', f's_lshl_b32 s{T0}, s{S_H}, 6', f's_add_u32 s{T0}, s{T0}, s{S_S}', f's_lshl_b32 s{T0}, s{T0}, 3',
               f's_add_u32 s{T0}, s{T0}, {PROF + 0x10000}', 's_waitcnt lgkmcnt(0)', 'v_mov_b32 v8, s74', 'v_mov_b32 v9, s75', 'v_mov_b32 v10, 0',
               's_mov_b64 exec, 1', f'buffer_store_dwordx2 v[8:9], v10, {WS}, s{T0} offen', 's_mov_b64 exec, -1')
        em(prep())
        kvcheck()
    elif red:
        SEL, RA, RT = 64, 68, 72
        late = w == 1
        em(f's_xor_b32 s{S_CRD}, s{S_CP}, 294912', f's_add_u32 s{S_CRD}, s{S_CRD}, s{S_CR}')
        def cload():
            return [f'buffer_load_dwordx4 v[{8+4*i}:{8+4*i+3}], v{V_EX}, {WS}, s{S_CRD} offen offset:{i*1024} sc1' for i in range(4)]
        if not late: em(cload())
        em(f's_add_u32 s{T1}, s{S_MB}, s{S_O0}')
        em(f'v_and_b32 v{RT}, 64, v{V_EX}', f'v_lshrrev_b32 v{RT}, 2, v{RT}', f'v_mov_b32 v{RT+1}, 0x3f80', f'v_lshlrev_b32 v{RT}, v{RT}, v{RT+1}')
        for r in range(4): a(f'v_cndmask_b32 v{SEL+r}, 0, v{RT}, s[{S_RM+2*r}:{S_RM+2*r+1}]')
        if late:
            em(prep())
            delay(a, knob('d1'))
            em(cload())
        def creduce():
            for i in range(4):
                b = 8 + 4*i
                a(f'v_mfma_f32_16x16x32_bf16 v[{RA}:{RA+3}], v[{SEL}:{SEL+3}], v[{b}:{b+3}], {"0" if i == 0 else f"v[{RA}:{RA+3}]"}')
                if i == 0: em(f'v_max3_u32 v{RT}, v{b}, v{b+1}, v{b+2}', f'v_mov_b32 v{RT+1}, v{b+3}')
                else: em(f'v_max3_u32 v{RT}, v{RT}, v{b}, v{b+1}', f'v_max3_u32 v{RT+1}, v{RT+1}, v{b+2}, v{b+3}')
            em(f'v_max_u32 v{RT}, v{RT}, v{RT+1}', f'v_cmp_eq_u32 vcc, -1, v{RT}', 's_cmp_eq_u64 vcc, 0')
        RL, RD = f'L_rp{t_}', f'L_rpd{t_}'
        a.label(RL)
        creduce(); em(f's_cbranch_scc1 {RD}')
        em(f's_cmp_eq_u32 s{S_BUD}, 0', f's_cbranch_scc1 {RD}', f's_sub_u32 s{S_BUD}, s{S_BUD}, 1')
        if 'cnt' in EXP: em('s_add_u32 s98, s98, 1')
        em(cload(), f's_branch {RL}')
        a.label(RD)
        em(f'v_add_f32_dpp v{RA}, v{RA}, v{RA} row_ror:8 row_mask:0xf bank_mask:0xf',
           f'v_add_f32_dpp v{RA+1}, v{RA+1}, v{RA+1} row_ror:8 row_mask:0xf bank_mask:0xf', cvt(RA, RA))
        em(f'buffer_store_dword v{RA}, v{V_M2O}, {WS}, s{T1} offen{sc}')
    prof(a, 9)
    a('s_barrier')
    real = REAL[w]
    em(f's_add_u32 s{T0}, s{S_O0}, {M2 + real[0]*1024}')
    if io: em(f's_add_u32 s{T1}, s{S_O0}, {M2 + real[2]*1024}')
    if w in (0, 2):
        em(prep())
        delay(a, knob('d2'))
    else:
        delay(a, knob('d3'))
    def mload():
        o = [f'buffer_load_dwordx4 v[{SL(c)}:{SL(c)+3}], v{V_EX}, {WS}, s{T0} offen offset:{(real[c]-real[0])*1024} sc1' for c in range(2)]
        if io: o.append(f'buffer_load_dwordx4 v[{SL(2)}:{SL(2)+3}], v{V_EX}, {WS}, s{T1} offen sc1')
        return o
    CT = 20 if io else 16
    def mcheck():
        x, y = SL(0), SL(1)
        em(awrite(0), f'v_max3_u32 v{CT}, v{x}, v{x+1}, v{x+2}', awrite(1),
           f'v_max3_u32 v{CT}, v{CT}, v{x+3}, v{y}', f'v_max3_u32 v{CT+1}, v{y+1}, v{y+2}, v{y+3}')
        if io:
            z = SL(2)
            em(awrite(2), f'v_max3_u32 v{CT}, v{CT}, v{z}, v{z+1}', f'v_max3_u32 v{CT+1}, v{CT+1}, v{z+2}, v{z+3}')
        em(f'v_max_u32 v{CT}, v{CT}, v{CT+1}', f'v_cmp_eq_u32 vcc, -1, v{CT}', 's_cmp_eq_u64 vcc, 0')
    em(mload())
    PL = f'L_pm{t_}'
    mcheck(); em(f's_cbranch_scc1 {B1}')
    a.label(PL)
    em(f's_cmp_eq_u32 s{S_BUD}, 0', f's_cbranch_scc1 {B1}', f's_sub_u32 s{S_BUD}, s{S_BUD}, 1')
    if 'cnt' in EXP: em('s_add_u32 s99, s99, 1')
    em(mload())
    mcheck(); em(f's_cbranch_scc0 {PL}')
    a.label(B1)
    prof(a, 1)
    q = lambda c, t, sl: mm1('Q', c, t, sl)
    k = lambda c, t, sl: mm1('K', c, t, sl)
    v = lambda c, t, sl: mm1('V', c, t, sl)
    r2 = lr(('K', 2))
    em(q(0, 0, 0), q(0, 1, 0), r2[0], r2[1], q(1, 0, 1), r2[2], r2[3], q(1, 1, 1), k(0, 0, 0), k(0, 1, 0), k(1, 0, 1), k(1, 1, 1))
    a('s_waitcnt lgkmcnt(4)')
    a('s_barrier')
    prof(a, 2)
    if io:
        kvloads()
        em(f'v_lshlrev_b32 v20, 3, v{V_EX}', f'v_mov_b32 v21, s{S_S}')
        em(f's_lshl_b32 s{T2}, s{S_H}, 7', f's_add_u32 s{T2}, s{T2}, {F_CH}')
        em('s_mov_b64 exec, 1', f'buffer_store_dword v21, v20, {WS}, s{T2} offen sc1', 's_mov_b64 exec, -1')
        NW = f'L_nw{t_}'
        em(f's_cmp_eq_u32 s{S_WOK}, 0', f's_cbranch_scc1 {NW}')
        em(f's_add_u32 s{T1}, s{S_WA}, {KF}', f's_add_u32 s{T2}, s{S_WA}, {VF}')
        em(f'buffer_load_dword v{V_M2O}, v20, {WS}, s{T1} offen', f'buffer_load_dword v{V_M2O}, v20, {WS}, s{T2} offen')
        a.label(NW)
        em(aread(3, 3))
    else:
        em(aread(2, 2), aread(3, 3))
        kvloads()
    r3, r4, r5 = lr(('K', 4)), lr(('K', 5)), lr(('V', 5))
    em(v(0, 0, 0), v(0, 1, 0), aread(4, 0), v(1, 0, 1), v(1, 1, 1), aread(5, 1))
    em(q(2, 0, 2), q(2, 1, 2), k(2, 0, 2), k(2, 1, 2), aread(6, 2), r3[0])
    em(q(3, 0, 3), r3[1], r3[2], q(3, 1, 3), r3[3], k(3, 0, 3), k(3, 1, 3), aread(7, 3))
    em(q(4, 0, 0), q(4, 1, 0), k(4, 0, 0), k(4, 1, 0), aread(8, 0), r4[0])
    em(q(5, 0, 1), r4[1], r4[2], q(5, 1, 1), r4[3], q(6, 0, 2), q(6, 1, 2), q(7, 0, 3), q(7, 1, 3), q(8, 0, 0), q(8, 1, 0))
    em(k(5, 0, 1), k(5, 1, 1), r5[0], r5[1], cvt(QA, QA), k(6, 0, 2), r5[2], r5[3], cvt(QA + 1, QA + 2), k(6, 1, 2), cvt(QB, QB),
       k(7, 0, 3), cvt(QB + 1, QB + 2), k(7, 1, 3), k(8, 0, 0), k(8, 1, 0))
    prof(a, 3)
    em(tr(QA), cvt(KA, KA), cvt(KA + 1, KA + 2))
    em(tr(QB), cvt(KB, KB), cvt(KB + 1, KB + 2))
    em(tr(KA), cvt(QA, QA), cvt(QA + 1, QA + 2))
    em(tr(KB), cvt(QA + 2, QB), cvt(QA + 3, QB + 2))
    em(f'v_mfma_f32_16x16x32_bf16 v[{KX}:{KX+3}], v[{KX}:{KX+3}], v[{QA}:{QA+3}], 0', cvt(KA, KA), cvt(KA + 1, KA + 2))
    em(f'v_mfma_f32_16x16x32_bf16 v[{KX+4}:{KX+7}], v[{KX+4}:{KX+7}], v[{QA}:{QA+3}], 0', cvt(KA + 2, KB), cvt(KA + 3, KB + 2))
    em(f'v_mfma_f32_16x16x32_bf16 v[{QB}:{QB+3}], v[{KA}:{KA+3}], v[{QA}:{QA+3}], 0')
    em(f's_add_u32 s{T0}, s{S_SEGO}, {KM}')
    em(f'buffer_store_dwordx4 v[{KA}:{KA+3}], v{V_EX}, {WS}, s{T0} offen sc1')
    for r in range(4):
        a(f'v_mov_b32_dpp v{KX+r}, v{KX+4+r} quad_perm:[0,1,2,3] row_mask:0xf bank_mask:0xc')
    NM, GM = f's[{S_NM}:{S_NM+1}]', f's[{S_GM}:{S_GM+1}]'
    em(f'v_cndmask_b32 v{KB}, v{QB+1}, v{QB}, {NM}', f'v_cndmask_b32 v{KB+1}, v{QB+3}, v{QB+2}, {NM}',
       f'v_cndmask_b32 v{KB}, v{KB}, v{KB+1}, {GM}')
    em(f'ds_write_b32 v{V_EX}, v{KB} offset:{X_SM + 4*w}', f'ds_write_b128 v{V_EX}, v[{KX}:{KX+3}] offset:{X_TOK + w*1024}')
    prof(a, 4)
    em(v(5, 0, 1), v(5, 1, 1), aread(2, 1), v(6, 0, 2), v(6, 1, 2), aread(3, 2), v(7, 0, 3), v(7, 1, 3), aread(4, 3))
    a('s_waitcnt lgkmcnt(3)')
    a('s_barrier')
    prof(a, 5)
    a(f'ds_read_b128 v[64:67], v{V_EX} offset:{X_SM}')
    for kk in range(4):
        a(f'ds_read_b128 v[{40+4*kk}:{43+4*kk}], v{V_EX} offset:{X_TOK + kk*1024}')
    em(v(8, 0, 0), v(8, 1, 0), v(2, 0, 1), v(2, 1, 1))
    em(v(3, 0, 2), 'v_add_f32 v64, v64, v65', v(3, 1, 2), 'v_add_f32 v66, v66, v67', 'v_add_f32 v64, v64, v66')
    em(pka(40, 40, 44), pka(42, 42, 46), pka(40, 40, 48), pka(42, 42, 50), pka(44, 40, 52), pka(46, 42, 54))
    pre = lread(5, 8) + lread(6, 24)
    em('v_max3_f32 v68, v44, v45, v46', 'v_max3_f32 v68, v68, v47, v64')
    em(v(4, 0, 3), pre[4])
    em('v_max_f32_dpp v68, v68, v68 row_ror:8 row_mask:0xf bank_mask:0xf', 'v_mov_b32 v69, v68')
    em(v(4, 1, 3), pre[5])
    em('v_permlane32_swap_b32 v68, v69', 'v_max_f32 v68, v68, v69', 'v_mov_b32 v69, v68')
    em(pre[6], pre[7])
    em('v_permlane16_swap_b32 v68, v69', 'v_max_f32 v68, v68, v69', f'v_mul_f32 v68, s{S_C}, v68')
    em(pre[0], f'v_fma_f32 v64, v64, s{S_C}, -v68', pre[1])
    for d in (44, 46):
        a(f'v_pk_fma_f32 v[{d}:{d+1}], v[{d}:{d+1}], s[{S_C}:{S_C+1}], v[68:69] op_sel_hi:[1,1,0] neg_lo:[0,0,1] neg_hi:[0,0,1]')
    em('v_exp_f32 v64, v64', cvt(VA, VA), 'v_exp_f32 v44, v44', cvt(VA + 1, VA + 2), 'v_exp_f32 v45, v45',
       'v_mov_b32_dpp v65, v64 row_ror:8 row_mask:0xf bank_mask:0xf', 'v_exp_f32 v46, v46', cvt(VA + 2, VB), 'v_exp_f32 v47, v47', cvt(VA + 3, VB + 2))
    em(cvt(41, 64), pre[2], cvt(42, 44), 'v_mov_b32 v40, v41', pre[3], cvt(43, 46))
    em('v_permlane32_swap_b32 v40, v41')
    em(f'v_mov_b64 v[48:49], s[{S_Q4}:{S_Q4+1}]', f'v_mov_b64 v[50:51], s[{S_ONE}:{S_ONE+1}]')
    em(f's_add_u32 s{T0}, s{S_SEGO}, {KM}')
    a(f'buffer_store_dwordx4 v[{VA}:{VA+3}], v{V_EX}, {WS}, s{T0} offen offset:1024 sc1', tok='kmvm')
    em(f's_cmp_eq_u32 s{S_S}, 63', 's_cbranch_scc1 L_chx')
    em('v_mov_b32_dpp v44, v42 row_ror:8 row_mask:0xf bank_mask:0xf', 'v_mov_b32_dpp v45, v43 row_ror:8 row_mask:0xf bank_mask:0xf')
    em('v_mfma_f32_16x16x32_bf16 v[52:55], v[48:51], v[40:43], 0')
    em(f'v_mfma_f32_16x16x16_bf16 v[64:67], v[{VA}:{VA+1}], v[40:41], 0')
    em(f'v_lshrrev_b32 v48, 1, v{V_EX}', 'v_and_b32 v48, 0x180, v48')
    em(f'v_mfma_f32_16x16x16_bf16 v[68:71], v[{VA+2}:{VA+3}], v[40:41], 0')
    em(f'v_and_b32 v49, 0x70, v{V_EX}', 'v_or_b32 v48, v48, v49')
    em(f'v_mfma_f32_16x16x32_bf16 v[64:67], v[{VX}:{VX+3}], v[42:45], v[64:67]')
    em('v_add_f32_dpp v52, v52, v52 row_ror:8 row_mask:0xf bank_mask:0xf', f'v_bfe_u32 v50, v{V_EX}, 7, 1')
    em(f'v_mfma_f32_16x16x32_bf16 v[68:71], v[{VX+4}:{VX+7}], v[42:45], v[68:71]')
    em('v_rcp_f32 v52, v52', 'v_lshl_add_u32 v49, v50, 3, v48', 'v_lshl_add_u32 v50, v50, 9, v48')
    for d in (64, 66, 68, 70):
        a(f'v_pk_mul_f32 v[{d}:{d+1}], v[{d}:{d+1}], v[52:53] op_sel_hi:[1,0]')
    em(cvt(68, 68), cvt(69, 70), cvt(64, 64), cvt(65, 66))
    em('v_mov_b32_dpp v64, v68 row_ror:8 row_mask:0xf bank_mask:0xc', 'v_mov_b32_dpp v65, v69 row_ror:8 row_mask:0xf bank_mask:0xc')
    em(f'ds_write_b64 v49, v[64:65] offset:{X_O + w*512}')
    prof(a, 6)
    if red: em([zero(r) for r in range(52, 60, 2)], 'v_mov_b64 v[60:61], -1', 'v_mov_b64 v[62:63], -1')
    else: em([zero(r) for r in range(52, 64, 2)])
    a('s_waitcnt lgkmcnt(0)')
    a('s_barrier')
    prof(a, 7)
    for jj in range(2):
        a(f'ds_read_b128 v[{40+4*jj}:{43+4*jj}], v50 offset:{X_O + jj*1024}')
    for e in range(4):
        a(f'ds_read_b128 v[{64+4*e}:{67+4*e}], v48 offset:{X_O + e*512}')
    em(zero(48), zero(50))
    if red:
        em(f's_add_u32 s{T1}, s{S_MB}, s{S_O2}')
        for i in range(4):
            a(f'buffer_store_dwordx4 v[60:63], v{V_EX}, {WS}, s{S_CRD} offen offset:{i*1024}{sc}')
        a(f'buffer_store_dword v60, v{V_M2O}, {WS}, s{T1} offen{sc}')
    em(f's_add_u32 s{T0}, s{S_CS}, s{S_CP}', f's_add_u32 s{T1}, s{S_CSS}, s{S_CP}')
    ring = [8, 16, 24, 32]
    nxt = lread(7, 8) + lread(8, 24)
    GS, GA, GB, GC, GD = 48, 52, 56, 60, 40
    def epi(t, img):
        return [cvt(t, t), cvt(t + 1, t + 2), f's_add_u32 s{T2}, s{T0}, {img*65536}',
                f'buffer_store_dwordx2 v[{t}:{t+1}], v{V_C1}, {WS}, s{T2} offen{sc}']
    em([smf(GS, 40 + 4*jj, opreg(('S',), jj)) for jj in range(2)])
    ga = [smf(GA, 64 + 4*e, f'v[{ring[e]}:{ring[e]+7}]') for e in range(4)]
    gb = [smf(GB, 64 + 4*e, opreg(('O', 0, e >> 1), e & 1)) for e in range(4)]
    gc = [smf(GC, 64 + 4*e, opreg(('O', 1, e >> 1), e & 1)) for e in range(4)]
    gd = [smf(GD, 64 + 4*e, f'v[{ring[e]}:{ring[e]+7}]') for e in range(4)]
    em(ga[0], nxt[0], nxt[1], zero(GD), ga[1], nxt[2], nxt[3], zero(GD + 2))
    em(ga[2], nxt[4], nxt[5], f'v_permlane32_swap_b32 v{GS}, v{GS+2}', ga[3], nxt[6], nxt[7], f'v_permlane32_swap_b32 v{GS+1}, v{GS+3}')
    zc = [zero(60), zero(62)] if red else [[], []]
    em(gb[0], f'v_add_f32 v{GS}, v{GS}, v{GS+2}', zc[0], gb[1], f'v_add_f32 v{GS+1}, v{GS+1}, v{GS+3}', zc[1], gb[2], cvt(GS, GS),
       f'buffer_store_dword v{GS}, v{V_CS}, {WS}, s{T1} offen{sc}')
    e = epi(GA, 2)
    em(gb[3], e[0], gc[0], e[1:], gc[1])
    e = epi(GB, 0)
    em(gc[2], e[0], gc[3], e[1:])
    em(gd[0], gd[1])
    e = epi(GC, 1)
    em(e[0], gd[2], e[1:], gd[3])
    em(f's_mov_b32 s{T3}, s{S_O0}', f's_mov_b32 s{S_O0}, s{S_O1}', f's_mov_b32 s{S_O1}, s{S_O2}', f's_mov_b32 s{S_O2}, s{T3}')
    em(f's_xor_b32 s{S_CP}, s{S_CP}, 294912', f's_add_u32 s{S_S}, s{S_S}, 1', f's_add_u32 s{S_SEGO}, s{S_SEGO}, {32*8192}')
    em(epi(GD, 3))
    prof2 = PROF_STEP is not None
    if prof2:
        sk = a.uid('L_pf')
        a(f's_cmp_lg_u32 s{S_S}, {PROF_STEP + 1}'); a(f's_cbranch_scc1 {sk}')
        a.rawins(f's_mem{"real" if PROF_REAL else ""}time s[{PS+16}:{PS+17}]')
        a.label(sk)
    a(f's_branch {LS}')

def chain_role(a):
    stamp(a, 1)
    setup(a)
    stamp(a, 2)
    team_barrier(a)
    stamp(a, 3)
    if 'setuponly' in EXP:
        a('s_branch L_exit')
    a(f's_mov_b32 s{S_S}, 0'); a(f's_mov_b32 s{S_O0}, 0'); a(f's_mov_b32 s{S_O1}, 9216'); a(f's_mov_b32 s{S_O2}, 18432')
    a(f's_mov_b32 s{S_CP}, 0')
    if 'cnt' in EXP: a('s_mov_b32 s98, 0'); a('s_mov_b32 s99, 0')
    variants = getattr(chain_role, 'variants', 'both')
    vs = {'both': [('', 'l'), (' sc1', 'f')], 'loc': [('', 'l')], 'for': [(' sc1', 'f')]}[variants]
    if variants == 'both':
        a(f's_cmp_lg_u32 s{S_FOREIGN}, 0'); a('s_cbranch_scc1 L_cdf')
    for sc, tag in vs:
        a.label(f'L_cd{tag}')
        a(f's_cmp_eq_u32 s{S_W}, 3'); a(f's_cbranch_scc1 L_ce{tag}io')
        a(f's_cmp_eq_u32 s{S_W}, 1'); a(f's_cbranch_scc1 L_ce{tag}r1')
        a(f's_cmp_eq_u32 s{S_W}, 0'); a(f's_cbranch_scc1 L_ce{tag}r0')
        a(f's_cmp_lt_u32 s{S_H}, 8'); a(f's_cbranch_scc1 L_ce{tag}r2')
        a(f's_branch L_ce{tag}n2')
        for role in ('r0', 'r1', 'r2', 'n2', 'io'):
            loop(a, sc, tag, role)
    a.label('L_chx')
    WS = f's[{S_WS}:{S_WS+3}]'
    a('s_waitcnt vmcnt(0)')
    a('s_barrier')
    sk = a.uid('L_x')
    a(f's_cmp_lg_u32 s{S_W}, 3'); a(f's_cbranch_scc1 {sk}')
    a(f'v_lshlrev_b32 v60, 3, v{V_EX}'); a('v_mov_b32 v61, 64')
    a(f's_lshl_b32 s{T2}, s{S_H}, 7'); a(f's_add_u32 s{T2}, s{T2}, {F_CH}')
    a('s_mov_b64 exec, 1')
    a(f'buffer_store_dword v61, v60, {WS}, s{T2} offen sc1')
    a('s_mov_b64 exec, -1')
    a.label(sk)
    if 'cnt' in EXP:
        a(f's_lshl_b32 s{T0}, s{S_H}, 2'); a(f's_add_u32 s{T0}, s{T0}, s{S_W}'); a(f's_lshl_b32 s{T0}, s{T0}, 7'); a(f's_add_u32 s{T0}, s{T0}, {PROF}')
        a('v_mov_b32 v10, 0'); a('v_mov_b32 v8, s98'); a('v_mov_b32 v9, s99'); a('s_mov_b64 exec, 1')
        a(f'buffer_store_dwordx2 v[8:9], v10, {WS}, s{T0} offen')
        a('s_mov_b64 exec, -1')
    if PROF_STEP is not None:
        a('s_waitcnt lgkmcnt(0)')
        a(f's_lshl_b32 s{T0}, s{S_H}, 2'); a(f's_add_u32 s{T0}, s{T0}, s{S_W}'); a(f's_lshl_b32 s{T0}, s{T0}, 7'); a(f's_add_u32 s{T0}, s{T0}, {PROF}')
        a('v_mov_b32 v10, 0'); a('s_mov_b64 exec, 1')
        for k in range(13):
            a(f'v_mov_b32 v8, s{PS+2*k}'); a(f'v_mov_b32 v9, s{PS+2*k+1}')
            a(f'buffer_store_dwordx2 v[8:9], v10, {WS}, s{T0} offen offset:{8*k}')
        a('s_mov_b64 exec, -1')
    stamp(a, 4)
```

```python
import sys, gen_base, gen_chain, gen_shadow
out = sys.argv[1]
roles = ['ln','kv','f1','f2','sh','fin','ch']
for x in sys.argv[2:]:
    if x.startswith('prof='): gen_chain.PROF_STEP = int(x[5:])
    elif x.startswith('shprof='): gen_shadow.PROF_IT = int(x[7:])
    elif x.startswith('var='): gen_chain.chain_role.variants = x[4:]
    elif x == 'real': gen_chain.PROF_REAL = True
    elif x == 'noch': roles.remove('ch')
    elif x.startswith('no='): roles.remove(x[3:])
    elif x.startswith('exp='): gen_chain.EXP = set(x[4:].split(',')); gen_shadow.EXP = gen_chain.EXP
import gen
if 'setuponly' in gen_chain.EXP: roles.append('setuponly')
t = gen.build(tuple(roles), 'dev/' + out)
print(len(t))
```

```python
import re
from collections import defaultdict

VCC = (('s', 106), ('s', 107))
EXEC = (('s', 126), ('s', 127))
M0 = (('s', 124),)

_reg_re = re.compile(r'^(v|a|s)(\d+)$')
_rng_re = re.compile(r'^(v|a|s)\[(\d+):(\d+)\]$')


def regs_of(op):
    op = op.strip()
    neg = op.startswith('-')
    if neg:
        op = op[1:]
    if op.startswith('|') and op.endswith('|'):
        op = op[1:-1]
    m = _reg_re.match(op)
    if m:
        return [(m.group(1), int(m.group(2)))]
    m = _rng_re.match(op)
    if m:
        return [(m.group(1), i) for i in range(int(m.group(2)), int(m.group(3)) + 1)]
    if op == 'vcc':
        return list(VCC)
    if op == 'vcc_lo':
        return [VCC[0]]
    if op == 'vcc_hi':
        return [VCC[1]]
    if op == 'exec':
        return list(EXEC)
    if op == 'exec_lo':
        return [EXEC[0]]
    if op == 'exec_hi':
        return [EXEC[1]]
    if op == 'm0':
        return list(M0)
    return []


TRANS = ('v_exp_f32', 'v_log_f32', 'v_rcp_f32', 'v_rsq_f32', 'v_sqrt_f32', 'v_sin_f32', 'v_cos_f32',
         'v_rcp_iflag_f32', 'v_exp_f16', 'v_rcp_f16')
MFMA_PASSES = {
    'v_mfma_f32_16x16x32_bf16': 4, 'v_mfma_f32_16x16x16_bf16': 4, 'v_mfma_f32_16x16x16_bf16_1k': 4,
    'v_mfma_f32_16x16x16bf16_1k': 4,
    'v_mfma_f32_32x32x16_bf16': 8, 'v_smfmac_f32_16x16x64_bf16': 4, 'v_smfmac_f32_16x16x32_bf16': 4,
    'v_mfma_f32_16x16x4_f32': 8, 'v_mfma_f32_16x16x4f32': 8,
}


def split_ops(s):
    out, depth, cur = [], 0, ''
    for ch in s:
        if ch in '[(':
            depth += 1
        elif ch in '])':
            depth -= 1
        if ch == ',' and depth == 0:
            out.append(cur.strip())
            cur = ''
        else:
            cur += ch
    if cur.strip():
        out.append(cur.strip())
    return out


class Ins:
    __slots__ = ('text', 'mn', 'ops', 'mods', 'defs', 'uses', 'kind', 'tok_def', 'tok_use', 'label', 'target',
                 'passes', 'srcC', 'srcAB', 'dpp', 'wide_store', 'comment', 'valu_sdefs', 'lds_dma', 'raw', 'retok')

    def __init__(self, text):
        self.text = text
        self.label = None
        self.target = None
        self.tok_def = []
        self.tok_use = []
        self.defs = []
        self.uses = []
        self.passes = 0
        self.srcC = []
        self.srcAB = []
        self.dpp = False
        self.wide_store = []
        self.valu_sdefs = []
        self.lds_dma = False
        self.kind = 'other'
        self.raw = False
        self.retok = None
        self.mn = ''
        self.ops = []
        self.mods = ''


def parse(text):
    ins = Ins(text)
    t = text.split(';')[0].strip()
    if t.endswith(':'):
        ins.label = t[:-1]
        ins.kind = 'label'
        return ins
    if t.startswith('.'):
        ins.kind = 'directive'
        return ins
    sp = t.split(None, 1)
    mn = sp[0]
    rest = sp[1] if len(sp) > 1 else ''
    ops = split_ops(rest)
    mods = ''
    if ops:
        last = ops[-1].split(None, 1)
        if len(last) > 1 and not ops[-1].startswith('hwreg') and not ops[-1].startswith('vmcnt') \
                and not ops[-1].startswith('lgkmcnt'):
            ops[-1] = last[0]
            mods = last[1]
    ins.mn, ins.ops, ins.mods = mn, ops, mods
    base = re.sub(r'_(e32|e64|dpp|sdwa)$', '', mn)
    R = [regs_of(o) for o in ops]

    def flat(lst):
        return [r for x in lst for r in x]

    if mn.startswith('v_mfma') or mn.startswith('v_smfmac'):
        ins.kind = 'mfma'
        ins.passes = MFMA_PASSES[base]
        ins.defs = R[0]
        if mn.startswith('v_smfmac'):
            ins.srcC = R[0]
            ins.srcAB = R[1] + R[2] + R[3]
        else:
            ins.srcC = R[3]
            ins.srcAB = R[1] + R[2]
        ins.uses = ins.srcC + ins.srcAB
    elif mn.startswith('v_'):
        ins.kind = 'valu'
        ins.dpp = ('row_' in mods or 'quad_perm' in mods or 'dpp' in mn or 'wave_' in mods or 'row_' in rest)
        if base.startswith('v_cmpx'):
            ins.defs = list(EXEC) + R[0]
            ins.uses = flat(R[1:])
        elif base.startswith('v_cmp'):
            ins.defs = R[0]
            ins.uses = flat(R[1:])
        elif base in ('v_add_co_u32', 'v_sub_co_u32', 'v_subrev_co_u32', 'v_addc_co_u32', 'v_subb_co_u32',
                      'v_mad_u64_u32', 'v_div_scale_f32'):
            ins.defs = R[0] + R[1]
            ins.uses = flat(R[2:])
        elif base in ('v_permlane32_swap_b32', 'v_permlane16_swap_b32', 'v_swap_b32'):
            ins.defs = R[0] + R[1]
            ins.uses = R[0] + R[1]
        elif base in ('v_fmac_f32', 'v_mac_f32', 'v_writelane_b32', 'v_pk_fmac_f16', 'v_dot2c_f32_bf16'):
            ins.defs = R[0]
            ins.uses = flat(R)
        elif base == 'v_nop':
            pass
        else:
            ins.defs = R[0]
            ins.uses = flat(R[1:])
            if ins.dpp:
                ins.uses = ins.uses + R[0]
        if base == 'v_cndmask_b32' and len(ops) == 3:
            ins.uses = ins.uses + list(VCC)
        ins.valu_sdefs = [r for r in ins.defs if r[0] == 's']
    elif mn.startswith('ds_'):
        ins.kind = 'lds'
        if mn.startswith('ds_read') or mn.startswith('ds_bpermute') or mn.startswith('ds_permute') \
                or mn.startswith('ds_swizzle') or '_rtn' in mn:
            ins.defs = R[0]
            ins.uses = flat(R[1:])
        else:
            ins.uses = flat(R)
    elif mn.startswith('buffer_') or mn.startswith('global_'):
        ins.kind = 'vmem'
        allmods = ' ' + mods + ' '
        is_lds = (' lds ' in allmods) or ('_lds_' in mn)
        if mn in ('buffer_wbl2', 'buffer_inv'):
            pass
        elif is_lds:
            ins.lds_dma = True
            ins.uses = flat(R) + list(M0)
        elif '_load' in mn:
            ins.defs = R[0]
            ins.uses = flat(R[1:])
        elif '_store' in mn:
            ins.uses = flat(R)
            data = R[0] if mn.startswith('buffer_') else R[1]
            if len(data) >= 3:
                ins.wide_store = data
        elif '_atomic' in mn:
            ret = ' sc0 ' in allmods
            if mn.startswith('buffer_'):
                ins.uses = flat(R)
                if ret:
                    n = len(R[0])
                    ins.defs = R[0][:n // 2] if 'cmpswap' in mn else R[0]
            else:
                if ret:
                    ins.defs = R[0]
                    ins.uses = flat(R[1:])
                else:
                    ins.uses = flat(R)
        else:
            raise ValueError('vmem? ' + text)
    elif mn.startswith('s_'):
        ins.kind = 'salu'
        if mn.startswith('s_load') or mn.startswith('s_buffer_load') or mn in ('s_memtime', 's_memrealtime'):
            ins.kind = 'smem'
            ins.defs = R[0]
            ins.uses = flat(R[1:])
        elif mn.startswith('s_cbranch') or mn == 's_branch':
            ins.kind = 'branch'
            ins.target = ops[0]
            if 'vcc' in mn:
                ins.uses = list(VCC)
            if 'exec' in mn:
                ins.uses = list(EXEC)
        elif mn == 's_endpgm':
            ins.kind = 'end'
        elif mn == 's_waitcnt':
            ins.kind = 'wait'
        elif mn == 's_nop':
            ins.kind = 'nop'
        elif mn in ('s_barrier', 's_setprio', 's_sleep', 's_sethalt'):
            pass
        elif mn.startswith('s_cmp') or mn.startswith('s_bitcmp'):
            ins.uses = flat(R)
        elif 'saveexec' in mn:
            ins.defs = R[0] + list(EXEC)
            ins.uses = flat(R[1:]) + list(EXEC)
        elif mn == 's_setreg_b32' or mn == 's_setreg_imm32_b32':
            ins.uses = flat(R[1:])
        else:
            ins.defs = R[0] if R else []
            ins.uses = flat(R[1:])
            if mn in ('s_addk_i32', 's_mulk_i32') or mn.startswith('s_cmov') or mn.startswith('s_bitset'):
                ins.uses = ins.uses + R[0]
    else:
        raise ValueError('cannot parse: ' + text)
    return ins


class Asm:
    def __init__(self):
        self.items = []
        self._uid = 0
        self.time_aware = True

    def uid(self, p='L'):
        self._uid += 1
        return f'{p}{self._uid}'

    def __call__(self, text, tok=None, need=None):
        lines = [l for l in text.split('\n') if l.split(';')[0].strip()]
        out = []
        for l in lines:
            out.append(parse(l.strip()))
        if need:
            out[0].tok_use = list(need) if isinstance(need, (list, tuple)) else [need]
        if tok:
            out[-1].tok_def = list(tok) if isinstance(tok, (list, tuple)) else [tok]
        self.items.extend(out)
        return out[-1] if out else None

    def rawins(self, text):
        i = Ins(text)
        i.kind = 'other'
        self.items.append(i)

    def label(self, name):
        self(name + ':')

    def need(self, *toks):
        i = Ins('')
        i.kind = 'pseudo'
        i.tok_use = list(toks)
        self.items.append(i)

    def retok(self, regs, tok):
        i = Ins('')
        i.kind = 'pseudo'
        i.retok = ([('v', r) for r in regs], tok)
        self.items.append(i)

    def comment(self, s):
        i = Ins('; ' + s)
        i.kind = 'comment'
        self.items.append(i)

    def add(self, ins_list):
        self.items.extend(ins_list)

    def _cfg(self, items):
        lab = {}
        for n, it in enumerate(items):
            if it.kind == 'label':
                lab[it.label] = n
        succ = [[] for _ in items]
        for n, it in enumerate(items):
            if it.kind == 'end':
                continue
            if it.kind == 'branch':
                succ[n].append(lab[it.target])
                if it.mn != 's_branch' and n + 1 < len(items):
                    succ[n].append(n + 1)
            elif n + 1 < len(items):
                succ[n].append(n + 1)
        return succ

    @staticmethod
    def _parse_wait(it):
        vm = lg = None
        t = it.text
        m = re.search(r'vmcnt\((\d+)\)', t)
        if m:
            vm = int(m.group(1))
        m = re.search(r'lgkmcnt\((\d+)\)', t)
        if m:
            lg = int(m.group(1))
        return vm, lg

    def _insert_waits(self, items):
        succ = self._cfg(items)
        n_items = len(items)
        leaders = {0}
        for n, it in enumerate(items):
            if it.kind == 'label':
                leaders.add(n)
            if it.kind in ('branch', 'end') and n + 1 < n_items:
                leaders.add(n + 1)
        leaders = sorted(leaders)
        blk_end = {}
        for i, l in enumerate(leaders):
            blk_end[l] = leaders[i + 1] if i + 1 < len(leaders) else n_items
        preds = defaultdict(list)
        for n in range(n_items):
            for s in succ[n]:
                preds[s].append(n)

        def transfer(l, st, waits):
            vm, lg, sm = dict(st[0]), dict(st[1]), set(st[2])
            for n in range(l, blk_end[l]):
                it = items[n]
                if it.kind in ('label', 'comment', 'directive'):
                    continue
                if it.kind == 'wait':
                    wv, wl = self._parse_wait(it)
                    if wv is not None:
                        vm = {k: v for k, v in vm.items() if v < wv}
                    if wl is not None:
                        if wl == 0:
                            lg, sm = {}, set()
                        elif not sm:
                            lg = {k: v for k, v in lg.items() if v < wl}
                    continue
                if it.retok:
                    for r in it.retok[0]:
                        if r in vm:
                            k = ('t', it.retok[1])
                            vm[k] = min(vm.get(k, 99), vm.pop(r))
                    continue
                keys = list(it.uses) + list(it.defs) + [('t', t) for t in it.tok_use]
                if it.kind == 'vmem' and it.defs and '_load' in it.mn:
                    vkeys = list(it.uses) + [('t', t) for t in it.tok_use]
                else:
                    vkeys = keys
                needv = [vm[k] for k in vkeys if k in vm]
                needl = [lg[k] for k in keys if k in lg]
                needs = [k for k in keys if k in sm]
                wv = min(needv) if needv else None
                wl = min(needl) if needl else None
                if needs or (wl is not None and sm):
                    wl = 0
                if wv is not None:
                    vm = {k: v for k, v in vm.items() if v < wv}
                if wl is not None:
                    if wl == 0:
                        lg, sm = {}, set()
                    else:
                        lg = {k: v for k, v in lg.items() if v < wl}
                if waits is not None and (wv is not None or wl is not None):
                    waits[n] = (wv, wl)
                if it.kind == 'vmem':
                    vm = {k: v + 1 for k, v in vm.items() if v + 1 < 64}
                    for r in it.defs:
                        vm[r] = 0
                    for t in it.tok_def:
                        vm[('t', t)] = 0
                    vm[('t', '*vm')] = 0
                elif it.kind == 'lds':
                    lg = {k: v + 1 for k, v in lg.items()}
                    for k in list(lg):
                        if lg[k] > 15:
                            lg[k] = 15
                    for r in it.defs:
                        lg[r] = 0
                    for t in it.tok_def:
                        lg[('t', t)] = 0
                    lg[('t', '*lds')] = 0
                elif it.kind == 'smem':
                    for r in it.defs:
                        sm.add(r)
                    for t in it.tok_def:
                        sm.add(('t', t))
                    sm.add(('t', '*smem'))
            return vm, lg, sm

        def merge(a, b):
            if a is None:
                return (dict(b[0]), dict(b[1]), set(b[2])), True
            ch = False
            vm, lg, sm = a
            for src, dst in ((b[0], vm), (b[1], lg)):
                for k, v in src.items():
                    if k not in dst or v < dst[k]:
                        dst[k] = v
                        ch = True
            for k in b[2]:
                if k not in sm:
                    sm.add(k)
                    ch = True
            return (vm, lg, sm), ch

        state = {l: None for l in leaders}
        work = []
        for l in leaders:
            if l == 0 or not preds.get(l):
                state[l] = ({}, {}, set())
                work.append(l)
        inwork = set(work)
        while work:
            l = work.pop(0)
            inwork.discard(l)
            out = transfer(l, state[l], None)
            last = blk_end[l] - 1
            for s in succ[last]:
                new, ch = merge(state[s], out)
                state[s] = new
                if ch and s not in inwork:
                    work.append(s)
                    inwork.add(s)
        waits = {}
        for l in leaders:
            if state[l] is not None:
                transfer(l, state[l], waits)
        res = []
        for n, it in enumerate(items):
            if n in waits:
                wv, wl = waits[n]
                s = 's_waitcnt'
                if wv is not None:
                    s += f' vmcnt({min(wv, 63)})'
                if wl is not None:
                    s += f' lgkmcnt({min(wl, 15)})'
                res.append(parse(s))
            if it.kind != 'pseudo':
                res.append(it)
        return res

    @staticmethod
    def _req(p, c):
        req = 0
        if p.kind == 'mfma':
            pd = set(p.defs)
            xdl = {4: (6, 8), 8: (10, 12), 2: (4, 5), 16: (18, 20)}[p.passes]
            if c.kind == 'mfma':
                cc = c.srcC
                if pd & set(cc):
                    if not (cc == p.defs and c.passes == p.passes):
                        req = max(req, xdl[0])
                if pd & set(c.srcAB):
                    req = max(req, xdl[1])
                if pd & set(c.defs) and not (pd & set(cc)):
                    if c.passes != p.passes or c.defs != p.defs:
                        req = max(req, xdl[0])
            elif c.kind in ('valu', 'vmem', 'lds'):
                if pd & (set(c.uses) | set(c.defs)):
                    req = max(req, xdl[1])
                if c.kind == 'valu' and set(p.srcC) & set(c.defs):
                    req = max(req, {4: 3, 8: 7, 2: 1, 16: 15}[p.passes])
        elif p.kind == 'valu':
            pd = set(p.defs)
            vd = {r for r in pd if r[0] in 'va'}
            sd = set(p.valu_sdefs)
            base = re.sub(r'_(e32|e64|dpp|sdwa)$', '', p.mn)
            if c.kind == 'mfma':
                if vd & set(c.uses):
                    req = max(req, 2)
                if sd & set(EXEC):
                    req = max(req, 4)
            elif c.kind == 'valu':
                cb = re.sub(r'_(e32|e64|dpp|sdwa)$', '', c.mn)
                cu = set(c.uses)
                if c.dpp and vd & cu:
                    req = max(req, 2)
                if c.dpp and sd & set(EXEC):
                    req = max(req, 5)
                if cb.startswith('v_permlane') and vd & cu:
                    req = max(req, 2)
                if cb.startswith('v_permlane') and sd & set(EXEC):
                    req = max(req, 4)
                if cb in ('v_readfirstlane_b32', 'v_readlane_b32'):
                    if vd & cu:
                        req = max(req, 1)
                    if sd & set(EXEC):
                        req = max(req, 4)
                if sd & cu:
                    req = max(req, 4 if cb in ('v_readlane_b32', 'v_writelane_b32', 'v_div_fmas_f32') else 2)
                if base in TRANS and vd & cu:
                    req = max(req, 1)
                if (('op_sel' in p.mods and not p.mn.endswith('_f32')) or 'sdwa' in p.mn or 'dst_sel' in p.mods) and vd & (cu | set(c.defs)):
                    req = max(req, 1)
            elif c.kind == 'vmem':
                if sd & set(c.uses):
                    req = max(req, 5)
            elif c.kind == 'branch':
                if sd & set(c.uses):
                    req = max(req, 5)
            elif c.kind in ('salu', 'smem'):
                if c.kind == 'smem' and sd & set(c.uses):
                    req = max(req, 5)
        elif p.kind == 'vmem':
            if p.wide_store and set(p.wide_store) & set(c.defs):
                req = max(req, 2 if c.kind in ('valu', 'mfma') else 1)
        elif p.kind == 'salu':
            if set(p.defs) & set(M0) and (c.lds_dma or c.mn == 's_sendmsg'):
                req = max(req, 1)
        return req

    @staticmethod
    def _ws(it):
        if it.kind == 'nop':
            return int(it.ops[0], 0) + 1
        if it.kind in ('label', 'comment', 'directive', 'pseudo'):
            return 0
        return 1

    def _pad_hazards(self, items):
        MAXD = 21
        out = []
        succ = self._cfg(items)
        preds = defaultdict(list)
        for n in range(len(items)):
            for s in succ[n]:
                preds[s].append(n)
        extra = defaultdict(int)
        interesting = ('mfma', 'valu', 'vmem', 'lds', 'smem', 'branch', 'salu')
        def elapsed(p, path, c, k):
            t = 0
            pit = items[p]
            pipe = pit.passes if (pit.kind == 'mfma' and self.time_aware) else 0
            for q in path:
                it = items[q]
                t += extra[q]
                w = self._ws(it)
                if w == 0:
                    continue
                t += w
                if it.kind == 'mfma' and self.time_aware:
                    t = max(t, pipe)
                    pipe = t + it.passes
            t += k + 1
            if c.kind == 'mfma' and self.time_aware:
                t = max(t, pipe)
            return t - 1
        for n, c in enumerate(items):
            if c.kind not in interesting:
                continue
            need = 0
            stack = [(p, 0, ()) for p in preds.get(n, [])]
            seen = {}
            while stack:
                p, d, path = stack.pop()
                if d >= MAXD:
                    continue
                sig = (p,) + tuple((items[q].kind == 'mfma', self._ws(items[q]), extra[q]) for q in path if self._ws(items[q]) or extra[q])
                if sig in seen or p in path:
                    continue
                seen[sig] = d
                it = items[p]
                r = self._req(it, c)
                if r > d:
                    k = 0
                    while elapsed(p, path, c, k) < r:
                        k += 1
                    need = max(need, k)
                nd = d + self._ws(it) + extra[p]
                for q in preds.get(p, []):
                    stack.append((q, nd, (p,) + path))
            extra[n] += need
        for n, it in enumerate(items):
            k = extra.get(n, 0)
            while k > 0:
                j = min(k, 16)
                out.append(parse(f's_nop {j - 1}'))
                k -= j
            out.append(it)
        return out

    def finalize(self):
        items = self._insert_waits(self.items)
        items = self._pad_hazards(items)
        lines = []
        for it in items:
            if it.kind == 'label':
                lines.append(it.text)
            elif it.kind == 'pseudo':
                continue
            else:
                lines.append(' ' + it.text)
        self.final_items = items
        return '\n'.join(lines) + '\n'


def interleave(main, fill, start=0, every=1, per=1):
    out, fi = [], 0
    for i, m in enumerate(main):
        out.append(m)
        if i >= start and (i - start) % every == 0:
            for _ in range(per):
                if fi < len(fill):
                    out.append(fill[fi])
                    fi += 1
    out.extend(fill[fi:])
    return out
```

```python
from gen_base import *
import struct
def f2u(x): return struct.unpack('<I', struct.pack('<f', x))[0]

X_MEM, X_TOK, X_SM, X_O, RESB = 0, 9216, 13312, 14336, 16384
V_EX, V_RES, V_CS, V_C1, V_M2O, V_IDX, V_SEL = 0, 1, 2, 3, 4, 5, 6
AR, LR = 8, 24
QA, QB, KA, KB, VA, VB = 40, 44, 48, 52, 56, 60
KX, VX = 64, 72
PROF = 0x20000
PROF_STEP = None
PROF_REAL = False
EXP = set()

REAL = [[2, 3, 4, 5, 6, 7, 8, 0, 1], [0, 1, 2, 3, 4, 5, 6, 7, 8], [6, 7, 8, 0, 1, 2, 3, 4, 5], [4, 5, 8, 6, 7, 0, 1, 2, 3]]
def knob(name, dflt=0):
    for x in EXP:
        if x.startswith(name + '='): return int(x[len(name)+1:])
    return dflt
def delay(a, n):
    while n > 0:
        a.rawins(f's_nop {min(n, 16) - 1}'); n -= 16
RESIDENT = [('Q', 0), ('K', 2), ('K', 4), ('K', 5), ('V', 5), ('O', 2, 0), ('O', 2, 1), ('O', 3, 0), ('O', 3, 1)]
REGIMG = [(m, c) for c in range(9) for m in 'QKV' if (m, c) not in RESIDENT] + \
         [('O', 0, 0), ('O', 0, 1), ('O', 1, 0), ('O', 1, 1), ('S',)]
assert len(REGIMG) == 27
def opbase(k):
    return ('a', 8 * k) if k < 32 else ('v', 80 + 8 * (k - 32))
def opreg(img, tau):
    k = 2 * REGIMG.index(img) + tau
    f, b = opbase(k)
    return f'{f}[{b}:{b+7}]'

S_CRD = 37
S_WOK, S_WA = 38, 39
S_H, S_S = 40, 41
S_O0, S_O1, S_O2 = 42, 43, 44
S_MR = 45
S_MB = 46
S_CP = 47
S_CS = 48
S_CR = 49
S_K0, S_K1 = 50, 51
S_HB, S_B = 52, 53
S_C = 54
S_NM = 56
S_SEGO = 58
S_CSS = 59
S_GM = 60
S_RM = 62
S_Q4 = 70
S_ONE = 72
S_TO, S_TA, S_TR = 52, 53, 45
T0, T1, T2, T3 = 33, 34, 35, 36
PS = 74

def prof(a, k, _=0):
    if PROF_STEP is None: return
    sk = a.uid('L_pf')
    a(f's_cmp_lg_u32 s{S_S}, {PROF_STEP + (1 if k >= 12 else 0)}'); a(f's_cbranch_scc1 {sk}')
    a.rawins(f's_mem{"real" if PROF_REAL else ""}time s[{PS+2*k}:{PS+2*k+1}]')
    a.label(sk)

def smf(d, av, b):
    return f'v_smfmac_f32_16x16x64_bf16 v[{d}:{d+3}], v[{av}:{av+3}], {b}, v{V_IDX}'

def lread(slot, dst):
    return [f'ds_read_b128 v[{dst+4*q}:{dst+4*q+3}], v{V_RES} offset:{slot*4096 + q*1024}' for q in range(4)]

S_B_, S_C_ = 20, 24

def setup(a):
    W = S_W
    WS = f's[{S_WS}:{S_WS+3}]'
    if 'hx' in EXP: a(f's_xor_b32 s{S_H}, s{S_T}, 1')
    else: a(f's_mov_b32 s{S_H}, s{S_T}')
    srd(a, S_A, 16, 576 * 8192); srd(a, S_B_, 24, 576 * 8192); srd(a, S_C_, 32, 576 * 8192); srd(a, S_D, 40, 32 * 147456)
    a(f'v_mov_b32 v79, v{V_LANE}')
    L = 79
    a(f'v_lshlrev_b32 v{V_EX}, 4, v{L}')
    a(f's_mul_i32 s{T0}, s{W}, 36864'); a(f's_add_u32 s{T0}, s{T0}, {RESB}'); a(f'v_add_u32 v{V_RES}, s{T0}, v{V_EX}')
    a(f'v_bfe_u32 v9, v{L}, 3, 1'); a('v_lshlrev_b32 v9, 12, v9')
    a(f'v_and_b32 v10, 7, v{L}'); a('v_lshl_add_u32 v9, v10, 3, v9')
    a(f'v_bfe_u32 v10, v{L}, 4, 1'); a('v_lshl_add_u32 v9, v10, 6, v9')
    a(f'v_lshrrev_b32 v10, 5, v{L}')
    a(f'v_lshl_add_u32 v{V_C1}, v10, 13, v9')
    a(f'v_lshl_add_u32 v{V_CS}, v10, 2, v9')
    a(f'v_bfe_u32 v9, v{L}, 2, 1'); a('v_lshlrev_b32 v9, 2, v9'); a(f'v_lshrrev_b32 v10, 4, v{L}'); a('v_add_u32 v9, v9, v10')
    a(f'v_and_b32 v10, 3, v{L}'); a('v_lshlrev_b32 v10, 2, v10'); a(f'v_lshl_add_u32 v{V_M2O}, v9, 4, v10')
    a(f'v_bfe_u32 v10, v{L}, 3, 1'); a('v_mul_u32_u24 v10, 0xaaaa, v10'); a(f'v_add_u32 v{V_IDX}, 0x4444, v10')
    a(f'v_and_b32 v9, 7, v{L}'); a(f'v_bfe_u32 v10, v{L}, 4, 1'); a('v_lshlrev_b32 v10, 2, v10')
    a('v_sub_u32 v9, v9, v10')
    for r in range(2):
        a(f'v_mov_b32 v11, 0'); a('v_mov_b32 v12, 0x3f80'); a(f'v_cmp_eq_u32 vcc, {2*r}, v9'); a('v_cndmask_b32 v11, v11, v12, vcc')
        a('v_mov_b32 v12, 0x3f800000'); a(f'v_cmp_eq_u32 vcc, {2*r+1}, v9'); a(f'v_cndmask_b32 v{V_SEL+r}, v11, v12, vcc')
    a(f's_mov_b32 s{S_C}, {f2u(128 ** -0.5 * 1.4426950408889634):#x}'); a(f's_mov_b32 s{S_C+1}, s{S_C}')
    a(f's_mov_b32 s{S_NM}, 0x00ff00ff'); a(f's_mov_b32 s{S_NM+1}, 0x00ff00ff')
    a(f's_mov_b32 s{S_GM}, 0'); a(f's_mov_b32 s{S_GM+1}, -1')
    for r, m in enumerate((0x0011, 0x1100, 0x0022, 0x2200)):
        a(f's_mov_b32 s{S_RM+2*r}, {m * 0x10001:#x}'); a(f's_mov_b32 s{S_RM+2*r+1}, {m * 0x10001:#x}')
    a(f's_mov_b32 s{S_Q4}, 0x3e803e80'); a(f's_mov_b32 s{S_Q4+1}, 0x3e803e80')
    a(f's_mov_b32 s{S_ONE}, 0x3f803f80'); a(f's_mov_b32 s{S_ONE+1}, 0x3f803f80')
    a(f's_lshl_b32 s{T0}, s{W}, 11')
    a(f's_lshl_b32 s{T1}, s{S_H}, 13'); a(f's_add_u32 s{S_SEGO}, s{T0}, s{T1}')
    a(f's_cmp_lt_u32 s{S_H}, 16')
    a(f's_cselect_b32 s{T0}, 32, -16'); a(f's_cselect_b32 s{T1}, 16, 32')
    a(f's_cmp_eq_u32 s{W}, 1'); a(f's_cselect_b32 s{T0}, s{T1}, s{T0}')
    a(f's_cmp_eq_u32 s{W}, 2'); a(f's_cselect_b32 s{T0}, 64, s{T0}')
    a(f's_add_u32 s{S_B}, s{T0}, s{S_H}')
    a(f's_cmp_lt_u32 s{S_H}, 8'); a(f's_cselect_b32 s{S_HB}, 1, 0')
    a(f's_cmp_lt_u32 s{W}, 2'); a(f's_cselect_b32 s{S_HB}, 1, s{S_HB}')
    a(f's_cmp_eq_u32 s{W}, 3'); a(f's_cselect_b32 s{S_HB}, 0, s{S_HB}')
    a(f's_min_u32 s{S_B}, s{S_B}, 71')
    a(f's_lshl_b32 s{T0}, s{S_B}, 7'); a(f's_add_u32 s{S_MB}, s{T0}, {M2}')
    a(f's_lshl_b32 s{T0}, s{S_B}, 12'); a(f's_add_u32 s{S_CR}, s{T0}, {C1}')
    a(f's_lshl_b32 s{T0}, s{W}, 14'); a(f's_lshl_b32 s{T1}, s{S_H}, 7'); a(f's_add_u32 s{T0}, s{T0}, s{T1}')
    a(f's_add_u32 s{S_CS}, s{T0}, {C1}')
    a(f's_lshl_b32 s{T0}, s{W}, 13'); a(f's_add_u32 s{T0}, s{T0}, s{T1}'); a(f's_add_u32 s{S_CSS}, s{T0}, {C1 + 64*4096}')
    a(f's_mov_b32 s{S_K0}, 0'); a(f's_mov_b32 s{S_K1}, 0')
    a('s_waitcnt lgkmcnt(0)')
    for s_ in (S_A, S_B_, S_C_, S_D): srd_fix(a, s_)
    u0, p0, tau, p2, p3, p1 = 8, 9, 10, 11, 12, 13
    a(f'v_and_b32 v{u0}, 1, v{L}'); a(f'v_bfe_u32 v{p0}, v{L}, 4, 1'); a(f'v_bfe_u32 v{tau}, v{L}, 1, 1')
    a(f'v_bfe_u32 v{p2}, v{L}, 2, 1'); a(f'v_bfe_u32 v{p3}, v{L}, 3, 1'); a(f'v_bfe_u32 v{p1}, v{L}, 5, 1')
    VQ, VO, VS_, VT0, VT1, VU0, VU1 = 20, 21, 22, 23, 24, 25, 26
    a(f'v_lshlrev_b32 v14, 5, v{tau}'); a(f'v_lshl_add_u32 v14, v{u0}, 4, v14'); a(f's_lshl_b32 s{T0}, s{W}, 6'); a(f'v_add_u32 v14, s{T0}, v14')
    a(f'v_lshl_add_u32 v16, v{p1}, 1, v{p3}'); a(f'v_lshl_add_u32 v16, v{p2}, 4, v16'); a(f'v_lshl_add_u32 v16, v{p0}, 5, v16')
    a(f'v_mul_u32_u24 v17, 1152, v16'); a(f'v_add_u32 v{VO}, v17, v14')
    a(f'v_xor_b32 v{tau}, v{tau}, v{p0}')
    a(f'v_lshlrev_b32 v14, 5, v{tau}'); a(f'v_lshl_add_u32 v14, v{u0}, 4, v14'); a(f's_lshl_b32 s{T0}, s{W}, 6'); a(f'v_add_u32 v14, s{T0}, v14')
    a(f'v_lshl_add_u32 v15, v{p1}, 1, v{p0}')
    a(f'v_lshl_add_u32 v16, v{p2}, 2, v15'); a(f'v_lshl_add_u32 v16, v{p3}, 3, v16')
    a(f'v_lshl_add_u32 v{VQ}, v16, 13, v14')
    if 'pB' in EXP:
        a(f'v_lshrrev_b32 v16, 4, v{L}'); a(f's_lshl_b32 s{T0}, s{W}, 4'); a(f'v_add_u32 v16, s{T0}, v16')
        a(f'v_and_b32 v14, 15, v{L}'); a('v_lshlrev_b32 v14, 4, v14'); a(f'v_lshl_add_u32 v{VQ}, v16, 13, v14')
    a(f'v_lshl_add_u32 v16, v{p2}, 4, v15'); a(f'v_lshl_add_u32 v16, v{p3}, 5, v16')
    a(f'v_lshl_add_u32 v16, v{tau}, 6, v16'); a('v_mul_u32_u24 v17, 1152, v16')
    a(f'v_lshlrev_b32 v18, 4, v{u0}'); a(f's_lshl_b32 s{T0}, s{W}, 5'); a(f's_add_u32 s{T0}, s{T0}, 1024')
    a(f'v_add_u32 v18, s{T0}, v18'); a(f'v_add_u32 v{VS_}, v17, v18')
    a(f'v_bfe_u32 v{u0}, v{L}, 1, 1'); a(f'v_bfe_u32 v{p0}, v{L}, 2, 1'); a(f'v_bfe_u32 v{p3}, v{L}, 3, 1')
    a(f'v_bfe_u32 v{p2}, v{L}, 4, 1'); a(f'v_bfe_u32 v14, v{L}, 5, 1')
    a(f'v_and_b32 v18, 1, v{L}'); a('v_lshlrev_b32 v18, 3, v18'); a(f's_mul_i32 s{T0}, s{W}, 36864'); a(f's_add_u32 s37, s{T0}, {RESB}')
    a('v_add_u32 v18, s37, v18')
    a(f'v_lshl_add_u32 v15, v{p2}, 2, v{u0}'); a(f'v_lshl_add_u32 v15, v{p3}, 3, v15'); a(f'v_lshl_add_u32 v15, v{p0}, 4, v15')
    a('v_lshl_add_u32 v15, v14, 6, v15')
    a(f'v_lshl_add_u32 v16, v{p0}, 1, v15')
    a(f'v_xor_b32 v17, 2, v16')
    a(f'v_lshl_add_u32 v{VT0}, v16, 4, v18'); a(f'v_lshl_add_u32 v{VT1}, v17, 4, v18')
    a(f'v_lshl_add_u32 v15, v{p3}, 1, v{u0}'); a(f'v_lshl_add_u32 v15, v{p2}, 2, v15'); a(f'v_lshl_add_u32 v15, v{p0}, 3, v15')
    a('v_lshl_add_u32 v15, v14, 6, v15')
    a(f'v_lshl_add_u32 v{VU0}, v15, 4, v18'); a(f'v_add_u32 v{VU1}, 256, v{VU0}')
    a(f's_lshl_b32 s{T2}, s{S_H}, 8')
    a(f's_mul_i32 s{T3}, s{S_H}, 147456')
    def poison():
        sk = a.uid('L_np')
        a(f's_cmp_eq_u32 s{S_HB}, 0'); a(f's_cbranch_scc1 {sk}')
        if 'nopoison' in EXP: a(f's_branch {sk}')
        for r in range(4): a(f'v_mov_b32 v{8+r}, -1')
        for par in range(2):
            a(f's_add_u32 s{T0}, s{S_CR}, {par*294912}')
            for i in range(4):
                a(f'buffer_store_dwordx4 v[8:11], v{V_EX}, {WS}, s{T0} offen offset:{i*1024} sc1')
        for k in (1, 2):
            a(f's_add_u32 s{T0}, s{S_MB}, {9216*k}')
            a(f'buffer_store_dword v8, v{V_M2O}, {WS}, s{T0} offen sc1')
        a.label(sk)

    def wload(w):
        order = [('O', 0, 0), ('O', 0, 1), ('O', 1, 0), ('O', 1, 1), ('S',)] + \
                [(m, REAL[w].index(r)) for r in range(9) for m in 'QKV'] + [x for x in RESIDENT if x[0] == 'O']
        if 'qkv1' in EXP: order = order[5:32] + order[:5] + order[32:]
        assert sorted(map(str, order)) == sorted(map(str, REGIMG + RESIDENT))
        pos = {img: i for i, img in enumerate(order)}
        free = set(range(9)); slot_of = {}
        st_ = {'nxt': 0}
        def dma(i, slot):
            img = order[i]
            if img[0] in 'QKV':
                sr = {'Q': S_A, 'K': S_B_, 'V': S_C_}[img[0]]; vo = VQ; st = 16 * 8192
                if 'pB' in EXP: st = 4 * 8192
                a(f's_add_u32 s53, s{T2}, {REAL[w][img[1]] << 19}')
            elif img[0] == 'O':
                sr = S_D; vo = VO; st = 4 * 1152
                a(f's_add_u32 s53, s{T3}, {img[2] * 64 * 1152 + img[1] * 256}')
            else:
                sr = S_D; vo = VS_; st = 4 * 1152
                a(f's_mov_b32 s53, s{T3}')
            for n in range(4):
                a(f's_add_u32 m0, s37, {slot*4096 + n*1024}')
                a(f's_add_u32 s38, s53, {n*st}')
                a(f'buffer_load_dwordx4 v{vo}, s[{sr}:{sr+3}], s38 offen{" nt" if "wnt" in EXP else ""}{" sc1" if "wsc1" in EXP else ""} lds', tok=f'cw{w}_{i}')
        def issue():
            while st_['nxt'] < 36:
                i = st_['nxt']; img = order[i]
                if img in RESIDENT:
                    sl = RESIDENT.index(img)
                    if sl not in free: return
                else:
                    cand = [j for j in free if pos[RESIDENT[j]] > i]
                    if not cand: return
                    sl = max(cand, key=lambda j: pos[RESIDENT[j]])
                free.discard(sl); slot_of[i] = sl
                dma(i, sl); st_['nxt'] += 1
        if 'wst2' in EXP and w == 0: stamp(a, 5)
        issue()
        if 'wst2' in EXP and w == 0: stamp(a, 6)
        poison()
        for i in range(36):
            img = order[i]; slot = slot_of[i]
            a.need(f'cw{w}_{i}')
            if w == 0 and i == 0:
                a(f's_lshl_b32 s53, s{S_X}, 2'); a(f's_add_u32 s53, s53, {D_LN}')
                a('v_mov_b32 v8, 1'); a('v_mov_b32 v9, 0'); a('s_mov_b64 exec, 1')
                a(f'buffer_atomic_add v8, v9, s[{S_DBG}:{S_DBG+3}], s53 offen sc1')
                a('s_mov_b64 exec, -1')
            vt = VU0 if img[0] == 'O' else VT0
            for t in range(2):
                if img in RESIDENT: f, b = 'v', 32 + 8 * t
                else: f, b = opbase(2 * REGIMG.index(img) + t)
                for hb in range(2):
                    for rd in range(2):
                        r = b + 4 * hb + 2 * rd
                        a(f'ds_read_b64_tr_b16 {f}[{r}:{r+1}], v{vt+t} offset:{slot*4096 + hb*2048 + rd*512}')
            a('s_waitcnt lgkmcnt(0)')
            if img in RESIDENT:
                for q in range(4):
                    a(f'ds_write_b128 v{V_RES}, v[{32+4*q}:{32+4*q+3}] offset:{slot*4096 + q*1024}')
            else:
                free.add(slot)
            issue()
            if 'wst2' in EXP and w == 0 and i == 0: stamp(a, 7)
            if 'wst' in EXP and w == 0 and i in (4, 18, 31): stamp(a, {4: 5, 18: 6, 31: 7}[i])
        a('s_waitcnt lgkmcnt(0)')
    done = a.uid('L_wl')
    lbl = [a.uid('L_wl') for _ in range(4)]
    if 'half' in EXP:
        a(f's_bitcmp1_b32 s{S_H}, 1'); a(f's_cbranch_scc1 {done}')
    for w in range(1, 4):
        a(f's_cmp_eq_u32 s{W}, {w}'); a(f's_cbranch_scc1 {lbl[w]}')
    for w in range(4):
        a.label(lbl[w])
        wload(w)
        if w < 3: a(f's_branch {done}')
    a.label(done)

def team_barrier(a):
    a('s_waitcnt vmcnt(0)')
    a('s_barrier')
    sk = a.uid('L_tb')
    a(f's_cmp_lg_u32 s{S_W}, 0'); a(f's_cbranch_scc1 {sk}')
    a(f's_lshl_b32 s{T0}, s{S_FOREIGN}, 16'); a(f's_add_u32 s{T0}, s{T0}, 1')
    a(f'v_mov_b32 v8, s{T0}'); a('v_mov_b32 v9, 0')
    a('s_mov_b64 exec, 1')
    a(f'buffer_atomic_add v8, v9, s[{S_DBG}:{S_DBG+3}], 0 offen offset:{D_CHB} sc1')
    a('s_mov_b64 exec, -1')
    a('v_mov_b32 v9, 0'); a('v_mov_b32 v11, 32')
    poll(a, f'buffer_load_dword v8, v9, s[{S_DBG}:{S_DBG+3}], 0 offen offset:{D_CHB} sc1',
         'v_and_b32 v10, 0xffff, v8\nv_cmp_le_u32 vcc, v11, v10', sleep=6)
    a('v_lshrrev_b32 v8, 16, v8')
    a('ds_write_b32 v9, v8')
    a('s_waitcnt lgkmcnt(0)')
    a.label(sk)
    a('s_barrier')
    a('v_mov_b32 v9, 0')
    a('ds_read_b32 v8, v9')
    a('s_waitcnt lgkmcnt(0)')
    a(f'v_readfirstlane_b32 s{S_FOREIGN}, v8')
    a('s_barrier')

def loop(a, sc, tag, role):
    WS = f's[{S_WS}:{S_WS+3}]'
    w = {'r0': 0, 'r1': 1, 'r2': 2, 'n2': 2, 'io': 3}[role]
    red = role[0] == 'r'
    io = role == 'io'
    t_ = tag + role
    LS, LE = f'L_cs{t_}', f'L_ce{t_}'
    acc = {'Q': (QA, QB), 'K': (KA, KB), 'V': (VA, VB)}
    SL = lambda i: AR + 4*i
    def W(m, c, t):
        if (m, c) in RESIDENT: return f'v[{LR+8*t}:{LR+8*t+7}]'
        return opreg((m, c), t)
    def mm1(m, c, t, slot): return smf(acc[m][t], SL(slot), W(m, c, t))
    def lr(img): return lread(RESIDENT.index(img), LR)
    def aread(c, slot): return f'ds_read_b128 v[{SL(slot)}:{SL(slot)+3}], v{V_EX} offset:{X_MEM + REAL[w][c]*1024}'
    def awrite(c): return f'ds_write_b128 v{V_EX}, v[{SL(c)}:{SL(c)+3}] offset:{X_MEM + REAL[w][c]*1024}'
    def cvt(d, s0): return f'v_cvt_pk_bf16_f32 v{d}, v{s0}, v{s0+1}'
    def tr(d): return f'v_mfma_f32_16x16x16_bf16 v[{d}:{d+3}], v[{d}:{d+1}], v[{V_SEL}:{V_SEL+1}], 0'
    def pka(d, x, y): return f'v_pk_add_f32 v[{d}:{d+1}], v[{x}:{x+1}], v[{y}:{y+1}]'
    def zero(r): return f'v_mov_b64 v[{r}:{r+1}], 0'
    def em(*xs):
        for x in xs:
            if isinstance(x, (list, tuple)): em(*x)
            else: a(x)
    nown = 3 if io else 2
    RT = 54
    def prep(): return [[zero(r) for r in range(QA, QA + 24, 2)], lr(('Q', 0))]
    B1 = f'L_b1{t_}'
    PZ = knob('pz', 0)
    def poison(d, caddr, maddr, part=range(5)):
        o = []
        for i in part:
            if i < 4: o.append(f'buffer_store_dwordx4 v[{d}:{d+3}], v{V_EX}, {WS}, s{caddr} offen offset:{i*1024}{sc}')
            else: o.append(f'buffer_store_dword v{d}, v{V_M2O}, {WS}, s{maddr} offen{sc}')
        return o

    def kvcheck():
        u = a.uid('')
        em(f's_lshr_b32 s{T1}, s{S_S}, 1', f's_add_u32 s{T1}, s{T1}, 1')
        em(f's_add_u32 s{T2}, s{T1}, 1', f's_min_u32 s{T2}, s{T2}, 32')
        em(f's_bitcmp1_b32 s{S_S}, 0', f's_cselect_b32 s{T0}, s{S_K1}, s{S_K0}')
        OK, FL = f'L_ok{t_}{u}', f'L_fl{t_}{u}'
        em(f's_cmp_ge_u32 s{T0}, s{T2}', f's_cbranch_scc1 {OK}')
        em(f'v_lshlrev_b32 v9, 3, v{V_EX}')
        em(f's_lshl_b32 s{T3}, s{S_H}, 2', f's_add_u32 s{T3}, s{T3}, {F_KV}')
        a.label(FL)
        em('s_mov_b64 exec, 3', f'buffer_load_dword v8, v9, {WS}, s{T3} offen sc1', 's_mov_b64 exec, -1')
        em(f'v_readlane_b32 s{S_K0}, v8, 0', f'v_readlane_b32 s{S_K1}, v8, 1')
        em(f's_bitcmp1_b32 s{S_S}, 0', f's_cselect_b32 s{T0}, s{S_K1}, s{S_K0}')
        em(f's_cmp_ge_u32 s{T0}, s{T1}', f's_cbranch_scc1 {OK}')
        em(f's_cmp_eq_u32 s{S_BUD}, 0', f's_cbranch_scc1 {OK}')
        em(f's_sub_u32 s{S_BUD}, s{S_BUD}, 1', f's_branch {FL}')
        a.label(OK)
        em(f's_add_u32 s{T1}, s{T1}, 1', f's_cmp_ge_u32 s{T0}, s{T1}', f's_cselect_b32 s{S_WOK}, 1, 0')
        em(f's_add_u32 s{T0}, s{S_S}, 2', f's_lshl_b32 s{T0}, s{T0}, 5', f's_add_u32 s{T0}, s{T0}, s{S_H}', f's_lshl_b32 s{S_WA}, s{T0}, 13')

    def kvl():
        return [[f's_add_u32 s{T1}, s{S_SEGO}, {KF}', f's_add_u32 s{T2}, s{S_SEGO}, {VF}'],
                [f'buffer_load_dwordx4 v[{KX+4*k}:{KX+4*k+3}], v{V_EX}, {WS}, s{T1} offen offset:{k*1024}' for k in range(2)],
                [f'buffer_load_dwordx4 v[{VX+4*k}:{VX+4*k+3}], v{V_EX}, {WS}, s{T2} offen offset:{k*1024}' for k in range(2)]]
    def kvloads(): em(kvl())
    ones4 = [f'v_mov_b64 v[{VX}:{VX+1}], -1', f'v_mov_b64 v[{VX+2}:{VX+3}], -1']

    a.label(LE)
    em(prep())
    if io: kvcheck()
    srd(a, S_A, 8, 9216)
    a(f'v_lshrrev_b32 v21, 4, v{V_EX}')
    a('v_and_b32 v22, 7, v21'); a('v_mul_u32_u24 v22, 1152, v22')
    a('v_lshrrev_b32 v23, 3, v21'); a('v_lshl_add_u32 v22, v23, 4, v22')
    a('s_waitcnt lgkmcnt(0)')
    srd_fix(a, S_A)
    a('s_barrier')
    for c in range(nown):
        a(f'buffer_load_dwordx4 v[{SL(c)}:{SL(c)+3}], v22, s[{S_A}:{S_A+3}], 0 offen offset:{REAL[w][c]*128}')
    if red: em(f's_add_u32 s{S_CRD}, s{S_CR}, 294912')
    if red and PZ == 4: em(ones4)
    em([awrite(c) for c in range(nown)])
    em(f's_branch {B1}')

    a.label(LS)
    prof(a, 12)
    prof(a, 0)
    if io:
        if 'steps' in EXP:
            em('s_memtime s[74:75]', f's_lshl_b32 s{T0}, s{S_H}, 6', f's_add_u32 s{T0}, s{T0}, s{S_S}', f's_lshl_b32 s{T0}, s{T0}, 3',
               f's_add_u32 s{T0}, s{T0}, {PROF + 0x10000}', 's_waitcnt lgkmcnt(0)', 'v_mov_b32 v8, s74', 'v_mov_b32 v9, s75', 'v_mov_b32 v10, 0',
               's_mov_b64 exec, 1', f'buffer_store_dwordx2 v[8:9], v10, {WS}, s{T0} offen', 's_mov_b64 exec, -1')
        em(prep())
        kvcheck()
    elif red:
        late = w == 1
        em(f's_xor_b32 s{S_CRD}, s{S_CP}, 294912', f's_add_u32 s{S_CRD}, s{S_CRD}, s{S_CR}')
        NS = knob('ns', 3)
        SETS = [8, 24, 64][:NS]
        SEL, RA, RT = 56, 60, 54
        def cload(b):
            return [f'buffer_load_dwordx4 v[{b+4*i}:{b+4*i+3}], v{V_EX}, {WS}, s{S_CRD} offen offset:{i*1024} sc1' for i in range(4)]
        selr = [f's_add_u32 s{T1}, s{S_MB}, s{S_O0}',
                f'v_and_b32 v{RT}, 64, v{V_EX}', f'v_lshrrev_b32 v{RT}, 2, v{RT}', f'v_mov_b32 v{RT+1}, 0x3f80', f'v_lshlrev_b32 v{RT}, v{RT}, v{RT+1}'] + \
               [f'v_cndmask_b32 v{SEL+r}, 0, v{RT}, s[{S_RM+2*r}:{S_RM+2*r+1}]' for r in range(4)]
        zq = [zero(r) for r in range(QA, RT, 2)]
        if PZ == 4: zq = zq + ones4
        if PZ == 2:
            em('v_mov_b64 v[44:45], -1', 'v_mov_b64 v[46:47], -1', f's_add_u32 s{T2}, s{S_CR}, s{S_CP}', f's_add_u32 s{T3}, s{S_MB}, s{S_O1}')
            em(poison(44, T2, T3))
        if late:
            em(selr, zq)
            delay(a, knob('d1'))
            em(cload(SETS[0]))
            for b in SETS[1:]:
                delay(a, knob('g1', 16)); em(cload(b))
        else:
            delay(a, knob('d0'))
            em(cload(SETS[0]), selr)
            if NS > 1: delay(a, knob('g0', 8)); em(cload(SETS[1]))
            em(zq)
            if NS > 2: delay(a, knob('g0', 8)); em(cload(SETS[2]))
        def creduce(sb, first=False):
            mf = lambda i: f'v_mfma_f32_16x16x32_bf16 v[{RA}:{RA+3}], v[{SEL}:{SEL+3}], v[{sb+4*i}:{sb+4*i+3}], {"0" if i == 0 else f"v[{RA}:{RA+3}]"}'
            if PZ == 5:
                stp = 1 if role == 'r2' else 2
                xo = lambda d, x, y: f'v_bitop3_b32 v{d}, v{x}, v{y}, s{S_TR} bitop3:0x7e'
                for i in range(4):
                    b = sb + 4*i
                    a(mf(i))
                    if stp == 2:
                        if i == 0: em(xo(RT, b, b + 2))
                        elif i == 1: em(xo(RT + 1, b, b + 2))
                        elif i == 2: em(f'v_or_b32 v{RT}, v{RT}, v{RT+1}', xo(RT + 1, b, b + 2))
                        else: em(f'v_or_b32 v{RT}, v{RT}, v{RT+1}', xo(RT + 1, b, b + 2))
                    else:
                        if i == 0: em(xo(RT, b, b + 1), xo(RT + 1, b + 2, b + 3))
                        else: em(f'v_or_b32 v{RT}, v{RT}, v{RT+1}', xo(RT + 1, b, b + 1), f'v_or_b32 v{RT}, v{RT}, v{RT+1}', xo(RT + 1, b + 2, b + 3))
                em(f'v_bitop3_b32 v{RT}, v{RT}, v{RT+1}, 1 bitop3:0xa8', f'v_cmp_ne_u32 vcc, 0, v{RT}', 's_cmp_eq_u64 vcc, 0')
                return
            if first:
                b = sb
                em(f'v_max3_u32 v{RT}, v{b}, v{b+1}, v{b+2}', f'v_max3_u32 v{RT+1}, v{b+3}, v{b+4}, v{b+5}', mf(0),
                   f'v_max3_u32 v{RT}, v{RT}, v{b+6}, v{b+7}', mf(1),
                   f'v_max3_u32 v{RT+1}, v{RT+1}, v{b+8}, v{b+9}', f'v_max3_u32 v{RT}, v{RT}, v{b+10}, v{b+11}', mf(2),
                   f'v_max3_u32 v{RT+1}, v{RT+1}, v{b+12}, v{b+13}', f'v_max3_u32 v{RT}, v{RT}, v{b+14}, v{b+15}', mf(3))
            else:
                for i in range(4):
                    b = sb + 4*i
                    a(mf(i))
                    if i == 0: em(f'v_max3_u32 v{RT}, v{b}, v{b+1}, v{b+2}', f'v_mov_b32 v{RT+1}, v{b+3}')
                    else: em(f'v_max3_u32 v{RT}, v{RT}, v{b}, v{b+1}', f'v_max3_u32 v{RT+1}, v{RT+1}, v{b+2}, v{b+3}')
            em(f'v_max_u32 v{RT}, v{RT}, v{RT+1}', f'v_cmp_eq_u32 vcc, -1, v{RT}', 's_cmp_eq_u64 vcc, 0')
        RL, RD = f'L_rp{t_}', f'L_rpd{t_}'
        if knob('md') == 2:
            assert PZ == 5
            NB = knob('nb1' if late else 'nb0', 2)
            cregs = list(range(8, 24))
            RX = f'L_rx{t_}'
            if PROF_STEP is not None: em('s_waitcnt vmcnt(0)'); prof(a, 10)
            creduce(8); em(f's_cbranch_scc1 {RD}')
            a.retok(cregs, 'cstale')
            a.label(RL)
            em(f's_cmp_eq_u32 s{S_BUD}, 0', f's_cbranch_scc1 {RX}', f's_sub_u32 s{S_BUD}, s{S_BUD}, 1')
            if 'cnt' in EXP: em('s_add_u32 s98, s98, 1')
            em('s_mov_b64 exec, vcc', cload(8))
            a.retok(cregs, 'cstale')
            em(f's_waitcnt vmcnt({4*(NB-1)})')
            stp = 1 if role == 'r2' else 2
            xo = lambda d, x, y: f'v_bitop3_b32 v{d}, v{x}, v{y}, s{S_TR} bitop3:0x7e'
            mf = lambda i: f'v_mfma_f32_16x16x32_bf16 v[{RA}:{RA+3}], v[{SEL}:{SEL+3}], v[{8+4*i}:{8+4*i+3}], {"0" if i == 0 else f"v[{RA}:{RA+3}]"}'
            ml = knob('mlate')
            for i in range(4):
                b = 8 + 4*i
                if stp == 2:
                    if i == 0: em(xo(RT, b, b + 2))
                    else: em(xo(RT + 1, b, b + 2), f'v_or_b32 v{RT}, v{RT}, v{RT+1}')
                else:
                    if i == 0: em(xo(RT, b, b + 1), xo(RT + 1, b + 2, b + 3), f'v_or_b32 v{RT}, v{RT}, v{RT+1}')
                    else: em(xo(RT + 1, b, b + 1), f'v_or_b32 v{RT}, v{RT}, v{RT+1}', xo(RT + 1, b + 2, b + 3), f'v_or_b32 v{RT}, v{RT}, v{RT+1}')
                if not ml and i > 0: a(mf(i - 1))
            em(f'v_and_b32 v{RT}, 1, v{RT}', f'v_cmp_ne_u32 vcc, 0, v{RT}')
            if not ml: a(mf(3))
            em('s_cmp_eq_u64 vcc, 0', f's_cbranch_scc0 {RL}')
            a.label(RX)
            em('s_mov_b64 exec, -1')
            if knob('mlate'):
                for i in range(4): a(mf(i))
        elif knob('md'):
            NB = knob('nb1' if late else 'nb0', 1)
            cregs = list(range(8, 24))
            for j in range(1, NB):
                delay(a, knob('gb1' if late else 'gb0', 16)); em(cload(8))
            em(f's_waitcnt vmcnt({4*(NB-1)})'); a.retok(cregs, 'cstale')
            creduce(8, NB > 1); em(f's_cbranch_scc1 {RD}')
            RM = f'L_rm{t_}'
            a.label(RL)
            em(f's_cmp_eq_u32 s{S_BUD}, 0', f's_cbranch_scc1 {RM}', f's_sub_u32 s{S_BUD}, s{S_BUD}, 1')
            if 'cnt' in EXP: em('s_add_u32 s98, s98, 1')
            em('s_mov_b64 exec, vcc', cload(8), 's_mov_b64 exec, -1')
            em(f's_waitcnt vmcnt({4*(NB-1)})'); a.retok(cregs, 'cstale')
            em(f'v_max3_u32 v{RT}, v8, v9, v10', f'v_max3_u32 v{RT+1}, v11, v12, v13')
            for b in range(14, 22, 4): em(f'v_max3_u32 v{RT}, v{RT}, v{b}, v{b+1}', f'v_max3_u32 v{RT+1}, v{RT+1}, v{b+2}, v{b+3}')
            em(f'v_max3_u32 v{RT}, v{RT}, v22, v23', f'v_max_u32 v{RT}, v{RT}, v{RT+1}', f'v_cmp_eq_u32 vcc, -1, v{RT}', 's_cmp_eq_u64 vcc, 0')
            em(f's_cbranch_scc0 {RL}')
            a.label(RM)
            for i in range(4):
                b = 8 + 4*i
                a(f'v_mfma_f32_16x16x32_bf16 v[{RA}:{RA+3}], v[{SEL}:{SEL+3}], v[{b}:{b+3}], {"0" if i == 0 else f"v[{RA}:{RA+3}]"}')
        else:
            if PROF_STEP is not None: em('s_waitcnt vmcnt(0)'); prof(a, 10)
            a.label(RL)
            for j, b in enumerate(SETS):
                creduce(b); em(f's_cbranch_scc1 {RD}')
                if j == NS - 1: em(f's_cmp_eq_u32 s{S_BUD}, 0', f's_cbranch_scc1 {RD}', f's_sub_u32 s{S_BUD}, s{S_BUD}, 1')
                if 'cnt' in EXP: em('s_add_u32 s98, s98, 1')
                em(cload(b))
            em(f's_branch {RL}')
        a.label(RD)
        em(f'v_add_f32_dpp v{RA}, v{RA}, v{RA} row_ror:8 row_mask:0xf bank_mask:0xf',
           f'v_add_f32_dpp v{RA+1}, v{RA+1}, v{RA+1} row_ror:8 row_mask:0xf bank_mask:0xf', cvt(RA, RA))
        em(f'buffer_store_dword v{RA}, v{V_M2O}, {WS}, s{T1} offen{sc}')
    prof(a, 9)
    a('s_barrier')
    real = REAL[w]
    em(f's_add_u32 s{T0}, s{S_O0}, {M2 + real[0]*1024}')
    if io: em(f's_add_u32 s{T1}, s{S_O0}, {M2 + real[2]*1024}')
    MS = knob('ms', 3)
    msets = ([[8, 12, 16], [64, 68, 72]] if io else [[8, 12], [64, 68], [72, 76]])[:MS]
    def mload(st):
        o = [f'buffer_load_dwordx4 v[{st[c]}:{st[c]+3}], v{V_EX}, {WS}, s{T0} offen offset:{(real[c]-real[0])*1024} sc1' for c in range(2)]
        if io: o.append(f'buffer_load_dwordx4 v[{st[2]}:{st[2]+3}], v{V_EX}, {WS}, s{T1} offen sc1')
        return o
    CT = 20 if io else 16
    def mcheck(st, first=False):
        x, y = st[0], st[1]
        aw = lambda c: f'ds_write_b128 v{V_EX}, v[{st[c]}:{st[c]+3}] offset:{X_MEM + REAL[w][c]*1024}'
        if first:
            em(f'v_max3_u32 v{CT}, v{x}, v{x+1}, v{x+2}', f'v_max3_u32 v{CT+1}, v{x+3}, v{y}, v{y+1}', aw(0),
               f'v_max3_u32 v{CT}, v{CT}, v{y+2}, v{y+3}', aw(1))
            if io:
                z = st[2]
                em(f'v_max3_u32 v{CT+1}, v{CT+1}, v{z}, v{z+1}', f'v_max3_u32 v{CT}, v{CT}, v{z+2}, v{z+3}', aw(2))
        else:
            em(aw(0), f'v_max3_u32 v{CT}, v{x}, v{x+1}, v{x+2}', aw(1),
               f'v_max3_u32 v{CT}, v{CT}, v{x+3}, v{y}', f'v_max3_u32 v{CT+1}, v{y+1}, v{y+2}, v{y+3}')
            if io:
                z = st[2]
                em(aw(2), f'v_max3_u32 v{CT}, v{CT}, v{z}, v{z+1}', f'v_max3_u32 v{CT+1}, v{CT+1}, v{z+2}, v{z+3}')
        em(f'v_max_u32 v{CT}, v{CT}, v{CT+1}', f'v_cmp_eq_u32 vcc, -1, v{CT}', 's_cmp_eq_u64 vcc, 0')
    fill = [] if io else ([zero(r) for r in range(RT if red else QA, QA + 24, 2)], lr(('Q', 0)))
    if fill and knob('pre02' if w in (0, 2) else 'pre1'):
        em(fill); fill = []
    delay(a, knob('d2' if w in (0, 2) else 'd3'))
    em(mload(msets[0]))
    if fill: em(fill[0])
    if len(msets) > 1:
        delay(a, knob('g2', 0 if fill else 16)); em(mload(msets[1]))
    if fill: em(fill[1])
    if red and PZ == 1:
        em('v_mov_b64 v[20:21], -1', 'v_mov_b64 v[22:23], -1', f's_add_u32 s{T2}, s{S_MB}, s{S_O2}')
        em(poison(20, S_CRD, T2))
    if len(msets) > 2:
        delay(a, knob('g3', 8)); em(mload(msets[2]))
    PL = f'L_pm{t_}'
    if knob('mm') == 2:
        MB_ = knob('mb02' if w in (0, 2) else ('mb1' if w == 1 else 'mb3'), 2)
        st = msets[0]
        mregs = list(range(8, 8 + 4 * len(st)))
        PX = f'L_px{t_}'
        if PROF_STEP is not None: em('s_waitcnt vmcnt(0)'); prof(a, 11, 0)
        mcheck(st); em(f's_cbranch_scc1 {B1}')
        a.retok(mregs, 'mstale')
        a.label(PL)
        em(f's_cmp_eq_u32 s{S_BUD}, 0', f's_cbranch_scc1 {PX}', f's_sub_u32 s{S_BUD}, s{S_BUD}, 1')
        if 'cnt' in EXP: em('s_add_u32 s99, s99, 1')
        em('s_mov_b64 exec, vcc', mload(st))
        a.retok(mregs, 'mstale')
        em(f's_waitcnt vmcnt({len(st)*(MB_-1)})')
        mcheck(st, True); em(f's_cbranch_scc0 {PL}')
        a.label(PX)
        em('s_mov_b64 exec, -1')
    elif knob('mm'):
        MB_ = knob('mb02' if w in (0, 2) else ('mb1' if w == 1 else 'mb3'), 1)
        st = msets[0]
        mregs = list(range(8, 8 + 4 * len(st)))
        for j in range(1, MB_):
            delay(a, knob('gm02' if w in (0, 2) else ('gm1' if w == 1 else 'gm3'), 16)); em(mload(st))
        em(f's_waitcnt vmcnt({len(st)*(MB_-1)})'); a.retok(mregs, 'mstale')
        mcheck(st, MB_ > 1); em(f's_cbranch_scc1 {B1}')
        a.label(PL)
        em(f's_cmp_eq_u32 s{S_BUD}, 0', f's_cbranch_scc1 {B1}', f's_sub_u32 s{S_BUD}, s{S_BUD}, 1')
        if 'cnt' in EXP: em('s_add_u32 s99, s99, 1')
        em('s_mov_b64 exec, vcc', mload(st), 's_mov_b64 exec, -1')
        em(f's_waitcnt vmcnt({len(st)*(MB_-1)})'); a.retok(mregs, 'mstale')
        mcheck(st, MB_ > 1); em(f's_cbranch_scc0 {PL}')
    else:
        if PROF_STEP is not None: em('s_waitcnt vmcnt(0)'); prof(a, 11, 0)
        a.label(PL)
        DL = [B1] + [f'L_pd{j}{t_}' for j in range(1, len(msets))]
        for j, st in enumerate(msets):
            mcheck(st); em(f's_cbranch_scc1 {DL[j]}')
            if j == len(msets) - 1: em(f's_cmp_eq_u32 s{S_BUD}, 0', f's_cbranch_scc1 {DL[j]}', f's_sub_u32 s{S_BUD}, s{S_BUD}, 1')
            if 'cnt' in EXP: em('s_add_u32 s99, s99, 1')
            em(mload(st))
        em(f's_branch {PL}')
        for j in range(len(msets) - 1, 0, -1):
            a.label(DL[j])
            regs = list(range(8, 8 + 4 * len(msets[j])))
            a.retok(regs, 'mstale')
            for c in range(len(msets[j])):
                em(f'v_mov_b64 v[{8+4*c}:{8+4*c+1}], v[{msets[j][c]}:{msets[j][c]+1}]', f'v_mov_b64 v[{8+4*c+2}:{8+4*c+3}], v[{msets[j][c]+2}:{msets[j][c]+3}]')
            if j > 1: em(f's_branch {B1}')
    a.label(B1)
    prof(a, 1)
    q = lambda c, t, sl: mm1('Q', c, t, sl)
    k = lambda c, t, sl: mm1('K', c, t, sl)
    v = lambda c, t, sl: mm1('V', c, t, sl)
    r2 = lr(('K', 2))
    em(q(0, 0, 0), q(0, 1, 0), r2[0], r2[1], q(1, 0, 1), r2[2], r2[3], q(1, 1, 1), k(0, 0, 0), k(0, 1, 0), k(1, 0, 1), k(1, 1, 1))
    a('s_waitcnt lgkmcnt(4)')
    a('s_barrier')
    prof(a, 2)
    if io:
        kvloads()
        em(f'v_lshlrev_b32 v20, 3, v{V_EX}', f'v_mov_b32 v21, s{S_S}')
        em(f's_lshl_b32 s{T2}, s{S_H}, 7', f's_add_u32 s{T2}, s{T2}, {F_CH}')
        em('s_mov_b64 exec, 1', f'buffer_store_dword v21, v20, {WS}, s{T2} offen sc1', 's_mov_b64 exec, -1')
        NW = f'L_nw{t_}'
        em(f's_cmp_eq_u32 s{S_WOK}, 0', f's_cbranch_scc1 {NW}')
        em(f's_add_u32 s{T1}, s{S_WA}, {KF}', f's_add_u32 s{T2}, s{S_WA}, {VF}')
        em(f'buffer_load_dword v{V_M2O}, v20, {WS}, s{T1} offen', f'buffer_load_dword v{V_M2O}, v20, {WS}, s{T2} offen')
        a.label(NW)
        em(aread(3, 3))
    else:
        em(aread(2, 2), aread(3, 3))
        if not (red and PZ == 4): kvloads()
    r3, r4, r5 = lr(('K', 4)), lr(('K', 5)), lr(('V', 5))
    X = [[] for _ in range(12)]
    if red and PZ == 4:
        kv = kvl()
        pz = poison(VX, S_CRD, T3)
        em(kv[0], f's_add_u32 s{T3}, s{S_MB}, s{S_O2}')
        seq = kv[1] + pz + kv[2]
        st0 = knob('x0', 0)
        if knob('xs', 1) == 1:
            for i, x in enumerate(seq): X[st0 + i].append(x)
        else:
            for i, x in enumerate(seq): X[st0 + i // 2].append(x)
    em(v(0, 0, 0), X[0], v(0, 1, 0), X[1])
    a.need('mstale')
    em(aread(4, 0), v(1, 0, 1), X[2], v(1, 1, 1), X[3], aread(5, 1))
    em(q(2, 0, 2), X[4], q(2, 1, 2), X[5], k(2, 0, 2), X[6], k(2, 1, 2), X[7], aread(6, 2), r3[0])
    em(q(3, 0, 3), X[8], r3[1], r3[2], q(3, 1, 3), X[9], r3[3], k(3, 0, 3), X[10], k(3, 1, 3), X[11], aread(7, 3))
    em(q(4, 0, 0), q(4, 1, 0), k(4, 0, 0), k(4, 1, 0), aread(8, 0), r4[0])
    em(q(5, 0, 1), r4[1], r4[2], q(5, 1, 1), r4[3], q(6, 0, 2), q(6, 1, 2), q(7, 0, 3), q(7, 1, 3), q(8, 0, 0), q(8, 1, 0))
    em(k(5, 0, 1), k(5, 1, 1), r5[0], r5[1], cvt(QA, QA), k(6, 0, 2), r5[2], r5[3], cvt(QA + 1, QA + 2), k(6, 1, 2), cvt(QB, QB),
       k(7, 0, 3), cvt(QB + 1, QB + 2), k(7, 1, 3), k(8, 0, 0), k(8, 1, 0))
    prof(a, 3)
    em(tr(QA), cvt(KA, KA), cvt(KA + 1, KA + 2))
    em(tr(QB), cvt(KB, KB), cvt(KB + 1, KB + 2))
    em(tr(KA), cvt(QA, QA), cvt(QA + 1, QA + 2))
    em(tr(KB), cvt(QA + 2, QB), cvt(QA + 3, QB + 2))
    em(f'v_mfma_f32_16x16x32_bf16 v[{KX}:{KX+3}], v[{KX}:{KX+3}], v[{QA}:{QA+3}], 0', cvt(KA, KA), cvt(KA + 1, KA + 2))
    em(f'v_mfma_f32_16x16x32_bf16 v[{KX+4}:{KX+7}], v[{KX+4}:{KX+7}], v[{QA}:{QA+3}], 0', cvt(KA + 2, KB), cvt(KA + 3, KB + 2))
    em(f'v_mfma_f32_16x16x32_bf16 v[{QB}:{QB+3}], v[{KA}:{KA+3}], v[{QA}:{QA+3}], 0')
    em(f's_add_u32 s{T0}, s{S_SEGO}, {KM}')
    em(f'buffer_store_dwordx4 v[{KA}:{KA+3}], v{V_EX}, {WS}, s{T0} offen sc1')
    for r in range(4):
        a(f'v_mov_b32_dpp v{KX+r}, v{KX+4+r} quad_perm:[0,1,2,3] row_mask:0xf bank_mask:0xc')
    NM, GM = f's[{S_NM}:{S_NM+1}]', f's[{S_GM}:{S_GM+1}]'
    em(f'v_cndmask_b32 v{KB}, v{QB+1}, v{QB}, {NM}', f'v_cndmask_b32 v{KB+1}, v{QB+3}, v{QB+2}, {NM}',
       f'v_cndmask_b32 v{KB}, v{KB}, v{KB+1}, {GM}')
    em(f'ds_write_b32 v{V_EX}, v{KB} offset:{X_SM + 4*w}', f'ds_write_b128 v{V_EX}, v[{KX}:{KX+3}] offset:{X_TOK + w*1024}')
    prof(a, 4)
    em(v(5, 0, 1), v(5, 1, 1), aread(2, 1), v(6, 0, 2), v(6, 1, 2), aread(3, 2), v(7, 0, 3), v(7, 1, 3), aread(4, 3))
    a('s_waitcnt lgkmcnt(3)')
    a('s_barrier')
    prof(a, 5)
    a(f'ds_read_b128 v[64:67], v{V_EX} offset:{X_SM}')
    for kk in range(4):
        a(f'ds_read_b128 v[{40+4*kk}:{43+4*kk}], v{V_EX} offset:{X_TOK + kk*1024}')
    em(v(8, 0, 0), v(8, 1, 0), v(2, 0, 1), v(2, 1, 1))
    em(v(3, 0, 2), 'v_add_f32 v64, v64, v65', v(3, 1, 2), 'v_add_f32 v66, v66, v67', 'v_add_f32 v64, v64, v66')
    em(pka(40, 40, 44), pka(42, 42, 46), pka(40, 40, 48), pka(42, 42, 50), pka(44, 40, 52), pka(46, 42, 54))
    pre = lread(5, 8) + lread(6, 24)
    em('v_max3_f32 v68, v44, v45, v46', 'v_max3_f32 v68, v68, v47, v64')
    em(v(4, 0, 3), pre[4])
    em('v_max_f32_dpp v68, v68, v68 row_ror:8 row_mask:0xf bank_mask:0xf', 'v_mov_b32 v69, v68')
    em(v(4, 1, 3), pre[5])
    em('v_permlane32_swap_b32 v68, v69', 'v_max_f32 v68, v68, v69', 'v_mov_b32 v69, v68')
    em(pre[6], pre[7])
    em('v_permlane16_swap_b32 v68, v69', 'v_max_f32 v68, v68, v69', f'v_mul_f32 v68, s{S_C}, v68')
    em(pre[0], f'v_fma_f32 v64, v64, s{S_C}, -v68', pre[1])
    for d in (44, 46):
        a(f'v_pk_fma_f32 v[{d}:{d+1}], v[{d}:{d+1}], s[{S_C}:{S_C+1}], v[68:69] op_sel_hi:[1,1,0] neg_lo:[0,0,1] neg_hi:[0,0,1]')
    em('v_exp_f32 v64, v64', cvt(VA, VA), 'v_exp_f32 v44, v44', cvt(VA + 1, VA + 2), 'v_exp_f32 v45, v45',
       'v_mov_b32_dpp v65, v64 row_ror:8 row_mask:0xf bank_mask:0xf', 'v_exp_f32 v46, v46', cvt(VA + 2, VB), 'v_exp_f32 v47, v47', cvt(VA + 3, VB + 2))
    em(cvt(41, 64), pre[2], cvt(42, 44), 'v_mov_b32 v40, v41', pre[3], cvt(43, 46))
    em('v_permlane32_swap_b32 v40, v41')
    em(f'v_mov_b64 v[48:49], s[{S_Q4}:{S_Q4+1}]', f'v_mov_b64 v[50:51], s[{S_ONE}:{S_ONE+1}]')
    em(f's_add_u32 s{T0}, s{S_SEGO}, {KM}')
    a(f'buffer_store_dwordx4 v[{VA}:{VA+3}], v{V_EX}, {WS}, s{T0} offen offset:1024 sc1', tok='kmvm')
    em(f's_cmp_eq_u32 s{S_S}, 63', 's_cbranch_scc1 L_chx')
    em('v_mov_b32_dpp v44, v42 row_ror:8 row_mask:0xf bank_mask:0xf', 'v_mov_b32_dpp v45, v43 row_ror:8 row_mask:0xf bank_mask:0xf')
    em('v_mfma_f32_16x16x32_bf16 v[52:55], v[48:51], v[40:43], 0')
    em(f'v_mfma_f32_16x16x16_bf16 v[64:67], v[{VA}:{VA+1}], v[40:41], 0')
    em(f'v_lshrrev_b32 v48, 1, v{V_EX}', 'v_and_b32 v48, 0x180, v48')
    em(f'v_mfma_f32_16x16x16_bf16 v[68:71], v[{VA+2}:{VA+3}], v[40:41], 0')
    em(f'v_and_b32 v49, 0x70, v{V_EX}', 'v_or_b32 v48, v48, v49')
    em(f'v_mfma_f32_16x16x32_bf16 v[64:67], v[{VX}:{VX+3}], v[42:45], v[64:67]')
    em('v_add_f32_dpp v52, v52, v52 row_ror:8 row_mask:0xf bank_mask:0xf', f'v_bfe_u32 v50, v{V_EX}, 7, 1')
    em(f'v_mfma_f32_16x16x32_bf16 v[68:71], v[{VX+4}:{VX+7}], v[42:45], v[68:71]')
    em('v_rcp_f32 v52, v52', 'v_lshl_add_u32 v49, v50, 3, v48', 'v_lshl_add_u32 v50, v50, 9, v48')
    for d in (64, 66, 68, 70):
        a(f'v_pk_mul_f32 v[{d}:{d+1}], v[{d}:{d+1}], v[52:53] op_sel_hi:[1,0]')
    em(cvt(68, 68), cvt(69, 70), cvt(64, 64), cvt(65, 66))
    em('v_mov_b32_dpp v64, v68 row_ror:8 row_mask:0xf bank_mask:0xc', 'v_mov_b32_dpp v65, v69 row_ror:8 row_mask:0xf bank_mask:0xc')
    em(f'ds_write_b64 v49, v[64:65] offset:{X_O + w*512}')
    prof(a, 6)
    if red and PZ == 3:
        em('v_mov_b64 v[60:61], -1', 'v_mov_b64 v[62:63], -1', f's_add_u32 s{T1}, s{S_MB}, s{S_O2}')
        em(poison(60, S_CRD, T1, range(5)[:knob('pa', 2)]))
        em([zero(r) for r in range(52, 60, 2)])
    elif red and PZ == 0: em([zero(r) for r in range(52, 60, 2)], 'v_mov_b64 v[60:61], -1', 'v_mov_b64 v[62:63], -1')
    elif red and PZ == 5: em([zero(r) for r in range(52, 60, 2)], 'v_mov_b64 v[60:61], -1', zero(62))
    else: em([zero(r) for r in range(52, 64, 2)])
    a('s_waitcnt lgkmcnt(0)')
    a('s_barrier')
    prof(a, 7)
    for jj in range(2):
        a(f'ds_read_b128 v[{40+4*jj}:{43+4*jj}], v50 offset:{X_O + jj*1024}')
    for e in range(4):
        a(f'ds_read_b128 v[{64+4*e}:{67+4*e}], v48 offset:{X_O + e*512}')
    em(zero(48), zero(50))
    if red and PZ in (0, 3):
        em(f's_add_u32 s{T1}, s{S_MB}, s{S_O2}')
        em(poison(60, S_CRD, T1, range(5)[(knob('pa', 2) if PZ == 3 else 0):]))
    if PZ == 5:
        if red: em(f's_add_u32 s{T1}, s{S_MB}, s{S_O2}', poison(60, S_CRD, T1, [4]))
        em(f's_lshl_b32 s{S_TO}, s{S_S}, 15', f's_and_b32 s{S_TO}, s{S_TO}, 0x10000', f's_xor_b32 s{S_TA}, s{S_TO}, 0x10000',
           f's_bfe_i32 s{S_TR}, s{S_TO}, 0x10010')
    em(f's_add_u32 s{T0}, s{S_CS}, s{S_CP}', f's_add_u32 s{T1}, s{S_CSS}, s{S_CP}')
    ring = [8, 16, 24, 32]
    nxt = lread(7, 8) + lread(8, 24)
    GS, GA, GB, GC, GD = 48, 52, 56, 60, 40
    VM = 44
    def tagv(t):
        return [f'v_add_u32 v{t}, s{S_TA}, v{t}', f'v_and_or_b32 v{t}, v{t}, v{VM}, s{S_TO}'] if PZ == 5 else []
    def epi(t, img):
        return [[tagv(t), cvt(t, t)], cvt(t + 1, t + 2), f's_add_u32 s{T2}, s{T0}, {img*65536}',
                f'buffer_store_dwordx2 v[{t}:{t+1}], v{V_C1}, {WS}, s{T2} offen{sc}']
    em([smf(GS, 40 + 4*jj, opreg(('S',), jj)) for jj in range(2)])
    ga = [smf(GA, 64 + 4*e, f'v[{ring[e]}:{ring[e]+7}]') for e in range(4)]
    gb = [smf(GB, 64 + 4*e, opreg(('O', 0, e >> 1), e & 1)) for e in range(4)]
    gc = [smf(GC, 64 + 4*e, opreg(('O', 1, e >> 1), e & 1)) for e in range(4)]
    gd = [smf(GD, 64 + 4*e, f'v[{ring[e]}:{ring[e]+7}]') for e in range(4)]
    em(ga[0], nxt[0], nxt[1], zero(GD), ga[1], nxt[2], nxt[3], zero(GD + 2))
    if PZ == 5: em(f'v_mov_b32 v{VM}, 0xfffe0000')
    em(ga[2], nxt[4], nxt[5], f'v_permlane32_swap_b32 v{GS}, v{GS+2}', ga[3], nxt[6], nxt[7], f'v_permlane32_swap_b32 v{GS+1}, v{GS+3}')
    zc = [zero(60), zero(62)] if red and PZ in (0, 3) else [zero(60) if red and PZ == 5 else [], []]
    em(gb[0], f'v_add_f32 v{GS}, v{GS}, v{GS+2}', zc[0], gb[1], f'v_add_f32 v{GS+1}, v{GS+1}, v{GS+3}', zc[1], tagv(GS), gb[2], cvt(GS, GS),
       f'buffer_store_dword v{GS}, v{V_CS}, {WS}, s{T1} offen{sc}')
    e = epi(GA, 2)
    em(gb[3], e[0], gc[0], e[1:], gc[1])
    e = epi(GB, 0)
    em(gc[2], e[0], gc[3], e[1:])
    em(gd[0], gd[1])
    e = epi(GC, 1)
    em(e[0], gd[2], e[1:], gd[3])
    em(f's_mov_b32 s{T3}, s{S_O0}', f's_mov_b32 s{S_O0}, s{S_O1}', f's_mov_b32 s{S_O1}, s{S_O2}', f's_mov_b32 s{S_O2}, s{T3}')
    em(f's_xor_b32 s{S_CP}, s{S_CP}, 294912', f's_add_u32 s{S_S}, s{S_S}, 1', f's_add_u32 s{S_SEGO}, s{S_SEGO}, {32*8192}')
    em(epi(GD, 3))
    prof2 = PROF_STEP is not None
    if prof2:
        sk = a.uid('L_pf')
        a(f's_cmp_lg_u32 s{S_S}, {PROF_STEP + 1}'); a(f's_cbranch_scc1 {sk}')
        a.rawins(f's_mem{"real" if PROF_REAL else ""}time s[{PS+16}:{PS+17}]')
        a.label(sk)
    a(f's_branch {LS}')

def chain_role(a):
    stamp(a, 1)
    setup(a)
    stamp(a, 2)
    team_barrier(a)
    stamp(a, 3)
    if 'setuponly' in EXP:
        a('s_branch L_exit')
    a(f's_mov_b32 s{S_S}, 0'); a(f's_mov_b32 s{S_O0}, 0'); a(f's_mov_b32 s{S_O1}, 9216'); a(f's_mov_b32 s{S_O2}, 18432')
    a(f's_mov_b32 s{S_CP}, 0')
    if 'cnt' in EXP: a('s_mov_b32 s98, 0'); a('s_mov_b32 s99, 0')
    variants = getattr(chain_role, 'variants', 'both')
    vs = {'both': [('', 'l'), (' sc1', 'f')], 'loc': [('', 'l')], 'for': [(' sc1', 'f')]}[variants]
    if variants == 'both':
        a(f's_cmp_lg_u32 s{S_FOREIGN}, 0'); a('s_cbranch_scc1 L_cdf')
    for sc, tag in vs:
        a.label(f'L_cd{tag}')
        a(f's_cmp_eq_u32 s{S_W}, 3'); a(f's_cbranch_scc1 L_ce{tag}io')
        a(f's_cmp_eq_u32 s{S_W}, 1'); a(f's_cbranch_scc1 L_ce{tag}r1')
        a(f's_cmp_eq_u32 s{S_W}, 0'); a(f's_cbranch_scc1 L_ce{tag}r0')
        a(f's_cmp_lt_u32 s{S_H}, 8'); a(f's_cbranch_scc1 L_ce{tag}r2')
        a(f's_branch L_ce{tag}n2')
        for role in ('r0', 'r1', 'r2', 'n2', 'io'):
            loop(a, sc, tag, role)
    a.label('L_chx')
    WS = f's[{S_WS}:{S_WS+3}]'
    a('s_waitcnt vmcnt(0)')
    a('s_barrier')
    sk = a.uid('L_x')
    a(f's_cmp_lg_u32 s{S_W}, 3'); a(f's_cbranch_scc1 {sk}')
    a(f'v_lshlrev_b32 v60, 3, v{V_EX}'); a('v_mov_b32 v61, 64')
    a(f's_lshl_b32 s{T2}, s{S_H}, 7'); a(f's_add_u32 s{T2}, s{T2}, {F_CH}')
    a('s_mov_b64 exec, 1')
    a(f'buffer_store_dword v61, v60, {WS}, s{T2} offen sc1')
    a('s_mov_b64 exec, -1')
    a.label(sk)
    if 'cnt' in EXP:
        a(f's_lshl_b32 s{T0}, s{S_H}, 2'); a(f's_add_u32 s{T0}, s{T0}, s{S_W}'); a(f's_lshl_b32 s{T0}, s{T0}, 7'); a(f's_add_u32 s{T0}, s{T0}, {PROF}')
        a('v_mov_b32 v10, 0'); a('v_mov_b32 v8, s98'); a('v_mov_b32 v9, s99'); a('s_mov_b64 exec, 1')
        a(f'buffer_store_dwordx2 v[8:9], v10, {WS}, s{T0} offen')
        a('s_mov_b64 exec, -1')
    if PROF_STEP is not None:
        a('s_waitcnt lgkmcnt(0)')
        a(f's_lshl_b32 s{T0}, s{S_H}, 2'); a(f's_add_u32 s{T0}, s{T0}, s{S_W}'); a(f's_lshl_b32 s{T0}, s{T0}, 7'); a(f's_add_u32 s{T0}, s{T0}, {PROF}')
        a('v_mov_b32 v10, 0'); a('s_mov_b64 exec, 1')
        for k in range(13):
            a(f'v_mov_b32 v8, s{PS+2*k}'); a(f'v_mov_b32 v9, s{PS+2*k+1}')
            a(f'buffer_store_dwordx2 v[8:9], v10, {WS}, s{T0} offen offset:{8*k}')
        a('s_mov_b64 exec, -1')
    stamp(a, 4)
```

```python
import sys, gen_base
gen_base.DEV_STAMPS = False
import gen_chain, gen_shadow
gen_chain.PROF_STEP = None
args = [x for x in sys.argv[1:] if not x.startswith('exp=')]
for x in sys.argv[1:]:
    if x.startswith('exp='): gen_chain.EXP = set(x[4:].split(',')); gen_shadow.EXP = gen_chain.EXP
import gen
out = args[0] if args else 'parallel_sum__memory_aug_recurrent_mem_tr__dense_activation_relu__prompt.s'
t = gen.build(('ln','kv','f1','f2','sh','fin','ch'), out)
assert 's_memtime' not in t and 's_memrealtime' not in t
print(len(t))
```

```python
import re
from collections import defaultdict

VCC = (('s', 106), ('s', 107))
EXEC = (('s', 126), ('s', 127))
M0 = (('s', 124),)

_reg_re = re.compile(r'^(v|a|s)(\d+)$')
_rng_re = re.compile(r'^(v|a|s)\[(\d+):(\d+)\]$')


def regs_of(op):
    op = op.strip()
    neg = op.startswith('-')
    if neg:
        op = op[1:]
    if op.startswith('|') and op.endswith('|'):
        op = op[1:-1]
    m = _reg_re.match(op)
    if m:
        return [(m.group(1), int(m.group(2)))]
    m = _rng_re.match(op)
    if m:
        return [(m.group(1), i) for i in range(int(m.group(2)), int(m.group(3)) + 1)]
    if op == 'vcc':
        return list(VCC)
    if op == 'vcc_lo':
        return [VCC[0]]
    if op == 'vcc_hi':
        return [VCC[1]]
    if op == 'exec':
        return list(EXEC)
    if op == 'exec_lo':
        return [EXEC[0]]
    if op == 'exec_hi':
        return [EXEC[1]]
    if op == 'm0':
        return list(M0)
    return []


TRANS = ('v_exp_f32', 'v_log_f32', 'v_rcp_f32', 'v_rsq_f32', 'v_sqrt_f32', 'v_sin_f32', 'v_cos_f32',
         'v_rcp_iflag_f32', 'v_exp_f16', 'v_rcp_f16')
MFMA_PASSES = {
    'v_mfma_f32_16x16x32_bf16': 4, 'v_mfma_f32_16x16x16_bf16': 4, 'v_mfma_f32_16x16x16_bf16_1k': 4,
    'v_mfma_f32_16x16x16bf16_1k': 4,
    'v_mfma_f32_32x32x16_bf16': 8, 'v_smfmac_f32_16x16x64_bf16': 4, 'v_smfmac_f32_16x16x32_bf16': 4,
    'v_mfma_f32_16x16x4_f32': 8, 'v_mfma_f32_16x16x4f32': 8,
}


def split_ops(s):
    out, depth, cur = [], 0, ''
    for ch in s:
        if ch in '[(':
            depth += 1
        elif ch in '])':
            depth -= 1
        if ch == ',' and depth == 0:
            out.append(cur.strip())
            cur = ''
        else:
            cur += ch
    if cur.strip():
        out.append(cur.strip())
    return out


class Ins:
    __slots__ = ('text', 'mn', 'ops', 'mods', 'defs', 'uses', 'kind', 'tok_def', 'tok_use', 'label', 'target',
                 'passes', 'srcC', 'srcAB', 'dpp', 'wide_store', 'comment', 'valu_sdefs', 'lds_dma', 'raw', 'retok')

    def __init__(self, text):
        self.text = text
        self.label = None
        self.target = None
        self.tok_def = []
        self.tok_use = []
        self.defs = []
        self.uses = []
        self.passes = 0
        self.srcC = []
        self.srcAB = []
        self.dpp = False
        self.wide_store = []
        self.valu_sdefs = []
        self.lds_dma = False
        self.kind = 'other'
        self.raw = False
        self.retok = None
        self.mn = ''
        self.ops = []
        self.mods = ''


def parse(text):
    ins = Ins(text)
    t = text.split(';')[0].strip()
    if t.endswith(':'):
        ins.label = t[:-1]
        ins.kind = 'label'
        return ins
    if t.startswith('.'):
        ins.kind = 'directive'
        return ins
    sp = t.split(None, 1)
    mn = sp[0]
    rest = sp[1] if len(sp) > 1 else ''
    ops = split_ops(rest)
    mods = ''
    if ops:
        last = ops[-1].split(None, 1)
        if len(last) > 1 and not ops[-1].startswith('hwreg') and not ops[-1].startswith('vmcnt') \
                and not ops[-1].startswith('lgkmcnt'):
            ops[-1] = last[0]
            mods = last[1]
    ins.mn, ins.ops, ins.mods = mn, ops, mods
    base = re.sub(r'_(e32|e64|dpp|sdwa)$', '', mn)
    R = [regs_of(o) for o in ops]

    def flat(lst):
        return [r for x in lst for r in x]

    if mn.startswith('v_mfma') or mn.startswith('v_smfmac'):
        ins.kind = 'mfma'
        ins.passes = MFMA_PASSES[base]
        ins.defs = R[0]
        if mn.startswith('v_smfmac'):
            ins.srcC = R[0]
            ins.srcAB = R[1] + R[2] + R[3]
        else:
            ins.srcC = R[3]
            ins.srcAB = R[1] + R[2]
        ins.uses = ins.srcC + ins.srcAB
    elif mn.startswith('v_'):
        ins.kind = 'valu'
        ins.dpp = ('row_' in mods or 'quad_perm' in mods or 'dpp' in mn or 'wave_' in mods or 'row_' in rest)
        if base.startswith('v_cmpx'):
            ins.defs = list(EXEC) + R[0]
            ins.uses = flat(R[1:])
        elif base.startswith('v_cmp'):
            ins.defs = R[0]
            ins.uses = flat(R[1:])
        elif base in ('v_add_co_u32', 'v_sub_co_u32', 'v_subrev_co_u32', 'v_addc_co_u32', 'v_subb_co_u32',
                      'v_mad_u64_u32', 'v_div_scale_f32'):
            ins.defs = R[0] + R[1]
            ins.uses = flat(R[2:])
        elif base in ('v_permlane32_swap_b32', 'v_permlane16_swap_b32', 'v_swap_b32'):
            ins.defs = R[0] + R[1]
            ins.uses = R[0] + R[1]
        elif base in ('v_fmac_f32', 'v_mac_f32', 'v_writelane_b32', 'v_pk_fmac_f16', 'v_dot2c_f32_bf16'):
            ins.defs = R[0]
            ins.uses = flat(R)
        elif base == 'v_nop':
            pass
        else:
            ins.defs = R[0]
            ins.uses = flat(R[1:])
            if ins.dpp:
                ins.uses = ins.uses + R[0]
        if base == 'v_cndmask_b32' and len(ops) == 3:
            ins.uses = ins.uses + list(VCC)
        ins.valu_sdefs = [r for r in ins.defs if r[0] == 's']
    elif mn.startswith('ds_'):
        ins.kind = 'lds'
        if mn.startswith('ds_read') or mn.startswith('ds_bpermute') or mn.startswith('ds_permute') \
                or mn.startswith('ds_swizzle') or '_rtn' in mn:
            ins.defs = R[0]
            ins.uses = flat(R[1:])
        else:
            ins.uses = flat(R)
    elif mn.startswith('buffer_') or mn.startswith('global_'):
        ins.kind = 'vmem'
        allmods = ' ' + mods + ' '
        is_lds = (' lds ' in allmods) or ('_lds_' in mn)
        if mn in ('buffer_wbl2', 'buffer_inv'):
            pass
        elif is_lds:
            ins.lds_dma = True
            ins.uses = flat(R) + list(M0)
        elif '_load' in mn:
            ins.defs = R[0]
            ins.uses = flat(R[1:])
        elif '_store' in mn:
            ins.uses = flat(R)
            data = R[0] if mn.startswith('buffer_') else R[1]
            if len(data) >= 3:
                ins.wide_store = data
        elif '_atomic' in mn:
            ret = ' sc0 ' in allmods
            if mn.startswith('buffer_'):
                ins.uses = flat(R)
                if ret:
                    n = len(R[0])
                    ins.defs = R[0][:n // 2] if 'cmpswap' in mn else R[0]
            else:
                if ret:
                    ins.defs = R[0]
                    ins.uses = flat(R[1:])
                else:
                    ins.uses = flat(R)
        else:
            raise ValueError('vmem? ' + text)
    elif mn.startswith('s_'):
        ins.kind = 'salu'
        if mn.startswith('s_load') or mn.startswith('s_buffer_load') or mn in ('s_memtime', 's_memrealtime'):
            ins.kind = 'smem'
            ins.defs = R[0]
            ins.uses = flat(R[1:])
        elif mn.startswith('s_cbranch') or mn == 's_branch':
            ins.kind = 'branch'
            ins.target = ops[0]
            if 'vcc' in mn:
                ins.uses = list(VCC)
            if 'exec' in mn:
                ins.uses = list(EXEC)
        elif mn == 's_endpgm':
            ins.kind = 'end'
        elif mn == 's_waitcnt':
            ins.kind = 'wait'
        elif mn == 's_nop':
            ins.kind = 'nop'
        elif mn in ('s_barrier', 's_setprio', 's_sleep', 's_sethalt'):
            pass
        elif mn.startswith('s_cmp') or mn.startswith('s_bitcmp'):
            ins.uses = flat(R)
        elif 'saveexec' in mn:
            ins.defs = R[0] + list(EXEC)
            ins.uses = flat(R[1:]) + list(EXEC)
        elif mn == 's_setreg_b32' or mn == 's_setreg_imm32_b32':
            ins.uses = flat(R[1:])
        else:
            ins.defs = R[0] if R else []
            ins.uses = flat(R[1:])
            if mn in ('s_addk_i32', 's_mulk_i32') or mn.startswith('s_cmov') or mn.startswith('s_bitset'):
                ins.uses = ins.uses + R[0]
    else:
        raise ValueError('cannot parse: ' + text)
    return ins


class Asm:
    def __init__(self):
        self.items = []
        self._uid = 0
        self.time_aware = True

    def uid(self, p='L'):
        self._uid += 1
        return f'{p}{self._uid}'

    def __call__(self, text, tok=None, need=None):
        lines = [l for l in text.split('\n') if l.split(';')[0].strip()]
        out = []
        for l in lines:
            out.append(parse(l.strip()))
        if need:
            out[0].tok_use = list(need) if isinstance(need, (list, tuple)) else [need]
        if tok:
            out[-1].tok_def = list(tok) if isinstance(tok, (list, tuple)) else [tok]
        self.items.extend(out)
        return out[-1] if out else None

    def rawins(self, text):
        i = Ins(text)
        i.kind = 'other'
        self.items.append(i)

    def label(self, name):
        self(name + ':')

    def need(self, *toks):
        i = Ins('')
        i.kind = 'pseudo'
        i.tok_use = list(toks)
        self.items.append(i)

    def needr(self, *regs):
        i = Ins('')
        i.kind = 'pseudo'
        i.uses = [('v', r) for r in regs]
        self.items.append(i)

    def retok(self, regs, tok):
        i = Ins('')
        i.kind = 'pseudo'
        i.retok = ([('v', r) for r in regs], tok)
        self.items.append(i)

    def comment(self, s):
        i = Ins('; ' + s)
        i.kind = 'comment'
        self.items.append(i)

    def add(self, ins_list):
        self.items.extend(ins_list)

    def _cfg(self, items):
        lab = {}
        for n, it in enumerate(items):
            if it.kind == 'label':
                lab[it.label] = n
        succ = [[] for _ in items]
        for n, it in enumerate(items):
            if it.kind == 'end':
                continue
            if it.kind == 'branch':
                succ[n].append(lab[it.target])
                if it.mn != 's_branch' and n + 1 < len(items):
                    succ[n].append(n + 1)
            elif n + 1 < len(items):
                succ[n].append(n + 1)
        return succ

    @staticmethod
    def _parse_wait(it):
        vm = lg = None
        t = it.text
        m = re.search(r'vmcnt\((\d+)\)', t)
        if m:
            vm = int(m.group(1))
        m = re.search(r'lgkmcnt\((\d+)\)', t)
        if m:
            lg = int(m.group(1))
        return vm, lg

    def _insert_waits(self, items):
        succ = self._cfg(items)
        n_items = len(items)
        leaders = {0}
        for n, it in enumerate(items):
            if it.kind == 'label':
                leaders.add(n)
            if it.kind in ('branch', 'end') and n + 1 < n_items:
                leaders.add(n + 1)
        leaders = sorted(leaders)
        blk_end = {}
        for i, l in enumerate(leaders):
            blk_end[l] = leaders[i + 1] if i + 1 < len(leaders) else n_items
        preds = defaultdict(list)
        for n in range(n_items):
            for s in succ[n]:
                preds[s].append(n)

        def transfer(l, st, waits):
            vm, lg, sm = dict(st[0]), dict(st[1]), set(st[2])
            for n in range(l, blk_end[l]):
                it = items[n]
                if it.kind in ('label', 'comment', 'directive'):
                    continue
                if it.kind == 'wait':
                    wv, wl = self._parse_wait(it)
                    if wv is not None:
                        vm = {k: v for k, v in vm.items() if v < wv}
                    if wl is not None:
                        if wl == 0:
                            lg, sm = {}, set()
                        elif not sm:
                            lg = {k: v for k, v in lg.items() if v < wl}
                    continue
                if it.retok:
                    for r in it.retok[0]:
                        if r in vm:
                            k = ('t', it.retok[1])
                            vm[k] = min(vm.get(k, 99), vm.pop(r))
                    continue
                keys = list(it.uses) + list(it.defs) + [('t', t) for t in it.tok_use]
                if it.kind == 'vmem' and it.defs and '_load' in it.mn:
                    vkeys = list(it.uses) + [('t', t) for t in it.tok_use]
                else:
                    vkeys = keys
                needv = [vm[k] for k in vkeys if k in vm]
                needl = [lg[k] for k in keys if k in lg]
                needs = [k for k in keys if k in sm]
                wv = min(needv) if needv else None
                wl = min(needl) if needl else None
                if needs or (wl is not None and sm):
                    wl = 0
                if wv is not None:
                    vm = {k: v for k, v in vm.items() if v < wv}
                if wl is not None:
                    if wl == 0:
                        lg, sm = {}, set()
                    else:
                        lg = {k: v for k, v in lg.items() if v < wl}
                if waits is not None and (wv is not None or wl is not None):
                    waits[n] = (wv, wl)
                if it.kind == 'vmem':
                    vm = {k: v + 1 for k, v in vm.items() if v + 1 < 64}
                    for r in it.defs:
                        vm[r] = 0
                    for t in it.tok_def:
                        vm[('t', t)] = 0
                    vm[('t', '*vm')] = 0
                elif it.kind == 'lds':
                    lg = {k: v + 1 for k, v in lg.items()}
                    for k in list(lg):
                        if lg[k] > 15:
                            lg[k] = 15
                    for r in it.defs:
                        lg[r] = 0
                    for t in it.tok_def:
                        lg[('t', t)] = 0
                    lg[('t', '*lds')] = 0
                elif it.kind == 'smem':
                    for r in it.defs:
                        sm.add(r)
                    for t in it.tok_def:
                        sm.add(('t', t))
                    sm.add(('t', '*smem'))
            return vm, lg, sm

        def merge(a, b):
            if a is None:
                return (dict(b[0]), dict(b[1]), set(b[2])), True
            ch = False
            vm, lg, sm = a
            for src, dst in ((b[0], vm), (b[1], lg)):
                for k, v in src.items():
                    if k not in dst or v < dst[k]:
                        dst[k] = v
                        ch = True
            for k in b[2]:
                if k not in sm:
                    sm.add(k)
                    ch = True
            return (vm, lg, sm), ch

        state = {l: None for l in leaders}
        work = []
        for l in leaders:
            if l == 0 or not preds.get(l):
                state[l] = ({}, {}, set())
                work.append(l)
        inwork = set(work)
        while work:
            l = work.pop(0)
            inwork.discard(l)
            out = transfer(l, state[l], None)
            last = blk_end[l] - 1
            for s in succ[last]:
                new, ch = merge(state[s], out)
                state[s] = new
                if ch and s not in inwork:
                    work.append(s)
                    inwork.add(s)
        waits = {}
        for l in leaders:
            if state[l] is not None:
                transfer(l, state[l], waits)
        res = []
        for n, it in enumerate(items):
            if n in waits:
                wv, wl = waits[n]
                s = 's_waitcnt'
                if wv is not None:
                    s += f' vmcnt({min(wv, 63)})'
                if wl is not None:
                    s += f' lgkmcnt({min(wl, 15)})'
                res.append(parse(s))
            if it.kind != 'pseudo':
                res.append(it)
        return res

    @staticmethod
    def _req(p, c):
        req = 0
        if p.kind == 'mfma':
            pd = set(p.defs)
            xdl = {4: (6, 8), 8: (10, 12), 2: (4, 5), 16: (18, 20)}[p.passes]
            if c.kind == 'mfma':
                cc = c.srcC
                if pd & set(cc):
                    if not (cc == p.defs and c.passes == p.passes):
                        req = max(req, xdl[0])
                if pd & set(c.srcAB):
                    req = max(req, xdl[1])
                if pd & set(c.defs) and not (pd & set(cc)):
                    if c.passes != p.passes or c.defs != p.defs:
                        req = max(req, xdl[0])
            elif c.kind in ('valu', 'vmem', 'lds'):
                if pd & (set(c.uses) | set(c.defs)):
                    req = max(req, xdl[1])
                if c.kind == 'valu' and set(p.srcC) & set(c.defs):
                    req = max(req, {4: 3, 8: 7, 2: 1, 16: 15}[p.passes])
        elif p.kind == 'valu':
            pd = set(p.defs)
            vd = {r for r in pd if r[0] in 'va'}
            sd = set(p.valu_sdefs)
            base = re.sub(r'_(e32|e64|dpp|sdwa)$', '', p.mn)
            if c.kind == 'mfma':
                if vd & set(c.uses):
                    req = max(req, 2)
                if sd & set(EXEC):
                    req = max(req, 4)
            elif c.kind == 'valu':
                cb = re.sub(r'_(e32|e64|dpp|sdwa)$', '', c.mn)
                cu = set(c.uses)
                if c.dpp and vd & cu:
                    req = max(req, 2)
                if c.dpp and sd & set(EXEC):
                    req = max(req, 5)
                if cb.startswith('v_permlane') and vd & cu:
                    req = max(req, 2)
                if cb.startswith('v_permlane') and sd & set(EXEC):
                    req = max(req, 4)
                if cb in ('v_readfirstlane_b32', 'v_readlane_b32'):
                    if vd & cu:
                        req = max(req, 1)
                    if sd & set(EXEC):
                        req = max(req, 4)
                if sd & cu:
                    req = max(req, 4 if cb in ('v_readlane_b32', 'v_writelane_b32', 'v_div_fmas_f32') else 2)
                if base in TRANS and vd & cu:
                    req = max(req, 1)
                if (('op_sel' in p.mods and not p.mn.endswith('_f32')) or 'sdwa' in p.mn or 'dst_sel' in p.mods) and vd & (cu | set(c.defs)):
                    req = max(req, 1)
            elif c.kind == 'vmem':
                if sd & set(c.uses):
                    req = max(req, 5)
            elif c.kind == 'branch':
                if sd & set(c.uses):
                    req = max(req, 5)
            elif c.kind in ('salu', 'smem'):
                if c.kind == 'smem' and sd & set(c.uses):
                    req = max(req, 5)
        elif p.kind == 'vmem':
            if p.wide_store and set(p.wide_store) & set(c.defs):
                req = max(req, 2 if c.kind in ('valu', 'mfma') else 1)
        elif p.kind == 'salu':
            if set(p.defs) & set(M0) and (c.lds_dma or c.mn == 's_sendmsg'):
                req = max(req, 1)
        return req

    @staticmethod
    def _ws(it):
        if it.kind == 'nop':
            return int(it.ops[0], 0) + 1
        if it.kind in ('label', 'comment', 'directive', 'pseudo'):
            return 0
        return 1

    def _pad_hazards(self, items):
        MAXD = 21
        out = []
        succ = self._cfg(items)
        preds = defaultdict(list)
        for n in range(len(items)):
            for s in succ[n]:
                preds[s].append(n)
        extra = defaultdict(int)
        interesting = ('mfma', 'valu', 'vmem', 'lds', 'smem', 'branch', 'salu')
        def elapsed(p, path, c, k):
            t = 0
            pit = items[p]
            pipe = pit.passes if (pit.kind == 'mfma' and self.time_aware) else 0
            for q in path:
                it = items[q]
                t += extra[q]
                w = self._ws(it)
                if w == 0:
                    continue
                t += w
                if it.kind == 'mfma' and self.time_aware:
                    t = max(t, pipe)
                    pipe = t + it.passes
            t += k + 1
            if c.kind == 'mfma' and self.time_aware:
                t = max(t, pipe)
            return t - 1
        for n, c in enumerate(items):
            if c.kind not in interesting:
                continue
            need = 0
            stack = [(p, 0, ()) for p in preds.get(n, [])]
            seen = {}
            while stack:
                p, d, path = stack.pop()
                if d >= MAXD:
                    continue
                sig = (p,) + tuple((items[q].kind == 'mfma', self._ws(items[q]), extra[q]) for q in path if self._ws(items[q]) or extra[q])
                if sig in seen or p in path:
                    continue
                seen[sig] = d
                it = items[p]
                r = self._req(it, c)
                if r > d:
                    k = 0
                    while elapsed(p, path, c, k) < r:
                        k += 1
                    need = max(need, k)
                nd = d + self._ws(it) + extra[p]
                for q in preds.get(p, []):
                    stack.append((q, nd, (p,) + path))
            extra[n] += need
        for n, it in enumerate(items):
            k = extra.get(n, 0)
            while k > 0:
                j = min(k, 16)
                out.append(parse(f's_nop {j - 1}'))
                k -= j
            out.append(it)
        return out

    def finalize(self):
        items = self._insert_waits(self.items)
        items = self._pad_hazards(items)
        lines = []
        for it in items:
            if it.kind == 'label':
                lines.append(it.text)
            elif it.kind == 'pseudo':
                continue
            else:
                lines.append(' ' + it.text)
        self.final_items = items
        return '\n'.join(lines) + '\n'


def interleave(main, fill, start=0, every=1, per=1):
    out, fi = [], 0
    for i, m in enumerate(main):
        out.append(m)
        if i >= start and (i - start) % every == 0:
            for _ in range(per):
                if fi < len(fill):
                    out.append(fill[fi])
                    fi += 1
    out.extend(fill[fi:])
    return out
```

```python
from gen_base import *
import struct
def f2u(x): return struct.unpack('<I', struct.pack('<f', x))[0]

X_MEM, X_TOK, X_SM, X_O, RESB = 0, 9216, 13312, 14336, 16384
V_EX, V_RES, V_CS, V_C1, V_M2O, V_IDX, V_SEL = 0, 1, 2, 3, 4, 5, 6
AR, LR = 8, 24
QA, QB, KA, KB, VA, VB = 40, 44, 48, 52, 56, 60
KX, VX = 64, 72
PROF = 0x20000
PROF_STEP = None
PROF_REAL = False
EXP = set()

REAL = [[2, 3, 4, 5, 6, 7, 8, 0, 1], [0, 1, 2, 3, 4, 5, 6, 7, 8], [6, 7, 8, 0, 1, 2, 3, 4, 5], [4, 5, 8, 6, 7, 0, 1, 2, 3]]
def knob(name, dflt=0):
    for x in EXP:
        if x.startswith(name + '='): return int(x[len(name)+1:])
    return dflt
def delay(a, n):
    while n > 0:
        a.rawins(f's_nop {min(n, 16) - 1}'); n -= 16
RESIDENT = [('Q', 0), ('K', 2), ('K', 4), ('K', 5), ('V', 5), ('O', 2, 0), ('O', 2, 1), ('O', 3, 0), ('O', 3, 1)]
REGIMG = [(m, c) for c in range(9) for m in 'QKV' if (m, c) not in RESIDENT] + \
         [('O', 0, 0), ('O', 0, 1), ('O', 1, 0), ('O', 1, 1), ('S',)]
assert len(REGIMG) == 27
def opbase(k):
    return ('a', 8 * k) if k < 32 else ('v', 80 + 8 * (k - 32))
def opreg(img, tau):
    k = 2 * REGIMG.index(img) + tau
    f, b = opbase(k)
    return f'{f}[{b}:{b+7}]'

S_CRD = 37
S_WOK, S_WA = 38, 39
S_H, S_S = 40, 41
S_O0, S_O1, S_O2 = 42, 43, 44
S_MR = 45
S_MB = 46
S_CP = 47
S_CS = 48
S_CR = 49
S_K0, S_K1 = 50, 51
S_HB, S_B = 52, 53
S_C = 54
S_NM = 56
S_SEGO = 58
S_CSS = 59
S_GM = 60
S_RM = 62
S_Q4 = 70
S_ONE = 72
S_TO, S_TA, S_TR = 52, 53, 45
T0, T1, T2, T3 = 33, 34, 35, 36
PS = 74

def pmode():
    for x in EXP:
        if x.startswith('pm='): return x[3:]
    return None
PM_IDS = {}
def mark(a, name):
    pm = pmode()
    if PROF_STEP is None or pm is None or not name.startswith(pm): return
    k = PM_IDS.setdefault(name, len(PM_IDS) + 1)
    assert k <= 11
    prof(a, k, force=True)
def prof(a, k, _=0, force=False):
    if PROF_STEP is None: return
    if pmode() and not force and k not in (0, 12): return
    sk = a.uid('L_pf')
    a(f's_cmp_lg_u32 s{S_S}, {PROF_STEP + (1 if k >= 12 else 0)}'); a(f's_cbranch_scc1 {sk}')
    a.rawins(f's_mem{"real" if PROF_REAL else ""}time s[{PS+2*k}:{PS+2*k+1}]')
    a.label(sk)

def smf(d, av, b):
    return f'v_smfmac_f32_16x16x64_bf16 v[{d}:{d+3}], v[{av}:{av+3}], {b}, v{V_IDX}'

def lread(slot, dst):
    return [f'ds_read_b128 v[{dst+4*q}:{dst+4*q+3}], v{V_RES} offset:{slot*4096 + q*1024}' for q in range(4)]

S_B_, S_C_ = 20, 24

def setup(a):
    W = S_W
    WS = f's[{S_WS}:{S_WS+3}]'
    if 'hx' in EXP: a(f's_xor_b32 s{S_H}, s{S_T}, 1')
    else: a(f's_mov_b32 s{S_H}, s{S_T}')
    srd(a, S_A, 16, 576 * 8192); srd(a, S_B_, 24, 576 * 8192); srd(a, S_C_, 32, 576 * 8192); srd(a, S_D, 40, 32 * 147456)
    a(f'v_mov_b32 v79, v{V_LANE}')
    L = 79
    a(f'v_lshlrev_b32 v{V_EX}, 4, v{L}')
    a(f's_mul_i32 s{T0}, s{W}, 36864'); a(f's_add_u32 s{T0}, s{T0}, {RESB}'); a(f'v_add_u32 v{V_RES}, s{T0}, v{V_EX}')
    a(f'v_bfe_u32 v9, v{L}, 3, 1'); a('v_lshlrev_b32 v9, 12, v9')
    a(f'v_and_b32 v10, 7, v{L}'); a('v_lshl_add_u32 v9, v10, 3, v9')
    a(f'v_bfe_u32 v10, v{L}, 4, 1'); a('v_lshl_add_u32 v9, v10, 6, v9')
    a(f'v_lshrrev_b32 v10, 5, v{L}')
    a(f'v_lshl_add_u32 v{V_C1}, v10, 13, v9')
    a(f'v_lshl_add_u32 v{V_CS}, v10, 2, v9')
    a(f'v_bfe_u32 v9, v{L}, 2, 1'); a('v_lshlrev_b32 v9, 2, v9'); a(f'v_lshrrev_b32 v10, 4, v{L}'); a('v_add_u32 v9, v9, v10')
    a(f'v_and_b32 v10, 3, v{L}'); a('v_lshlrev_b32 v10, 2, v10'); a(f'v_lshl_add_u32 v{V_M2O}, v9, 4, v10')
    a(f'v_bfe_u32 v10, v{L}, 3, 1'); a('v_mul_u32_u24 v10, 0xaaaa, v10'); a(f'v_add_u32 v{V_IDX}, 0x4444, v10')
    a(f'v_and_b32 v9, 7, v{L}'); a(f'v_bfe_u32 v10, v{L}, 4, 1'); a('v_lshlrev_b32 v10, 2, v10')
    a('v_sub_u32 v9, v9, v10')
    for r in range(2):
        a(f'v_mov_b32 v11, 0'); a('v_mov_b32 v12, 0x3f80'); a(f'v_cmp_eq_u32 vcc, {2*r}, v9'); a('v_cndmask_b32 v11, v11, v12, vcc')
        a('v_mov_b32 v12, 0x3f800000'); a(f'v_cmp_eq_u32 vcc, {2*r+1}, v9'); a(f'v_cndmask_b32 v{V_SEL+r}, v11, v12, vcc')
    a(f's_mov_b32 s{S_C}, {f2u(128 ** -0.5 * 1.4426950408889634):#x}'); a(f's_mov_b32 s{S_C+1}, s{S_C}')
    a(f's_mov_b32 s{S_NM}, 0x00ff00ff'); a(f's_mov_b32 s{S_NM+1}, 0x00ff00ff')
    a(f's_mov_b32 s{S_GM}, 0'); a(f's_mov_b32 s{S_GM+1}, -1')
    for r, m in enumerate((0x0011, 0x1100, 0x0022, 0x2200)):
        a(f's_mov_b32 s{S_RM+2*r}, {m * 0x10001:#x}'); a(f's_mov_b32 s{S_RM+2*r+1}, {m * 0x10001:#x}')
    a(f's_mov_b32 s{S_Q4}, 0x3e803e80'); a(f's_mov_b32 s{S_Q4+1}, 0x3e803e80')
    a(f's_mov_b32 s{S_ONE}, 0x3f803f80'); a(f's_mov_b32 s{S_ONE+1}, 0x3f803f80')
    a(f's_lshl_b32 s{T0}, s{W}, 11')
    a(f's_lshl_b32 s{T1}, s{S_H}, 13'); a(f's_add_u32 s{S_SEGO}, s{T0}, s{T1}')
    a(f's_cmp_lt_u32 s{S_H}, 16')
    a(f's_cselect_b32 s{T0}, 32, -16'); a(f's_cselect_b32 s{T1}, 16, 32')
    a(f's_cmp_eq_u32 s{W}, 1'); a(f's_cselect_b32 s{T0}, s{T1}, s{T0}')
    a(f's_cmp_eq_u32 s{W}, 2'); a(f's_cselect_b32 s{T0}, 64, s{T0}')
    a(f's_add_u32 s{S_B}, s{T0}, s{S_H}')
    a(f's_cmp_lt_u32 s{S_H}, 8'); a(f's_cselect_b32 s{S_HB}, 1, 0')
    a(f's_cmp_lt_u32 s{W}, 2'); a(f's_cselect_b32 s{S_HB}, 1, s{S_HB}')
    a(f's_cmp_eq_u32 s{W}, 3'); a(f's_cselect_b32 s{S_HB}, 0, s{S_HB}')
    a(f's_min_u32 s{S_B}, s{S_B}, 71')
    a(f's_lshl_b32 s{T0}, s{S_B}, 7'); a(f's_add_u32 s{S_MB}, s{T0}, {M2}')
    a(f's_lshl_b32 s{T0}, s{S_B}, 12'); a(f's_add_u32 s{S_CR}, s{T0}, {C1}')
    a(f's_lshl_b32 s{T0}, s{W}, 14'); a(f's_lshl_b32 s{T1}, s{S_H}, 7'); a(f's_add_u32 s{T0}, s{T0}, s{T1}')
    a(f's_add_u32 s{S_CS}, s{T0}, {C1}')
    a(f's_lshl_b32 s{T0}, s{W}, 13'); a(f's_add_u32 s{T0}, s{T0}, s{T1}'); a(f's_add_u32 s{S_CSS}, s{T0}, {C1 + 64*4096}')
    a(f's_mov_b32 s{S_K0}, 0'); a(f's_mov_b32 s{S_K1}, 0')
    a('s_waitcnt lgkmcnt(0)')
    for s_ in (S_A, S_B_, S_C_, S_D): srd_fix(a, s_)
    u0, p0, tau, p2, p3, p1 = 8, 9, 10, 11, 12, 13
    a(f'v_and_b32 v{u0}, 1, v{L}'); a(f'v_bfe_u32 v{p0}, v{L}, 4, 1'); a(f'v_bfe_u32 v{tau}, v{L}, 1, 1')
    a(f'v_bfe_u32 v{p2}, v{L}, 2, 1'); a(f'v_bfe_u32 v{p3}, v{L}, 3, 1'); a(f'v_bfe_u32 v{p1}, v{L}, 5, 1')
    VQ, VO, VS_, VT0, VT1, VU0, VU1 = 20, 21, 22, 23, 24, 25, 26
    a(f'v_lshlrev_b32 v14, 5, v{tau}'); a(f'v_lshl_add_u32 v14, v{u0}, 4, v14'); a(f's_lshl_b32 s{T0}, s{W}, 6'); a(f'v_add_u32 v14, s{T0}, v14')
    a(f'v_lshl_add_u32 v16, v{p1}, 1, v{p3}'); a(f'v_lshl_add_u32 v16, v{p2}, 4, v16'); a(f'v_lshl_add_u32 v16, v{p0}, 5, v16')
    a(f'v_mul_u32_u24 v17, 1152, v16'); a(f'v_add_u32 v{VO}, v17, v14')
    a(f'v_xor_b32 v{tau}, v{tau}, v{p0}')
    a(f'v_lshlrev_b32 v14, 5, v{tau}'); a(f'v_lshl_add_u32 v14, v{u0}, 4, v14'); a(f's_lshl_b32 s{T0}, s{W}, 6'); a(f'v_add_u32 v14, s{T0}, v14')
    a(f'v_lshl_add_u32 v15, v{p1}, 1, v{p0}')
    a(f'v_lshl_add_u32 v16, v{p2}, 2, v15'); a(f'v_lshl_add_u32 v16, v{p3}, 3, v16')
    a(f'v_lshl_add_u32 v{VQ}, v16, 13, v14')
    if 'pB' in EXP:
        a(f'v_lshrrev_b32 v16, 4, v{L}'); a(f's_lshl_b32 s{T0}, s{W}, 4'); a(f'v_add_u32 v16, s{T0}, v16')
        a(f'v_and_b32 v14, 15, v{L}'); a('v_lshlrev_b32 v14, 4, v14'); a(f'v_lshl_add_u32 v{VQ}, v16, 13, v14')
    a(f'v_lshl_add_u32 v16, v{p2}, 4, v15'); a(f'v_lshl_add_u32 v16, v{p3}, 5, v16')
    a(f'v_lshl_add_u32 v16, v{tau}, 6, v16'); a('v_mul_u32_u24 v17, 1152, v16')
    a(f'v_lshlrev_b32 v18, 4, v{u0}'); a(f's_lshl_b32 s{T0}, s{W}, 5'); a(f's_add_u32 s{T0}, s{T0}, 1024')
    a(f'v_add_u32 v18, s{T0}, v18'); a(f'v_add_u32 v{VS_}, v17, v18')
    a(f'v_bfe_u32 v{u0}, v{L}, 1, 1'); a(f'v_bfe_u32 v{p0}, v{L}, 2, 1'); a(f'v_bfe_u32 v{p3}, v{L}, 3, 1')
    a(f'v_bfe_u32 v{p2}, v{L}, 4, 1'); a(f'v_bfe_u32 v14, v{L}, 5, 1')
    a(f'v_and_b32 v18, 1, v{L}'); a('v_lshlrev_b32 v18, 3, v18'); a(f's_mul_i32 s{T0}, s{W}, 36864'); a(f's_add_u32 s37, s{T0}, {RESB}')
    a('v_add_u32 v18, s37, v18')
    a(f'v_lshl_add_u32 v15, v{p2}, 2, v{u0}'); a(f'v_lshl_add_u32 v15, v{p3}, 3, v15'); a(f'v_lshl_add_u32 v15, v{p0}, 4, v15')
    a('v_lshl_add_u32 v15, v14, 6, v15')
    a(f'v_lshl_add_u32 v16, v{p0}, 1, v15')
    a(f'v_xor_b32 v17, 2, v16')
    a(f'v_lshl_add_u32 v{VT0}, v16, 4, v18'); a(f'v_lshl_add_u32 v{VT1}, v17, 4, v18')
    a(f'v_lshl_add_u32 v15, v{p3}, 1, v{u0}'); a(f'v_lshl_add_u32 v15, v{p2}, 2, v15'); a(f'v_lshl_add_u32 v15, v{p0}, 3, v15')
    a('v_lshl_add_u32 v15, v14, 6, v15')
    a(f'v_lshl_add_u32 v{VU0}, v15, 4, v18'); a(f'v_add_u32 v{VU1}, 256, v{VU0}')
    a(f's_lshl_b32 s{T2}, s{S_H}, 8')
    a(f's_mul_i32 s{T3}, s{S_H}, 147456')
    def poison():
        sk = a.uid('L_np')
        a(f's_cmp_eq_u32 s{S_HB}, 0'); a(f's_cbranch_scc1 {sk}')
        if 'nopoison' in EXP: a(f's_branch {sk}')
        for r in range(4): a(f'v_mov_b32 v{8+r}, -1')
        for par in range(2):
            a(f's_add_u32 s{T0}, s{S_CR}, {par*294912}')
            for i in range(4):
                a(f'buffer_store_dwordx4 v[8:11], v{V_EX}, {WS}, s{T0} offen offset:{i*1024} sc1')
        for k in (1, 2):
            a(f's_add_u32 s{T0}, s{S_MB}, {9216*k}')
            a(f'buffer_store_dword v8, v{V_M2O}, {WS}, s{T0} offen sc1')
        a.label(sk)

    def wload(w):
        order = [('O', 0, 0), ('O', 0, 1), ('O', 1, 0), ('O', 1, 1), ('S',)] + \
                [(m, REAL[w].index(r)) for r in range(9) for m in 'QKV'] + [x for x in RESIDENT if x[0] == 'O']
        if 'qkv1' in EXP: order = order[5:32] + order[:5] + order[32:]
        assert sorted(map(str, order)) == sorted(map(str, REGIMG + RESIDENT))
        pos = {img: i for i, img in enumerate(order)}
        free = set(range(9)); slot_of = {}
        st_ = {'nxt': 0}
        def dma(i, slot):
            img = order[i]
            if img[0] in 'QKV':
                sr = {'Q': S_A, 'K': S_B_, 'V': S_C_}[img[0]]; vo = VQ; st = 16 * 8192
                if 'pB' in EXP: st = 4 * 8192
                a(f's_add_u32 s53, s{T2}, {REAL[w][img[1]] << 19}')
            elif img[0] == 'O':
                sr = S_D; vo = VO; st = 4 * 1152
                a(f's_add_u32 s53, s{T3}, {img[2] * 64 * 1152 + img[1] * 256}')
            else:
                sr = S_D; vo = VS_; st = 4 * 1152
                a(f's_mov_b32 s53, s{T3}')
            for n in range(4):
                a(f's_add_u32 m0, s37, {slot*4096 + n*1024}')
                a(f's_add_u32 s38, s53, {n*st}')
                a(f'buffer_load_dwordx4 v{vo}, s[{sr}:{sr+3}], s38 offen{" nt" if "wnt" in EXP else ""}{" sc1" if "wsc1" in EXP else ""} lds', tok=f'cw{w}_{i}')
        def issue():
            while st_['nxt'] < 36:
                i = st_['nxt']; img = order[i]
                if img in RESIDENT:
                    sl = RESIDENT.index(img)
                    if sl not in free: return
                else:
                    cand = [j for j in free if pos[RESIDENT[j]] > i]
                    if not cand: return
                    sl = max(cand, key=lambda j: pos[RESIDENT[j]])
                free.discard(sl); slot_of[i] = sl
                dma(i, sl); st_['nxt'] += 1
        if 'wst2' in EXP and w == 0: stamp(a, 5)
        issue()
        if 'wst2' in EXP and w == 0: stamp(a, 6)
        poison()
        for i in range(36):
            img = order[i]; slot = slot_of[i]
            a.need(f'cw{w}_{i}')
            if w == 0 and i == 0:
                a(f's_lshl_b32 s53, s{S_X}, 2'); a(f's_add_u32 s53, s53, {D_LN}')
                a('v_mov_b32 v8, 1'); a('v_mov_b32 v9, 0'); a('s_mov_b64 exec, 1')
                a(f'buffer_atomic_add v8, v9, s[{S_DBG}:{S_DBG+3}], s53 offen sc1')
                a('s_mov_b64 exec, -1')
            vt = VU0 if img[0] == 'O' else VT0
            for t in range(2):
                if img in RESIDENT: f, b = 'v', 32 + 8 * t
                else: f, b = opbase(2 * REGIMG.index(img) + t)
                for hb in range(2):
                    for rd in range(2):
                        r = b + 4 * hb + 2 * rd
                        a(f'ds_read_b64_tr_b16 {f}[{r}:{r+1}], v{vt+t} offset:{slot*4096 + hb*2048 + rd*512}')
            a('s_waitcnt lgkmcnt(0)')
            if img in RESIDENT:
                for q in range(4):
                    a(f'ds_write_b128 v{V_RES}, v[{32+4*q}:{32+4*q+3}] offset:{slot*4096 + q*1024}')
            else:
                free.add(slot)
            issue()
            if 'wst2' in EXP and w == 0 and i == 0: stamp(a, 7)
            if 'wst' in EXP and w == 0 and i in (4, 18, 31): stamp(a, {4: 5, 18: 6, 31: 7}[i])
        a('s_waitcnt lgkmcnt(0)')
    done = a.uid('L_wl')
    lbl = [a.uid('L_wl') for _ in range(4)]
    if 'half' in EXP:
        a(f's_bitcmp1_b32 s{S_H}, 1'); a(f's_cbranch_scc1 {done}')
    for w in range(1, 4):
        a(f's_cmp_eq_u32 s{W}, {w}'); a(f's_cbranch_scc1 {lbl[w]}')
    for w in range(4):
        a.label(lbl[w])
        wload(w)
        if w < 3: a(f's_branch {done}')
    a.label(done)

def team_barrier(a):
    a('s_waitcnt vmcnt(0)')
    a('s_barrier')
    sk = a.uid('L_tb')
    a(f's_cmp_lg_u32 s{S_W}, 0'); a(f's_cbranch_scc1 {sk}')
    a(f's_lshl_b32 s{T0}, s{S_FOREIGN}, 16'); a(f's_add_u32 s{T0}, s{T0}, 1')
    a(f'v_mov_b32 v8, s{T0}'); a('v_mov_b32 v9, 0')
    a('s_mov_b64 exec, 1')
    a(f'buffer_atomic_add v8, v9, s[{S_DBG}:{S_DBG+3}], 0 offen offset:{D_CHB} sc1')
    a('s_mov_b64 exec, -1')
    a('v_mov_b32 v9, 0'); a('v_mov_b32 v11, 32')
    poll(a, f'buffer_load_dword v8, v9, s[{S_DBG}:{S_DBG+3}], 0 offen offset:{D_CHB} sc1',
         'v_and_b32 v10, 0xffff, v8\nv_cmp_le_u32 vcc, v11, v10', sleep=6)
    a('v_lshrrev_b32 v8, 16, v8')
    a('ds_write_b32 v9, v8')
    a('s_waitcnt lgkmcnt(0)')
    a.label(sk)
    a('s_barrier')
    a('v_mov_b32 v9, 0')
    a('ds_read_b32 v8, v9')
    a('s_waitcnt lgkmcnt(0)')
    a(f'v_readfirstlane_b32 s{S_FOREIGN}, v8')
    a('s_barrier')

def loop(a, sc, tag, role):
    WS = f's[{S_WS}:{S_WS+3}]'
    w = {'r0': 0, 'r1': 1, 'r2': 2, 'n2': 2, 'io': 3}[role]
    red = role[0] == 'r'
    io = role == 'io'
    t_ = tag + role
    LS, LE = f'L_cs{t_}', f'L_ce{t_}'
    acc = {'Q': (QA, QB), 'K': (KA, KB), 'V': (VA, VB)}
    SL = lambda i: AR + 4*i
    def W(m, c, t):
        if (m, c) in RESIDENT: return f'v[{LR+8*t}:{LR+8*t+7}]'
        return opreg((m, c), t)
    def mm1(m, c, t, slot): return smf(acc[m][t], SL(slot), W(m, c, t))
    def lr(img): return lread(RESIDENT.index(img), LR)
    def aread(c, slot): return f'ds_read_b128 v[{SL(slot)}:{SL(slot)+3}], v{V_EX} offset:{X_MEM + REAL[w][c]*1024}'
    def awrite(c): return f'ds_write_b128 v{V_EX}, v[{SL(c)}:{SL(c)+3}] offset:{X_MEM + REAL[w][c]*1024}'
    def cvt(d, s0): return f'v_cvt_pk_bf16_f32 v{d}, v{s0}, v{s0+1}'
    def tr(d): return f'v_mfma_f32_16x16x16_bf16 v[{d}:{d+3}], v[{d}:{d+1}], v[{V_SEL}:{V_SEL+1}], 0'
    def pka(d, x, y): return f'v_pk_add_f32 v[{d}:{d+1}], v[{x}:{x+1}], v[{y}:{y+1}]'
    def zero(r): return f'v_mov_b64 v[{r}:{r+1}], 0'
    def em(*xs):
        for x in xs:
            if isinstance(x, (list, tuple)): em(*x)
            else: a(x)
    nown = 3 if io else 2
    RT = 54
    def prep(): return [[zero(r) for r in range(QA, QA + 24, 2)], lr(('Q', 0))]
    B1 = f'L_b1{t_}'
    PZ = knob('pz', 0)
    SCH = knob('sch', 0)
    def poison(d, caddr, maddr, part=range(5)):
        o = []
        for i in part:
            if i < 4: o.append(f'buffer_store_dwordx4 v[{d}:{d+3}], v{V_EX}, {WS}, s{caddr} offen offset:{i*1024}{sc}')
            else: o.append(f'buffer_store_dword v{d}, v{V_M2O}, {WS}, s{maddr} offen{sc}')
        return o

    def kvcheck(off=0):
        u = a.uid('')
        if off:
            em(f's_add_u32 s{T1}, s{S_S}, {off}', f's_lshr_b32 s{T1}, s{T1}, 1', f's_add_u32 s{T1}, s{T1}, 1', f's_min_u32 s{T1}, s{T1}, 32')
        else:
            em(f's_lshr_b32 s{T1}, s{S_S}, 1', f's_add_u32 s{T1}, s{T1}, 1')
        em(f's_add_u32 s{T2}, s{T1}, 1', f's_min_u32 s{T2}, s{T2}, 32')
        par = 's_cbranch_scc0' if off & 1 else None
        sel = (lambda: em(f's_bitcmp1_b32 s{S_S}, 0', f's_cselect_b32 s{T0}, s{S_K0}, s{S_K1}')) if off & 1 else \
              (lambda: em(f's_bitcmp1_b32 s{S_S}, 0', f's_cselect_b32 s{T0}, s{S_K1}, s{S_K0}'))
        sel()
        OK, FL = f'L_ok{t_}{u}', f'L_fl{t_}{u}'
        em(f's_cmp_ge_u32 s{T0}, s{T2}', f's_cbranch_scc1 {OK}')
        em(f'v_lshlrev_b32 v9, 3, v{V_EX}')
        em(f's_lshl_b32 s{T3}, s{S_H}, 2', f's_add_u32 s{T3}, s{T3}, {F_KV}')
        a.label(FL)
        em('s_mov_b64 exec, 3', f'buffer_load_dword v8, v9, {WS}, s{T3} offen sc1', 's_mov_b64 exec, -1')
        em(f'v_readlane_b32 s{S_K0}, v8, 0', f'v_readlane_b32 s{S_K1}, v8, 1')
        sel()
        em(f's_cmp_ge_u32 s{T0}, s{T1}', f's_cbranch_scc1 {OK}')
        em(f's_cmp_eq_u32 s{S_BUD}, 0', f's_cbranch_scc1 {OK}')
        em(f's_sub_u32 s{S_BUD}, s{S_BUD}, 1', f's_branch {FL}')
        a.label(OK)
        if SCH:
            em(f's_add_u32 s{T1}, s{T1}, 1', f's_cmp_ge_u32 s{T0}, s{T1}', f's_cselect_b32 s{T0}, {off + 2}, {off}',
               f's_add_u32 s{T0}, s{T0}, s{S_S}', f's_min_u32 s{T0}, s{T0}, 63',
               f's_lshl_b32 s{T0}, s{T0}, 5', f's_add_u32 s{T0}, s{T0}, s{S_H}', f's_lshl_b32 s{S_WA}, s{T0}, 13')
            return
        em(f's_add_u32 s{T1}, s{T1}, 1', f's_cmp_ge_u32 s{T0}, s{T1}', f's_cselect_b32 s{S_WOK}, 1, 0')
        em(f's_add_u32 s{T0}, s{S_S}, 2', f's_lshl_b32 s{T0}, s{T0}, 5', f's_add_u32 s{T0}, s{T0}, s{S_H}', f's_lshl_b32 s{S_WA}, s{T0}, 13')

    def kvl(ta=T1, tb=T2):
        return [[f's_add_u32 s{ta}, s{S_SEGO}, {KF}', f's_add_u32 s{tb}, s{S_SEGO}, {VF}'],
                [f'buffer_load_dwordx4 v[{KX+4*k}:{KX+4*k+3}], v{V_EX}, {WS}, s{ta} offen offset:{k*1024}' for k in range(2)],
                [f'buffer_load_dwordx4 v[{VX+4*k}:{VX+4*k+3}], v{V_EX}, {WS}, s{tb} offen offset:{k*1024}' for k in range(2)]]
    def kvloads(ta=T1, tb=T2): em(kvl(ta, tb))
    def warm(t):
        return [f'v_lshlrev_b32 v{t}, 3, v{V_EX}', f's_add_u32 s{T1}, s{S_WA}, {KF}', f's_add_u32 s{T2}, s{S_WA}, {VF}',
                f'buffer_load_dword v{V_M2O}, v{t}, {WS}, s{T1} offen', f'buffer_load_dword v{V_M2O}, v{t}, {WS}, s{T2} offen']
    ones4 = [f'v_mov_b64 v[{VX}:{VX+1}], -1', f'v_mov_b64 v[{VX+2}:{VX+3}], -1']

    a.label(LE)
    em(prep())
    if io:
        kvcheck()
        if SCH: em(warm(9)); kvcheck(1)
    srd(a, S_A, 8, 9216)
    a(f'v_lshrrev_b32 v21, 4, v{V_EX}')
    a('v_and_b32 v22, 7, v21'); a('v_mul_u32_u24 v22, 1152, v22')
    a('v_lshrrev_b32 v23, 3, v21'); a('v_lshl_add_u32 v22, v23, 4, v22')
    a('s_waitcnt lgkmcnt(0)')
    srd_fix(a, S_A)
    a('s_barrier')
    for c in range(nown):
        a(f'buffer_load_dwordx4 v[{SL(c)}:{SL(c)+3}], v22, s[{S_A}:{S_A+3}], 0 offen offset:{REAL[w][c]*128}')
    if SCH: kvloads()
    if red: em(f's_add_u32 s{S_CRD}, s{S_CR}, 294912')
    if red and PZ == 4: em(ones4)
    em([awrite(c) for c in range(nown)])
    em(f's_branch {B1}')

    a.label(LS)
    prof(a, 12)
    prof(a, 0)
    if 'nocomm' in EXP:
        em(prep())
        if SCH: kvloads()
        if io: em(f's_mov_b32 s{S_WOK}, 1', f's_lshl_b32 s{S_WA}, s{S_H}, 13')
        em([awrite(c) for c in range(nown)])
        em(f's_branch {B1}')
    if io:
        if 'steps' in EXP:
            em('s_memtime s[74:75]', f's_lshl_b32 s{T0}, s{S_H}, 6', f's_add_u32 s{T0}, s{T0}, s{S_S}', f's_lshl_b32 s{T0}, s{T0}, 3',
               f's_add_u32 s{T0}, s{T0}, {PROF + 0x10000}', 's_waitcnt lgkmcnt(0)', 'v_mov_b32 v8, s74', 'v_mov_b32 v9, s75', 'v_mov_b32 v10, 0',
               's_mov_b64 exec, 1', f'buffer_store_dwordx2 v[8:9], v10, {WS}, s{T0} offen', 's_mov_b64 exec, -1')
        em(prep())
        if SCH: kvloads(); kvcheck(1)
        else: kvcheck()
    elif not red:
        if SCH: kvloads()
    elif red:
        late = w == 1
        em(f's_xor_b32 s{S_CRD}, s{S_CP}, 294912', f's_add_u32 s{S_CRD}, s{S_CRD}, s{S_CR}')
        NS = knob('ns', 3)
        SETS = [8, 24, 64][:NS]
        SEL, RA, RT = 56, 60, 54
        def cload(b):
            return [f'buffer_load_dwordx4 v[{b+4*i}:{b+4*i+3}], v{V_EX}, {WS}, s{S_CRD} offen offset:{i*1024} sc1' for i in range(4)]
        selr = [f's_add_u32 s{T1}, s{S_MB}, s{S_O0}',
                f'v_and_b32 v{RT}, 64, v{V_EX}', f'v_lshrrev_b32 v{RT}, 2, v{RT}', f'v_mov_b32 v{RT+1}, 0x3f80', f'v_lshlrev_b32 v{RT}, v{RT}, v{RT+1}'] + \
               [f'v_cndmask_b32 v{SEL+r}, 0, v{RT}, s[{S_RM+2*r}:{S_RM+2*r+1}]' for r in range(4)]
        zq = [zero(r) for r in range(QA, RT, 2)]
        if PZ == 4: zq = zq + ones4
        if PZ == 2:
            em('v_mov_b64 v[44:45], -1', 'v_mov_b64 v[46:47], -1', f's_add_u32 s{T2}, s{S_CR}, s{S_CP}', f's_add_u32 s{T3}, s{S_MB}, s{S_O1}')
            em(poison(44, T2, T3))
        if late:
            em(selr, zq)
            delay(a, knob('d1'))
            em(cload(SETS[0]))
            for b in SETS[1:]:
                delay(a, knob('g1', 16)); em(cload(b))
        else:
            delay(a, knob('d0'))
            em(cload(SETS[0]), selr)
            if NS > 1: delay(a, knob('g0', 8)); em(cload(SETS[1]))
            em(zq)
            if NS > 2: delay(a, knob('g0', 8)); em(cload(SETS[2]))
        if SCH: kvloads(T2, T3)
        def creduce(sb, first=False):
            mf = lambda i: f'v_mfma_f32_16x16x32_bf16 v[{RA}:{RA+3}], v[{SEL}:{SEL+3}], v[{sb+4*i}:{sb+4*i+3}], {"0" if i == 0 else f"v[{RA}:{RA+3}]"}'
            if PZ == 5:
                stp = 1 if role == 'r2' else 2
                xo = lambda d, x, y: f'v_bitop3_b32 v{d}, v{x}, v{y}, s{S_TR} bitop3:0x7e'
                for i in range(4):
                    b = sb + 4*i
                    a(mf(i))
                    if stp == 2:
                        if i == 0: em(xo(RT, b, b + 2))
                        elif i == 1: em(xo(RT + 1, b, b + 2))
                        elif i == 2: em(f'v_or_b32 v{RT}, v{RT}, v{RT+1}', xo(RT + 1, b, b + 2))
                        else: em(f'v_or_b32 v{RT}, v{RT}, v{RT+1}', xo(RT + 1, b, b + 2))
                    else:
                        if i == 0: em(xo(RT, b, b + 1), xo(RT + 1, b + 2, b + 3))
                        else: em(f'v_or_b32 v{RT}, v{RT}, v{RT+1}', xo(RT + 1, b, b + 1), f'v_or_b32 v{RT}, v{RT}, v{RT+1}', xo(RT + 1, b + 2, b + 3))
                em(f'v_bitop3_b32 v{RT}, v{RT}, v{RT+1}, 1 bitop3:0xa8', f'v_cmp_ne_u32 vcc, 0, v{RT}', 's_cmp_eq_u64 vcc, 0')
                return
            if first:
                b = sb
                em(f'v_max3_u32 v{RT}, v{b}, v{b+1}, v{b+2}', f'v_max3_u32 v{RT+1}, v{b+3}, v{b+4}, v{b+5}', mf(0),
                   f'v_max3_u32 v{RT}, v{RT}, v{b+6}, v{b+7}', mf(1),
                   f'v_max3_u32 v{RT+1}, v{RT+1}, v{b+8}, v{b+9}', f'v_max3_u32 v{RT}, v{RT}, v{b+10}, v{b+11}', mf(2),
                   f'v_max3_u32 v{RT+1}, v{RT+1}, v{b+12}, v{b+13}', f'v_max3_u32 v{RT}, v{RT}, v{b+14}, v{b+15}', mf(3))
            else:
                for i in range(4):
                    b = sb + 4*i
                    a(mf(i))
                    if i == 0: em(f'v_max3_u32 v{RT}, v{b}, v{b+1}, v{b+2}', f'v_mov_b32 v{RT+1}, v{b+3}')
                    else: em(f'v_max3_u32 v{RT}, v{RT}, v{b}, v{b+1}', f'v_max3_u32 v{RT+1}, v{RT+1}, v{b+2}, v{b+3}')
            em(f'v_max_u32 v{RT}, v{RT}, v{RT+1}', f'v_cmp_eq_u32 vcc, -1, v{RT}', 's_cmp_eq_u64 vcc, 0')
        RL, RD = f'L_rp{t_}', f'L_rpd{t_}'
        if knob('md') == 2:
            assert PZ == 5
            NB = knob('nb1' if late else 'nb0', 2)
            cregs = list(range(8, 24))
            RX = f'L_rx{t_}'
            if PROF_STEP is not None: em('s_waitcnt vmcnt(0)'); prof(a, 10)
            creduce(8); em(f's_cbranch_scc1 {RD}')
            a.retok(cregs, 'cstale')
            a.label(RL)
            em(f's_cmp_eq_u32 s{S_BUD}, 0', f's_cbranch_scc1 {RX}', f's_sub_u32 s{S_BUD}, s{S_BUD}, 1')
            if 'cnt' in EXP: em('s_add_u32 s98, s98, 1')
            em('s_mov_b64 exec, vcc', cload(8))
            a.retok(cregs, 'cstale')
            em(f's_waitcnt vmcnt({4*(NB-1)})')
            stp = 1 if role == 'r2' else 2
            xo = lambda d, x, y: f'v_bitop3_b32 v{d}, v{x}, v{y}, s{S_TR} bitop3:0x7e'
            mf = lambda i: f'v_mfma_f32_16x16x32_bf16 v[{RA}:{RA+3}], v[{SEL}:{SEL+3}], v[{8+4*i}:{8+4*i+3}], {"0" if i == 0 else f"v[{RA}:{RA+3}]"}'
            ml = knob('mlate')
            for i in range(4):
                b = 8 + 4*i
                if stp == 2:
                    if i == 0: em(xo(RT, b, b + 2))
                    else: em(xo(RT + 1, b, b + 2), f'v_or_b32 v{RT}, v{RT}, v{RT+1}')
                else:
                    if i == 0: em(xo(RT, b, b + 1), xo(RT + 1, b + 2, b + 3), f'v_or_b32 v{RT}, v{RT}, v{RT+1}')
                    else: em(xo(RT + 1, b, b + 1), f'v_or_b32 v{RT}, v{RT}, v{RT+1}', xo(RT + 1, b + 2, b + 3), f'v_or_b32 v{RT}, v{RT}, v{RT+1}')
                if not ml and i > 0: a(mf(i - 1))
            em(f'v_and_b32 v{RT}, 1, v{RT}', f'v_cmp_ne_u32 vcc, 0, v{RT}')
            if not ml: a(mf(3))
            em('s_cmp_eq_u64 vcc, 0', f's_cbranch_scc0 {RL}')
            a.label(RX)
            em('s_mov_b64 exec, -1')
            if knob('mlate'):
                for i in range(4): a(mf(i))
        elif knob('md'):
            NB = knob('nb1' if late else 'nb0', 1)
            cregs = list(range(8, 24))
            for j in range(1, NB):
                delay(a, knob('gb1' if late else 'gb0', 16)); em(cload(8))
            em(f's_waitcnt vmcnt({4*(NB-1)})'); a.retok(cregs, 'cstale')
            creduce(8, NB > 1); em(f's_cbranch_scc1 {RD}')
            RM = f'L_rm{t_}'
            a.label(RL)
            em(f's_cmp_eq_u32 s{S_BUD}, 0', f's_cbranch_scc1 {RM}', f's_sub_u32 s{S_BUD}, s{S_BUD}, 1')
            if 'cnt' in EXP: em('s_add_u32 s98, s98, 1')
            em('s_mov_b64 exec, vcc', cload(8), 's_mov_b64 exec, -1')
            em(f's_waitcnt vmcnt({4*(NB-1)})'); a.retok(cregs, 'cstale')
            em(f'v_max3_u32 v{RT}, v8, v9, v10', f'v_max3_u32 v{RT+1}, v11, v12, v13')
            for b in range(14, 22, 4): em(f'v_max3_u32 v{RT}, v{RT}, v{b}, v{b+1}', f'v_max3_u32 v{RT+1}, v{RT+1}, v{b+2}, v{b+3}')
            em(f'v_max3_u32 v{RT}, v{RT}, v22, v23', f'v_max_u32 v{RT}, v{RT}, v{RT+1}', f'v_cmp_eq_u32 vcc, -1, v{RT}', 's_cmp_eq_u64 vcc, 0')
            em(f's_cbranch_scc0 {RL}')
            a.label(RM)
            for i in range(4):
                b = 8 + 4*i
                a(f'v_mfma_f32_16x16x32_bf16 v[{RA}:{RA+3}], v[{SEL}:{SEL+3}], v[{b}:{b+3}], {"0" if i == 0 else f"v[{RA}:{RA+3}]"}')
        elif SCH:
            assert NS == 1
            if PROF_STEP is not None: a.needr(*range(8, 24)); prof(a, 10)
            creduce(8); em(f's_cbranch_scc1 {RD}')
            a.label(RL)
            em(f's_cmp_eq_u32 s{S_BUD}, 0', f's_cbranch_scc1 {RD}', f's_sub_u32 s{S_BUD}, s{S_BUD}, 1')
            if 'cnt' in EXP: em('s_add_u32 s98, s98, 1')
            em(cload(8))
            creduce(8); em(f's_cbranch_scc0 {RL}')
        else:
            if PROF_STEP is not None: em('s_waitcnt vmcnt(0)'); prof(a, 10)
            a.label(RL)
            for j, b in enumerate(SETS):
                creduce(b); em(f's_cbranch_scc1 {RD}')
                if j == NS - 1: em(f's_cmp_eq_u32 s{S_BUD}, 0', f's_cbranch_scc1 {RD}', f's_sub_u32 s{S_BUD}, s{S_BUD}, 1')
                if 'cnt' in EXP: em('s_add_u32 s98, s98, 1')
                em(cload(b))
            em(f's_branch {RL}')
        a.label(RD)
        em(f'v_add_f32_dpp v{RA}, v{RA}, v{RA} row_ror:8 row_mask:0xf bank_mask:0xf',
           f'v_add_f32_dpp v{RA+1}, v{RA+1}, v{RA+1} row_ror:8 row_mask:0xf bank_mask:0xf', cvt(RA, RA))
        em(f'buffer_store_dword v{RA}, v{V_M2O}, {WS}, s{T1} offen{sc}')
    prof(a, 9)
    a('s_barrier')
    real = REAL[w]
    em(f's_add_u32 s{T0}, s{S_O0}, {M2 + real[0]*1024}')
    if io: em(f's_add_u32 s{T1}, s{S_O0}, {M2 + real[2]*1024}')
    MS = knob('ms', 3)
    msets = ([[8, 12, 16], [64, 68, 72]] if io else [[8, 12], [64, 68], [72, 76]])[:MS]
    def mload(st):
        o = [f'buffer_load_dwordx4 v[{st[c]}:{st[c]+3}], v{V_EX}, {WS}, s{T0} offen offset:{(real[c]-real[0])*1024} sc1' for c in range(2)]
        if io: o.append(f'buffer_load_dwordx4 v[{st[2]}:{st[2]+3}], v{V_EX}, {WS}, s{T1} offen sc1')
        return o
    CT = 20 if io else 16
    def mcheck(st, first=False):
        x, y = st[0], st[1]
        aw = lambda c: f'ds_write_b128 v{V_EX}, v[{st[c]}:{st[c]+3}] offset:{X_MEM + REAL[w][c]*1024}'
        if first:
            em(f'v_max3_u32 v{CT}, v{x}, v{x+1}, v{x+2}', f'v_max3_u32 v{CT+1}, v{x+3}, v{y}, v{y+1}', aw(0),
               f'v_max3_u32 v{CT}, v{CT}, v{y+2}, v{y+3}', aw(1))
            if io:
                z = st[2]
                em(f'v_max3_u32 v{CT+1}, v{CT+1}, v{z}, v{z+1}', f'v_max3_u32 v{CT}, v{CT}, v{z+2}, v{z+3}', aw(2))
        else:
            em(aw(0), f'v_max3_u32 v{CT}, v{x}, v{x+1}, v{x+2}', aw(1),
               f'v_max3_u32 v{CT}, v{CT}, v{x+3}, v{y}', f'v_max3_u32 v{CT+1}, v{y+1}, v{y+2}, v{y+3}')
            if io:
                z = st[2]
                em(aw(2), f'v_max3_u32 v{CT}, v{CT}, v{z}, v{z+1}', f'v_max3_u32 v{CT+1}, v{CT+1}, v{z+2}, v{z+3}')
        em(f'v_max_u32 v{CT}, v{CT}, v{CT+1}', f'v_cmp_eq_u32 vcc, -1, v{CT}', 's_cmp_eq_u64 vcc, 0')
    fill = [] if io else ([zero(r) for r in range(RT if red else QA, QA + 24, 2)], lr(('Q', 0)))
    if fill and knob('pre02' if w in (0, 2) else 'pre1'):
        em(fill); fill = []
    delay(a, knob('d2' if w in (0, 2) else 'd3'))
    em(mload(msets[0]))
    if fill: em(fill[0])
    if len(msets) > 1:
        delay(a, knob('g2', 0 if fill else 16)); em(mload(msets[1]))
    if fill: em(fill[1])
    if red and PZ == 1:
        em('v_mov_b64 v[20:21], -1', 'v_mov_b64 v[22:23], -1', f's_add_u32 s{T2}, s{S_MB}, s{S_O2}')
        em(poison(20, S_CRD, T2))
    if len(msets) > 2:
        delay(a, knob('g3', 8)); em(mload(msets[2]))
    PL = f'L_pm{t_}'
    if knob('mm') == 2:
        MB_ = knob('mb02' if w in (0, 2) else ('mb1' if w == 1 else 'mb3'), 2)
        st = msets[0]
        mregs = list(range(8, 8 + 4 * len(st)))
        PX = f'L_px{t_}'
        if PROF_STEP is not None: em('s_waitcnt vmcnt(0)'); prof(a, 11, 0)
        mcheck(st); em(f's_cbranch_scc1 {B1}')
        a.retok(mregs, 'mstale')
        a.label(PL)
        em(f's_cmp_eq_u32 s{S_BUD}, 0', f's_cbranch_scc1 {PX}', f's_sub_u32 s{S_BUD}, s{S_BUD}, 1')
        if 'cnt' in EXP: em('s_add_u32 s99, s99, 1')
        em('s_mov_b64 exec, vcc', mload(st))
        a.retok(mregs, 'mstale')
        em(f's_waitcnt vmcnt({len(st)*(MB_-1)})')
        mcheck(st, True); em(f's_cbranch_scc0 {PL}')
        a.label(PX)
        em('s_mov_b64 exec, -1')
    elif knob('mm'):
        MB_ = knob('mb02' if w in (0, 2) else ('mb1' if w == 1 else 'mb3'), 1)
        st = msets[0]
        mregs = list(range(8, 8 + 4 * len(st)))
        for j in range(1, MB_):
            delay(a, knob('gm02' if w in (0, 2) else ('gm1' if w == 1 else 'gm3'), 16)); em(mload(st))
        em(f's_waitcnt vmcnt({len(st)*(MB_-1)})'); a.retok(mregs, 'mstale')
        mcheck(st, MB_ > 1); em(f's_cbranch_scc1 {B1}')
        a.label(PL)
        em(f's_cmp_eq_u32 s{S_BUD}, 0', f's_cbranch_scc1 {B1}', f's_sub_u32 s{S_BUD}, s{S_BUD}, 1')
        if 'cnt' in EXP: em('s_add_u32 s99, s99, 1')
        em('s_mov_b64 exec, vcc', mload(st), 's_mov_b64 exec, -1')
        em(f's_waitcnt vmcnt({len(st)*(MB_-1)})'); a.retok(mregs, 'mstale')
        mcheck(st, MB_ > 1); em(f's_cbranch_scc0 {PL}')
    else:
        if PROF_STEP is not None: em('s_waitcnt vmcnt(0)'); prof(a, 11, 0)
        a.label(PL)
        DL = [B1] + [f'L_pd{j}{t_}' for j in range(1, len(msets))]
        for j, st in enumerate(msets):
            mcheck(st); em(f's_cbranch_scc1 {DL[j]}')
            if j == len(msets) - 1: em(f's_cmp_eq_u32 s{S_BUD}, 0', f's_cbranch_scc1 {DL[j]}', f's_sub_u32 s{S_BUD}, s{S_BUD}, 1')
            if 'cnt' in EXP: em('s_add_u32 s99, s99, 1')
            em(mload(st))
        em(f's_branch {PL}')
        for j in range(len(msets) - 1, 0, -1):
            a.label(DL[j])
            regs = list(range(8, 8 + 4 * len(msets[j])))
            a.retok(regs, 'mstale')
            for c in range(len(msets[j])):
                em(f'v_mov_b64 v[{8+4*c}:{8+4*c+1}], v[{msets[j][c]}:{msets[j][c]+1}]', f'v_mov_b64 v[{8+4*c+2}:{8+4*c+3}], v[{msets[j][c]+2}:{msets[j][c]+3}]')
            if j > 1: em(f's_branch {B1}')
    a.label(B1)
    prof(a, 1)
    if SCH:
        sched1(a, locals()); return
    q = lambda c, t, sl: mm1('Q', c, t, sl)
    k = lambda c, t, sl: mm1('K', c, t, sl)
    v = lambda c, t, sl: mm1('V', c, t, sl)
    r2 = lr(('K', 2))
    em(q(0, 0, 0), q(0, 1, 0), r2[0], r2[1], q(1, 0, 1), r2[2], r2[3], q(1, 1, 1), k(0, 0, 0), k(0, 1, 0), k(1, 0, 1), k(1, 1, 1))
    a('s_waitcnt lgkmcnt(4)')
    a('s_barrier')
    prof(a, 2)
    if io:
        kvloads()
        em(f'v_lshlrev_b32 v20, 3, v{V_EX}', f'v_mov_b32 v21, s{S_S}')
        em(f's_lshl_b32 s{T2}, s{S_H}, 7', f's_add_u32 s{T2}, s{T2}, {F_CH}')
        em('s_mov_b64 exec, 1', f'buffer_store_dword v21, v20, {WS}, s{T2} offen sc1', 's_mov_b64 exec, -1')
        NW = f'L_nw{t_}'
        em(f's_cmp_eq_u32 s{S_WOK}, 0', f's_cbranch_scc1 {NW}')
        em(f's_add_u32 s{T1}, s{S_WA}, {KF}', f's_add_u32 s{T2}, s{S_WA}, {VF}')
        em(f'buffer_load_dword v{V_M2O}, v20, {WS}, s{T1} offen', f'buffer_load_dword v{V_M2O}, v20, {WS}, s{T2} offen')
        a.label(NW)
        em(aread(3, 3))
    else:
        em(aread(2, 2), aread(3, 3))
        if not (red and PZ == 4): kvloads()
    r3, r4, r5 = lr(('K', 4)), lr(('K', 5)), lr(('V', 5))
    X = [[] for _ in range(12)]
    if red and PZ == 4:
        kv = kvl()
        pz = poison(VX, S_CRD, T3)
        em(kv[0], f's_add_u32 s{T3}, s{S_MB}, s{S_O2}')
        seq = kv[1] + pz + kv[2]
        st0 = knob('x0', 0)
        if knob('xs', 1) == 1:
            for i, x in enumerate(seq): X[st0 + i].append(x)
        else:
            for i, x in enumerate(seq): X[st0 + i // 2].append(x)
    em(v(0, 0, 0), X[0], v(0, 1, 0), X[1])
    a.need('mstale')
    em(aread(4, 0), v(1, 0, 1), X[2], v(1, 1, 1), X[3], aread(5, 1))
    em(q(2, 0, 2), X[4], q(2, 1, 2), X[5], k(2, 0, 2), X[6], k(2, 1, 2), X[7], aread(6, 2), r3[0])
    em(q(3, 0, 3), X[8], r3[1], r3[2], q(3, 1, 3), X[9], r3[3], k(3, 0, 3), X[10], k(3, 1, 3), X[11], aread(7, 3))
    em(q(4, 0, 0), q(4, 1, 0), k(4, 0, 0), k(4, 1, 0), aread(8, 0), r4[0])
    em(q(5, 0, 1), r4[1], r4[2], q(5, 1, 1), r4[3], q(6, 0, 2), q(6, 1, 2), q(7, 0, 3), q(7, 1, 3), q(8, 0, 0), q(8, 1, 0))
    em(k(5, 0, 1), k(5, 1, 1), r5[0], r5[1], cvt(QA, QA), k(6, 0, 2), r5[2], r5[3], cvt(QA + 1, QA + 2), k(6, 1, 2), cvt(QB, QB),
       k(7, 0, 3), cvt(QB + 1, QB + 2), k(7, 1, 3), k(8, 0, 0), k(8, 1, 0))
    prof(a, 3)
    em(tr(QA), cvt(KA, KA), cvt(KA + 1, KA + 2))
    em(tr(QB), cvt(KB, KB), cvt(KB + 1, KB + 2))
    em(tr(KA), cvt(QA, QA), cvt(QA + 1, QA + 2))
    em(tr(KB), cvt(QA + 2, QB), cvt(QA + 3, QB + 2))
    em(f'v_mfma_f32_16x16x32_bf16 v[{KX}:{KX+3}], v[{KX}:{KX+3}], v[{QA}:{QA+3}], 0', cvt(KA, KA), cvt(KA + 1, KA + 2))
    em(f'v_mfma_f32_16x16x32_bf16 v[{KX+4}:{KX+7}], v[{KX+4}:{KX+7}], v[{QA}:{QA+3}], 0', cvt(KA + 2, KB), cvt(KA + 3, KB + 2))
    em(f'v_mfma_f32_16x16x32_bf16 v[{QB}:{QB+3}], v[{KA}:{KA+3}], v[{QA}:{QA+3}], 0')
    em(f's_add_u32 s{T0}, s{S_SEGO}, {KM}')
    em(f'buffer_store_dwordx4 v[{KA}:{KA+3}], v{V_EX}, {WS}, s{T0} offen sc1')
    for r in range(4):
        a(f'v_mov_b32_dpp v{KX+r}, v{KX+4+r} quad_perm:[0,1,2,3] row_mask:0xf bank_mask:0xc')
    NM, GM = f's[{S_NM}:{S_NM+1}]', f's[{S_GM}:{S_GM+1}]'
    em(f'v_cndmask_b32 v{KB}, v{QB+1}, v{QB}, {NM}', f'v_cndmask_b32 v{KB+1}, v{QB+3}, v{QB+2}, {NM}',
       f'v_cndmask_b32 v{KB}, v{KB}, v{KB+1}, {GM}')
    em(f'ds_write_b32 v{V_EX}, v{KB} offset:{X_SM + 4*w}', f'ds_write_b128 v{V_EX}, v[{KX}:{KX+3}] offset:{X_TOK + w*1024}')
    prof(a, 4)
    em(v(5, 0, 1), v(5, 1, 1), aread(2, 1), v(6, 0, 2), v(6, 1, 2), aread(3, 2), v(7, 0, 3), v(7, 1, 3), aread(4, 3))
    a('s_waitcnt lgkmcnt(3)')
    a('s_barrier')
    prof(a, 5)
    a(f'ds_read_b128 v[64:67], v{V_EX} offset:{X_SM}')
    for kk in range(4):
        a(f'ds_read_b128 v[{40+4*kk}:{43+4*kk}], v{V_EX} offset:{X_TOK + kk*1024}')
    em(v(8, 0, 0), v(8, 1, 0), v(2, 0, 1), v(2, 1, 1))
    em(v(3, 0, 2), 'v_add_f32 v64, v64, v65', v(3, 1, 2), 'v_add_f32 v66, v66, v67', 'v_add_f32 v64, v64, v66')
    em(pka(40, 40, 44), pka(42, 42, 46), pka(40, 40, 48), pka(42, 42, 50), pka(44, 40, 52), pka(46, 42, 54))
    pre = lread(5, 8) + lread(6, 24)
    em('v_max3_f32 v68, v44, v45, v46', 'v_max3_f32 v68, v68, v47, v64')
    em(v(4, 0, 3), pre[4])
    em('v_max_f32_dpp v68, v68, v68 row_ror:8 row_mask:0xf bank_mask:0xf', 'v_mov_b32 v69, v68')
    em(v(4, 1, 3), pre[5])
    em('v_permlane32_swap_b32 v68, v69', 'v_max_f32 v68, v68, v69', 'v_mov_b32 v69, v68')
    em(pre[6], pre[7])
    em('v_permlane16_swap_b32 v68, v69', 'v_max_f32 v68, v68, v69', f'v_mul_f32 v68, s{S_C}, v68')
    em(pre[0], f'v_fma_f32 v64, v64, s{S_C}, -v68', pre[1])
    for d in (44, 46):
        a(f'v_pk_fma_f32 v[{d}:{d+1}], v[{d}:{d+1}], s[{S_C}:{S_C+1}], v[68:69] op_sel_hi:[1,1,0] neg_lo:[0,0,1] neg_hi:[0,0,1]')
    em('v_exp_f32 v64, v64', cvt(VA, VA), 'v_exp_f32 v44, v44', cvt(VA + 1, VA + 2), 'v_exp_f32 v45, v45',
       'v_mov_b32_dpp v65, v64 row_ror:8 row_mask:0xf bank_mask:0xf', 'v_exp_f32 v46, v46', cvt(VA + 2, VB), 'v_exp_f32 v47, v47', cvt(VA + 3, VB + 2))
    em(cvt(41, 64), pre[2], cvt(42, 44), 'v_mov_b32 v40, v41', pre[3], cvt(43, 46))
    em('v_permlane32_swap_b32 v40, v41')
    em(f'v_mov_b64 v[48:49], s[{S_Q4}:{S_Q4+1}]', f'v_mov_b64 v[50:51], s[{S_ONE}:{S_ONE+1}]')
    em(f's_add_u32 s{T0}, s{S_SEGO}, {KM}')
    a(f'buffer_store_dwordx4 v[{VA}:{VA+3}], v{V_EX}, {WS}, s{T0} offen offset:1024 sc1', tok='kmvm')
    em(f's_cmp_eq_u32 s{S_S}, 63', 's_cbranch_scc1 L_chx')
    em('v_mov_b32_dpp v44, v42 row_ror:8 row_mask:0xf bank_mask:0xf', 'v_mov_b32_dpp v45, v43 row_ror:8 row_mask:0xf bank_mask:0xf')
    em('v_mfma_f32_16x16x32_bf16 v[52:55], v[48:51], v[40:43], 0')
    em(f'v_mfma_f32_16x16x16_bf16 v[64:67], v[{VA}:{VA+1}], v[40:41], 0')
    em(f'v_lshrrev_b32 v48, 1, v{V_EX}', 'v_and_b32 v48, 0x180, v48')
    em(f'v_mfma_f32_16x16x16_bf16 v[68:71], v[{VA+2}:{VA+3}], v[40:41], 0')
    em(f'v_and_b32 v49, 0x70, v{V_EX}', 'v_or_b32 v48, v48, v49')
    em(f'v_mfma_f32_16x16x32_bf16 v[64:67], v[{VX}:{VX+3}], v[42:45], v[64:67]')
    em('v_add_f32_dpp v52, v52, v52 row_ror:8 row_mask:0xf bank_mask:0xf', f'v_bfe_u32 v50, v{V_EX}, 7, 1')
    em(f'v_mfma_f32_16x16x32_bf16 v[68:71], v[{VX+4}:{VX+7}], v[42:45], v[68:71]')
    em('v_rcp_f32 v52, v52', 'v_lshl_add_u32 v49, v50, 3, v48', 'v_lshl_add_u32 v50, v50, 9, v48')
    for d in (64, 66, 68, 70):
        a(f'v_pk_mul_f32 v[{d}:{d+1}], v[{d}:{d+1}], v[52:53] op_sel_hi:[1,0]')
    em(cvt(68, 68), cvt(69, 70), cvt(64, 64), cvt(65, 66))
    em('v_mov_b32_dpp v64, v68 row_ror:8 row_mask:0xf bank_mask:0xc', 'v_mov_b32_dpp v65, v69 row_ror:8 row_mask:0xf bank_mask:0xc')
    em(f'ds_write_b64 v49, v[64:65] offset:{X_O + w*512}')
    prof(a, 6)
    if red and PZ == 3:
        em('v_mov_b64 v[60:61], -1', 'v_mov_b64 v[62:63], -1', f's_add_u32 s{T1}, s{S_MB}, s{S_O2}')
        em(poison(60, S_CRD, T1, range(5)[:knob('pa', 2)]))
        em([zero(r) for r in range(52, 60, 2)])
    elif red and PZ == 0: em([zero(r) for r in range(52, 60, 2)], 'v_mov_b64 v[60:61], -1', 'v_mov_b64 v[62:63], -1')
    elif red and PZ == 5: em([zero(r) for r in range(52, 60, 2)], 'v_mov_b64 v[60:61], -1', zero(62))
    else: em([zero(r) for r in range(52, 64, 2)])
    a('s_waitcnt lgkmcnt(0)')
    a('s_barrier')
    prof(a, 7)
    for jj in range(2):
        a(f'ds_read_b128 v[{40+4*jj}:{43+4*jj}], v50 offset:{X_O + jj*1024}')
    for e in range(4):
        a(f'ds_read_b128 v[{64+4*e}:{67+4*e}], v48 offset:{X_O + e*512}')
    em(zero(48), zero(50))
    if red and PZ in (0, 3):
        em(f's_add_u32 s{T1}, s{S_MB}, s{S_O2}')
        em(poison(60, S_CRD, T1, range(5)[(knob('pa', 2) if PZ == 3 else 0):]))
    if PZ == 5:
        if red: em(f's_add_u32 s{T1}, s{S_MB}, s{S_O2}', poison(60, S_CRD, T1, [4]))
        em(f's_lshl_b32 s{S_TO}, s{S_S}, 15', f's_and_b32 s{S_TO}, s{S_TO}, 0x10000', f's_xor_b32 s{S_TA}, s{S_TO}, 0x10000',
           f's_bfe_i32 s{S_TR}, s{S_TO}, 0x10010')
    em(f's_add_u32 s{T0}, s{S_CS}, s{S_CP}', f's_add_u32 s{T1}, s{S_CSS}, s{S_CP}')
    ring = [8, 16, 24, 32]
    nxt = lread(7, 8) + lread(8, 24)
    GS, GA, GB, GC, GD = 48, 52, 56, 60, 40
    VM = 44
    def tagv(t):
        return [f'v_add_u32 v{t}, s{S_TA}, v{t}', f'v_and_or_b32 v{t}, v{t}, v{VM}, s{S_TO}'] if PZ == 5 else []
    def epi(t, img):
        return [[tagv(t), cvt(t, t)], cvt(t + 1, t + 2), f's_add_u32 s{T2}, s{T0}, {img*65536}',
                f'buffer_store_dwordx2 v[{t}:{t+1}], v{V_C1}, {WS}, s{T2} offen{sc}']
    em([smf(GS, 40 + 4*jj, opreg(('S',), jj)) for jj in range(2)])
    ga = [smf(GA, 64 + 4*e, f'v[{ring[e]}:{ring[e]+7}]') for e in range(4)]
    gb = [smf(GB, 64 + 4*e, opreg(('O', 0, e >> 1), e & 1)) for e in range(4)]
    gc = [smf(GC, 64 + 4*e, opreg(('O', 1, e >> 1), e & 1)) for e in range(4)]
    gd = [smf(GD, 64 + 4*e, f'v[{ring[e]}:{ring[e]+7}]') for e in range(4)]
    em(ga[0], nxt[0], nxt[1], zero(GD), ga[1], nxt[2], nxt[3], zero(GD + 2))
    if PZ == 5: em(f'v_mov_b32 v{VM}, 0xfffe0000')
    em(ga[2], nxt[4], nxt[5], f'v_permlane32_swap_b32 v{GS}, v{GS+2}', ga[3], nxt[6], nxt[7], f'v_permlane32_swap_b32 v{GS+1}, v{GS+3}')
    zc = [zero(60), zero(62)] if red and PZ in (0, 3) else [zero(60) if red and PZ == 5 else [], []]
    em(gb[0], f'v_add_f32 v{GS}, v{GS}, v{GS+2}', zc[0], gb[1], f'v_add_f32 v{GS+1}, v{GS+1}, v{GS+3}', zc[1], tagv(GS), gb[2], cvt(GS, GS),
       f'buffer_store_dword v{GS}, v{V_CS}, {WS}, s{T1} offen{sc}')
    e = epi(GA, 2)
    em(gb[3], e[0], gc[0], e[1:], gc[1])
    e = epi(GB, 0)
    em(gc[2], e[0], gc[3], e[1:])
    em(gd[0], gd[1])
    e = epi(GC, 1)
    em(e[0], gd[2], e[1:], gd[3])
    em(f's_mov_b32 s{T3}, s{S_O0}', f's_mov_b32 s{S_O0}, s{S_O1}', f's_mov_b32 s{S_O1}, s{S_O2}', f's_mov_b32 s{S_O2}, s{T3}')
    em(f's_xor_b32 s{S_CP}, s{S_CP}, 294912', f's_add_u32 s{S_S}, s{S_S}, 1', f's_add_u32 s{S_SEGO}, s{S_SEGO}, {32*8192}')
    em(epi(GD, 3))
    prof2 = PROF_STEP is not None
    if prof2:
        sk = a.uid('L_pf')
        a(f's_cmp_lg_u32 s{S_S}, {PROF_STEP + 1}'); a(f's_cbranch_scc1 {sk}')
        a.rawins(f's_mem{"real" if PROF_REAL else ""}time s[{PS+16}:{PS+17}]')
        a.label(sk)
    a(f's_branch {LS}')

def sched1(a, L):
    em, mm1, lr, aread, cvt, tr, pka, zero, poison = (L[k] for k in ('em', 'mm1', 'lr', 'aread', 'cvt', 'tr', 'pka', 'zero', 'poison'))
    io, red, w, WS, sc, PZ, LS, t_, SL, warm = (L[k] for k in ('io', 'red', 'w', 'WS', 'sc', 'PZ', 'LS', 't_', 'SL', 'warm'))
    assert PZ == 5
    q = lambda c, t, sl: mm1('Q', c, t, sl)
    k = lambda c, t, sl: mm1('K', c, t, sl)
    v = lambda c, t, sl: mm1('V', c, t, sl)
    class Wt:
        def __init__(s, *r): s.r = r
    def slot(i): return Wt(*range(SL(i), SL(i) + 4))
    def lrw(*qs): return Wt(*[LR + 4*x + j for x in qs for j in range(4)])
    def st(*xs):
        for x in xs:
            if x is None: continue
            if isinstance(x, (list, tuple)): st(*x)
            elif isinstance(x, Wt): a.needr(*x.r)
            else: a(x)
    pkm = lambda d, s_: f'v_pk_mul_f32 v[{d}:{d+1}], v[{d}:{d+1}], s[{s_}:{s_+1}]'
    k2, k4, k5, v5 = lr(('K', 2)), lr(('K', 4)), lr(('K', 5)), lr(('V', 5))
    st(q(0, 0, 0), k2[0], q(0, 1, 0), k2[1], q(1, 0, 1), k2[2], q(1, 1, 1), k2[3])
    if io: st(q(2, 0, 2), q(2, 1, 2))
    a('s_waitcnt lgkmcnt(4)')
    a('s_barrier')
    prof(a, 2)
    X = [[] for _ in range(8)]
    if io:
        TV = 62
        X[0] = [f's_lshl_b32 s{T3}, s{S_H}, 7', f's_add_u32 s{T3}, s{T3}, {F_CH}', f'v_mov_b32 v{TV}, s{S_S}']
        X[2] = ['s_mov_b64 exec, 1', f'buffer_store_dword v{TV}, v{V_EX}, {WS}, s{T3} offen sc1', 's_mov_b64 exec, -1']
        wm = warm(TV + 1)
        X[3] = [wm[1], wm[2], wm[0]]
        X[4] = [wm[3]]
        X[5] = [wm[4]]
        X[6] = [zero(TV)]
        st(aread(3, 3))
    else:
        st(aread(2, 2), aread(3, 3))
    st(k(0, 0, 0), X[0], k(0, 1, 0), aread(4, 0), k(1, 0, 1), X[2], k(1, 1, 1), aread(5, 1))
    if io: st(X[3])
    else: st(slot(2), q(2, 0, 2), q(2, 1, 2))
    st(k(2, 0, 2), k5[0], X[4], k(2, 1, 2), aread(6, 2), slot(3))
    st(q(3, 0, 3), k5[1], X[5], q(3, 1, 3), aread(7, 3), slot(0))
    st(q(4, 0, 0), k5[2], X[6], q(4, 1, 0), aread(8, 0), slot(1))
    st(q(5, 0, 1), k5[3], q(5, 1, 1), slot(2), q(6, 0, 2), q(6, 1, 2), slot(3))
    st(q(7, 0, 3), slot(0), q(8, 0, 0), q(7, 1, 3), lrw(0, 1, 2, 3), q(8, 1, 0), pkm(QA, S_C))
    st(k(5, 0, 1), k4[0], pkm(QA + 2, S_C))
    st(k(5, 1, 1), aread(3, 1), cvt(QA, QA))
    st(k(6, 0, 2), k4[1], cvt(QA + 1, QA + 2))
    st(k(6, 1, 2), aread(4, 2), pkm(QB, S_C))
    st(tr(QA), k4[2], pkm(QB + 2, S_C))
    st(k(7, 0, 3), k4[3], cvt(QB, QB))
    st(k(8, 0, 0), slot(1), cvt(QB + 1, QB + 2))
    st(k(3, 0, 1), cvt(QA, QA))
    st(tr(QB), cvt(QA + 1, QA + 2))
    st(k(7, 1, 3), slot(2), lrw(0, 1))
    st(k(4, 0, 2), v5[0], cvt(QA + 2, QB))
    st(k(8, 1, 0), v5[1], cvt(QA + 3, QB + 2))
    st(k(3, 1, 1), lrw(2, 3), cvt(KA, KA))
    KXr = Wt(*range(KX, KX + 8))
    st(k(4, 1, 2), v5[2], KXr, cvt(KA + 1, KA + 2))
    prof(a, 3)
    st(v5[3], f's_add_u32 s{T0}, s{S_SEGO}, {KM}')
    st(tr(KA), cvt(KB, KB), cvt(KB + 1, KB + 2))
    st(f'v_mfma_f32_16x16x32_bf16 v[{KX}:{KX+3}], v[{KX}:{KX+3}], v[{QA}:{QA+3}], 0')
    st(tr(KB), cvt(KA, KA), cvt(KA + 1, KA + 2))
    st(f'v_mfma_f32_16x16x32_bf16 v[{KX+4}:{KX+7}], v[{KX+4}:{KX+7}], v[{QA}:{QA+3}], 0')
    st(cvt(KA + 2, KB), cvt(KA + 3, KB + 2))
    st(f'v_mfma_f32_16x16x32_bf16 v[{QB}:{QB+3}], v[{KA}:{KA+3}], v[{QA}:{QA+3}], 0')
    dm = [f'v_mov_b32_dpp v{KX+r}, v{KX+4+r} quad_perm:[0,1,2,3] row_mask:0xf bank_mask:0xc' for r in range(4)]
    NM, GM = f's[{S_NM}:{S_NM+1}]', f's[{S_GM}:{S_GM+1}]'
    st(dm, v(7, 0, 3), f'ds_write_b128 v{V_EX}, v[{KX}:{KX+3}] offset:{X_TOK + w*1024}')
    st(f'v_cndmask_b32 v{KB}, v{QB+1}, v{QB}, {NM}', f'v_cndmask_b32 v{KB+1}, v{QB+3}, v{QB+2}, {NM}',
       f'v_cndmask_b32 v{KB}, v{KB}, v{KB+1}, {GM}')
    st(f'ds_write_b32 v{V_EX}, v{KB} offset:{X_SM + 4*w}')
    prof(a, 4)
    st(v(7, 1, 3), aread(0, 3), v(8, 0, 0), f'buffer_store_dwordx4 v[{KA}:{KA+3}], v{V_EX}, {WS}, s{T0} offen sc1',
       v(8, 1, 0), aread(1, 0), v(3, 0, 1), v(3, 1, 1), aread(2, 1))
    a('s_waitcnt lgkmcnt(3)')
    a('s_barrier')
    prof(a, 5); mark(a, 'P3start')
    a(f'ds_read_b128 v[64:67], v{V_EX} offset:{X_SM}')
    for kk in range(4):
        a(f'ds_read_b128 v[{40+4*kk}:{43+4*kk}], v{V_EX} offset:{X_TOK + kk*1024}')
    st(v(4, 0, 2), v(4, 1, 2), aread(5, 2), slot(3), v(0, 0, 3), v(0, 1, 3), aread(6, 3), slot(0), Wt(64, 65, 66, 67))
    st(v(1, 0, 0), 'v_add_f32 v64, v64, v65', v(1, 1, 0), slot(1), Wt(*range(40, 48)), 'v_add_f32 v66, v66, v67')
    st(v(2, 0, 1), pka(40, 40, 44), v(2, 1, 1), Wt(*range(48, 52)), pka(42, 42, 46))
    mark(a, 'P3a')
    st(pka(40, 40, 48), pka(42, 42, 50), 'v_add_f32 v64, v64, v66', Wt(*range(52, 56)), pka(44, 40, 52), pka(46, 42, 54))
    mark(a, 'P3b')
    pre = lread(5, 8) + lread(6, 24)
    st(slot(2), lrw(0, 1, 2, 3), v(5, 0, 2), 'v_max3_f32 v68, v44, v45, v46', v(5, 1, 2), 'v_max3_f32 v68, v68, v47, v64')
    st(slot(3), v(6, 0, 3),
       'v_max_f32_dpp v69, v68, v68 row_ror:8 row_mask:0xf bank_mask:0xf', 'v_max_f32_dpp v68, v68, v68 row_ror:8 row_mask:0xf bank_mask:0xf')
    st(v(6, 1, 3), pre[4], 'v_permlane32_swap_b32 v68, v69')
    mark(a, 'P3c')
    st('v_max_f32 v70, v68, v69', 'v_max_f32 v71, v68, v69', pre[5], pre[6], 'v_permlane16_swap_b32 v70, v71')
    st(pre[7], 'v_max_f32 v68, v70, v71')
    st('v_sub_f32 v64, v64, v68')
    for d in (44, 46):
        a(f'v_pk_add_f32 v[{d}:{d+1}], v[{d}:{d+1}], v[68:69] op_sel_hi:[1,0] neg_lo:[0,1] neg_hi:[0,1]')
    mark(a, 'P3d')
    st('v_exp_f32 v64, v64', pre[0], 'v_exp_f32 v44, v44', 'v_mov_b32_dpp v65, v64 row_ror:8 row_mask:0xf bank_mask:0xf', 'v_exp_f32 v45, v45',
       pre[1], cvt(VA, VA), 'v_exp_f32 v46, v46', cvt(40, 64), cvt(41, 64), 'v_exp_f32 v47, v47', cvt(VA + 1, VA + 2), pre[2])
    st(cvt(42, 44), 'v_permlane32_swap_b32 v40, v41', cvt(VA + 2, VB), pre[3], cvt(43, 46), cvt(VA + 3, VB + 2))
    mark(a, 'P3e')
    st(f'v_mov_b64 v[48:49], s[{S_Q4}:{S_Q4+1}]', f'v_mov_b64 v[50:51], s[{S_ONE}:{S_ONE+1}]')
    st(f's_add_u32 s{T0}, s{S_SEGO}, {KM}')
    LAST = f'L_last{t_}'
    st('v_mov_b32_dpp v44, v42 row_ror:8 row_mask:0xf bank_mask:0xf', f's_cmp_eq_u32 s{S_S}, 63',
       'v_mov_b32_dpp v45, v43 row_ror:8 row_mask:0xf bank_mask:0xf', f's_cbranch_scc1 {LAST}')
    vmst = f'buffer_store_dwordx4 v[{VA}:{VA+3}], v{V_EX}, {WS}, s{T0} offen offset:1024 sc1'
    mark(a, 'P3f')
    st('v_mfma_f32_16x16x32_bf16 v[52:55], v[48:51], v[40:43], 0')
    st(f'v_mfma_f32_16x16x16_bf16 v[64:67], v[{VA}:{VA+1}], v[40:41], 0')
    st(f'v_lshrrev_b32 v48, 1, v{V_EX}', 'v_and_b32 v48, 0x180, v48')
    st(f'v_mfma_f32_16x16x16_bf16 v[68:71], v[{VA+2}:{VA+3}], v[40:41], 0')
    st(f'v_and_b32 v49, 0x70, v{V_EX}', 'v_or_b32 v48, v48, v49')
    st(f'v_mfma_f32_16x16x32_bf16 v[64:67], v[{VX}:{VX+3}], v[42:45], v[64:67]')
    st('v_add_f32_dpp v52, v52, v52 row_ror:8 row_mask:0xf bank_mask:0xf', f'v_bfe_u32 v50, v{V_EX}, 7, 1')
    st(f'v_mfma_f32_16x16x32_bf16 v[68:71], v[{VX+4}:{VX+7}], v[42:45], v[68:71]')
    st('v_rcp_f32 v52, v52', 'v_lshl_add_u32 v49, v50, 3, v48', 'v_lshl_add_u32 v50, v50, 9, v48')
    mark(a, 'P3g')
    a(vmst, tok='kmvm')
    mark(a, 'P3h')
    for d in (64, 66, 68, 70):
        a(f'v_pk_mul_f32 v[{d}:{d+1}], v[{d}:{d+1}], v[52:53] op_sel_hi:[1,0]')
    st(cvt(68, 68), cvt(69, 70), cvt(64, 64), cvt(65, 66))
    st('v_mov_b32_dpp v64, v68 row_ror:8 row_mask:0xf bank_mask:0xc', 'v_mov_b32_dpp v65, v69 row_ror:8 row_mask:0xf bank_mask:0xc')
    st(f'ds_write_b64 v49, v[64:65] offset:{X_O + w*512}')
    prof(a, 6); mark(a, 'P3i')
    if red:
        st(f's_add_u32 s{T1}, s{S_MB}, s{S_O2}', 'v_mov_b32 v60, -1', poison(60, None, T1, [4]))
    st([zero(r) for r in range(52, 64, 2)])
    st(f's_bfe_u32 s{S_TO}, s{S_S}, 0x10001', f's_sub_u32 s{S_TR}, 0, s{S_TO}')
    st(f's_add_u32 s{T0}, s{S_CS}, s{S_CP}', f's_add_u32 s{T1}, s{S_CSS}, s{S_CP}')
    a('s_waitcnt lgkmcnt(0)')
    a('s_barrier')
    prof(a, 7); mark(a, 'P3j')
    for jj in range(2):
        a(f'ds_read_b128 v[{40+4*jj}:{43+4*jj}], v50 offset:{X_O + jj*1024}')
    for e in range(4):
        a(f'ds_read_b128 v[{64+4*e}:{67+4*e}], v48 offset:{X_O + e*512}')
    st(zero(48), zero(50))
    ring = [8, 16, 24, 32]
    nxt = lread(7, 8) + lread(8, 24)
    GS, GA, GB, GC, GD = 48, 52, 56, 60, 40
    tag = lambda t: f'v_and_or_b32 v{t}, v{t}, -2, s{S_TO}'
    adr = lambda img: f's_add_u32 s{T2}, s{T0}, {img*65536}'
    sto = lambda t: f'buffer_store_dwordx2 v[{t}:{t+1}], v{V_C1}, {WS}, s{T2} offen{sc}'
    E = lambda e: Wt(*range(64 + 4*e, 68 + 4*e))
    RG = lambda e: Wt(*range(ring[e], ring[e] + 8))
    S_ = [smf(GS, 40 + 4*jj, opreg(('S',), jj)) for jj in range(2)]
    ga = [smf(GA, 64 + 4*e, f'v[{ring[e]}:{ring[e]+7}]') for e in range(4)]
    gb = [smf(GB, 64 + 4*e, opreg(('O', 0, e >> 1), e & 1)) for e in range(4)]
    gc = [smf(GC, 64 + 4*e, opreg(('O', 1, e >> 1), e & 1)) for e in range(4)]
    gd = [smf(GD, 64 + 4*e, f'v[{ring[e]}:{ring[e]+7}]') for e in range(4)]
    st(S_[0], Wt(44, 45, 46, 47), S_[1], E(0), zero(GD))
    st(ga[0], nxt[0], E(1), zero(GD + 2))
    st(ga[1], nxt[1], E(2), f'v_permlane32_swap_b32 v{GS}, v{GS+2}')
    st(ga[2], nxt[2], E(3), f'v_permlane32_swap_b32 v{GS+1}, v{GS+3}')
    st(ga[3], nxt[3], f'v_add_f32 v{GS}, v{GS}, v{GS+2}')
    st(gb[0], nxt[4], f'v_add_f32 v{GS+1}, v{GS+1}, v{GS+3}')
    st(gb[1], nxt[5], cvt(GS, GS))
    st(gb[2], nxt[6], tag(GS))
    st(gb[3], f'buffer_store_dword v{GS}, v{V_CS}, {WS}, s{T1} offen{sc}', cvt(GA, GA))
    st(gc[0], nxt[7], adr(2), cvt(GA + 1, GA + 2))
    st(gc[1], tag(GA))
    st(gc[2], sto(GA), cvt(GB, GB))
    st(gc[3], adr(0), RG(0), cvt(GB + 1, GB + 2))
    st(gd[0], RG(1), tag(GB))
    st(gd[1], sto(GB), RG(2), cvt(GC, GC))
    st(gd[2], adr(1), RG(3), cvt(GC + 1, GC + 2))
    st(gd[3], tag(GC), sto(GC), adr(3))
    st(f's_mov_b32 s{T3}, s{S_O0}', f's_mov_b32 s{S_O0}, s{S_O1}', f's_mov_b32 s{S_O1}, s{S_O2}', f's_mov_b32 s{S_O2}, s{T3}')
    st(f's_xor_b32 s{S_CP}, s{S_CP}, 294912', f's_add_u32 s{S_S}, s{S_S}, 1', f's_add_u32 s{S_SEGO}, s{S_SEGO}, {32*8192}')
    st(cvt(GD, GD), cvt(GD + 1, GD + 2), tag(GD), sto(GD))
    if PROF_STEP is not None:
        sk = a.uid('L_pf')
        a(f's_cmp_lg_u32 s{S_S}, {PROF_STEP + 1}'); a(f's_cbranch_scc1 {sk}')
        a.rawins(f's_mem{"real" if PROF_REAL else ""}time s[{PS+16}:{PS+17}]')
        a.label(sk)
    a(f's_branch {LS}')
    a.label(LAST)
    a(vmst, tok='kmvm')
    a('s_branch L_chx')

def chain_role(a):
    stamp(a, 1)
    setup(a)
    stamp(a, 2)
    team_barrier(a)
    stamp(a, 3)
    if 'setuponly' in EXP:
        a('s_branch L_exit')
    a(f's_mov_b32 s{S_S}, 0'); a(f's_mov_b32 s{S_O0}, 0'); a(f's_mov_b32 s{S_O1}, 9216'); a(f's_mov_b32 s{S_O2}, 18432')
    a(f's_mov_b32 s{S_CP}, 0')
    if 'cnt' in EXP: a('s_mov_b32 s98, 0'); a('s_mov_b32 s99, 0')
    variants = getattr(chain_role, 'variants', 'both')
    vs = {'both': [('', 'l'), (' sc1', 'f')], 'loc': [('', 'l')], 'for': [(' sc1', 'f')]}[variants]
    if variants == 'both':
        a(f's_cmp_lg_u32 s{S_FOREIGN}, 0'); a('s_cbranch_scc1 L_cdf')
    for sc, tag in vs:
        a.label(f'L_cd{tag}')
        a(f's_cmp_eq_u32 s{S_W}, 3'); a(f's_cbranch_scc1 L_ce{tag}io')
        a(f's_cmp_eq_u32 s{S_W}, 1'); a(f's_cbranch_scc1 L_ce{tag}r1')
        a(f's_cmp_eq_u32 s{S_W}, 0'); a(f's_cbranch_scc1 L_ce{tag}r0')
        a(f's_cmp_lt_u32 s{S_H}, 8'); a(f's_cbranch_scc1 L_ce{tag}r2')
        a(f's_branch L_ce{tag}n2')
        for role in ('r0', 'r1', 'r2', 'n2', 'io'):
            loop(a, sc, tag, role)
    a.label('L_chx')
    WS = f's[{S_WS}:{S_WS+3}]'
    a('s_waitcnt vmcnt(0)')
    a('s_barrier')
    sk = a.uid('L_x')
    a(f's_cmp_lg_u32 s{S_W}, 3'); a(f's_cbranch_scc1 {sk}')
    a(f'v_lshlrev_b32 v60, 3, v{V_EX}'); a('v_mov_b32 v61, 64')
    a(f's_lshl_b32 s{T2}, s{S_H}, 7'); a(f's_add_u32 s{T2}, s{T2}, {F_CH}')
    a('s_mov_b64 exec, 1')
    a(f'buffer_store_dword v61, v60, {WS}, s{T2} offen sc1')
    a('s_mov_b64 exec, -1')
    a.label(sk)
    if 'cnt' in EXP:
        a(f's_lshl_b32 s{T0}, s{S_H}, 2'); a(f's_add_u32 s{T0}, s{T0}, s{S_W}'); a(f's_lshl_b32 s{T0}, s{T0}, 7'); a(f's_add_u32 s{T0}, s{T0}, {PROF}')
        a('v_mov_b32 v10, 0'); a('v_mov_b32 v8, s98'); a('v_mov_b32 v9, s99'); a('s_mov_b64 exec, 1')
        a(f'buffer_store_dwordx2 v[8:9], v10, {WS}, s{T0} offen')
        a('s_mov_b64 exec, -1')
    if PROF_STEP is not None:
        a('s_waitcnt lgkmcnt(0)')
        a(f's_lshl_b32 s{T0}, s{S_H}, 2'); a(f's_add_u32 s{T0}, s{T0}, s{S_W}'); a(f's_lshl_b32 s{T0}, s{T0}, 7'); a(f's_add_u32 s{T0}, s{T0}, {PROF}')
        a('v_mov_b32 v10, 0'); a('s_mov_b64 exec, 1')
        for k in range(13):
            a(f'v_mov_b32 v8, s{PS+2*k}'); a(f'v_mov_b32 v9, s{PS+2*k+1}')
            a(f'buffer_store_dwordx2 v[8:9], v10, {WS}, s{T0} offen offset:{8*k}')
        a('s_mov_b64 exec, -1')
    stamp(a, 4)
```

```python
from gen_base import *
import struct
def f2u(x): return struct.unpack('<I', struct.pack('<f', x))[0]

X_MEM, X_TOK, X_SM, X_O, RESB = 0, 9216, 13312, 14336, 16384
V_EX, V_RES, V_CS, V_C1, V_M2O, V_IDX, V_SEL = 0, 1, 2, 3, 4, 5, 6
AR, LR = 8, 24
QA, QB, KA, KB, VA, VB = 40, 44, 48, 52, 56, 60
KX, VX = 64, 72
PROF = 0x20000
PROF_STEP = None
PROF_REAL = False
EXP = set()

REAL = [[2, 3, 4, 5, 6, 7, 8, 0, 1], [0, 1, 2, 3, 4, 5, 6, 7, 8], [6, 7, 8, 0, 1, 2, 3, 4, 5], [4, 5, 8, 6, 7, 0, 1, 2, 3]]
def knob(name, dflt=0):
    for x in EXP:
        if x.startswith(name + '='): return int(x[len(name)+1:])
    return dflt
def delay(a, n):
    while n > 0:
        a.rawins(f's_nop {min(n, 16) - 1}'); n -= 16
RESIDENT = [('Q', 0), ('K', 2), ('K', 4), ('K', 5), ('V', 5), ('O', 2, 0), ('O', 2, 1), ('O', 3, 0), ('O', 3, 1)]
REGIMG = [(m, c) for c in range(9) for m in 'QKV' if (m, c) not in RESIDENT] + \
         [('O', 0, 0), ('O', 0, 1), ('O', 1, 0), ('O', 1, 1), ('S',)]
assert len(REGIMG) == 27
def opbase(k):
    return ('a', 8 * k) if k < 32 else ('v', 80 + 8 * (k - 32))
def opreg(img, tau):
    k = 2 * REGIMG.index(img) + tau
    f, b = opbase(k)
    return f'{f}[{b}:{b+7}]'

S_CRD = 37
S_WOK, S_WA = 38, 39
S_H, S_S = 40, 41
S_O0, S_O1, S_O2 = 42, 43, 44
S_MR = 45
S_MB = 46
S_CP = 47
S_CS = 48
S_CR = 49
S_K0, S_K1 = 50, 51
S_HB, S_B = 52, 53
S_C = 54
S_NM = 56
S_SEGO = 58
S_CSS = 59
S_GM = 60
S_RM = 62
S_Q4 = 70
S_ONE = 72
S_TO, S_TA, S_TR = 52, 53, 45
T0, T1, T2, T3 = 33, 34, 35, 36
PS = 74

def pmode():
    for x in EXP:
        if x.startswith('pm='): return x[3:]
    return None
PM_IDS = {}
def mark(a, name):
    pm = pmode()
    if PROF_STEP is None or pm is None or not name.startswith(pm): return
    k = PM_IDS.setdefault(name, len(PM_IDS) + 1)
    assert k <= 11
    prof(a, k, force=True)
def prof(a, k, _=0, force=False):
    if PROF_STEP is None: return
    if pmode() and not force and k not in (0, 12): return
    sk = a.uid('L_pf')
    a(f's_cmp_lg_u32 s{S_S}, {PROF_STEP + (1 if k >= 12 else 0)}'); a(f's_cbranch_scc1 {sk}')
    a.rawins(f's_mem{"real" if PROF_REAL else ""}time s[{PS+2*k}:{PS+2*k+1}]')
    a.label(sk)

def smf(d, av, b):
    return f'v_smfmac_f32_16x16x64_bf16 v[{d}:{d+3}], v[{av}:{av+3}], {b}, v{V_IDX}'

def lread(slot, dst):
    return [f'ds_read_b128 v[{dst+4*q}:{dst+4*q+3}], v{V_RES} offset:{slot*4096 + q*1024}' for q in range(4)]

S_B_, S_C_ = 20, 24

def setup(a):
    W = S_W
    WS = f's[{S_WS}:{S_WS+3}]'
    if 'hx' in EXP: a(f's_xor_b32 s{S_H}, s{S_T}, 1')
    else: a(f's_mov_b32 s{S_H}, s{S_T}')
    srd(a, S_A, 16, 576 * 8192); srd(a, S_B_, 24, 576 * 8192); srd(a, S_C_, 32, 576 * 8192); srd(a, S_D, 40, 32 * 147456)
    a(f'v_mov_b32 v79, v{V_LANE}')
    L = 79
    a(f'v_lshlrev_b32 v{V_EX}, 4, v{L}')
    a(f's_mul_i32 s{T0}, s{W}, 36864'); a(f's_add_u32 s{T0}, s{T0}, {RESB}'); a(f'v_add_u32 v{V_RES}, s{T0}, v{V_EX}')
    a(f'v_bfe_u32 v9, v{L}, 3, 1'); a('v_lshlrev_b32 v9, 12, v9')
    a(f'v_and_b32 v10, 7, v{L}'); a('v_lshl_add_u32 v9, v10, 3, v9')
    a(f'v_bfe_u32 v10, v{L}, 4, 1'); a('v_lshl_add_u32 v9, v10, 6, v9')
    a(f'v_lshrrev_b32 v10, 5, v{L}')
    a(f'v_lshl_add_u32 v{V_C1}, v10, 13, v9')
    a(f'v_lshl_add_u32 v{V_CS}, v10, 2, v9')
    if knob('x4'):
        a(f'v_bfe_u32 v9, v{L}, 3, 1'); a('v_lshlrev_b32 v9, 12, v9')
        a(f'v_and_b32 v11, 7, v{L}'); a('v_lshl_add_u32 v9, v11, 4, v9')
        a(f'v_lshl_add_u32 v9, v10, 13, v9')
        a(f'v_bfe_u32 v11, v{L}, 4, 1'); a('v_xor_b32 v11, 1, v11'); a(f'v_lshl_add_u32 v{V_C1}, v11, 17, v9')
    a(f'v_bfe_u32 v9, v{L}, 2, 1'); a('v_lshlrev_b32 v9, 2, v9'); a(f'v_lshrrev_b32 v10, 4, v{L}'); a('v_add_u32 v9, v9, v10')
    a(f'v_and_b32 v10, 3, v{L}'); a('v_lshlrev_b32 v10, 2, v10'); a(f'v_lshl_add_u32 v{V_M2O}, v9, 4, v10')
    if knob('x4'):
        a(f'v_and_b32 v9, 7, v{L}'); a(f'v_bfe_u32 v10, v{L}, 4, 1'); a(f'v_lshrrev_b32 v11, 5, v{L}'); a('v_lshl_add_u32 v10, v10, 1, v11')
        a('v_lshlrev_b32 v10, 2, v10'); a('v_lshl_add_u32 v9, v9, 4, v10')
        a(f's_cmp_lt_u32 s{W}, 2'); a('s_cselect_b64 vcc, -1, 0'); a(f'v_cndmask_b32 v{V_M2O}, v{V_M2O}, v9, vcc')
    a(f'v_bfe_u32 v10, v{L}, 3, 1'); a('v_mul_u32_u24 v10, 0xaaaa, v10'); a(f'v_add_u32 v{V_IDX}, 0x4444, v10')
    a(f'v_and_b32 v9, 7, v{L}'); a(f'v_bfe_u32 v10, v{L}, 4, 1'); a('v_lshlrev_b32 v10, 2, v10')
    a('v_sub_u32 v9, v9, v10')
    for r in range(2):
        a(f'v_mov_b32 v11, 0'); a('v_mov_b32 v12, 0x3f80'); a(f'v_cmp_eq_u32 vcc, {2*r}, v9'); a('v_cndmask_b32 v11, v11, v12, vcc')
        a('v_mov_b32 v12, 0x3f800000'); a(f'v_cmp_eq_u32 vcc, {2*r+1}, v9'); a(f'v_cndmask_b32 v{V_SEL+r}, v11, v12, vcc')
    a(f's_mov_b32 s{S_C}, {f2u(128 ** -0.5 * 1.4426950408889634):#x}'); a(f's_mov_b32 s{S_C+1}, s{S_C}')
    a(f's_mov_b32 s{S_NM}, 0x00ff00ff'); a(f's_mov_b32 s{S_NM+1}, 0x00ff00ff')
    a(f's_mov_b32 s{S_GM}, 0'); a(f's_mov_b32 s{S_GM+1}, -1')
    for r, m in enumerate((0x0011, 0x1100, 0x0022, 0x2200)):
        a(f's_mov_b32 s{S_RM+2*r}, {m * 0x10001:#x}'); a(f's_mov_b32 s{S_RM+2*r+1}, {m * 0x10001:#x}')
    if knob('x4'):
        a(f's_cmp_lt_u32 s{W}, 2')
        for r in range(4):
            a(f's_cselect_b32 s{S_RM+2*r}, {(0x0303 << 2*r) * 0x10001:#x}, s{S_RM+2*r}'); a(f's_mov_b32 s{S_RM+2*r+1}, s{S_RM+2*r}')
    a(f's_mov_b32 s{S_Q4}, 0x3e803e80'); a(f's_mov_b32 s{S_Q4+1}, 0x3e803e80')
    a(f's_mov_b32 s{S_ONE}, 0x3f803f80'); a(f's_mov_b32 s{S_ONE+1}, 0x3f803f80')
    a(f's_lshl_b32 s{T0}, s{W}, 11')
    a(f's_lshl_b32 s{T1}, s{S_H}, 13'); a(f's_add_u32 s{S_SEGO}, s{T0}, s{T1}')
    a(f's_cmp_lt_u32 s{S_H}, 16')
    a(f's_cselect_b32 s{T0}, 32, -16'); a(f's_cselect_b32 s{T1}, 16, 32')
    a(f's_cmp_eq_u32 s{W}, 1'); a(f's_cselect_b32 s{T0}, s{T1}, s{T0}')
    a(f's_cmp_eq_u32 s{W}, 2'); a(f's_cselect_b32 s{T0}, 64, s{T0}')
    a(f's_add_u32 s{S_B}, s{T0}, s{S_H}')
    a(f's_cmp_lt_u32 s{S_H}, 8'); a(f's_cselect_b32 s{S_HB}, 1, 0')
    a(f's_cmp_lt_u32 s{W}, 2'); a(f's_cselect_b32 s{S_HB}, 1, s{S_HB}')
    a(f's_cmp_eq_u32 s{W}, 3'); a(f's_cselect_b32 s{S_HB}, 0, s{S_HB}')
    a(f's_min_u32 s{S_B}, s{S_B}, 71')
    a(f's_lshl_b32 s{T0}, s{S_B}, 7'); a(f's_add_u32 s{S_MB}, s{T0}, {M2}')
    a(f's_lshl_b32 s{T0}, s{S_B}, 12'); a(f's_add_u32 s{S_CR}, s{T0}, {C1}')
    a(f's_lshl_b32 s{T0}, s{W}, 14'); a(f's_lshl_b32 s{T1}, s{S_H}, 7'); a(f's_add_u32 s{T0}, s{T0}, s{T1}')
    a(f's_add_u32 s{S_CS}, s{T0}, {C1}')
    a(f's_lshl_b32 s{T0}, s{W}, 13'); a(f's_add_u32 s{T0}, s{T0}, s{T1}'); a(f's_add_u32 s{S_CSS}, s{T0}, {C1 + 64*4096}')
    a(f's_mov_b32 s{S_K0}, 0'); a(f's_mov_b32 s{S_K1}, 0')
    a('s_waitcnt lgkmcnt(0)')
    for s_ in (S_A, S_B_, S_C_, S_D): srd_fix(a, s_)
    u0, p0, tau, p2, p3, p1 = 8, 9, 10, 11, 12, 13
    a(f'v_and_b32 v{u0}, 1, v{L}'); a(f'v_bfe_u32 v{p0}, v{L}, 4, 1'); a(f'v_bfe_u32 v{tau}, v{L}, 1, 1')
    a(f'v_bfe_u32 v{p2}, v{L}, 2, 1'); a(f'v_bfe_u32 v{p3}, v{L}, 3, 1'); a(f'v_bfe_u32 v{p1}, v{L}, 5, 1')
    VQ, VO, VS_, VT0, VT1, VU0, VU1 = 20, 21, 22, 23, 24, 25, 26
    a(f'v_lshlrev_b32 v14, 5, v{tau}'); a(f'v_lshl_add_u32 v14, v{u0}, 4, v14'); a(f's_lshl_b32 s{T0}, s{W}, 6'); a(f'v_add_u32 v14, s{T0}, v14')
    a(f'v_lshl_add_u32 v16, v{p1}, 1, v{p3}'); a(f'v_lshl_add_u32 v16, v{p2}, 4, v16'); a(f'v_lshl_add_u32 v16, v{p0}, 5, v16')
    a(f'v_mul_u32_u24 v17, 1152, v16'); a(f'v_add_u32 v{VO}, v17, v14')
    a(f'v_xor_b32 v{tau}, v{tau}, v{p0}')
    a(f'v_lshlrev_b32 v14, 5, v{tau}'); a(f'v_lshl_add_u32 v14, v{u0}, 4, v14'); a(f's_lshl_b32 s{T0}, s{W}, 6'); a(f'v_add_u32 v14, s{T0}, v14')
    a(f'v_lshl_add_u32 v15, v{p1}, 1, v{p0}')
    a(f'v_lshl_add_u32 v16, v{p2}, 2, v15'); a(f'v_lshl_add_u32 v16, v{p3}, 3, v16')
    a(f'v_lshl_add_u32 v{VQ}, v16, 13, v14')
    if 'pB' in EXP:
        a(f'v_lshrrev_b32 v16, 4, v{L}'); a(f's_lshl_b32 s{T0}, s{W}, 4'); a(f'v_add_u32 v16, s{T0}, v16')
        a(f'v_and_b32 v14, 15, v{L}'); a('v_lshlrev_b32 v14, 4, v14'); a(f'v_lshl_add_u32 v{VQ}, v16, 13, v14')
    a(f'v_lshl_add_u32 v16, v{p2}, 4, v15'); a(f'v_lshl_add_u32 v16, v{p3}, 5, v16')
    a(f'v_lshl_add_u32 v16, v{tau}, 6, v16'); a('v_mul_u32_u24 v17, 1152, v16')
    a(f'v_lshlrev_b32 v18, 4, v{u0}'); a(f's_lshl_b32 s{T0}, s{W}, 5'); a(f's_add_u32 s{T0}, s{T0}, 1024')
    a(f'v_add_u32 v18, s{T0}, v18'); a(f'v_add_u32 v{VS_}, v17, v18')
    a(f'v_bfe_u32 v{u0}, v{L}, 1, 1'); a(f'v_bfe_u32 v{p0}, v{L}, 2, 1'); a(f'v_bfe_u32 v{p3}, v{L}, 3, 1')
    a(f'v_bfe_u32 v{p2}, v{L}, 4, 1'); a(f'v_bfe_u32 v14, v{L}, 5, 1')
    a(f'v_and_b32 v18, 1, v{L}'); a('v_lshlrev_b32 v18, 3, v18'); a(f's_mul_i32 s{T0}, s{W}, 36864'); a(f's_add_u32 s37, s{T0}, {RESB}')
    a('v_add_u32 v18, s37, v18')
    a(f'v_lshl_add_u32 v15, v{p2}, 2, v{u0}'); a(f'v_lshl_add_u32 v15, v{p3}, 3, v15'); a(f'v_lshl_add_u32 v15, v{p0}, 4, v15')
    a('v_lshl_add_u32 v15, v14, 6, v15')
    a(f'v_lshl_add_u32 v16, v{p0}, 1, v15')
    a(f'v_xor_b32 v17, 2, v16')
    a(f'v_lshl_add_u32 v{VT0}, v16, 4, v18'); a(f'v_lshl_add_u32 v{VT1}, v17, 4, v18')
    a(f'v_lshl_add_u32 v15, v{p3}, 1, v{u0}'); a(f'v_lshl_add_u32 v15, v{p2}, 2, v15'); a(f'v_lshl_add_u32 v15, v{p0}, 3, v15')
    a('v_lshl_add_u32 v15, v14, 6, v15')
    a(f'v_lshl_add_u32 v{VU0}, v15, 4, v18'); a(f'v_add_u32 v{VU1}, 256, v{VU0}')
    a(f's_lshl_b32 s{T2}, s{S_H}, 8')
    a(f's_mul_i32 s{T3}, s{S_H}, 147456')
    def poison():
        sk = a.uid('L_np')
        a(f's_cmp_eq_u32 s{S_HB}, 0'); a(f's_cbranch_scc1 {sk}')
        if 'nopoison' in EXP: a(f's_branch {sk}')
        for r in range(4): a(f'v_mov_b32 v{8+r}, -1')
        for par in range(2):
            a(f's_add_u32 s{T0}, s{S_CR}, {par*294912}')
            for i in range(4):
                a(f'buffer_store_dwordx4 v[8:11], v{V_EX}, {WS}, s{T0} offen offset:{i*1024} sc1')
        for k in (1, 2):
            a(f's_add_u32 s{T0}, s{S_MB}, {9216*k}')
            a(f'buffer_store_dword v8, v{V_M2O}, {WS}, s{T0} offen sc1')
        a.label(sk)

    def wload(w):
        order = [('O', 0, 0), ('O', 0, 1), ('O', 1, 0), ('O', 1, 1), ('S',)] + \
                [(m, REAL[w].index(r)) for r in range(9) for m in 'QKV'] + [x for x in RESIDENT if x[0] == 'O']
        if 'qkv1' in EXP: order = order[5:32] + order[:5] + order[32:]
        assert sorted(map(str, order)) == sorted(map(str, REGIMG + RESIDENT))
        pos = {img: i for i, img in enumerate(order)}
        free = set(range(9)); slot_of = {}
        st_ = {'nxt': 0}
        def dma(i, slot):
            img = order[i]
            if img[0] in 'QKV':
                sr = {'Q': S_A, 'K': S_B_, 'V': S_C_}[img[0]]; vo = VQ; st = 16 * 8192
                if 'pB' in EXP: st = 4 * 8192
                a(f's_add_u32 s53, s{T2}, {REAL[w][img[1]] << 19}')
            elif img[0] == 'O':
                sr = S_D; vo = VO; st = 4 * 1152
                a(f's_add_u32 s53, s{T3}, {img[2] * 64 * 1152 + img[1] * 256}')
            else:
                sr = S_D; vo = VS_; st = 4 * 1152
                a(f's_mov_b32 s53, s{T3}')
            for n in range(4):
                a(f's_add_u32 m0, s37, {slot*4096 + n*1024}')
                a(f's_add_u32 s38, s53, {n*st}')
                a(f'buffer_load_dwordx4 v{vo}, s[{sr}:{sr+3}], s38 offen{" nt" if "wnt" in EXP else ""}{" sc1" if "wsc1" in EXP else ""} lds', tok=f'cw{w}_{i}')
        def issue():
            while st_['nxt'] < 36:
                i = st_['nxt']; img = order[i]
                if img in RESIDENT:
                    sl = RESIDENT.index(img)
                    if sl not in free: return
                else:
                    cand = [j for j in free if pos[RESIDENT[j]] > i]
                    if not cand: return
                    sl = max(cand, key=lambda j: pos[RESIDENT[j]])
                free.discard(sl); slot_of[i] = sl
                dma(i, sl); st_['nxt'] += 1
        if 'wst2' in EXP and w == 0: stamp(a, 5)
        issue()
        if 'wst2' in EXP and w == 0: stamp(a, 6)
        poison()
        for i in range(36):
            img = order[i]; slot = slot_of[i]
            a.need(f'cw{w}_{i}')
            if w == 0 and i == 0:
                a(f's_lshl_b32 s53, s{S_X}, 2'); a(f's_add_u32 s53, s53, {D_LN}')
                a('v_mov_b32 v8, 1'); a('v_mov_b32 v9, 0'); a('s_mov_b64 exec, 1')
                a(f'buffer_atomic_add v8, v9, s[{S_DBG}:{S_DBG+3}], s53 offen sc1')
                a('s_mov_b64 exec, -1')
            vt = VU0 if img[0] == 'O' else VT0
            for t in range(2):
                if img in RESIDENT: f, b = 'v', 32 + 8 * t
                else: f, b = opbase(2 * REGIMG.index(img) + t)
                for hb in range(2):
                    for rd in range(2):
                        r = b + 4 * hb + 2 * rd
                        a(f'ds_read_b64_tr_b16 {f}[{r}:{r+1}], v{vt+t} offset:{slot*4096 + hb*2048 + rd*512}')
            a('s_waitcnt lgkmcnt(0)')
            if img in RESIDENT:
                for q in range(4):
                    a(f'ds_write_b128 v{V_RES}, v[{32+4*q}:{32+4*q+3}] offset:{slot*4096 + q*1024}')
            else:
                free.add(slot)
            issue()
            if 'wst2' in EXP and w == 0 and i == 0: stamp(a, 7)
            if 'wst' in EXP and w == 0 and i in (4, 18, 31): stamp(a, {4: 5, 18: 6, 31: 7}[i])
        a('s_waitcnt lgkmcnt(0)')
    done = a.uid('L_wl')
    lbl = [a.uid('L_wl') for _ in range(4)]
    if 'half' in EXP:
        a(f's_bitcmp1_b32 s{S_H}, 1'); a(f's_cbranch_scc1 {done}')
    for w in range(1, 4):
        a(f's_cmp_eq_u32 s{W}, {w}'); a(f's_cbranch_scc1 {lbl[w]}')
    for w in range(4):
        a.label(lbl[w])
        wload(w)
        if w < 3: a(f's_branch {done}')
    a.label(done)

def team_barrier(a):
    a('s_waitcnt vmcnt(0)')
    a('s_barrier')
    sk = a.uid('L_tb')
    a(f's_cmp_lg_u32 s{S_W}, 0'); a(f's_cbranch_scc1 {sk}')
    a(f's_lshl_b32 s{T0}, s{S_FOREIGN}, 16'); a(f's_add_u32 s{T0}, s{T0}, 1')
    a(f'v_mov_b32 v8, s{T0}'); a('v_mov_b32 v9, 0')
    a('s_mov_b64 exec, 1')
    a(f'buffer_atomic_add v8, v9, s[{S_DBG}:{S_DBG+3}], 0 offen offset:{D_CHB} sc1')
    a('s_mov_b64 exec, -1')
    a('v_mov_b32 v9, 0'); a('v_mov_b32 v11, 32')
    poll(a, f'buffer_load_dword v8, v9, s[{S_DBG}:{S_DBG+3}], 0 offen offset:{D_CHB} sc1',
         'v_and_b32 v10, 0xffff, v8\nv_cmp_le_u32 vcc, v11, v10', sleep=6)
    a('v_lshrrev_b32 v8, 16, v8')
    a('ds_write_b32 v9, v8')
    a('s_waitcnt lgkmcnt(0)')
    a.label(sk)
    a('s_barrier')
    a('v_mov_b32 v9, 0')
    a('ds_read_b32 v8, v9')
    a('s_waitcnt lgkmcnt(0)')
    a(f'v_readfirstlane_b32 s{S_FOREIGN}, v8')
    a('s_barrier')

def loop(a, sc, tag, role):
    WS = f's[{S_WS}:{S_WS+3}]'
    w = {'r0': 0, 'r1': 1, 'r2': 2, 'n2': 2, 'io': 3}[role]
    red = role[0] == 'r'
    io = role == 'io'
    t_ = tag + role
    LS, LE = f'L_cs{t_}', f'L_ce{t_}'
    acc = {'Q': (QA, QB), 'K': (KA, KB), 'V': (VA, VB)}
    SL = lambda i: AR + 4*i
    def W(m, c, t):
        if (m, c) in RESIDENT: return f'v[{LR+8*t}:{LR+8*t+7}]'
        return opreg((m, c), t)
    def mm1(m, c, t, slot): return smf(acc[m][t], SL(slot), W(m, c, t))
    def lr(img): return lread(RESIDENT.index(img), LR)
    def aread(c, slot): return f'ds_read_b128 v[{SL(slot)}:{SL(slot)+3}], v{V_EX} offset:{X_MEM + REAL[w][c]*1024}'
    def awrite(c): return f'ds_write_b128 v{V_EX}, v[{SL(c)}:{SL(c)+3}] offset:{X_MEM + REAL[w][c]*1024}'
    def cvt(d, s0): return f'v_cvt_pk_bf16_f32 v{d}, v{s0}, v{s0+1}'
    def tr(d): return f'v_mfma_f32_16x16x16_bf16 v[{d}:{d+3}], v[{d}:{d+1}], v[{V_SEL}:{V_SEL+1}], 0'
    def pka(d, x, y): return f'v_pk_add_f32 v[{d}:{d+1}], v[{x}:{x+1}], v[{y}:{y+1}]'
    def zero(r): return f'v_mov_b64 v[{r}:{r+1}], 0'
    def em(*xs):
        for x in xs:
            if isinstance(x, (list, tuple)): em(*x)
            else: a(x)
    nown = 3 if io else 2
    RT = 54
    def prep(): return [[zero(r) for r in range(QA, QA + 24, 2)], lr(('Q', 0))]
    B1 = f'L_b1{t_}'
    PZ = knob('pz', 0)
    SCH = knob('sch', 0)
    def poison(d, caddr, maddr, part=range(5)):
        o = []
        for i in part:
            if i < 4: o.append(f'buffer_store_dwordx4 v[{d}:{d+3}], v{V_EX}, {WS}, s{caddr} offen offset:{i*1024}{sc}')
            else: o.append(f'buffer_store_dword v{d}, v{V_M2O}, {WS}, s{maddr} offen{sc}')
        return o

    def kvcheck(off=0):
        u = a.uid('')
        if off:
            em(f's_add_u32 s{T1}, s{S_S}, {off}', f's_lshr_b32 s{T1}, s{T1}, 1', f's_add_u32 s{T1}, s{T1}, 1', f's_min_u32 s{T1}, s{T1}, 32')
        else:
            em(f's_lshr_b32 s{T1}, s{S_S}, 1', f's_add_u32 s{T1}, s{T1}, 1')
        em(f's_add_u32 s{T2}, s{T1}, 1', f's_min_u32 s{T2}, s{T2}, 32')
        par = 's_cbranch_scc0' if off & 1 else None
        sel = (lambda: em(f's_bitcmp1_b32 s{S_S}, 0', f's_cselect_b32 s{T0}, s{S_K0}, s{S_K1}')) if off & 1 else \
              (lambda: em(f's_bitcmp1_b32 s{S_S}, 0', f's_cselect_b32 s{T0}, s{S_K1}, s{S_K0}'))
        sel()
        OK, FL = f'L_ok{t_}{u}', f'L_fl{t_}{u}'
        em(f's_cmp_ge_u32 s{T0}, s{T2}', f's_cbranch_scc1 {OK}')
        em(f'v_lshlrev_b32 v9, 3, v{V_EX}')
        em(f's_lshl_b32 s{T3}, s{S_H}, 2', f's_add_u32 s{T3}, s{T3}, {F_KV}')
        a.label(FL)
        em('s_mov_b64 exec, 3', f'buffer_load_dword v8, v9, {WS}, s{T3} offen sc1', 's_mov_b64 exec, -1')
        em(f'v_readlane_b32 s{S_K0}, v8, 0', f'v_readlane_b32 s{S_K1}, v8, 1')
        sel()
        em(f's_cmp_ge_u32 s{T0}, s{T1}', f's_cbranch_scc1 {OK}')
        em(f's_cmp_eq_u32 s{S_BUD}, 0', f's_cbranch_scc1 {OK}')
        em(f's_sub_u32 s{S_BUD}, s{S_BUD}, 1', f's_branch {FL}')
        a.label(OK)
        if SCH:
            em(f's_add_u32 s{T1}, s{T1}, 1', f's_cmp_ge_u32 s{T0}, s{T1}', f's_cselect_b32 s{T0}, {off + 2}, {off}',
               f's_add_u32 s{T0}, s{T0}, s{S_S}', f's_min_u32 s{T0}, s{T0}, 63',
               f's_lshl_b32 s{T0}, s{T0}, 5', f's_add_u32 s{T0}, s{T0}, s{S_H}', f's_lshl_b32 s{S_WA}, s{T0}, 13')
            return
        em(f's_add_u32 s{T1}, s{T1}, 1', f's_cmp_ge_u32 s{T0}, s{T1}', f's_cselect_b32 s{S_WOK}, 1, 0')
        em(f's_add_u32 s{T0}, s{S_S}, 2', f's_lshl_b32 s{T0}, s{T0}, 5', f's_add_u32 s{T0}, s{T0}, s{S_H}', f's_lshl_b32 s{S_WA}, s{T0}, 13')

    def kvl(ta=T1, tb=T2):
        return [[f's_add_u32 s{ta}, s{S_SEGO}, {KF}', f's_add_u32 s{tb}, s{S_SEGO}, {VF}'],
                [f'buffer_load_dwordx4 v[{KX+4*k}:{KX+4*k+3}], v{V_EX}, {WS}, s{ta} offen offset:{k*1024}' for k in range(2)],
                [f'buffer_load_dwordx4 v[{VX+4*k}:{VX+4*k+3}], v{V_EX}, {WS}, s{tb} offen offset:{k*1024}' for k in range(2)]]
    def kvloads(ta=T1, tb=T2): em(kvl(ta, tb))
    def warm(t):
        return [f'v_lshlrev_b32 v{t}, 3, v{V_EX}', f's_add_u32 s{T1}, s{S_WA}, {KF}', f's_add_u32 s{T2}, s{S_WA}, {VF}',
                f'buffer_load_dword v{V_M2O}, v{t}, {WS}, s{T1} offen', f'buffer_load_dword v{V_M2O}, v{t}, {WS}, s{T2} offen']
    ones4 = [f'v_mov_b64 v[{VX}:{VX+1}], -1', f'v_mov_b64 v[{VX+2}:{VX+3}], -1']

    a.label(LE)
    em(prep())
    if io:
        kvcheck()
        if SCH: em(warm(9)); kvcheck(1)
    srd(a, S_A, 8, 9216)
    a(f'v_lshrrev_b32 v21, 4, v{V_EX}')
    a('v_and_b32 v22, 7, v21'); a('v_mul_u32_u24 v22, 1152, v22')
    a('v_lshrrev_b32 v23, 3, v21'); a('v_lshl_add_u32 v22, v23, 4, v22')
    a('s_waitcnt lgkmcnt(0)')
    srd_fix(a, S_A)
    a('s_barrier')
    for c in range(nown):
        a(f'buffer_load_dwordx4 v[{SL(c)}:{SL(c)+3}], v22, s[{S_A}:{S_A+3}], 0 offen offset:{REAL[w][c]*128}')
    if SCH: kvloads()
    if red: em(f's_add_u32 s{S_CRD}, s{S_CR}, 294912')
    if red and PZ == 4: em(ones4)
    em([awrite(c) for c in range(nown)])
    em(f's_branch {B1}')

    a.label(LS)
    prof(a, 12)
    prof(a, 0)
    if 'nocomm' in EXP:
        em(prep())
        if SCH: kvloads()
        if io: em(f's_mov_b32 s{S_WOK}, 1', f's_add_u32 s{T0}, s{S_S}, 3', f's_min_u32 s{T0}, s{T0}, 63', f's_lshl_b32 s{T0}, s{T0}, 5',
                  f's_add_u32 s{T0}, s{T0}, s{S_H}', f's_lshl_b32 s{S_WA}, s{T0}, 13')
        em([awrite(c) for c in range(nown)])
        em(f's_branch {B1}')
    if io:
        if 'steps' in EXP:
            em('s_memtime s[74:75]', f's_lshl_b32 s{T0}, s{S_H}, 6', f's_add_u32 s{T0}, s{T0}, s{S_S}', f's_lshl_b32 s{T0}, s{T0}, 3',
               f's_add_u32 s{T0}, s{T0}, {PROF + 0x10000}', 's_waitcnt lgkmcnt(0)', 'v_mov_b32 v8, s74', 'v_mov_b32 v9, s75', 'v_mov_b32 v10, 0',
               's_mov_b64 exec, 1', f'buffer_store_dwordx2 v[8:9], v10, {WS}, s{T0} offen', 's_mov_b64 exec, -1')
        em(prep())
        if SCH: kvloads(); kvcheck(1)
        else: kvcheck()
    elif not red:
        if SCH: kvloads()
    elif red:
        late = w == 1
        em(f's_xor_b32 s{S_CRD}, s{S_CP}, 294912', f's_add_u32 s{S_CRD}, s{S_CRD}, s{S_CR}')
        NS = knob('ns', 3)
        SETS = [8, 24, 64][:NS]
        SEL, RA, RT = 56, 60, 54
        def cload(b):
            return [f'buffer_load_dwordx4 v[{b+4*i}:{b+4*i+3}], v{V_EX}, {WS}, s{S_CRD} offen offset:{i*1024} sc1' for i in range(4)]
        selr = [f's_add_u32 s{T1}, s{S_MB}, s{S_O0}',
                f'v_and_b32 v{RT}, 64, v{V_EX}', f'v_lshrrev_b32 v{RT}, 2, v{RT}', f'v_mov_b32 v{RT+1}, 0x3f80', f'v_lshlrev_b32 v{RT}, v{RT}, v{RT+1}'] + \
               [f'v_cndmask_b32 v{SEL+r}, 0, v{RT}, s[{S_RM+2*r}:{S_RM+2*r+1}]' for r in range(4)]
        X4 = knob('x4') and role != 'r2'
        if X4:
            selr = [f's_add_u32 s{T1}, s{S_MB}, s{S_O0}',
                    f'v_and_b32 v{RT}, 16, v{V_EX}', f'v_mov_b32 v{RT+1}, 0x3f80', f'v_lshlrev_b32 v{RT}, v{RT}, v{RT+1}'] + \
                   [f'v_cndmask_b32 v{SEL+r}, 0, v{RT}, s[{S_RM+2*r}:{S_RM+2*r+1}]' for r in range(4)]
        zq = [zero(r) for r in range(QA, RT, 2)]
        if PZ == 4: zq = zq + ones4
        if PZ == 2:
            em('v_mov_b64 v[44:45], -1', 'v_mov_b64 v[46:47], -1', f's_add_u32 s{T2}, s{S_CR}, s{S_CP}', f's_add_u32 s{T3}, s{S_MB}, s{S_O1}')
            em(poison(44, T2, T3))
        if late:
            em(selr, zq)
            delay(a, knob('d1'))
            em(cload(SETS[0]))
            for b in SETS[1:]:
                delay(a, knob('g1', 16)); em(cload(b))
        else:
            delay(a, knob('d0'))
            em(cload(SETS[0]), selr)
            if NS > 1: delay(a, knob('g0', 8)); em(cload(SETS[1]))
            em(zq)
            if NS > 2: delay(a, knob('g0', 8)); em(cload(SETS[2]))
        if SCH: kvloads(T2, T3)
        def creduce(sb, first=False):
            mf = lambda i: f'v_mfma_f32_16x16x32_bf16 v[{RA}:{RA+3}], v[{SEL}:{SEL+3}], v[{sb+4*i}:{sb+4*i+3}], {"0" if i == 0 else f"v[{RA}:{RA+3}]"}'
            if PZ == 5 and X4:
                mf = lambda i: f'v_mfma_f32_16x16x32_bf16 v[{RA}:{RA+3}], v[{sb+4*i}:{sb+4*i+3}], v[{SEL}:{SEL+3}], {"0" if i == 0 else f"v[{RA}:{RA+3}]"}'
                xo = lambda d, x, y: f'v_bitop3_b32 v{d}, v{x}, v{y}, s{S_TR} bitop3:0x7e'
                em(mf(0), mf(1), xo(RT, sb, sb + 4), mf(2), mf(3), xo(RT + 1, sb + 8, sb + 12))
                em(f'v_bitop3_b32 v{RT}, v{RT}, v{RT+1}, 1 bitop3:0xa8', f'v_cmp_ne_u32 vcc, 0, v{RT}', 's_cmp_eq_u64 vcc, 0')
                return
            if PZ == 5:
                stp = 1 if role == 'r2' else 2
                xo = lambda d, x, y: f'v_bitop3_b32 v{d}, v{x}, v{y}, s{S_TR} bitop3:0x7e'
                for i in range(4):
                    b = sb + 4*i
                    a(mf(i))
                    if stp == 2:
                        if i == 0: em(xo(RT, b, b + 2))
                        elif i == 1: em(xo(RT + 1, b, b + 2))
                        elif i == 2: em(f'v_or_b32 v{RT}, v{RT}, v{RT+1}', xo(RT + 1, b, b + 2))
                        else: em(f'v_or_b32 v{RT}, v{RT}, v{RT+1}', xo(RT + 1, b, b + 2))
                    else:
                        if i == 0: em(xo(RT, b, b + 1), xo(RT + 1, b + 2, b + 3))
                        else: em(f'v_or_b32 v{RT}, v{RT}, v{RT+1}', xo(RT + 1, b, b + 1), f'v_or_b32 v{RT}, v{RT}, v{RT+1}', xo(RT + 1, b + 2, b + 3))
                em(f'v_bitop3_b32 v{RT}, v{RT}, v{RT+1}, 1 bitop3:0xa8', f'v_cmp_ne_u32 vcc, 0, v{RT}', 's_cmp_eq_u64 vcc, 0')
                return
            if first:
                b = sb
                em(f'v_max3_u32 v{RT}, v{b}, v{b+1}, v{b+2}', f'v_max3_u32 v{RT+1}, v{b+3}, v{b+4}, v{b+5}', mf(0),
                   f'v_max3_u32 v{RT}, v{RT}, v{b+6}, v{b+7}', mf(1),
                   f'v_max3_u32 v{RT+1}, v{RT+1}, v{b+8}, v{b+9}', f'v_max3_u32 v{RT}, v{RT}, v{b+10}, v{b+11}', mf(2),
                   f'v_max3_u32 v{RT+1}, v{RT+1}, v{b+12}, v{b+13}', f'v_max3_u32 v{RT}, v{RT}, v{b+14}, v{b+15}', mf(3))
            else:
                for i in range(4):
                    b = sb + 4*i
                    a(mf(i))
                    if i == 0: em(f'v_max3_u32 v{RT}, v{b}, v{b+1}, v{b+2}', f'v_mov_b32 v{RT+1}, v{b+3}')
                    else: em(f'v_max3_u32 v{RT}, v{RT}, v{b}, v{b+1}', f'v_max3_u32 v{RT+1}, v{RT+1}, v{b+2}, v{b+3}')
            em(f'v_max_u32 v{RT}, v{RT}, v{RT+1}', f'v_cmp_eq_u32 vcc, -1, v{RT}', 's_cmp_eq_u64 vcc, 0')
        RL, RD = f'L_rp{t_}', f'L_rpd{t_}'
        if knob('md') == 2:
            assert PZ == 5
            NB = knob('nb1' if late else 'nb0', 2)
            cregs = list(range(8, 24))
            RX = f'L_rx{t_}'
            if PROF_STEP is not None: em('s_waitcnt vmcnt(0)'); prof(a, 10)
            creduce(8); em(f's_cbranch_scc1 {RD}')
            a.retok(cregs, 'cstale')
            a.label(RL)
            em(f's_cmp_eq_u32 s{S_BUD}, 0', f's_cbranch_scc1 {RX}', f's_sub_u32 s{S_BUD}, s{S_BUD}, 1')
            if 'cnt' in EXP: em('s_add_u32 s98, s98, 1')
            em('s_mov_b64 exec, vcc', cload(8))
            a.retok(cregs, 'cstale')
            em(f's_waitcnt vmcnt({4*(NB-1)})')
            stp = 1 if role == 'r2' else 2
            xo = lambda d, x, y: f'v_bitop3_b32 v{d}, v{x}, v{y}, s{S_TR} bitop3:0x7e'
            mf = lambda i: f'v_mfma_f32_16x16x32_bf16 v[{RA}:{RA+3}], v[{SEL}:{SEL+3}], v[{8+4*i}:{8+4*i+3}], {"0" if i == 0 else f"v[{RA}:{RA+3}]"}'
            ml = knob('mlate')
            for i in range(4):
                b = 8 + 4*i
                if stp == 2:
                    if i == 0: em(xo(RT, b, b + 2))
                    else: em(xo(RT + 1, b, b + 2), f'v_or_b32 v{RT}, v{RT}, v{RT+1}')
                else:
                    if i == 0: em(xo(RT, b, b + 1), xo(RT + 1, b + 2, b + 3), f'v_or_b32 v{RT}, v{RT}, v{RT+1}')
                    else: em(xo(RT + 1, b, b + 1), f'v_or_b32 v{RT}, v{RT}, v{RT+1}', xo(RT + 1, b + 2, b + 3), f'v_or_b32 v{RT}, v{RT}, v{RT+1}')
                if not ml and i > 0: a(mf(i - 1))
            em(f'v_and_b32 v{RT}, 1, v{RT}', f'v_cmp_ne_u32 vcc, 0, v{RT}')
            if not ml: a(mf(3))
            em('s_cmp_eq_u64 vcc, 0', f's_cbranch_scc0 {RL}')
            a.label(RX)
            em('s_mov_b64 exec, -1')
            if knob('mlate'):
                for i in range(4): a(mf(i))
        elif knob('md'):
            NB = knob('nb1' if late else 'nb0', 1)
            cregs = list(range(8, 24))
            for j in range(1, NB):
                delay(a, knob('gb1' if late else 'gb0', 16)); em(cload(8))
            em(f's_waitcnt vmcnt({4*(NB-1)})'); a.retok(cregs, 'cstale')
            creduce(8, NB > 1); em(f's_cbranch_scc1 {RD}')
            RM = f'L_rm{t_}'
            a.label(RL)
            em(f's_cmp_eq_u32 s{S_BUD}, 0', f's_cbranch_scc1 {RM}', f's_sub_u32 s{S_BUD}, s{S_BUD}, 1')
            if 'cnt' in EXP: em('s_add_u32 s98, s98, 1')
            em('s_mov_b64 exec, vcc', cload(8), 's_mov_b64 exec, -1')
            em(f's_waitcnt vmcnt({4*(NB-1)})'); a.retok(cregs, 'cstale')
            em(f'v_max3_u32 v{RT}, v8, v9, v10', f'v_max3_u32 v{RT+1}, v11, v12, v13')
            for b in range(14, 22, 4): em(f'v_max3_u32 v{RT}, v{RT}, v{b}, v{b+1}', f'v_max3_u32 v{RT+1}, v{RT+1}, v{b+2}, v{b+3}')
            em(f'v_max3_u32 v{RT}, v{RT}, v22, v23', f'v_max_u32 v{RT}, v{RT}, v{RT+1}', f'v_cmp_eq_u32 vcc, -1, v{RT}', 's_cmp_eq_u64 vcc, 0')
            em(f's_cbranch_scc0 {RL}')
            a.label(RM)
            for i in range(4):
                b = 8 + 4*i
                a(f'v_mfma_f32_16x16x32_bf16 v[{RA}:{RA+3}], v[{SEL}:{SEL+3}], v[{b}:{b+3}], {"0" if i == 0 else f"v[{RA}:{RA+3}]"}')
        elif SCH:
            assert NS == 1
            if PROF_STEP is not None: a.needr(*range(8, 24)); prof(a, 10)
            creduce(8); em(f's_cbranch_scc1 {RD}')
            a.label(RL)
            em(f's_cmp_eq_u32 s{S_BUD}, 0', f's_cbranch_scc1 {RD}', f's_sub_u32 s{S_BUD}, s{S_BUD}, 1')
            if 'cnt' in EXP: em('s_add_u32 s98, s98, 1')
            em(cload(8))
            creduce(8); em(f's_cbranch_scc0 {RL}')
        else:
            if PROF_STEP is not None: em('s_waitcnt vmcnt(0)'); prof(a, 10)
            a.label(RL)
            for j, b in enumerate(SETS):
                creduce(b); em(f's_cbranch_scc1 {RD}')
                if j == NS - 1: em(f's_cmp_eq_u32 s{S_BUD}, 0', f's_cbranch_scc1 {RD}', f's_sub_u32 s{S_BUD}, s{S_BUD}, 1')
                if 'cnt' in EXP: em('s_add_u32 s98, s98, 1')
                em(cload(b))
            em(f's_branch {RL}')
        a.label(RD)
        if X4:
            em(f'v_permlane32_swap_b32 v{RA}, v{RA+2}', f'v_permlane32_swap_b32 v{RA+1}, v{RA+3}',
               f'v_add_f32 v{RA}, v{RA}, v{RA+2}', f'v_add_f32 v{RA+1}, v{RA+1}, v{RA+3}', cvt(RA, RA))
        else:
            em(f'v_add_f32_dpp v{RA}, v{RA}, v{RA} row_ror:8 row_mask:0xf bank_mask:0xf',
               f'v_add_f32_dpp v{RA+1}, v{RA+1}, v{RA+1} row_ror:8 row_mask:0xf bank_mask:0xf', cvt(RA, RA))
        em(f'buffer_store_dword v{RA}, v{V_M2O}, {WS}, s{T1} offen{sc}')
    prof(a, 9)
    a('s_barrier')
    real = REAL[w]
    em(f's_add_u32 s{T0}, s{S_O0}, {M2 + real[0]*1024}')
    if io: em(f's_add_u32 s{T1}, s{S_O0}, {M2 + real[2]*1024}')
    MS = knob('ms', 3)
    msets = ([[8, 12, 16], [64, 68, 72]] if io else [[8, 12], [64, 68], [72, 76]])[:MS]
    def mload(st):
        o = [f'buffer_load_dwordx4 v[{st[c]}:{st[c]+3}], v{V_EX}, {WS}, s{T0} offen offset:{(real[c]-real[0])*1024} sc1' for c in range(2)]
        if io: o.append(f'buffer_load_dwordx4 v[{st[2]}:{st[2]+3}], v{V_EX}, {WS}, s{T1} offen sc1')
        return o
    CT = 20 if io else 16
    def mcheck(st, first=False):
        x, y = st[0], st[1]
        aw = lambda c: f'ds_write_b128 v{V_EX}, v[{st[c]}:{st[c]+3}] offset:{X_MEM + REAL[w][c]*1024}'
        if first:
            em(f'v_max3_u32 v{CT}, v{x}, v{x+1}, v{x+2}', f'v_max3_u32 v{CT+1}, v{x+3}, v{y}, v{y+1}', aw(0),
               f'v_max3_u32 v{CT}, v{CT}, v{y+2}, v{y+3}', aw(1))
            if io:
                z = st[2]
                em(f'v_max3_u32 v{CT+1}, v{CT+1}, v{z}, v{z+1}', f'v_max3_u32 v{CT}, v{CT}, v{z+2}, v{z+3}', aw(2))
        else:
            em(aw(0), f'v_max3_u32 v{CT}, v{x}, v{x+1}, v{x+2}', aw(1),
               f'v_max3_u32 v{CT}, v{CT}, v{x+3}, v{y}', f'v_max3_u32 v{CT+1}, v{y+1}, v{y+2}, v{y+3}')
            if io:
                z = st[2]
                em(aw(2), f'v_max3_u32 v{CT}, v{CT}, v{z}, v{z+1}', f'v_max3_u32 v{CT+1}, v{CT+1}, v{z+2}, v{z+3}')
        em(f'v_max_u32 v{CT}, v{CT}, v{CT+1}', f'v_cmp_eq_u32 vcc, -1, v{CT}', 's_cmp_eq_u64 vcc, 0')
    fill = [] if io else ([zero(r) for r in range(RT if red else QA, QA + 24, 2)], lr(('Q', 0)))
    if fill and knob('pre02' if w in (0, 2) else 'pre1'):
        em(fill); fill = []
    delay(a, knob('d2' if w in (0, 2) else 'd3'))
    em(mload(msets[0]))
    if fill: em(fill[0])
    if len(msets) > 1:
        delay(a, knob('g2', 0 if fill else 16)); em(mload(msets[1]))
    if fill: em(fill[1])
    if red and PZ == 1:
        em('v_mov_b64 v[20:21], -1', 'v_mov_b64 v[22:23], -1', f's_add_u32 s{T2}, s{S_MB}, s{S_O2}')
        em(poison(20, S_CRD, T2))
    if len(msets) > 2:
        delay(a, knob('g3', 8)); em(mload(msets[2]))
    PL = f'L_pm{t_}'
    if knob('mm') == 2:
        MB_ = knob('mb02' if w in (0, 2) else ('mb1' if w == 1 else 'mb3'), 2)
        st = msets[0]
        mregs = list(range(8, 8 + 4 * len(st)))
        PX = f'L_px{t_}'
        if PROF_STEP is not None: em('s_waitcnt vmcnt(0)'); prof(a, 11, 0)
        mcheck(st); em(f's_cbranch_scc1 {B1}')
        a.retok(mregs, 'mstale')
        a.label(PL)
        em(f's_cmp_eq_u32 s{S_BUD}, 0', f's_cbranch_scc1 {PX}', f's_sub_u32 s{S_BUD}, s{S_BUD}, 1')
        if 'cnt' in EXP: em('s_add_u32 s99, s99, 1')
        em('s_mov_b64 exec, vcc', mload(st))
        a.retok(mregs, 'mstale')
        em(f's_waitcnt vmcnt({len(st)*(MB_-1)})')
        mcheck(st, True); em(f's_cbranch_scc0 {PL}')
        a.label(PX)
        em('s_mov_b64 exec, -1')
    elif knob('mm'):
        MB_ = knob('mb02' if w in (0, 2) else ('mb1' if w == 1 else 'mb3'), 1)
        st = msets[0]
        mregs = list(range(8, 8 + 4 * len(st)))
        for j in range(1, MB_):
            delay(a, knob('gm02' if w in (0, 2) else ('gm1' if w == 1 else 'gm3'), 16)); em(mload(st))
        em(f's_waitcnt vmcnt({len(st)*(MB_-1)})'); a.retok(mregs, 'mstale')
        mcheck(st, MB_ > 1); em(f's_cbranch_scc1 {B1}')
        a.label(PL)
        em(f's_cmp_eq_u32 s{S_BUD}, 0', f's_cbranch_scc1 {B1}', f's_sub_u32 s{S_BUD}, s{S_BUD}, 1')
        if 'cnt' in EXP: em('s_add_u32 s99, s99, 1')
        em('s_mov_b64 exec, vcc', mload(st), 's_mov_b64 exec, -1')
        em(f's_waitcnt vmcnt({len(st)*(MB_-1)})'); a.retok(mregs, 'mstale')
        mcheck(st, MB_ > 1); em(f's_cbranch_scc0 {PL}')
    else:
        if PROF_STEP is not None: em('s_waitcnt vmcnt(0)'); prof(a, 11, 0)
        a.label(PL)
        DL = [B1] + [f'L_pd{j}{t_}' for j in range(1, len(msets))]
        for j, st in enumerate(msets):
            mcheck(st); em(f's_cbranch_scc1 {DL[j]}')
            if j == len(msets) - 1: em(f's_cmp_eq_u32 s{S_BUD}, 0', f's_cbranch_scc1 {DL[j]}', f's_sub_u32 s{S_BUD}, s{S_BUD}, 1')
            if 'cnt' in EXP: em('s_add_u32 s99, s99, 1')
            em(mload(st))
        em(f's_branch {PL}')
        for j in range(len(msets) - 1, 0, -1):
            a.label(DL[j])
            regs = list(range(8, 8 + 4 * len(msets[j])))
            a.retok(regs, 'mstale')
            for c in range(len(msets[j])):
                em(f'v_mov_b64 v[{8+4*c}:{8+4*c+1}], v[{msets[j][c]}:{msets[j][c]+1}]', f'v_mov_b64 v[{8+4*c+2}:{8+4*c+3}], v[{msets[j][c]+2}:{msets[j][c]+3}]')
            if j > 1: em(f's_branch {B1}')
    a.label(B1)
    prof(a, 1)
    if SCH:
        sched1(a, locals()); return
    q = lambda c, t, sl: mm1('Q', c, t, sl)
    k = lambda c, t, sl: mm1('K', c, t, sl)
    v = lambda c, t, sl: mm1('V', c, t, sl)
    r2 = lr(('K', 2))
    em(q(0, 0, 0), q(0, 1, 0), r2[0], r2[1], q(1, 0, 1), r2[2], r2[3], q(1, 1, 1), k(0, 0, 0), k(0, 1, 0), k(1, 0, 1), k(1, 1, 1))
    a('s_waitcnt lgkmcnt(4)')
    a('s_barrier')
    prof(a, 2)
    if io:
        kvloads()
        em(f'v_lshlrev_b32 v20, 3, v{V_EX}', f'v_mov_b32 v21, s{S_S}')
        em(f's_lshl_b32 s{T2}, s{S_H}, 7', f's_add_u32 s{T2}, s{T2}, {F_CH}')
        em('s_mov_b64 exec, 1', f'buffer_store_dword v21, v20, {WS}, s{T2} offen sc1', 's_mov_b64 exec, -1')
        NW = f'L_nw{t_}'
        em(f's_cmp_eq_u32 s{S_WOK}, 0', f's_cbranch_scc1 {NW}')
        em(f's_add_u32 s{T1}, s{S_WA}, {KF}', f's_add_u32 s{T2}, s{S_WA}, {VF}')
        em(f'buffer_load_dword v{V_M2O}, v20, {WS}, s{T1} offen', f'buffer_load_dword v{V_M2O}, v20, {WS}, s{T2} offen')
        a.label(NW)
        em(aread(3, 3))
    else:
        em(aread(2, 2), aread(3, 3))
        if not (red and PZ == 4): kvloads()
    r3, r4, r5 = lr(('K', 4)), lr(('K', 5)), lr(('V', 5))
    X = [[] for _ in range(12)]
    if red and PZ == 4:
        kv = kvl()
        pz = poison(VX, S_CRD, T3)
        em(kv[0], f's_add_u32 s{T3}, s{S_MB}, s{S_O2}')
        seq = kv[1] + pz + kv[2]
        st0 = knob('x0', 0)
        if knob('xs', 1) == 1:
            for i, x in enumerate(seq): X[st0 + i].append(x)
        else:
            for i, x in enumerate(seq): X[st0 + i // 2].append(x)
    em(v(0, 0, 0), X[0], v(0, 1, 0), X[1])
    a.need('mstale')
    em(aread(4, 0), v(1, 0, 1), X[2], v(1, 1, 1), X[3], aread(5, 1))
    em(q(2, 0, 2), X[4], q(2, 1, 2), X[5], k(2, 0, 2), X[6], k(2, 1, 2), X[7], aread(6, 2), r3[0])
    em(q(3, 0, 3), X[8], r3[1], r3[2], q(3, 1, 3), X[9], r3[3], k(3, 0, 3), X[10], k(3, 1, 3), X[11], aread(7, 3))
    em(q(4, 0, 0), q(4, 1, 0), k(4, 0, 0), k(4, 1, 0), aread(8, 0), r4[0])
    em(q(5, 0, 1), r4[1], r4[2], q(5, 1, 1), r4[3], q(6, 0, 2), q(6, 1, 2), q(7, 0, 3), q(7, 1, 3), q(8, 0, 0), q(8, 1, 0))
    em(k(5, 0, 1), k(5, 1, 1), r5[0], r5[1], cvt(QA, QA), k(6, 0, 2), r5[2], r5[3], cvt(QA + 1, QA + 2), k(6, 1, 2), cvt(QB, QB),
       k(7, 0, 3), cvt(QB + 1, QB + 2), k(7, 1, 3), k(8, 0, 0), k(8, 1, 0))
    prof(a, 3)
    em(tr(QA), cvt(KA, KA), cvt(KA + 1, KA + 2))
    em(tr(QB), cvt(KB, KB), cvt(KB + 1, KB + 2))
    em(tr(KA), cvt(QA, QA), cvt(QA + 1, QA + 2))
    em(tr(KB), cvt(QA + 2, QB), cvt(QA + 3, QB + 2))
    em(f'v_mfma_f32_16x16x32_bf16 v[{KX}:{KX+3}], v[{KX}:{KX+3}], v[{QA}:{QA+3}], 0', cvt(KA, KA), cvt(KA + 1, KA + 2))
    em(f'v_mfma_f32_16x16x32_bf16 v[{KX+4}:{KX+7}], v[{KX+4}:{KX+7}], v[{QA}:{QA+3}], 0', cvt(KA + 2, KB), cvt(KA + 3, KB + 2))
    em(f'v_mfma_f32_16x16x32_bf16 v[{QB}:{QB+3}], v[{KA}:{KA+3}], v[{QA}:{QA+3}], 0')
    em(f's_add_u32 s{T0}, s{S_SEGO}, {KM}')
    em(f'buffer_store_dwordx4 v[{KA}:{KA+3}], v{V_EX}, {WS}, s{T0} offen sc1')
    for r in range(4):
        a(f'v_mov_b32_dpp v{KX+r}, v{KX+4+r} quad_perm:[0,1,2,3] row_mask:0xf bank_mask:0xc')
    NM, GM = f's[{S_NM}:{S_NM+1}]', f's[{S_GM}:{S_GM+1}]'
    em(f'v_cndmask_b32 v{KB}, v{QB+1}, v{QB}, {NM}', f'v_cndmask_b32 v{KB+1}, v{QB+3}, v{QB+2}, {NM}',
       f'v_cndmask_b32 v{KB}, v{KB}, v{KB+1}, {GM}')
    em(f'ds_write_b32 v{V_EX}, v{KB} offset:{X_SM + 4*w}', f'ds_write_b128 v{V_EX}, v[{KX}:{KX+3}] offset:{X_TOK + w*1024}')
    prof(a, 4)
    em(v(5, 0, 1), v(5, 1, 1), aread(2, 1), v(6, 0, 2), v(6, 1, 2), aread(3, 2), v(7, 0, 3), v(7, 1, 3), aread(4, 3))
    a('s_waitcnt lgkmcnt(3)')
    a('s_barrier')
    prof(a, 5)
    a(f'ds_read_b128 v[64:67], v{V_EX} offset:{X_SM}')
    for kk in range(4):
        a(f'ds_read_b128 v[{40+4*kk}:{43+4*kk}], v{V_EX} offset:{X_TOK + kk*1024}')
    em(v(8, 0, 0), v(8, 1, 0), v(2, 0, 1), v(2, 1, 1))
    em(v(3, 0, 2), 'v_add_f32 v64, v64, v65', v(3, 1, 2), 'v_add_f32 v66, v66, v67', 'v_add_f32 v64, v64, v66')
    em(pka(40, 40, 44), pka(42, 42, 46), pka(40, 40, 48), pka(42, 42, 50), pka(44, 40, 52), pka(46, 42, 54))
    pre = lread(5, 8) + lread(6, 24)
    em('v_max3_f32 v68, v44, v45, v46', 'v_max3_f32 v68, v68, v47, v64')
    em(v(4, 0, 3), pre[4])
    em('v_max_f32_dpp v68, v68, v68 row_ror:8 row_mask:0xf bank_mask:0xf', 'v_mov_b32 v69, v68')
    em(v(4, 1, 3), pre[5])
    em('v_permlane32_swap_b32 v68, v69', 'v_max_f32 v68, v68, v69', 'v_mov_b32 v69, v68')
    em(pre[6], pre[7])
    em('v_permlane16_swap_b32 v68, v69', 'v_max_f32 v68, v68, v69', f'v_mul_f32 v68, s{S_C}, v68')
    em(pre[0], f'v_fma_f32 v64, v64, s{S_C}, -v68', pre[1])
    for d in (44, 46):
        a(f'v_pk_fma_f32 v[{d}:{d+1}], v[{d}:{d+1}], s[{S_C}:{S_C+1}], v[68:69] op_sel_hi:[1,1,0] neg_lo:[0,0,1] neg_hi:[0,0,1]')
    em('v_exp_f32 v64, v64', cvt(VA, VA), 'v_exp_f32 v44, v44', cvt(VA + 1, VA + 2), 'v_exp_f32 v45, v45',
       'v_mov_b32_dpp v65, v64 row_ror:8 row_mask:0xf bank_mask:0xf', 'v_exp_f32 v46, v46', cvt(VA + 2, VB), 'v_exp_f32 v47, v47', cvt(VA + 3, VB + 2))
    em(cvt(41, 64), pre[2], cvt(42, 44), 'v_mov_b32 v40, v41', pre[3], cvt(43, 46))
    em('v_permlane32_swap_b32 v40, v41')
    em(f'v_mov_b64 v[48:49], s[{S_Q4}:{S_Q4+1}]', f'v_mov_b64 v[50:51], s[{S_ONE}:{S_ONE+1}]')
    em(f's_add_u32 s{T0}, s{S_SEGO}, {KM}')
    a(f'buffer_store_dwordx4 v[{VA}:{VA+3}], v{V_EX}, {WS}, s{T0} offen offset:1024 sc1', tok='kmvm')
    em(f's_cmp_eq_u32 s{S_S}, 63', 's_cbranch_scc1 L_chx')
    em('v_mov_b32_dpp v44, v42 row_ror:8 row_mask:0xf bank_mask:0xf', 'v_mov_b32_dpp v45, v43 row_ror:8 row_mask:0xf bank_mask:0xf')
    em('v_mfma_f32_16x16x32_bf16 v[52:55], v[48:51], v[40:43], 0')
    em(f'v_mfma_f32_16x16x16_bf16 v[64:67], v[{VA}:{VA+1}], v[40:41], 0')
    em(f'v_lshrrev_b32 v48, 1, v{V_EX}', 'v_and_b32 v48, 0x180, v48')
    em(f'v_mfma_f32_16x16x16_bf16 v[68:71], v[{VA+2}:{VA+3}], v[40:41], 0')
    em(f'v_and_b32 v49, 0x70, v{V_EX}', 'v_or_b32 v48, v48, v49')
    em(f'v_mfma_f32_16x16x32_bf16 v[64:67], v[{VX}:{VX+3}], v[42:45], v[64:67]')
    em('v_add_f32_dpp v52, v52, v52 row_ror:8 row_mask:0xf bank_mask:0xf', f'v_bfe_u32 v50, v{V_EX}, 7, 1')
    em(f'v_mfma_f32_16x16x32_bf16 v[68:71], v[{VX+4}:{VX+7}], v[42:45], v[68:71]')
    em('v_rcp_f32 v52, v52', 'v_lshl_add_u32 v49, v50, 3, v48', 'v_lshl_add_u32 v50, v50, 9, v48')
    for d in (64, 66, 68, 70):
        a(f'v_pk_mul_f32 v[{d}:{d+1}], v[{d}:{d+1}], v[52:53] op_sel_hi:[1,0]')
    em(cvt(68, 68), cvt(69, 70), cvt(64, 64), cvt(65, 66))
    em('v_mov_b32_dpp v64, v68 row_ror:8 row_mask:0xf bank_mask:0xc', 'v_mov_b32_dpp v65, v69 row_ror:8 row_mask:0xf bank_mask:0xc')
    em(f'ds_write_b64 v49, v[64:65] offset:{X_O + w*512}')
    prof(a, 6)
    if red and PZ == 3:
        em('v_mov_b64 v[60:61], -1', 'v_mov_b64 v[62:63], -1', f's_add_u32 s{T1}, s{S_MB}, s{S_O2}')
        em(poison(60, S_CRD, T1, range(5)[:knob('pa', 2)]))
        em([zero(r) for r in range(52, 60, 2)])
    elif red and PZ == 0: em([zero(r) for r in range(52, 60, 2)], 'v_mov_b64 v[60:61], -1', 'v_mov_b64 v[62:63], -1')
    elif red and PZ == 5: em([zero(r) for r in range(52, 60, 2)], 'v_mov_b64 v[60:61], -1', zero(62))
    else: em([zero(r) for r in range(52, 64, 2)])
    a('s_waitcnt lgkmcnt(0)')
    a('s_barrier')
    prof(a, 7)
    for jj in range(2):
        a(f'ds_read_b128 v[{40+4*jj}:{43+4*jj}], v50 offset:{X_O + jj*1024}')
    for e in range(4):
        a(f'ds_read_b128 v[{64+4*e}:{67+4*e}], v48 offset:{X_O + e*512}')
    em(zero(48), zero(50))
    if red and PZ in (0, 3):
        em(f's_add_u32 s{T1}, s{S_MB}, s{S_O2}')
        em(poison(60, S_CRD, T1, range(5)[(knob('pa', 2) if PZ == 3 else 0):]))
    if PZ == 5:
        if red: em(f's_add_u32 s{T1}, s{S_MB}, s{S_O2}', poison(60, S_CRD, T1, [4]))
        em(f's_lshl_b32 s{S_TO}, s{S_S}, 15', f's_and_b32 s{S_TO}, s{S_TO}, 0x10000', f's_xor_b32 s{S_TA}, s{S_TO}, 0x10000',
           f's_bfe_i32 s{S_TR}, s{S_TO}, 0x10010')
    em(f's_add_u32 s{T0}, s{S_CS}, s{S_CP}', f's_add_u32 s{T1}, s{S_CSS}, s{S_CP}')
    ring = [8, 16, 24, 32]
    nxt = lread(7, 8) + lread(8, 24)
    GS, GA, GB, GC, GD = 48, 52, 56, 60, 40
    VM = 44
    def tagv(t):
        return [f'v_add_u32 v{t}, s{S_TA}, v{t}', f'v_and_or_b32 v{t}, v{t}, v{VM}, s{S_TO}'] if PZ == 5 else []
    def epi(t, img):
        return [[tagv(t), cvt(t, t)], cvt(t + 1, t + 2), f's_add_u32 s{T2}, s{T0}, {img*65536}',
                f'buffer_store_dwordx2 v[{t}:{t+1}], v{V_C1}, {WS}, s{T2} offen{sc}']
    em([smf(GS, 40 + 4*jj, opreg(('S',), jj)) for jj in range(2)])
    ga = [smf(GA, 64 + 4*e, f'v[{ring[e]}:{ring[e]+7}]') for e in range(4)]
    gb = [smf(GB, 64 + 4*e, opreg(('O', 0, e >> 1), e & 1)) for e in range(4)]
    gc = [smf(GC, 64 + 4*e, opreg(('O', 1, e >> 1), e & 1)) for e in range(4)]
    gd = [smf(GD, 64 + 4*e, f'v[{ring[e]}:{ring[e]+7}]') for e in range(4)]
    em(ga[0], nxt[0], nxt[1], zero(GD), ga[1], nxt[2], nxt[3], zero(GD + 2))
    if PZ == 5: em(f'v_mov_b32 v{VM}, 0xfffe0000')
    em(ga[2], nxt[4], nxt[5], f'v_permlane32_swap_b32 v{GS}, v{GS+2}', ga[3], nxt[6], nxt[7], f'v_permlane32_swap_b32 v{GS+1}, v{GS+3}')
    zc = [zero(60), zero(62)] if red and PZ in (0, 3) else [zero(60) if red and PZ == 5 else [], []]
    em(gb[0], f'v_add_f32 v{GS}, v{GS}, v{GS+2}', zc[0], gb[1], f'v_add_f32 v{GS+1}, v{GS+1}, v{GS+3}', zc[1], tagv(GS), gb[2], cvt(GS, GS),
       f'buffer_store_dword v{GS}, v{V_CS}, {WS}, s{T1} offen{sc}')
    e = epi(GA, 2)
    em(gb[3], e[0], gc[0], e[1:], gc[1])
    e = epi(GB, 0)
    em(gc[2], e[0], gc[3], e[1:])
    em(gd[0], gd[1])
    e = epi(GC, 1)
    em(e[0], gd[2], e[1:], gd[3])
    em(f's_mov_b32 s{T3}, s{S_O0}', f's_mov_b32 s{S_O0}, s{S_O1}', f's_mov_b32 s{S_O1}, s{S_O2}', f's_mov_b32 s{S_O2}, s{T3}')
    em(f's_xor_b32 s{S_CP}, s{S_CP}, 294912', f's_add_u32 s{S_S}, s{S_S}, 1', f's_add_u32 s{S_SEGO}, s{S_SEGO}, {32*8192}')
    em(epi(GD, 3))
    prof2 = PROF_STEP is not None
    if prof2:
        sk = a.uid('L_pf')
        a(f's_cmp_lg_u32 s{S_S}, {PROF_STEP + 1}'); a(f's_cbranch_scc1 {sk}')
        a.rawins(f's_mem{"real" if PROF_REAL else ""}time s[{PS+16}:{PS+17}]')
        a.label(sk)
    a(f's_branch {LS}')

def sched1(a, L):
    em, mm1, lr, aread, cvt, tr, pka, zero, poison = (L[k] for k in ('em', 'mm1', 'lr', 'aread', 'cvt', 'tr', 'pka', 'zero', 'poison'))
    io, red, w, WS, sc, PZ, LS, t_, SL, warm = (L[k] for k in ('io', 'red', 'w', 'WS', 'sc', 'PZ', 'LS', 't_', 'SL', 'warm'))
    assert PZ == 5
    q = lambda c, t, sl: mm1('Q', c, t, sl)
    k = lambda c, t, sl: mm1('K', c, t, sl)
    v = lambda c, t, sl: mm1('V', c, t, sl)
    class Wt:
        def __init__(s, *r): s.r = r
    def slot(i): return Wt(*range(SL(i), SL(i) + 4))
    def lrw(*qs): return Wt(*[LR + 4*x + j for x in qs for j in range(4)])
    def st(*xs):
        for x in xs:
            if x is None: continue
            if isinstance(x, (list, tuple)): st(*x)
            elif isinstance(x, Wt): a.needr(*x.r)
            else: a(x)
    pkm = lambda d, s_: f'v_pk_mul_f32 v[{d}:{d+1}], v[{d}:{d+1}], s[{s_}:{s_+1}]'
    k2, k4, k5, v5 = lr(('K', 2)), lr(('K', 4)), lr(('K', 5)), lr(('V', 5))
    st(q(0, 0, 0), k2[0], q(0, 1, 0), k2[1], q(1, 0, 1), k2[2], q(1, 1, 1), k2[3])
    if io: st(q(2, 0, 2), q(2, 1, 2))
    a('s_waitcnt lgkmcnt(4)')
    a('s_barrier')
    prof(a, 2)
    X = [[] for _ in range(8)]
    if io:
        TV = 62
        X[0] = [f's_lshl_b32 s{T3}, s{S_H}, 7', f's_add_u32 s{T3}, s{T3}, {F_CH}', f'v_mov_b32 v{TV}, s{S_S}']
        X[2] = ['s_mov_b64 exec, 1', f'buffer_store_dword v{TV}, v{V_EX}, {WS}, s{T3} offen sc1', 's_mov_b64 exec, -1']
        wm = warm(TV + 1)
        X[3] = [wm[1], wm[2], wm[0]]
        X[4] = [wm[3]]
        X[5] = [wm[4]]
        X[6] = [zero(TV)]
        st(aread(3, 3))
    else:
        st(aread(2, 2), aread(3, 3))
    st(k(0, 0, 0), X[0], k(0, 1, 0), aread(4, 0), k(1, 0, 1), X[2], k(1, 1, 1), aread(5, 1))
    if io: st(X[3])
    else: st(slot(2), q(2, 0, 2), q(2, 1, 2))
    st(k(2, 0, 2), k5[0], X[4], k(2, 1, 2), aread(6, 2), slot(3))
    st(q(3, 0, 3), k5[1], X[5], q(3, 1, 3), aread(7, 3), slot(0))
    st(q(4, 0, 0), k5[2], X[6], q(4, 1, 0), aread(8, 0), slot(1))
    st(q(5, 0, 1), k5[3], q(5, 1, 1), slot(2), q(6, 0, 2), q(6, 1, 2), slot(3))
    st(q(7, 0, 3), slot(0), q(8, 0, 0), q(7, 1, 3), lrw(0, 1, 2, 3), q(8, 1, 0), pkm(QA, S_C))
    st(k(5, 0, 1), k4[0], pkm(QA + 2, S_C))
    st(k(5, 1, 1), aread(3, 1), cvt(QA, QA))
    st(k(6, 0, 2), k4[1], cvt(QA + 1, QA + 2))
    st(k(6, 1, 2), aread(4, 2), pkm(QB, S_C))
    st(tr(QA), k4[2], pkm(QB + 2, S_C))
    st(k(7, 0, 3), k4[3], cvt(QB, QB))
    st(k(8, 0, 0), slot(1), cvt(QB + 1, QB + 2))
    st(k(3, 0, 1), cvt(QA, QA))
    st(tr(QB), cvt(QA + 1, QA + 2))
    st(k(7, 1, 3), slot(2), lrw(0, 1))
    st(k(4, 0, 2), v5[0], cvt(QA + 2, QB))
    st(k(8, 1, 0), v5[1], cvt(QA + 3, QB + 2))
    st(k(3, 1, 1), lrw(2, 3), cvt(KA, KA))
    KXr = Wt(*range(KX, KX + 8))
    st(k(4, 1, 2), v5[2], KXr, cvt(KA + 1, KA + 2))
    prof(a, 3)
    sc0 = f'v_mfma_f32_16x16x32_bf16 v[{KX}:{KX+3}], v[{KX}:{KX+3}], v[{QA}:{QA+3}], 0'
    sc1_ = f'v_mfma_f32_16x16x32_bf16 v[{KX+4}:{KX+7}], v[{KX+4}:{KX+7}], v[{QA}:{QA+3}], 0'
    scm = f'v_mfma_f32_16x16x32_bf16 v[{QB}:{QB+3}], v[{KA}:{KA+3}], v[{QA}:{QA+3}], 0'
    dm = [f'v_mov_b32_dpp v{KX+r}, v{KX+4+r} quad_perm:[0,1,2,3] row_mask:0xf bank_mask:0xc' for r in range(4)]
    NM, GM = f's[{S_NM}:{S_NM+1}]', f's[{S_GM}:{S_GM+1}]'
    wtok = f'ds_write_b128 v{V_EX}, v[{KX}:{KX+3}] offset:{X_TOK + w*1024}'
    cnd = [f'v_cndmask_b32 v{KB}, v{QB+1}, v{QB}, {NM}', f'v_cndmask_b32 v{KB+1}, v{QB+3}, v{QB+2}, {NM}', f'v_cndmask_b32 v{KB}, v{KB}, v{KB+1}, {GM}']
    wsm = f'ds_write_b32 v{V_EX}, v{KB} offset:{X_SM + 4*w}'
    kmst = f'buffer_store_dwordx4 v[{KA}:{KA+3}], v{V_EX}, {WS}, s{T0} offen sc1'
    P2N = knob('p2n')
    if P2N:
        st(v5[3], f's_add_u32 s{T0}, s{S_SEGO}, {KM}')
        st(tr(KA))
        st(sc0, cvt(KB, KB), cvt(KB + 1, KB + 2))
        st(sc1_)
        st(tr(KB), cvt(KA, KA), cvt(KA + 1, KA + 2))
        st(v(7, 0, 3), dm[0], dm[1])
        st(v(7, 1, 3), aread(0, 3), cvt(KA + 2, KB), cvt(KA + 3, KB + 2), dm[2], dm[3])
        st(scm, wtok)
        st(v(8, 0, 0), kmst, v(8, 1, 0), aread(1, 0), cnd, wsm)
        prof(a, 4)
        if P2N == 1:
            st(v(3, 0, 1), v(3, 1, 1), aread(2, 1), v(4, 0, 2), v(4, 1, 2), aread(5, 2))
            a('s_waitcnt lgkmcnt(2)')
        else:
            st(v(3, 0, 1), v(3, 1, 1), aread(2, 1), v(4, 0, 2))
            a('s_waitcnt lgkmcnt(1)')
        a('s_barrier')
    else:
        st(v5[3], f's_add_u32 s{T0}, s{S_SEGO}, {KM}')
        st(tr(KA), cvt(KB, KB), cvt(KB + 1, KB + 2))
        st(sc0)
        st(tr(KB), cvt(KA, KA), cvt(KA + 1, KA + 2))
        st(sc1_)
        st(cvt(KA + 2, KB), cvt(KA + 3, KB + 2))
        st(scm)
        st(dm, v(7, 0, 3), wtok)
        st(cnd)
        st(wsm)
        prof(a, 4)
        st(v(7, 1, 3), aread(0, 3), v(8, 0, 0), kmst,
           v(8, 1, 0), aread(1, 0), v(3, 0, 1), v(3, 1, 1), aread(2, 1))
        a('s_waitcnt lgkmcnt(3)')
        a('s_barrier')
    prof(a, 5); mark(a, 'P3start')
    a(f'ds_read_b128 v[64:67], v{V_EX} offset:{X_SM}')
    for kk in range(4):
        a(f'ds_read_b128 v[{40+4*kk}:{43+4*kk}], v{V_EX} offset:{X_TOK + kk*1024}')
    pre = lread(5, 8) + lread(6, 24)
    P5N = knob('p5n')
    cst = [f'v_mov_b64 v[48:49], s[{S_Q4}:{S_Q4+1}]', f'v_mov_b64 v[50:51], s[{S_ONE}:{S_ONE+1}]']
    if P2N:
        if P2N == 2: st(v(4, 1, 2), aread(5, 2))
        st(slot(3), v(0, 0, 3), v(0, 1, 3), aread(6, 3), slot(0), v(1, 0, 0), v(1, 1, 0), slot(1), Wt(64, 65, 66, 67))
        st(v(2, 0, 1), 'v_add_f32 v64, v64, v65', v(2, 1, 1), slot(2), lrw(0, 1, 2, 3), Wt(*range(40, 48)), 'v_add_f32 v66, v66, v67')
        st(v(5, 0, 2), pka(40, 40, 44), v(5, 1, 2), Wt(*range(48, 52)), pka(42, 42, 46))
        mark(a, 'P3a')
        st(pka(40, 40, 48), pka(42, 42, 50), 'v_add_f32 v64, v64, v66', Wt(*range(52, 56)), pka(44, 40, 52), pka(46, 42, 54))
        mark(a, 'P3b')
        st(slot(3), v(6, 0, 3), 'v_max3_f32 v68, v44, v45, v46', cst[0], v(6, 1, 3), pre[4], 'v_max3_f32 v68, v68, v47, v64')
        st(cst[1], pre[5],
           'v_max_f32_dpp v69, v68, v68 row_ror:8 row_mask:0xf bank_mask:0xf', 'v_max_f32_dpp v68, v68, v68 row_ror:8 row_mask:0xf bank_mask:0xf')
        st(pre[6], pre[7], 'v_permlane32_swap_b32 v68, v69')
        mark(a, 'P3c')
        st('v_max_f32 v70, v68, v69', 'v_max_f32 v71, v68, v69', pre[0], pre[1], 'v_permlane16_swap_b32 v70, v71')
        st(pre[2], 'v_max_f32 v68, v70, v71')
        st('v_sub_f32 v64, v64, v68')
        for d in (44, 46):
            a(f'v_pk_add_f32 v[{d}:{d+1}], v[{d}:{d+1}], v[68:69] op_sel_hi:[1,0] neg_lo:[0,1] neg_hi:[0,1]')
        mark(a, 'P3d')
        st('v_exp_f32 v64, v64', pre[3], 'v_exp_f32 v44, v44', 'v_mov_b32_dpp v65, v64 row_ror:8 row_mask:0xf bank_mask:0xf', 'v_exp_f32 v45, v45',
           cvt(VA, VA), 'v_exp_f32 v46, v46', cvt(40, 64), cvt(41, 64), 'v_exp_f32 v47, v47', cvt(VA + 1, VA + 2))
        st(cvt(42, 44), 'v_permlane32_swap_b32 v40, v41', cvt(VA + 2, VB), cvt(43, 46), cvt(VA + 3, VB + 2))
        mark(a, 'P3e')
    else:
        st(v(4, 0, 2), v(4, 1, 2), aread(5, 2), slot(3), v(0, 0, 3), v(0, 1, 3), aread(6, 3), slot(0), Wt(64, 65, 66, 67))
        st(v(1, 0, 0), 'v_add_f32 v64, v64, v65', v(1, 1, 0), slot(1), Wt(*range(40, 48)), 'v_add_f32 v66, v66, v67')
        st(v(2, 0, 1), pka(40, 40, 44), v(2, 1, 1), Wt(*range(48, 52)), pka(42, 42, 46))
        mark(a, 'P3a')
        st(pka(40, 40, 48), pka(42, 42, 50), 'v_add_f32 v64, v64, v66', Wt(*range(52, 56)), pka(44, 40, 52), pka(46, 42, 54))
        mark(a, 'P3b')
        st(slot(2), lrw(0, 1, 2, 3), v(5, 0, 2), 'v_max3_f32 v68, v44, v45, v46', v(5, 1, 2), 'v_max3_f32 v68, v68, v47, v64')
        st(slot(3), v(6, 0, 3),
           'v_max_f32_dpp v69, v68, v68 row_ror:8 row_mask:0xf bank_mask:0xf', 'v_max_f32_dpp v68, v68, v68 row_ror:8 row_mask:0xf bank_mask:0xf')
        st(v(6, 1, 3), pre[4], 'v_permlane32_swap_b32 v68, v69')
        mark(a, 'P3c')
        st('v_max_f32 v70, v68, v69', 'v_max_f32 v71, v68, v69', pre[5], pre[6], 'v_permlane16_swap_b32 v70, v71')
        st(pre[7], 'v_max_f32 v68, v70, v71')
        st('v_sub_f32 v64, v64, v68')
        for d in (44, 46):
            a(f'v_pk_add_f32 v[{d}:{d+1}], v[{d}:{d+1}], v[68:69] op_sel_hi:[1,0] neg_lo:[0,1] neg_hi:[0,1]')
        mark(a, 'P3d')
        st('v_exp_f32 v64, v64', pre[0], 'v_exp_f32 v44, v44', 'v_mov_b32_dpp v65, v64 row_ror:8 row_mask:0xf bank_mask:0xf', 'v_exp_f32 v45, v45',
           pre[1], cvt(VA, VA), 'v_exp_f32 v46, v46', cvt(40, 64), cvt(41, 64), 'v_exp_f32 v47, v47', cvt(VA + 1, VA + 2), pre[2])
        st(cvt(42, 44), 'v_permlane32_swap_b32 v40, v41', cvt(VA + 2, VB), pre[3], cvt(43, 46), cvt(VA + 3, VB + 2))
        mark(a, 'P3e')
        st(cst)
    st(f's_add_u32 s{T0}, s{S_SEGO}, {KM}')
    LAST = f'L_last{t_}'
    st('v_mov_b32_dpp v44, v42 row_ror:8 row_mask:0xf bank_mask:0xf', f's_cmp_eq_u32 s{S_S}, 63',
       'v_mov_b32_dpp v45, v43 row_ror:8 row_mask:0xf bank_mask:0xf', f's_cbranch_scc1 {LAST}')
    vmst = f'buffer_store_dwordx4 v[{VA}:{VA+3}], v{V_EX}, {WS}, s{T0} offen offset:1024 sc1'
    mark(a, 'P3f')
    ring = [8, 16, 24, 32]
    nxt = lread(7, 8) + lread(8, 24)
    tag = lambda t: f'v_and_or_b32 v{t}, v{t}, -2, s{S_TO}'
    adr = lambda img: f's_add_u32 s{T2}, s{T0}, {img*65536}'
    sto = lambda t: f'buffer_store_dwordx2 v[{t}:{t+1}], v{V_C1}, {WS}, s{T2} offen{sc}'
    RG = lambda e: Wt(*range(ring[e], ring[e] + 8))
    rot = [f's_mov_b32 s{T3}, s{S_O0}', f's_mov_b32 s{S_O0}, s{S_O1}', f's_mov_b32 s{S_O1}, s{S_O2}', f's_mov_b32 s{S_O2}, s{T3}',
           f's_xor_b32 s{S_CP}, s{S_CP}, 294912', f's_add_u32 s{S_S}, s{S_S}, 1', f's_add_u32 s{S_SEGO}, s{S_SEGO}, {32*8192}']
    if P5N:
        GS, GA, GB, GC, GD = 52, 48, 56, 60, 40
        AX, AY = 46, 47
        ER = {w: 64}
        others = [e for e in range(4) if e != w]
        for j, e in enumerate(others): ER[e] = 68 + 4*j
        E = lambda e: Wt(*range(ER[e], ER[e] + 4))
        S_ = [smf(GS, 40 + 4*jj, opreg(('S',), jj)) for jj in range(2)]
        ga = [smf(GA, ER[e], f'v[{ring[e]}:{ring[e]+7}]') for e in range(4)]
        gb = [smf(GB, ER[e], opreg(('O', 0, e >> 1), e & 1)) for e in range(4)]
        gc = [smf(GC, ER[e], opreg(('O', 1, e >> 1), e & 1)) for e in range(4)]
        gd = [smf(GD, ER[e], f'v[{ring[e]}:{ring[e]+7}]') for e in range(4)]
        st('v_mfma_f32_16x16x32_bf16 v[52:55], v[48:51], v[40:43], 0', f'v_lshrrev_b32 v{AX}, 1, v{V_EX}', f'v_and_b32 v{AY}, 0x70, v{V_EX}')
        st(f'v_mfma_f32_16x16x16_bf16 v[64:67], v[{VA}:{VA+1}], v[40:41], 0', f'v_and_b32 v{AX}, 0x180, v{AX}', zero(60))
        st(f'v_mfma_f32_16x16x16_bf16 v[68:71], v[{VA+2}:{VA+3}], v[40:41], 0', f'v_or_b32 v{AX}, v{AX}, v{AY}', zero(62))
        a(vmst, tok='kmvm')
        st(f'v_mfma_f32_16x16x32_bf16 v[64:67], v[{VX}:{VX+3}], v[42:45], v[64:67]',
           'v_add_f32_dpp v52, v52, v52 row_ror:8 row_mask:0xf bank_mask:0xf', f'v_bfe_u32 v{AY}, v{V_EX}, 7, 1')
        st(f'v_mfma_f32_16x16x32_bf16 v[68:71], v[{VX+4}:{VX+7}], v[42:45], v[68:71]',
           'v_rcp_f32 v52, v52', f'v_lshl_add_u32 v{AY}, v{AY}, 9, v{AX}', zero(48), zero(50), zero(56), zero(58))
        mark(a, 'P3g')
        for d in (64, 66, 68, 70):
            a(f'v_pk_mul_f32 v[{d}:{d+1}], v[{d}:{d+1}], v[52:53] op_sel_hi:[1,0]')
        st(cvt(64, 64), cvt(65, 66), cvt(66, 68), cvt(67, 70))
        st(f's_mov_b64 exec, s[{S_NM}:{S_NM+1}]', f'ds_write_b128 v{AX}, v[64:67] offset:{X_O + w*512}', 's_mov_b64 exec, -1')
        st([f'v_mov_b32_dpp v{64+r}, v{64+r} row_ror:8 row_mask:0xf bank_mask:0xc' for r in range(4)])
        prof(a, 6); mark(a, 'P3i')
        st(f's_bfe_u32 s{S_TO}, s{S_S}, 0x10001', f's_sub_u32 s{S_TR}, 0, s{S_TO}')
        st(RG(w), ga[w], nxt[2*w], nxt[2*w+1], zero(52))
        if red: st(gb[w], f's_add_u32 s{T1}, s{S_MB}, s{S_O2}', 'v_mov_b32 v44, -1', gc[w], poison(44, None, T1, [4]), zero(54))
        else: st(gb[w], zero(54), gc[w])
        st(f's_add_u32 s{T0}, s{S_CS}, s{S_CP}', f's_add_u32 s{T1}, s{S_CSS}, s{S_CP}')
        a('s_waitcnt lgkmcnt(2)')
        a('s_barrier')
        prof(a, 7); mark(a, 'P3j')
        for e in others:
            a(f'ds_read_b128 v[{ER[e]}:{ER[e]+3}], v{AX} offset:{X_O + e*512}')
        for jj in range(2):
            a(f'ds_read_b128 v[{40+4*jj}:{43+4*jj}], v{AY} offset:{X_O + jj*1024}')
        e1, e2, e3 = others
        nx = lambda e: [nxt[2*e], nxt[2*e+1]]
        if knob('x4'):
            sw = lambda x, y: f'v_permlane16_swap_b32 v{x}, v{y}'
            st4 = lambda t: f'buffer_store_dwordx4 v[{t}:{t+3}], v{V_C1}, {WS}, s{T2} offen{sc}'
            st(E(e1), ga[e1], nx(e1)[0], E(e2), ga[e2], nx(e1)[1], E(e3), ga[e3], nx(e2)[0], Wt(40, 41, 42, 43))
            st(gb[e1], nx(e2)[1], gb[e2], nx(e3)[0], cvt(48, 48))
            st(gb[e3], nx(e3)[1], cvt(49, 50))
            st(S_[0], adr(0), zero(GD), Wt(44, 45, 46, 47))
            st(S_[1], cvt(50, 56))
            st(gc[e1], cvt(51, 58), zero(GD + 2))
            st(gc[e2], sw(48, 50), f'v_permlane32_swap_b32 v{GS}, v{GS+2}')
            st(gc[e3], sw(49, 51), f'v_permlane32_swap_b32 v{GS+1}, v{GS+3}')
            st(RG(w), gd[w], tag(48), f'v_add_f32 v{GS}, v{GS}, v{GS+2}')
            st(RG(e1), gd[e1], st4(48), f'v_add_f32 v{GS+1}, v{GS+1}, v{GS+3}', cvt(63, 62))
            st(RG(e2), gd[e2], adr(1), cvt(GS, GS), cvt(62, 60))
            st(RG(e3), gd[e3], tag(GS), f'buffer_store_dword v{GS}, v{V_CS}, {WS}, s{T1} offen{sc}')
            st(rot[:5])
            st(cvt(60, 40), cvt(61, 42), rot[5:], sw(60, 62), sw(61, 63), tag(60), st4(60))
        else:
            st(E(e1), ga[e1], nx(e1)[0], E(e2), ga[e2], nx(e1)[1], E(e3), ga[e3], nx(e2)[0], Wt(40, 41, 42, 43))
            st(S_[0], nx(e2)[1], Wt(44, 45, 46, 47), S_[1], nx(e3)[0], cvt(GA, GA))
            st(gb[e1], nx(e3)[1], adr(2), cvt(GA + 1, GA + 2))
            st(gb[e2], tag(GA), f'v_permlane32_swap_b32 v{GS}, v{GS+2}')
            st(gb[e3], sto(GA), f'v_permlane32_swap_b32 v{GS+1}, v{GS+3}')
            st(gc[e1], zero(GD), f'v_add_f32 v{GS}, v{GS}, v{GS+2}')
            st(gc[e2], zero(GD + 2), f'v_add_f32 v{GS+1}, v{GS+1}, v{GS+3}')
            st(gc[e3], adr(0), cvt(GB, GB), cvt(GS, GS))
            st(RG(w), gd[w], cvt(GB + 1, GB + 2), tag(GS))
            st(RG(e1), gd[e1], f'buffer_store_dword v{GS}, v{V_CS}, {WS}, s{T1} offen{sc}', tag(GB), cvt(GC, GC))
            st(RG(e2), gd[e2], sto(GB), adr(1), cvt(GC + 1, GC + 2))
            st(RG(e3), gd[e3], tag(GC), sto(GC), adr(3))
            st(rot)
            st(cvt(GD, GD), cvt(GD + 1, GD + 2), tag(GD), sto(GD))
    else:
        sched1_p5(a, locals(), L)
    if PROF_STEP is not None:
        sk = a.uid('L_pf')
        a(f's_cmp_lg_u32 s{S_S}, {PROF_STEP + 1}'); a(f's_cbranch_scc1 {sk}')
        a.rawins(f's_mem{"real" if PROF_REAL else ""}time s[{PS+16}:{PS+17}]')
        a.label(sk)
    a(f's_branch {LS}')
    a.label(LAST)
    a(vmst, tok='kmvm')
    a('s_branch L_chx')

def sched1_p5(a, M, L):
    st, Wt, vmst, tag, adr, sto, RG, ring, nxt, rot, cvt, zero, poison, red, w, WS, sc = (M[k] for k in
        ('st', 'Wt', 'vmst', 'tag', 'adr', 'sto', 'RG', 'ring', 'nxt', 'rot', 'cvt', 'zero', 'poison', 'red', 'w', 'WS', 'sc'))
    st('v_mfma_f32_16x16x32_bf16 v[52:55], v[48:51], v[40:43], 0')
    st(f'v_mfma_f32_16x16x16_bf16 v[64:67], v[{VA}:{VA+1}], v[40:41], 0')
    st(f'v_lshrrev_b32 v48, 1, v{V_EX}', 'v_and_b32 v48, 0x180, v48')
    st(f'v_mfma_f32_16x16x16_bf16 v[68:71], v[{VA+2}:{VA+3}], v[40:41], 0')
    st(f'v_and_b32 v49, 0x70, v{V_EX}', 'v_or_b32 v48, v48, v49')
    st(f'v_mfma_f32_16x16x32_bf16 v[64:67], v[{VX}:{VX+3}], v[42:45], v[64:67]')
    st('v_add_f32_dpp v52, v52, v52 row_ror:8 row_mask:0xf bank_mask:0xf', f'v_bfe_u32 v50, v{V_EX}, 7, 1')
    st(f'v_mfma_f32_16x16x32_bf16 v[68:71], v[{VX+4}:{VX+7}], v[42:45], v[68:71]')
    st('v_rcp_f32 v52, v52', 'v_lshl_add_u32 v49, v50, 3, v48', 'v_lshl_add_u32 v50, v50, 9, v48')
    mark(a, 'P3g')
    a(vmst, tok='kmvm')
    mark(a, 'P3h')
    for d in (64, 66, 68, 70):
        a(f'v_pk_mul_f32 v[{d}:{d+1}], v[{d}:{d+1}], v[52:53] op_sel_hi:[1,0]')
    st(cvt(68, 68), cvt(69, 70), cvt(64, 64), cvt(65, 66))
    st('v_mov_b32_dpp v64, v68 row_ror:8 row_mask:0xf bank_mask:0xc', 'v_mov_b32_dpp v65, v69 row_ror:8 row_mask:0xf bank_mask:0xc')
    st(f'ds_write_b64 v49, v[64:65] offset:{X_O + w*512}')
    prof(a, 6); mark(a, 'P3i')
    if red:
        st(f's_add_u32 s{T1}, s{S_MB}, s{S_O2}', 'v_mov_b32 v60, -1', poison(60, None, T1, [4]))
    st([zero(r) for r in range(52, 64, 2)])
    st(f's_bfe_u32 s{S_TO}, s{S_S}, 0x10001', f's_sub_u32 s{S_TR}, 0, s{S_TO}')
    st(f's_add_u32 s{T0}, s{S_CS}, s{S_CP}', f's_add_u32 s{T1}, s{S_CSS}, s{S_CP}')
    a('s_waitcnt lgkmcnt(0)')
    a('s_barrier')
    prof(a, 7); mark(a, 'P3j')
    for jj in range(2):
        a(f'ds_read_b128 v[{40+4*jj}:{43+4*jj}], v50 offset:{X_O + jj*1024}')
    for e in range(4):
        a(f'ds_read_b128 v[{64+4*e}:{67+4*e}], v48 offset:{X_O + e*512}')
    st(zero(48), zero(50))
    GS, GA, GB, GC, GD = 48, 52, 56, 60, 40
    E = lambda e: Wt(*range(64 + 4*e, 68 + 4*e))
    S_ = [smf(GS, 40 + 4*jj, opreg(('S',), jj)) for jj in range(2)]
    ga = [smf(GA, 64 + 4*e, f'v[{ring[e]}:{ring[e]+7}]') for e in range(4)]
    gb = [smf(GB, 64 + 4*e, opreg(('O', 0, e >> 1), e & 1)) for e in range(4)]
    gc = [smf(GC, 64 + 4*e, opreg(('O', 1, e >> 1), e & 1)) for e in range(4)]
    gd = [smf(GD, 64 + 4*e, f'v[{ring[e]}:{ring[e]+7}]') for e in range(4)]
    st(S_[0], Wt(44, 45, 46, 47), S_[1], E(0), zero(GD))
    st(ga[0], nxt[0], E(1), zero(GD + 2))
    st(ga[1], nxt[1], E(2), f'v_permlane32_swap_b32 v{GS}, v{GS+2}')
    st(ga[2], nxt[2], E(3), f'v_permlane32_swap_b32 v{GS+1}, v{GS+3}')
    st(ga[3], nxt[3], f'v_add_f32 v{GS}, v{GS}, v{GS+2}')
    st(gb[0], nxt[4], f'v_add_f32 v{GS+1}, v{GS+1}, v{GS+3}')
    st(gb[1], nxt[5], cvt(GS, GS))
    st(gb[2], nxt[6], tag(GS))
    st(gb[3], f'buffer_store_dword v{GS}, v{V_CS}, {WS}, s{T1} offen{sc}', cvt(GA, GA))
    st(gc[0], nxt[7], adr(2), cvt(GA + 1, GA + 2))
    st(gc[1], tag(GA))
    st(gc[2], sto(GA), cvt(GB, GB))
    st(gc[3], adr(0), RG(0), cvt(GB + 1, GB + 2))
    st(gd[0], RG(1), tag(GB))
    st(gd[1], sto(GB), RG(2), cvt(GC, GC))
    st(gd[2], adr(1), RG(3), cvt(GC + 1, GC + 2))
    st(gd[3], tag(GC), sto(GC), adr(3))
    st(rot)
    st(cvt(GD, GD), cvt(GD + 1, GD + 2), tag(GD), sto(GD))

def chain_role(a):
    stamp(a, 1)
    setup(a)
    stamp(a, 2)
    team_barrier(a)
    stamp(a, 3)
    if 'setuponly' in EXP:
        a('s_branch L_exit')
    a(f's_mov_b32 s{S_S}, 0'); a(f's_mov_b32 s{S_O0}, 0'); a(f's_mov_b32 s{S_O1}, 9216'); a(f's_mov_b32 s{S_O2}, 18432')
    a(f's_mov_b32 s{S_CP}, 0')
    if 'cnt' in EXP: a('s_mov_b32 s98, 0'); a('s_mov_b32 s99, 0')
    variants = getattr(chain_role, 'variants', 'both')
    vs = {'both': [('', 'l'), (' sc1', 'f')], 'loc': [('', 'l')], 'for': [(' sc1', 'f')]}[variants]
    if variants == 'both':
        a(f's_cmp_lg_u32 s{S_FOREIGN}, 0'); a('s_cbranch_scc1 L_cdf')
    for sc, tag in vs:
        a.label(f'L_cd{tag}')
        a(f's_cmp_eq_u32 s{S_W}, 3'); a(f's_cbranch_scc1 L_ce{tag}io')
        a(f's_cmp_eq_u32 s{S_W}, 1'); a(f's_cbranch_scc1 L_ce{tag}r1')
        a(f's_cmp_eq_u32 s{S_W}, 0'); a(f's_cbranch_scc1 L_ce{tag}r0')
        a(f's_cmp_lt_u32 s{S_H}, 8'); a(f's_cbranch_scc1 L_ce{tag}r2')
        a(f's_branch L_ce{tag}n2')
        for role in ('r0', 'r1', 'r2', 'n2', 'io'):
            loop(a, sc, tag, role)
    a.label('L_chx')
    WS = f's[{S_WS}:{S_WS+3}]'
    a('s_waitcnt vmcnt(0)')
    a('s_barrier')
    sk = a.uid('L_x')
    a(f's_cmp_lg_u32 s{S_W}, 3'); a(f's_cbranch_scc1 {sk}')
    a(f'v_lshlrev_b32 v60, 3, v{V_EX}'); a('v_mov_b32 v61, 64')
    a(f's_lshl_b32 s{T2}, s{S_H}, 7'); a(f's_add_u32 s{T2}, s{T2}, {F_CH}')
    a('s_mov_b64 exec, 1')
    a(f'buffer_store_dword v61, v60, {WS}, s{T2} offen sc1')
    a('s_mov_b64 exec, -1')
    a.label(sk)
    if 'cnt' in EXP:
        a(f's_lshl_b32 s{T0}, s{S_H}, 2'); a(f's_add_u32 s{T0}, s{T0}, s{S_W}'); a(f's_lshl_b32 s{T0}, s{T0}, 7'); a(f's_add_u32 s{T0}, s{T0}, {PROF}')
        a('v_mov_b32 v10, 0'); a('v_mov_b32 v8, s98'); a('v_mov_b32 v9, s99'); a('s_mov_b64 exec, 1')
        a(f'buffer_store_dwordx2 v[8:9], v10, {WS}, s{T0} offen')
        a('s_mov_b64 exec, -1')
    if PROF_STEP is not None:
        a('s_waitcnt lgkmcnt(0)')
        a(f's_lshl_b32 s{T0}, s{S_H}, 2'); a(f's_add_u32 s{T0}, s{T0}, s{S_W}'); a(f's_lshl_b32 s{T0}, s{T0}, 7'); a(f's_add_u32 s{T0}, s{T0}, {PROF}')
        a('v_mov_b32 v10, 0'); a('s_mov_b64 exec, 1')
        for k in range(13):
            a(f'v_mov_b32 v8, s{PS+2*k}'); a(f'v_mov_b32 v9, s{PS+2*k+1}')
            a(f'buffer_store_dwordx2 v[8:9], v10, {WS}, s{T0} offen offset:{8*k}')
        a('s_mov_b64 exec, -1')
    stamp(a, 4)
```

```python
import sys
from gen_base import *
import gen_bulk as B
import gen_shadow as SH
import gen_chain as CH

def build(roles=('ln', 'kv', 'f1'), out='k.s'):
    a = Asm()
    entry(a)
    stamp(a, 0)
    a(f's_lshl_b32 s33, s{S_X}, 5'); a(f's_add_u32 s33, s33, s{S_T}'); a('s_lshl_b32 s33, s33, 5')
    a('v_mov_b32 v2, 0'); a('v_mov_b32 v3, 0'); a('v_mov_b32 v4, 0'); a('v_mov_b32 v5, 0'); a(f'v_lshlrev_b32 v6, 4, v{V_LANE}')
    a('s_mov_b64 exec, 3')
    a(f'buffer_store_dwordx4 v[2:5], v6, s[{S_WS}:{S_WS+3}], s33 offen sc1')
    a('s_mov_b64 exec, -1')
    a(f's_cmp_eq_u32 s{S_X}, 0')
    a('s_cbranch_scc1 L_chain')
    if 'setuponly' in roles:
        gbar_arrive(a); a('s_branch L_exit')
    a(f's_sub_u32 s38, s{S_X}, 1')
    a(f's_mul_i32 s39, s{S_T}, 7'); a('s_add_u32 s39, s39, s38')
    RI = CH.rl_items()
    if RI: a('s_mov_b32 s42, 0')
    a('s_cmp_ge_u32 s39, 128'); a('s_cbranch_scc1 L_noln')
    if RI:
        a(f's_cmp_ge_u32 s39, {8 * len(RI)}'); a('s_cbranch_scc1 L_nocp')
        enc = lambda vals, bits: sum(v << (bits * i) for i, v in enumerate(vals))
        mc, cc, rc = enc(['QKV'.index(m) for m, _ in RI], 2), enc([c for _, c in RI], 4), enc([CH.rl_res(j) for j in range(len(RI))], 2)
        a('s_lshr_b32 s40, s39, 3'); a('s_and_b32 s41, s39, 7')
        a('s_lshl_b32 s33, s40, 1'); a(f's_lshr_b32 s34, {mc:#x}, s33'); a('s_and_b32 s34, s34, 3')
        a(f's_lshr_b32 s35, {rc:#x}, s33'); a('s_and_b32 s35, s35, 3')
        a('s_lshl_b32 s33, s40, 2'); a(f's_mov_b32 s44, {cc & 0xffffffff:#x}'); a(f's_mov_b32 s45, {cc >> 32:#x}'); a('s_lshr_b64 s[44:45], s[44:45], s33')
        a('s_and_b32 s36, s44, 15')
        a('s_lshl_b32 s43, s36, 19'); a('s_lshl_b32 s33, s41, 10'); a('s_add_u32 s43, s43, s33'); a('s_add_u32 s43, s43, 256')
        a('s_lshl_b32 s44, s39, 16'); a('s_lshl_b32 s35, s35, 8'); a('s_add_u32 s44, s44, s35'); a(f's_add_u32 s44, s44, {CH.RLB}')
        a('s_lshl_b32 s42, s41, 2'); a(f's_add_u32 s42, s42, {CH.D_RL}')
        lab = [a.uid('L_cm') for _ in range(4)]
        a('s_cmp_eq_u32 s34, 1'); a(f's_cbranch_scc1 {lab[1]}'); a('s_cmp_eq_u32 s34, 2'); a(f's_cbranch_scc1 {lab[2]}')
        for m in range(3):
            if m: a.label(lab[m])
            srd(a, S_B, 16 + 8 * m, 576 * 8192)
            if m < 2: a(f's_branch {lab[3]}')
        a.label(lab[3])
        a(f'v_lshrrev_b32 v2, 4, v{V_LANE}'); a(f's_lshl_b32 s33, s{S_W}, 2'); a('v_add_u32 v2, s33, v2')
        a(f'v_and_b32 v3, 15, v{V_LANE}'); a('v_lshlrev_b32 v3, 4, v3')
        a('v_lshl_add_u32 v136, v2, 13, v3'); a('v_lshl_add_u32 v137, v2, 10, v3')
        a('s_waitcnt lgkmcnt(0)'); srd_fix(a, S_B)
        for q in range(4):
            a(f's_add_u32 s33, s43, {q * 16 * 8192}')
            a(f'buffer_load_dwordx4 v[{120+4*q}:{123+4*q}], v136, s[{S_B}:{S_B+3}], s33 offen')
        def mid():
            if CH.knob('rlbad'):
                for q in range(16): a(f'v_mov_b32 v{120+q}, 0')
            for q in range(4):
                a(f's_add_u32 s35, s44, {q * 16 * 1024}')
                a(f'buffer_store_dwordx4 v[{120+4*q}:{123+4*q}], v137, s[{S_WS}:{S_WS+3}], s35 offen sc1')
        B.ln_role(a, 39, mid)
        a('s_branch L_noln')
        a.label('L_nocp')
    B.ln_role(a, 39)
    a.label('L_noln')
    gbar_arrive(a, 42 if RI else None)
    stamp(a, 1)
    a(f's_cmp_lt_u32 s{S_T}, 12'); a('s_cbranch_scc1 L_ffn')
    a(f's_sub_u32 s39, s{S_T}, 12'); a('s_mul_i32 s39, s39, 7'); a('s_add_u32 s39, s39, s38')
    a('s_cmp_ge_u32 s39, 128'); a('s_cbranch_scc1 L_spare')
    a('s_cmp_lt_u32 s39, 64'); a('s_cbranch_scc1 L_shadow')
    a('s_sub_u32 s39, s39, 64'); a('s_and_b32 s40, s39, 31'); a('s_lshr_b32 s41, s39, 5')
    if 'kv' in roles:
        B.ws_gemm(a, 'kv')
    a(f's_lshl_b32 s64, s41, 5'); a('s_add_u32 s64, s64, s40')
    a('s_branch L_fin')
    a.label('L_ffn')
    a(f's_lshr_b32 s39, s{S_T}, 2'); a('s_mul_i32 s39, s39, 7'); a('s_add_u32 s39, s39, s38')
    a('s_cmp_ge_u32 s39, 18'); a('s_cbranch_scc1 L_spare')
    a(f's_and_b32 s52, s{S_T}, 3'); a('s_lshl_b32 s39, s39, 2'); a('s_add_u32 s52, s52, s39')
    a('s_mul_i32 s41, s52, 3641'); a('s_lshr_b32 s41, s41, 16')
    a('s_mul_i32 s40, s41, 18'); a('s_sub_u32 s40, s52, s40')
    if 'f1' in roles:
        B.ws_gemm(a, 'f1')
    if 'f2' in roles:
        B.ffn2_role(a)
    a('s_add_u32 s64, s52, 64')
    a('s_branch L_fin')
    a.label('L_shadow')
    a('s_and_b32 s40, s39, 31'); a('s_lshr_b32 s41, s39, 5')
    if 'sh' in roles:
        SH.shadow_role(a)
    a('s_branch L_exit')
    a.label('L_spare')
    a(f's_cmp_lt_u32 s{S_T}, 12'); a('s_cbranch_scc0 L_spare2')
    a('s_sub_u32 s39, s39, 18'); a('s_lshl_b32 s39, s39, 2'); a(f's_and_b32 s33, s{S_T}, 3'); a('s_add_u32 s64, s39, s33')
    a('s_branch L_spare3')
    a.label('L_spare2')
    a('s_sub_u32 s64, s39, 116')
    a.label('L_spare3')
    a('s_add_u32 s64, s64, 136')
    gbar_wait(a)
    a.label('L_fin')
    if 'fin' in roles:
        SH.finisher_role(a)
    a('s_branch L_exit')
    a.label('L_chain')
    if 'ch' not in roles:
        gbar_arrive(a)
        gbar_wait(a)
        a(f's_lshl_b32 s33, s{S_T}, 7'); a(f's_add_u32 s33, s33, {F_CH}')
        a('v_mov_b32 v2, 64'); a('v_mov_b32 v3, 0'); a('s_mov_b64 exec, 1')
        a(f'buffer_store_dword v2, v3, s[{S_WS}:{S_WS+3}], s33 offen sc1')
        a('s_mov_b64 exec, -1')
    else:
        CH.chain_role(a)
    a.label('L_exit')
    a('s_endpgm')
    txt = header() + a.finalize() + footer()
    open(out, 'w').write(txt)
    return txt

if __name__ == '__main__':
    roles = sys.argv[1].split(',') if len(sys.argv) > 1 else ('ln', 'kv', 'f1')
    t = build(roles)
    print(len(t), 'bytes')
```

```python
from asmgen import Asm, parse, interleave
from common import *

S_WS   = 4
S_DBG  = 8
S_X    = 12
S_T    = 13
S_W    = 14
S_BUD  = 15
S_A    = 16
S_B    = 20
S_C    = 24
S_D    = 28
S_FOREIGN = 32
V_TID = 0
V_LANE = 1

def srd(a, sreg, karg_off, size):
    a(f's_load_dwordx2 s[{sreg}:{sreg+1}], s[0:1], {karg_off}')
    a(f's_mov_b32 s{sreg+2}, {size:#x}')
    a(f's_mov_b32 s{sreg+3}, 0x20000')

def srd_fix(a, sreg):
    a(f's_and_b32 s{sreg+1}, s{sreg+1}, 0xffff')

def poll(a, load_text, cmp_text, name='poll', sleep=0):
    L = a.uid(name); D = a.uid(name + 'd')
    a.label(L)
    a(load_text)
    a('s_waitcnt vmcnt(0)')
    a(cmp_text)
    a('s_cmp_eq_u64 vcc, exec')
    a(f's_cbranch_scc1 {D}')
    a(f's_cmp_eq_u32 s{S_BUD}, 0')
    a(f's_cbranch_scc1 {D}')
    a(f's_sub_u32 s{S_BUD}, s{S_BUD}, 1')
    if sleep: a(f's_sleep {sleep}')
    a(f's_branch {L}')
    a.label(D)

def entry(a):
    a(f's_cmp_ge_u32 s2, 256')
    a('s_cbranch_scc1 L_exit')
    srd(a, S_WS, 96, WS_SIZE)
    srd(a, S_DBG, 88, 256)
    a(f's_getreg_b32 s{S_X}, hwreg(HW_REG_XCC_ID)')
    a(f's_and_b32 s{S_X}, s{S_X}, 7')
    a(f'v_lshrrev_b32 v2, 6, v0')
    a(f'v_and_b32 v{V_LANE}, 63, v0')
    a(f'v_readfirstlane_b32 s{S_W}, v2')
    a(f's_mov_b32 s{S_BUD}, 0x20000')
    a(f's_mov_b32 s{S_FOREIGN}, 0')
    a('s_waitcnt lgkmcnt(0)')
    srd_fix(a, S_WS); srd_fix(a, S_DBG)
    a(f's_cmp_lg_u32 s{S_W}, 0')
    a('s_cbranch_scc1 L_tk_wait')
    a(f's_lshl_b32 s33, s{S_X}, 2')
    a('v_mov_b32 v2, 1')
    a('v_mov_b32 v3, 0')
    a('s_mov_b64 exec, 1')
    a(f'buffer_atomic_add v2, v3, s[{S_DBG}:{S_DBG+3}], s33 offen sc0 sc1')
    a('s_waitcnt vmcnt(0)')
    a(f'v_readfirstlane_b32 s{S_T}, v2')
    a('s_mov_b64 exec, -1')
    a(f's_cmp_lt_u32 s{S_T}, 32')
    a('s_cbranch_scc1 L_tk_ok')
    a(f'v_lshlrev_b32 v3, 2, v{V_LANE}')
    a('v_and_b32 v3, 31, v3')
    a.label('L_ov_poll')
    a(f'buffer_load_dword v2, v3, s[{S_DBG}:{S_DBG+3}], 0 offen sc1')
    a('s_waitcnt vmcnt(0)')
    a('s_mov_b32 s33, 0')
    for i in range(8):
        a(f'v_readlane_b32 s{40+i}, v2, {i}')
    for i in range(8):
        a(f's_add_u32 s33, s33, s{40+i}')
    a('s_cmp_eq_u32 s33, 256')
    a('s_cbranch_scc1 L_ov_go')
    a(f's_cmp_eq_u32 s{S_BUD}, 0')
    a('s_cbranch_scc1 L_ov_go')
    a(f's_sub_u32 s{S_BUD}, s{S_BUD}, 1')
    a('s_branch L_ov_poll')
    a.label('L_ov_go')
    a(f's_sub_u32 s33, s{S_T}, 32')
    for i in range(8):
        a(f's_sub_u32 s34, s{40+i}, 32')
        a(f's_max_i32 s34, s34, 0')
        a(f's_cmp_gt_u32 s{S_X}, {i}')
        a(f's_cselect_b32 s34, s34, 0')
        a(f's_add_u32 s33, s33, s34')
    a(f's_mov_b32 s{S_FOREIGN}, 1')
    a(f's_mov_b32 s35, 0')
    a(f's_mov_b32 s36, 7')
    a(f's_mov_b32 s37, 31')
    for i in range(8):
        nx = a.uid('L_hn')
        a(f's_min_u32 s34, s{40+i}, 32')
        a(f's_sub_u32 s38, 32, s34')
        a(f's_cmp_eq_u32 s35, 0')
        a(f's_cbranch_scc0 {nx}')
        a(f's_cmp_lt_u32 s33, s38')
        a(f's_cselect_b32 s35, 1, 0')
        a(f's_add_u32 s39, s34, s33')
        a(f's_cmp_eq_u32 s35, 1')
        a(f's_cselect_b32 s36, {i}, s36')
        a(f's_cselect_b32 s37, s39, s37')
        a(f's_sub_u32 s33, s33, s38')
        a.label(nx)
    a(f's_mov_b32 s{S_X}, s36')
    a(f's_mov_b32 s{S_T}, s37')
    a.label('L_tk_ok')
    a(f's_lshl_b32 s33, s{S_X}, 5')
    a(f's_or_b32 s33, s33, s{S_T}')
    a(f's_lshl_b32 s34, s{S_FOREIGN}, 8')
    a(f's_or_b32 s33, s33, s34')
    a('v_mov_b32 v2, s33')
    a('v_mov_b32 v3, 0')
    a('ds_write_b32 v3, v2')
    a('s_waitcnt lgkmcnt(0)')
    a.label('L_tk_wait')
    a('s_barrier')
    a('v_mov_b32 v3, 0')
    a('ds_read_b32 v2, v3')
    a('s_waitcnt lgkmcnt(0)')
    a('v_readfirstlane_b32 s33, v2')
    a(f's_and_b32 s{S_T}, s33, 31')
    a(f's_bfe_u32 s{S_X}, s33, 0x30005')
    a(f's_bfe_u32 s{S_FOREIGN}, s33, 0x10008')
    a('s_barrier')

def gbar_arrive(a, extra=None):
    a('s_waitcnt vmcnt(0)')
    a('s_barrier')
    sk = a.uid('L_ga')
    a(f's_cmp_lg_u32 s{S_W}, 0')
    a(f's_cbranch_scc1 {sk}')
    a(f's_lshl_b32 s33, s{S_X}, 2')
    a(f's_add_u32 s33, s33, {D_LN}')
    a('v_mov_b32 v2, 1')
    a('v_mov_b32 v3, 0')
    a('s_mov_b64 exec, 1')
    a(f'buffer_atomic_add v2, v3, s[{S_DBG}:{S_DBG+3}], s33 offen sc1')
    if extra:
        a(f's_cmp_eq_u32 s{extra}, 0'); a(f's_cbranch_scc1 {sk}x')
        a(f'buffer_atomic_add v2, v3, s[{S_DBG}:{S_DBG+3}], s{extra} offen sc1')
        a.label(f'{sk}x')
    a('s_mov_b64 exec, -1')
    a.label(sk)

def gbar_wait(a, vt0=2, vt1=3):
    sk = a.uid('L_gw')
    a(f's_cmp_lg_u32 s{S_W}, 0')
    a(f's_cbranch_scc1 {sk}')
    a(f'v_lshlrev_b32 v{vt1}, 2, v{V_LANE}')
    a(f'v_and_b32 v{vt1}, 31, v{vt1}')
    poll(a, f'buffer_load_dword v{vt0}, v{vt1}, s[{S_DBG}:{S_DBG+3}], 0 offen offset:{D_LN} sc1',
         f'v_cmp_le_u32 vcc, 32, v{vt0}', sleep=4)
    a.label(sk)
    a('s_barrier')

def header(lds=163840, grid=256):
    return f'''; generated by dev/gen.py (own generator)
; @launch grid=({grid},1,1) block=(256,1,1) lds={lds}
.amdgcn_target "amdgcn-amd-amdhsa--gfx950"
.text
.globl {KNAME}
.p2align 8
.type {KNAME},@function
{KNAME}:
'''

def footer(nv=512, acc=256):
    return f'''.section .rodata,"a"
.p2align 6
.amdhsa_kernel {KNAME}
  .amdhsa_next_free_vgpr {nv}
  .amdhsa_next_free_sgpr 102
  .amdhsa_accum_offset {acc}
  .amdhsa_group_segment_fixed_size 0
  .amdhsa_kernarg_size 104
  .amdhsa_user_sgpr_count 2
  .amdhsa_user_sgpr_kernarg_segment_ptr 1
  .amdhsa_system_sgpr_workgroup_id_x 1
.end_amdhsa_kernel
'''

STAMPS = 0x8000
DEV_STAMPS = True
def stamp(a, idx, wave=0):
    if not DEV_STAMPS:
        return
    sk = a.uid('L_st')
    a(f's_cmp_lg_u32 s{S_W}, {wave}'); a(f's_cbranch_scc1 {sk}')
    a('s_memrealtime s[98:99]')
    a('s_memtime s[96:97]')
    a(f's_lshl_b32 s100, s{S_X}, 5'); a(f's_add_u32 s100, s100, s{S_T}'); a('s_lshl_b32 s100, s100, 7')
    a(f's_add_u32 s100, s100, {STAMPS + 8*idx}')
    a('s_waitcnt lgkmcnt(0)')
    a('v_mov_b32 v78, s98'); a('v_mov_b32 v79, s99'); a('v_mov_b32 v77, 0')
    a('s_mov_b64 exec, 1')
    a(f'buffer_store_dwordx2 v[78:79], v77, s[{S_WS}:{S_WS+3}], s100 offen')
    a('v_mov_b32 v78, s96'); a('v_mov_b32 v79, s97')
    a(f'buffer_store_dwordx2 v[78:79], v77, s[{S_WS}:{S_WS+3}], s100 offen offset:64')
    a('s_mov_b64 exec, -1')
    a.label(sk)
```

```python
from gen_base import *
import struct
def f2u(x): return struct.unpack('<I', struct.pack('<f', x))[0]

X_MEM, X_TOK, X_SM, X_O, RESB = 0, 9216, 13312, 14336, 16384
V_EX, V_RES, V_CS, V_C1, V_M2O, V_IDX, V_SEL = 0, 1, 2, 3, 4, 5, 6
AR, LR = 8, 24
QA, QB, KA, KB, VA, VB = 40, 44, 48, 52, 56, 60
KX, VX = 64, 72
PROF = 0x20000
PROF_STEP = None
PROF_REAL = False
EXP = set()

REAL = [[2, 3, 4, 5, 6, 7, 8, 0, 1], [0, 1, 2, 3, 4, 5, 6, 7, 8], [6, 7, 8, 0, 1, 2, 3, 4, 5], [4, 5, 8, 6, 7, 0, 1, 2, 3]]
def knob(name, dflt=0):
    for x in EXP:
        if x.startswith(name + '='): return int(x[len(name)+1:])
    return dflt
def delay(a, n):
    while n > 0:
        a.rawins(f's_nop {min(n, 16) - 1}'); n -= 16
RESIDENT = [('Q', 0), ('K', 2), ('K', 4), ('K', 5), ('V', 5), ('O', 2, 0), ('O', 2, 1), ('O', 3, 0), ('O', 3, 1)]
REGIMG = [(m, c) for c in range(9) for m in 'QKV' if (m, c) not in RESIDENT] + \
         [('O', 0, 0), ('O', 0, 1), ('O', 1, 0), ('O', 1, 1), ('S',)]
assert len(REGIMG) == 27
MIXED = [[('K', 2), ('K', 7), ('Q', 0), ('V', 2), ('Q', 2), ('K', 1), ('V', 5), ('K', 0), ('Q', 4), ('V', 7), ('V', 0), ('K', 8), ('K', 5), ('K', 4), ('K', 6), ('Q', 6)],
         [('Q', 2), ('K', 5), ('K', 6), ('V', 7), ('K', 4), ('K', 2), ('Q', 6), ('V', 0), ('K', 0), ('V', 2), ('K', 7), ('Q', 4), ('K', 1), ('V', 5), ('K', 8), ('Q', 0)]]
RLB, D_RL = 0xB000000, 192
def rl_items():
    n = knob('rlc')
    return MIXED[knob('nx', 1)][16 - n:] if n else []
def rl_res(j): return (0, 2, 3)[j % 3]
def opbase(k):
    return ('a', 8 * k) if k < 32 else ('v', 80 + 8 * (k - 32))
def opreg(img, tau):
    k = 2 * REGIMG.index(img) + tau
    f, b = opbase(k)
    return f'{f}[{b}:{b+7}]'

S_CRD = 37
S_WOK, S_WA = 38, 39
S_H, S_S = 40, 41
S_O0, S_O1, S_O2 = 42, 43, 44
S_MR = 45
S_MB = 46
S_CP = 47
S_CS = 48
S_CR = 49
S_K0, S_K1 = 50, 51
S_HB, S_B = 52, 53
S_C = 54
S_NM = 56
S_SEGO = 58
S_CSS = 59
S_GM = 60
S_RM = 62
S_Q4 = 70
S_ONE = 72
S_TO, S_TA, S_TR = 52, 53, 45
T0, T1, T2, T3 = 33, 34, 35, 36
PS = 74

def pmode():
    for x in EXP:
        if x.startswith('pm='): return x[3:]
    return None
PM_IDS = {}
def mark(a, name):
    pm = pmode()
    if PROF_STEP is None or pm is None or not name.startswith(pm): return
    k = PM_IDS.setdefault(name, len(PM_IDS) + 1)
    assert k <= 11
    prof(a, k, force=True)
def prof(a, k, _=0, force=False):
    if PROF_STEP is None: return
    if pmode() and not force and k not in (0, 12): return
    sk = a.uid('L_pf')
    a(f's_cmp_lg_u32 s{S_S}, {PROF_STEP + (1 if k >= 12 else 0)}'); a(f's_cbranch_scc1 {sk}')
    a.rawins(f's_mem{"real" if PROF_REAL else ""}time s[{PS+2*k}:{PS+2*k+1}]')
    a.label(sk)

def smf(d, av, b):
    return f'v_smfmac_f32_16x16x64_bf16 v[{d}:{d+3}], v[{av}:{av+3}], {b}, v{V_IDX}'

def lread(slot, dst):
    return [f'ds_read_b128 v[{dst+4*q}:{dst+4*q+3}], v{V_RES} offset:{slot*4096 + q*1024}' for q in range(4)]

S_B_, S_C_ = 20, 24

def setup(a):
    W = S_W
    WS = f's[{S_WS}:{S_WS+3}]'
    if 'hx' in EXP: a(f's_xor_b32 s{S_H}, s{S_T}, 1')
    else: a(f's_mov_b32 s{S_H}, s{S_T}')
    srd(a, S_A, 16, 576 * 8192); srd(a, S_B_, 24, 576 * 8192); srd(a, S_C_, 32, 576 * 8192); srd(a, S_D, 40, 32 * 147456)
    EA = knob('ea')
    S_M0 = 76
    if EA: srd(a, S_M0, 8, 9216)
    a(f'v_mov_b32 v79, v{V_LANE}')
    L = 79
    a(f'v_lshlrev_b32 v{V_EX}, 4, v{L}')
    a(f's_mul_i32 s{T0}, s{W}, 36864'); a(f's_add_u32 s{T0}, s{T0}, {RESB}'); a(f'v_add_u32 v{V_RES}, s{T0}, v{V_EX}')
    a(f'v_bfe_u32 v9, v{L}, 3, 1'); a('v_lshlrev_b32 v9, 12, v9')
    a(f'v_and_b32 v10, 7, v{L}'); a('v_lshl_add_u32 v9, v10, 3, v9')
    a(f'v_bfe_u32 v10, v{L}, 4, 1'); a('v_lshl_add_u32 v9, v10, 6, v9')
    a(f'v_lshrrev_b32 v10, 5, v{L}')
    a(f'v_lshl_add_u32 v{V_C1}, v10, 13, v9')
    a(f'v_lshl_add_u32 v{V_CS}, v10, 2, v9')
    if knob('x4'):
        a(f'v_bfe_u32 v9, v{L}, 3, 1'); a('v_lshlrev_b32 v9, 12, v9')
        a(f'v_and_b32 v11, 7, v{L}'); a('v_lshl_add_u32 v9, v11, 4, v9')
        a(f'v_lshl_add_u32 v9, v10, 13, v9')
        a(f'v_bfe_u32 v11, v{L}, 4, 1'); a('v_xor_b32 v11, 1, v11'); a(f'v_lshl_add_u32 v{V_C1}, v11, 17, v9')
    a(f'v_bfe_u32 v9, v{L}, 2, 1'); a('v_lshlrev_b32 v9, 2, v9'); a(f'v_lshrrev_b32 v10, 4, v{L}'); a('v_add_u32 v9, v9, v10')
    a(f'v_and_b32 v10, 3, v{L}'); a('v_lshlrev_b32 v10, 2, v10'); a(f'v_lshl_add_u32 v{V_M2O}, v9, 4, v10')
    if knob('x4'):
        a(f'v_and_b32 v9, 7, v{L}'); a(f'v_bfe_u32 v10, v{L}, 4, 1'); a(f'v_lshrrev_b32 v11, 5, v{L}'); a('v_lshl_add_u32 v10, v10, 1, v11')
        a('v_lshlrev_b32 v10, 2, v10'); a('v_lshl_add_u32 v9, v9, 4, v10')
        a(f's_cmp_lt_u32 s{W}, 2'); a('s_cselect_b64 vcc, -1, 0'); a(f'v_cndmask_b32 v{V_M2O}, v{V_M2O}, v9, vcc')
    a(f'v_bfe_u32 v10, v{L}, 3, 1'); a('v_mul_u32_u24 v10, 0xaaaa, v10'); a(f'v_add_u32 v{V_IDX}, 0x4444, v10')
    a(f'v_and_b32 v9, 7, v{L}'); a(f'v_bfe_u32 v10, v{L}, 4, 1'); a('v_lshlrev_b32 v10, 2, v10')
    a('v_sub_u32 v9, v9, v10')
    for r in range(2):
        a(f'v_mov_b32 v11, 0'); a('v_mov_b32 v12, 0x3f80'); a(f'v_cmp_eq_u32 vcc, {2*r}, v9'); a('v_cndmask_b32 v11, v11, v12, vcc')
        a('v_mov_b32 v12, 0x3f800000'); a(f'v_cmp_eq_u32 vcc, {2*r+1}, v9'); a(f'v_cndmask_b32 v{V_SEL+r}, v11, v12, vcc')
    a(f's_mov_b32 s{S_C}, {f2u(128 ** -0.5 * 1.4426950408889634):#x}'); a(f's_mov_b32 s{S_C+1}, s{S_C}')
    a(f's_mov_b32 s{S_NM}, 0x00ff00ff'); a(f's_mov_b32 s{S_NM+1}, 0x00ff00ff')
    a(f's_mov_b32 s{S_GM}, 0'); a(f's_mov_b32 s{S_GM+1}, -1')
    for r, m in enumerate((0x0011, 0x1100, 0x0022, 0x2200)):
        a(f's_mov_b32 s{S_RM+2*r}, {m * 0x10001:#x}'); a(f's_mov_b32 s{S_RM+2*r+1}, {m * 0x10001:#x}')
    if knob('x4'):
        a(f's_cmp_lt_u32 s{W}, 2')
        for r in range(4):
            a(f's_cselect_b32 s{S_RM+2*r}, {(0x0303 << 2*r) * 0x10001:#x}, s{S_RM+2*r}'); a(f's_mov_b32 s{S_RM+2*r+1}, s{S_RM+2*r}')
    a(f's_mov_b32 s{S_Q4}, 0x3e803e80'); a(f's_mov_b32 s{S_Q4+1}, 0x3e803e80')
    a(f's_mov_b32 s{S_ONE}, 0x3f803f80'); a(f's_mov_b32 s{S_ONE+1}, 0x3f803f80')
    a(f's_lshl_b32 s{T0}, s{W}, 11')
    a(f's_lshl_b32 s{T1}, s{S_H}, 13'); a(f's_add_u32 s{S_SEGO}, s{T0}, s{T1}')
    a(f's_cmp_lt_u32 s{S_H}, 16')
    a(f's_cselect_b32 s{T0}, 32, -16'); a(f's_cselect_b32 s{T1}, 16, 32')
    a(f's_cmp_eq_u32 s{W}, 1'); a(f's_cselect_b32 s{T0}, s{T1}, s{T0}')
    a(f's_cmp_eq_u32 s{W}, 2'); a(f's_cselect_b32 s{T0}, 64, s{T0}')
    a(f's_add_u32 s{S_B}, s{T0}, s{S_H}')
    a(f's_cmp_lt_u32 s{S_H}, 8'); a(f's_cselect_b32 s{S_HB}, 1, 0')
    a(f's_cmp_lt_u32 s{W}, 2'); a(f's_cselect_b32 s{S_HB}, 1, s{S_HB}')
    a(f's_cmp_eq_u32 s{W}, 3'); a(f's_cselect_b32 s{S_HB}, 0, s{S_HB}')
    a(f's_min_u32 s{S_B}, s{S_B}, 71')
    a(f's_lshl_b32 s{T0}, s{S_B}, 7'); a(f's_add_u32 s{S_MB}, s{T0}, {M2}')
    a(f's_lshl_b32 s{T0}, s{S_B}, 12'); a(f's_add_u32 s{S_CR}, s{T0}, {C1}')
    a(f's_lshl_b32 s{T0}, s{W}, 14'); a(f's_lshl_b32 s{T1}, s{S_H}, 7'); a(f's_add_u32 s{T0}, s{T0}, s{T1}')
    a(f's_add_u32 s{S_CS}, s{T0}, {C1}')
    a(f's_lshl_b32 s{T0}, s{W}, 13'); a(f's_add_u32 s{T0}, s{T0}, s{T1}'); a(f's_add_u32 s{S_CSS}, s{T0}, {C1 + 64*4096}')
    a(f's_mov_b32 s{S_K0}, 0'); a(f's_mov_b32 s{S_K1}, 0')
    a('s_waitcnt lgkmcnt(0)')
    for s_ in (S_A, S_B_, S_C_, S_D): srd_fix(a, s_)
    if EA:
        srd_fix(a, S_M0)
        a(f'v_and_b32 v72, 7, v{L}'); a('v_mul_u32_u24 v72, 1152, v72')
        a(f'v_lshrrev_b32 v73, 3, v{L}'); a('v_lshl_add_u32 v72, v73, 4, v72')
        a('v_mov_b32 v74, 0'); a(f'v_lshlrev_b32 v75, 7, v{L}')
    u0, p0, tau, p2, p3, p1 = 8, 9, 10, 11, 12, 13
    a(f'v_and_b32 v{u0}, 1, v{L}'); a(f'v_bfe_u32 v{p0}, v{L}, 4, 1'); a(f'v_bfe_u32 v{tau}, v{L}, 1, 1')
    a(f'v_bfe_u32 v{p2}, v{L}, 2, 1'); a(f'v_bfe_u32 v{p3}, v{L}, 3, 1'); a(f'v_bfe_u32 v{p1}, v{L}, 5, 1')
    VQ, VO, VS_, VT0, VT1, VU0, VU1 = 20, 21, 22, 23, 24, 25, 26
    a(f'v_lshlrev_b32 v14, 5, v{tau}'); a(f'v_lshl_add_u32 v14, v{u0}, 4, v14'); a(f's_lshl_b32 s{T0}, s{W}, 6'); a(f'v_add_u32 v14, s{T0}, v14')
    a(f'v_lshl_add_u32 v16, v{p1}, 1, v{p3}'); a(f'v_lshl_add_u32 v16, v{p2}, 4, v16'); a(f'v_lshl_add_u32 v16, v{p0}, 5, v16')
    a(f'v_mul_u32_u24 v17, 1152, v16'); a(f'v_add_u32 v{VO}, v17, v14')
    a(f'v_xor_b32 v{tau}, v{tau}, v{p0}')
    a(f'v_lshlrev_b32 v14, 5, v{tau}'); a(f'v_lshl_add_u32 v14, v{u0}, 4, v14'); a(f's_lshl_b32 s{T0}, s{W}, 6'); a(f'v_add_u32 v14, s{T0}, v14')
    a(f'v_lshl_add_u32 v15, v{p1}, 1, v{p0}')
    a(f'v_lshl_add_u32 v16, v{p2}, 2, v15'); a(f'v_lshl_add_u32 v16, v{p3}, 3, v16')
    a(f'v_lshl_add_u32 v{VQ}, v16, 13, v14')
    if 'pB' in EXP:
        a(f'v_lshrrev_b32 v16, 4, v{L}'); a(f's_lshl_b32 s{T0}, s{W}, 4'); a(f'v_add_u32 v16, s{T0}, v16')
        a(f'v_and_b32 v14, 15, v{L}'); a('v_lshlrev_b32 v14, 4, v14'); a(f'v_lshl_add_u32 v{VQ}, v16, 13, v14')
    a(f'v_lshl_add_u32 v16, v{p2}, 4, v15'); a(f'v_lshl_add_u32 v16, v{p3}, 5, v16')
    a(f'v_lshl_add_u32 v16, v{tau}, 6, v16'); a('v_mul_u32_u24 v17, 1152, v16')
    a(f'v_lshlrev_b32 v18, 4, v{u0}'); a(f's_lshl_b32 s{T0}, s{W}, 5'); a(f's_add_u32 s{T0}, s{T0}, 1024')
    a(f'v_add_u32 v18, s{T0}, v18'); a(f'v_add_u32 v{VS_}, v17, v18')
    a(f'v_bfe_u32 v{u0}, v{L}, 1, 1'); a(f'v_bfe_u32 v{p0}, v{L}, 2, 1'); a(f'v_bfe_u32 v{p3}, v{L}, 3, 1')
    a(f'v_bfe_u32 v{p2}, v{L}, 4, 1'); a(f'v_bfe_u32 v14, v{L}, 5, 1')
    a(f'v_and_b32 v18, 1, v{L}'); a('v_lshlrev_b32 v18, 3, v18'); a(f's_mul_i32 s{T0}, s{W}, 36864'); a(f's_add_u32 s37, s{T0}, {RESB}')
    a('v_add_u32 v18, s37, v18')
    a(f'v_lshl_add_u32 v15, v{p2}, 2, v{u0}'); a(f'v_lshl_add_u32 v15, v{p3}, 3, v15'); a(f'v_lshl_add_u32 v15, v{p0}, 4, v15')
    a('v_lshl_add_u32 v15, v14, 6, v15')
    a(f'v_lshl_add_u32 v16, v{p0}, 1, v15')
    a(f'v_xor_b32 v17, 2, v16')
    a(f'v_lshl_add_u32 v{VT0}, v16, 4, v18'); a(f'v_lshl_add_u32 v{VT1}, v17, 4, v18')
    a(f'v_lshl_add_u32 v15, v{p3}, 1, v{u0}'); a(f'v_lshl_add_u32 v15, v{p2}, 2, v15'); a(f'v_lshl_add_u32 v15, v{p0}, 3, v15')
    a('v_lshl_add_u32 v15, v14, 6, v15')
    a(f'v_lshl_add_u32 v{VU0}, v15, 4, v18'); a(f'v_add_u32 v{VU1}, 256, v{VU0}')
    PB = knob('pb')
    VQB, VTB, VUB, VXT, VXO, VXP = 27, 48, 56, 60, 62, 64
    VRA, VRZ, VRF = 64, 66, 68
    if PB == 2:
        a(f's_lshl_b32 s{T0}, s{W}, 12'); a(f's_sub_u32 s{T0}, s{T0}, s37')
        for k_, r_ in enumerate((VT0, VT1, VU0, VU1)): a(f'v_add_u32 v{VXP + k_}, s{T0}, v{r_}')
    if PB == 1:
        b = [8, 9, 10, 11, 12, 13]
        for i in range(6): a(f'v_bfe_u32 v{b[i]}, v{L}, {i}, 1')
        a(f's_and_b32 s{T0}, s{W}, 1'); a(f's_lshr_b32 s{T1}, s{W}, 1')
        a(f'v_xor_b32 v14, v{b[1]}, v{b[4]}'); a(f'v_lshl_add_u32 v14, v14, 1, v{b[0]}')
        a(f'v_xor_b32 v15, v{b[2]}, v{b[5]}'); a('v_lshl_add_u32 v14, v15, 2, v14'); a(f'v_lshl_add_u32 v14, v{b[3]}, 3, v14')
        a(f'v_lshl_add_u32 v15, v{b[5]}, 2, v{b[4]}')
        a(f's_lshl_b32 s{T2}, s{T0}, 1'); a(f's_lshl_b32 s{T3}, s{T1}, 5'); a(f's_add_u32 s{T2}, s{T2}, s{T3}'); a(f'v_add_u32 v15, s{T2}, v15')
        a('v_lshlrev_b32 v14, 4, v14'); a(f'v_lshl_add_u32 v{VQ}, v15, 13, v14'); a(f'v_xor_b32 v{VQB}, 0x80, v{VQ}')
        a(f'v_lshl_add_u32 v14, v{b[1]}, 1, v{b[0]}')
        a(f'v_xor_b32 v15, v{b[2]}, v{b[4]}'); a('v_lshl_add_u32 v14, v15, 2, v14')
        a(f'v_xor_b32 v15, v{b[3]}, v{b[5]}'); a('v_lshl_add_u32 v14, v15, 3, v14')
        a(f'v_lshl_add_u32 v15, v{b[5]}, 4, v{b[4]}')
        a(f's_lshl_b32 s{T2}, s{T0}, 1'); a(f's_lshl_b32 s{T3}, s{T1}, 3'); a(f's_add_u32 s{T2}, s{T2}, s{T3}'); a(f'v_add_u32 v15, s{T2}, v15')
        a('v_mul_u32_u24 v15, 1152, v15'); a(f'v_lshl_add_u32 v{VO}, v14, 4, v15')
        if knob('rlc'):
            a(f'v_lshrrev_b32 v14, 13, v{VQ}'); a(f'v_and_b32 v15, 0xff, v{VQ}'); a(f'v_lshl_add_u32 v{VRA}, v14, 10, v15')
            a(f'v_xor_b32 v{VRA + 1}, 0x80, v{VRA}'); a(f'v_mov_b32 v{VRZ}, 0')
            a(f's_and_b32 s41, s{S_H}, 3'); a('s_cmp_eq_u32 s41, 1'); a(f's_cselect_b32 s41, {knob("rlc")}, -1')
            a(f's_lshr_b32 s43, s{S_H}, 2'); a('s_lshl_b32 s42, s43, 2'); a(f's_add_u32 s42, s42, {D_RL}')
            a('s_lshl_b32 s43, s43, 16'); a(f's_add_u32 s43, s43, {RLB}'); a('s_mov_b32 s39, 0')
        a(f'v_lshlrev_b32 v16, 3, v{b[0]}'); a(f'v_add_u32 v16, {RESB}, v16')
        a(f'v_lshl_add_u32 v16, v{b[2]}, 8, v16'); a(f'v_lshl_add_u32 v16, v{b[4]}, 9, v16'); a(f'v_lshl_add_u32 v16, v{b[1]}, 4, v16')
        a(f'v_xor_b32 v14, s{T0}, v{b[4]}'); a('v_lshl_add_u32 v17, v14, 6, v16')
        a(f'v_xor_b32 v14, s{T1}, v{b[3]}'); a('v_lshl_add_u32 v17, v14, 7, v17')
        a(f'v_lshl_add_u32 v17, v{b[3]}, 10, v17'); a(f'v_lshl_add_u32 v17, v{b[5]}, 11, v17')
        a(f'v_lshl_add_u32 v17, v{b[2]}, 5, v17')
        for t in range(2):
            if t: a('v_xor_b32 v17, 32, v17')
            for wp in range(4): a(f'v_add_u32 v{VTB + 4*t + wp}, {wp * 36864}, v17')
            a(f'v_subrev_u32 v{VXT + t}, {RESB}, v17')
        a(f'v_lshl_add_u32 v17, v{b[3]}, 5, v16')
        a(f'v_xor_b32 v14, s{T0}, v{b[2]}'); a('v_lshl_add_u32 v17, v14, 6, v17')
        a(f'v_xor_b32 v14, s{T1}, v{b[4]}'); a('v_lshl_add_u32 v17, v14, 7, v17')
        a(f'v_lshl_add_u32 v17, v{b[5]}, 10, v17')
        for wp in range(4): a(f'v_add_u32 v{VUB + wp}, {wp * 36864}, v17')
        a(f'v_subrev_u32 v{VXO}, {RESB}, v17')
    a(f's_lshl_b32 s{T2}, s{S_H}, 8')
    a(f's_mul_i32 s{T3}, s{S_H}, 147456')
    def poison():
        sk = a.uid('L_np')
        a(f's_cmp_eq_u32 s{S_HB}, 0'); a(f's_cbranch_scc1 {sk}')
        if 'nopoison' in EXP: a(f's_branch {sk}')
        for r in range(4): a(f'v_mov_b32 v{8+r}, -1')
        for par in range(2):
            a(f's_add_u32 s{T0}, s{S_CR}, {par*294912}')
            for i in range(4):
                a(f'buffer_store_dwordx4 v[8:11], v{V_EX}, {WS}, s{T0} offen offset:{i*1024} sc1')
        for k in (1, 2):
            a(f's_add_u32 s{T0}, s{S_MB}, {9216*k}')
            a(f'buffer_store_dword v8, v{V_M2O}, {WS}, s{T0} offen sc1')
        a.label(sk)

    def worder(w):
        order = [('O', 0, 0), ('O', 0, 1), ('O', 1, 0), ('O', 1, 1), ('S',)] + \
                [(m, REAL[w].index(r)) for r in range(9) for m in 'QKV'] + [x for x in RESIDENT if x[0] == 'O']
        if 'qkv1' in EXP: order = order[5:32] + order[:5] + order[32:]
        assert sorted(map(str, order)) == sorted(map(str, REGIMG + RESIDENT))
        return order
    def plan(w):
        order = worder(w)
        pos = {img: i for i, img in enumerate(order)}
        free = set(range(9)); slot_of = {}; st_ = {'nxt': 0}
        def issue():
            out = []
            while st_['nxt'] < 36:
                i = st_['nxt']; img = order[i]
                if img in RESIDENT:
                    sl = RESIDENT.index(img)
                    if sl not in free: break
                else:
                    cand = [j for j in free if pos[RESIDENT[j]] > i]
                    if not cand: break
                    sl = max(cand, key=lambda j: pos[RESIDENT[j]])
                free.discard(sl); slot_of[i] = sl
                out.append(i); st_['nxt'] += 1
            return out
        first = issue(); after = []
        for i in range(36):
            assert i in slot_of
            if order[i] not in RESIDENT: free.add(slot_of[i])
            after.append(issue())
        return order, slot_of, first, after
    def plan2(w, nx):
        mixed = MIXED[nx]
        pure = [(m, r) for r in range(9) for m in 'QKV' if (m, r) not in mixed]
        order = [('O', 0, 0), ('O', 0, 1), ('O', 1, 0), ('O', 1, 1), ('S',)] + [(m, REAL[w].index(r)) for m, r in pure + mixed] + \
                [x for x in RESIDENT if x[0] == 'O']
        assert sorted(map(str, order)) == sorted(map(str, REGIMG + RESIDENT))
        pos = {img: i for i, img in enumerate(order)}
        hp = [pos[RESIDENT[j]] for j in range(9)] + [99] * nx
        free = set(range(9 + nx)); slot_of = {}; st_ = {'nxt': 0}
        def issue():
            out = []
            while st_['nxt'] < 36:
                i = st_['nxt']
                cand = [j for j in sorted(free) if hp[j] >= i]
                if not cand: break
                sl = min(cand, key=lambda j: hp[j])
                free.discard(sl); slot_of[i] = sl; out.append(i); st_['nxt'] += 1
            return out
        first = issue(); after = []
        for i in range(36):
            assert i in slot_of
            if hp[slot_of[i]] != i: free.add(slot_of[i])
            after.append(issue())
        for i in range(2, 36): assert i in first or i not in after[i - 1]
        assert slot_of[4] != 9
        return order, slot_of, first, after
    PLAN = [plan2(w, knob('nx', 1)) if PB else plan(w) for w in range(4)]
    SHARED = PB == 1
    def wload(w):
        order, slot_of, first, after = PLAN[w]
        def dma(i):
            img = order[i]; slot = slot_of[i]
            rows = [0, 1, 2, 3]
            if img[0] in 'QKV':
                sr = {'Q': S_A, 'K': S_B_, 'V': S_C_}[img[0]]; vo = [VQ] * 4; st = 16 * 8192
                if 'pB' in EXP: st = 4 * 8192
                so = [n * st for n in rows]
                if SHARED: vo = [VQ, VQB, VQ, VQB]; so = [(8 * (n & 1) + 16 * (n >> 1)) * 8192 for n in rows]
                a(f's_add_u32 s53, s{T2}, {REAL[w][img[1]] << 19}')
            elif img[0] == 'O':
                sr = S_D; vo = [VO] * 4; so = [n * 4 * 1152 for n in rows]
                if SHARED: so = [(4 * (n & 1) + 32 * (n >> 1)) * 1152 for n in rows]
                a(f's_add_u32 s53, s{T3}, {img[2] * 64 * 1152 + img[1] * 256}')
            else:
                sr = S_D; vo = [VS_] * 4; so = [n * 4 * 1152 for n in rows]
                a(f's_mov_b32 s53, s{T3}')
            RI = rl_items()
            if img[0] in 'QKV' and (img[0], REAL[w][img[1]]) in RI:
                j = RI.index((img[0], REAL[w][img[1]]))
                lr_, ld_ = a.uid('L_rl'), a.uid('L_rd')
                a('s_cmp_eq_u32 s39, 1'); a(f's_cbranch_scc1 {lr_}')
                for n in range(4):
                    if slot == 9: a(f's_mov_b32 m0, {w*4096 + n*1024}')
                    else: a(f's_add_u32 m0, s37, {slot*4096 + n*1024}')
                    a(f's_add_u32 s38, s53, {so[n]}')
                    a(f'buffer_load_dwordx4 v{vo[n]}, s[{sr}:{sr+3}], s38 offen lds', tok=f'cw{w}_{i}')
                a(f's_branch {ld_}')
                a.label(lr_)
                for n in range(4):
                    if slot == 9: a(f's_mov_b32 m0, {w*4096 + n*1024}')
                    else: a(f's_add_u32 m0, s37, {slot*4096 + n*1024}')
                    a(f's_add_u32 s38, s43, {j * 8 * 65536 + rl_res(j) * 256 + (8 * (n & 1) + 16 * (n >> 1)) * 1024}')
                    a(f'buffer_load_dwordx4 v{VRA + (n & 1)}, {WS}, s38 offen{" sc1" if knob("rsc", 1) else ""} lds', tok=f'cw{w}_{i}')
                a.label(ld_)
                return
            for n in range(4):
                if slot == 9: a(f's_mov_b32 m0, {w*4096 + n*1024}')
                else: a(f's_add_u32 m0, s37, {slot*4096 + n*1024}')
                a(f's_add_u32 s38, s53, {so[n]}')
                a(f'buffer_load_dwordx4 v{vo[n]}, s[{sr}:{sr+3}], s38 offen{" nt" if "wnt" in EXP else ""}{" sc1" if "wsc1" in EXP else ""} lds', tok=f'cw{w}_{i}')
        def wback(i):
            if order[i] in RESIDENT:
                for q in range(4):
                    a(f'ds_write_b128 v{V_RES}, v[{32+4*q}:{32+4*q+3}] offset:{RESIDENT.index(order[i])*4096 + q*1024}')
        if 'wst2' in EXP and w == 0: stamp(a, 5)
        for i in first: dma(i)
        if 'wst2' in EXP and w == 0: stamp(a, 6)
        poison()
        for i in range(36):
            img = order[i]; slot = slot_of[i]
            a.need(f'cw{w}_{i}')
            if w == 0 and i == 0:
                a(f's_lshl_b32 s53, s{S_X}, 2'); a(f's_add_u32 s53, s53, {D_LN}')
                a('v_mov_b32 v8, 1'); a('v_mov_b32 v9, 0'); a('s_mov_b64 exec, 1')
                a(f'buffer_atomic_add v8, v9, s[{S_DBG}:{S_DBG+3}], s53 offen sc1')
                a('s_mov_b64 exec, -1')
            if SHARED:
                a('s_barrier')
                SMP = {knob('rs0', 7) + knob('rsd', 2) * k_: k_ for k_ in range(knob('rsn', 3))} if knob('rlc') else {}
                if i - 9 in SMP:
                    a(f'v_readfirstlane_b32 s38, v{VRF + SMP[i - 9]}'); a('s_cmp_ge_u32 s38, s41'); a('s_cselect_b32 s39, 1, s39')
                if i in SMP: a(f'buffer_load_dword v{VRF + SMP[i]}, v{VRZ}, s[{S_DBG}:{S_DBG+3}], s42 offen sc1')
                if EA and i == 11 and w == 0:
                    a(f's_lshl_b32 s38, s{S_FOREIGN}, 16'); a('s_add_u32 s38, s38, 1'); a('v_mov_b32 v8, s38'); a('s_mov_b64 exec, 1')
                    a(f'buffer_atomic_add v8, v74, s[{S_DBG}:{S_DBG+3}], 0 offen offset:{D_CHB} sc1')
                    a('s_mov_b64 exec, -1')
                if EA and i == knob('eas', 21):
                    a(f'buffer_load_dword v71, v74, s[{S_DBG}:{S_DBG+3}], 0 offen offset:{D_CHB} sc1')
                if EA and i == knob('eae', 30):
                    a('v_readfirstlane_b32 s38, v71'); a('s_lshr_b32 s45, s38, 16'); a('s_and_b32 s38, s38, 0xffff')
                    a('s_cmp_ge_u32 s38, 32'); a('s_cselect_b32 s44, 1, 0')
                    if w == 3:
                        sk = a.uid('L_kv0')
                        a(f's_cbranch_scc0 {sk}')
                        a(f's_lshl_b32 s38, s{S_H}, 2'); a(f's_add_u32 s38, s38, {F_KV}')
                        a('s_mov_b64 exec, 3'); a(f'buffer_load_dword v73, v75, {WS}, s38 offen sc1'); a('s_mov_b64 exec, -1')
                        a.label(sk)
                    for c in range(3 if w == 3 else 2):
                        a(f'buffer_load_dwordx4 v[{AR+4*c}:{AR+4*c+3}], v72, s[{S_M0}:{S_M0+3}], 0 offen offset:{REAL[w][c]*128}')
                if i:
                    wback(i - 1)
                    for j in after[i - 1]: dma(j)
            vt = VU0 if img[0] == 'O' else VT0
            for t in range(2):
                if img in RESIDENT: f, b = 'v', 32 + 8 * t
                else: f, b = opbase(2 * REGIMG.index(img) + t)
                for hb in range(2):
                    for rd in range(2):
                        r = b + 4 * hb + 2 * rd
                        if SHARED and img[0] != 'S':
                            wp = rd + 2 * hb; so = PLAN[wp][1][i] * 4096
                            if so == 9 * 4096:
                                if img[0] == 'O': adr = f'v{VXO} offset:{wp * 4096 + t * 2048}'
                                else: adr = f'v{VXT + t} offset:{wp * 4096}'
                            elif img[0] == 'O': adr = f'v{VUB + wp} offset:{so + t * 2048}'
                            else: adr = f'v{VTB + 4*t + wp} offset:{so}'
                        elif slot == 9: adr = f'v{VXP + (2 if img[0] == "O" else 0) + t} offset:{hb*2048 + rd*512}'
                        else: adr = f'v{vt+t} offset:{slot*4096 + hb*2048 + rd*512}'
                        a(f'ds_read_b64_tr_b16 {f}[{r}:{r+1}], {adr}')
            a('s_waitcnt lgkmcnt(0)')
            if not SHARED:
                wback(i)
                for j in after[i]: dma(j)
            if 'wst2' in EXP and w == 0 and i == 0: stamp(a, 7)
            if 'wst' in EXP and w == 0 and i in (4, 18, 31): stamp(a, {4: 5, 18: 6, 31: 7}[i])
        if SHARED:
            a('s_barrier'); wback(35)
        if EA:
            for c in range(3 if w == 3 else 2):
                a(f'ds_write_b128 v{V_EX}, v[{AR+4*c}:{AR+4*c+3}] offset:{X_MEM + REAL[w][c]*1024}')
        a('s_waitcnt lgkmcnt(0)')
        if EA:
            ok, dn = a.uid('L_eok'), a.uid('L_edn')
            a('s_cmp_eq_u32 s44, 1'); a(f's_cbranch_scc1 {ok}')
            a('v_mov_b32 v76, 32')
            poll(a, f'buffer_load_dword v77, v74, s[{S_DBG}:{S_DBG+3}], 0 offen offset:{D_CHB} sc1',
                 'v_and_b32 v78, 0xffff, v77\nv_cmp_le_u32 vcc, v76, v78', sleep=6)
            a('v_readfirstlane_b32 s45, v77'); a('s_lshr_b32 s45, s45, 16')
            a(f's_branch {dn}')
            a.label(ok)
            if w == 3: a(f'v_readlane_b32 s{S_K0}, v73, 0'); a(f'v_readlane_b32 s{S_K1}, v73, 1')
            a.label(dn)
            a(f's_mov_b32 s{S_FOREIGN}, s45')
    done = a.uid('L_wl')
    lbl = [a.uid('L_wl') for _ in range(4)]
    if 'half' in EXP:
        a(f's_bitcmp1_b32 s{S_H}, 1'); a(f's_cbranch_scc1 {done}')
    for w in range(1, 4):
        a(f's_cmp_eq_u32 s{W}, {w}'); a(f's_cbranch_scc1 {lbl[w]}')
    for w in range(4):
        a.label(lbl[w])
        wload(w)
        if w < 3: a(f's_branch {done}')
    a.label(done)
    if 'rsv' in EXP:
        sk = a.uid('L_rsv')
        a(f's_cmp_lg_u32 s{W}, 0'); a(f's_cbranch_scc1 {sk}')
        a(f's_lshl_b32 s38, s{S_X}, 5'); a(f's_add_u32 s38, s38, s{S_T}'); a('s_lshl_b32 s38, s38, 7'); a(f's_add_u32 s38, s38, {STAMPS}')
        a('v_mov_b32 v72, 0'); a('s_mov_b64 exec, 1')
        for k_ in range(3): a(f'buffer_store_dword v{68 + k_}, v72, {WS}, s38 offen offset:{8 * (5 + k_)}')
        a('s_mov_b64 exec, -1')
        a.label(sk)

def team_barrier(a):
    a('s_waitcnt vmcnt(0)')
    a('s_barrier')
    sk = a.uid('L_tb')
    a(f's_cmp_lg_u32 s{S_W}, 0'); a(f's_cbranch_scc1 {sk}')
    a(f's_lshl_b32 s{T0}, s{S_FOREIGN}, 16'); a(f's_add_u32 s{T0}, s{T0}, 1')
    a(f'v_mov_b32 v8, s{T0}'); a('v_mov_b32 v9, 0')
    a('s_mov_b64 exec, 1')
    a(f'buffer_atomic_add v8, v9, s[{S_DBG}:{S_DBG+3}], 0 offen offset:{D_CHB} sc1')
    a('s_mov_b64 exec, -1')
    a('v_mov_b32 v9, 0'); a('v_mov_b32 v11, 32')
    poll(a, f'buffer_load_dword v8, v9, s[{S_DBG}:{S_DBG+3}], 0 offen offset:{D_CHB} sc1',
         'v_and_b32 v10, 0xffff, v8\nv_cmp_le_u32 vcc, v11, v10', sleep=6)
    a('v_lshrrev_b32 v8, 16, v8')
    a('ds_write_b32 v9, v8')
    a('s_waitcnt lgkmcnt(0)')
    a.label(sk)
    a('s_barrier')
    a('v_mov_b32 v9, 0')
    a('ds_read_b32 v8, v9')
    a('s_waitcnt lgkmcnt(0)')
    a(f'v_readfirstlane_b32 s{S_FOREIGN}, v8')
    a('s_barrier')

def loop(a, sc, tag, role):
    WS = f's[{S_WS}:{S_WS+3}]'
    w = {'r0': 0, 'r1': 1, 'r2': 2, 'n2': 2, 'io': 3}[role]
    red = role[0] == 'r'
    io = role == 'io'
    t_ = tag + role
    LS, LE = f'L_cs{t_}', f'L_ce{t_}'
    acc = {'Q': (QA, QB), 'K': (KA, KB), 'V': (VA, VB)}
    SL = lambda i: AR + 4*i
    def W(m, c, t):
        if (m, c) in RESIDENT: return f'v[{LR+8*t}:{LR+8*t+7}]'
        return opreg((m, c), t)
    def mm1(m, c, t, slot): return smf(acc[m][t], SL(slot), W(m, c, t))
    def lr(img): return lread(RESIDENT.index(img), LR)
    def aread(c, slot): return f'ds_read_b128 v[{SL(slot)}:{SL(slot)+3}], v{V_EX} offset:{X_MEM + REAL[w][c]*1024}'
    def awrite(c): return f'ds_write_b128 v{V_EX}, v[{SL(c)}:{SL(c)+3}] offset:{X_MEM + REAL[w][c]*1024}'
    def cvt(d, s0): return f'v_cvt_pk_bf16_f32 v{d}, v{s0}, v{s0+1}'
    def tr(d): return f'v_mfma_f32_16x16x16_bf16 v[{d}:{d+3}], v[{d}:{d+1}], v[{V_SEL}:{V_SEL+1}], 0'
    def pka(d, x, y): return f'v_pk_add_f32 v[{d}:{d+1}], v[{x}:{x+1}], v[{y}:{y+1}]'
    def zero(r): return f'v_mov_b64 v[{r}:{r+1}], 0'
    def em(*xs):
        for x in xs:
            if isinstance(x, (list, tuple)): em(*x)
            else: a(x)
    nown = 3 if io else 2
    RT = 54
    def prep(): return [[zero(r) for r in range(QA, QA + 24, 2)], lr(('Q', 0))]
    B1 = f'L_b1{t_}'
    PZ = knob('pz', 0)
    SCH = knob('sch', 0)
    def poison(d, caddr, maddr, part=range(5)):
        o = []
        for i in part:
            if i < 4: o.append(f'buffer_store_dwordx4 v[{d}:{d+3}], v{V_EX}, {WS}, s{caddr} offen offset:{i*1024}{sc}')
            else: o.append(f'buffer_store_dword v{d}, v{V_M2O}, {WS}, s{maddr} offen{sc}')
        return o

    def kvcheck(off=0, lazy=False, va=8):
        u = a.uid('')
        if off:
            em(f's_add_u32 s{T1}, s{S_S}, {off}', f's_lshr_b32 s{T1}, s{T1}, 1', f's_add_u32 s{T1}, s{T1}, 1', f's_min_u32 s{T1}, s{T1}, 32')
        else:
            em(f's_lshr_b32 s{T1}, s{S_S}, 1', f's_add_u32 s{T1}, s{T1}, 1')
        if lazy: em(f's_mov_b32 s{T2}, s{T1}')
        else: em(f's_add_u32 s{T2}, s{T1}, 1', f's_min_u32 s{T2}, s{T2}, 32')
        par = 's_cbranch_scc0' if off & 1 else None
        sel = (lambda: em(f's_bitcmp1_b32 s{S_S}, 0', f's_cselect_b32 s{T0}, s{S_K0}, s{S_K1}')) if off & 1 else \
              (lambda: em(f's_bitcmp1_b32 s{S_S}, 0', f's_cselect_b32 s{T0}, s{S_K1}, s{S_K0}'))
        sel()
        OK, FL = f'L_ok{t_}{u}', f'L_fl{t_}{u}'
        em(f's_cmp_ge_u32 s{T0}, s{T2}', f's_cbranch_scc1 {OK}')
        em(f'v_lshlrev_b32 v{va+1}, 3, v{V_EX}')
        em(f's_lshl_b32 s{T3}, s{S_H}, 2', f's_add_u32 s{T3}, s{T3}, {F_KV}')
        a.label(FL)
        em('s_mov_b64 exec, 3', f'buffer_load_dword v{va}, v{va+1}, {WS}, s{T3} offen sc1', 's_mov_b64 exec, -1')
        em(f'v_readlane_b32 s{S_K0}, v{va}, 0', f'v_readlane_b32 s{S_K1}, v{va}, 1')
        sel()
        em(f's_cmp_ge_u32 s{T0}, s{T1}', f's_cbranch_scc1 {OK}')
        em(f's_cmp_eq_u32 s{S_BUD}, 0', f's_cbranch_scc1 {OK}')
        em(f's_sub_u32 s{S_BUD}, s{S_BUD}, 1', f's_branch {FL}')
        a.label(OK)
        if SCH:
            em(f's_add_u32 s{T1}, s{T1}, 1', f's_cmp_ge_u32 s{T0}, s{T1}', f's_cselect_b32 s{T0}, {off + 2}, {off}',
               f's_add_u32 s{T0}, s{T0}, s{S_S}', f's_min_u32 s{T0}, s{T0}, 63',
               f's_lshl_b32 s{T0}, s{T0}, 5', f's_add_u32 s{T0}, s{T0}, s{S_H}', f's_lshl_b32 s{S_WA}, s{T0}, 13')
            return
        em(f's_add_u32 s{T1}, s{T1}, 1', f's_cmp_ge_u32 s{T0}, s{T1}', f's_cselect_b32 s{S_WOK}, 1, 0')
        em(f's_add_u32 s{T0}, s{S_S}, 2', f's_lshl_b32 s{T0}, s{T0}, 5', f's_add_u32 s{T0}, s{T0}, s{S_H}', f's_lshl_b32 s{S_WA}, s{T0}, 13')

    def kvl(ta=T1, tb=T2):
        return [[f's_add_u32 s{ta}, s{S_SEGO}, {KF}', f's_add_u32 s{tb}, s{S_SEGO}, {VF}'],
                [f'buffer_load_dwordx4 v[{KX+4*k}:{KX+4*k+3}], v{V_EX}, {WS}, s{ta} offen offset:{k*1024}' for k in range(2)],
                [f'buffer_load_dwordx4 v[{VX+4*k}:{VX+4*k+3}], v{V_EX}, {WS}, s{tb} offen offset:{k*1024}' for k in range(2)]]
    def kvloads(ta=T1, tb=T2): em(kvl(ta, tb))
    def warm(t):
        return [f'v_lshlrev_b32 v{t}, 3, v{V_EX}', f's_add_u32 s{T1}, s{S_WA}, {KF}', f's_add_u32 s{T2}, s{S_WA}, {VF}',
                f'buffer_load_dword v{V_M2O}, v{t}, {WS}, s{T1} offen', f'buffer_load_dword v{V_M2O}, v{t}, {WS}, s{T2} offen']
    ones4 = [f'v_mov_b64 v[{VX}:{VX+1}], -1', f'v_mov_b64 v[{VX+2}:{VX+3}], -1']

    a.label(LE)
    em(prep())
    if knob('ea'):
        assert SCH
        if io: kvcheck(0, True, 20)
        a('s_barrier')
        kvloads()
        if io: em(warm(20)); kvcheck(1, True, 20)
        if red: em(f's_add_u32 s{S_CRD}, s{S_CR}, 294912')
        if red and PZ == 4: em(ones4)
        em(f's_branch {B1}')
    if io and not knob('ea'):
        kvcheck()
        if SCH: em(warm(9)); kvcheck(1)
    if not knob('ea'):
        srd(a, S_A, 8, 9216)
        a(f'v_lshrrev_b32 v21, 4, v{V_EX}')
        a('v_and_b32 v22, 7, v21'); a('v_mul_u32_u24 v22, 1152, v22')
        a('v_lshrrev_b32 v23, 3, v21'); a('v_lshl_add_u32 v22, v23, 4, v22')
        a('s_waitcnt lgkmcnt(0)')
        srd_fix(a, S_A)
        a('s_barrier')
        for c in range(nown):
            a(f'buffer_load_dwordx4 v[{SL(c)}:{SL(c)+3}], v22, s[{S_A}:{S_A+3}], 0 offen offset:{REAL[w][c]*128}')
    if not knob('ea'):
        if SCH: kvloads()
        if red: em(f's_add_u32 s{S_CRD}, s{S_CR}, 294912')
        if red and PZ == 4: em(ones4)
        em([awrite(c) for c in range(nown)])
        em(f's_branch {B1}')

    a.label(LS)
    prof(a, 12)
    prof(a, 0)
    if 'nocomm' in EXP:
        em(prep())
        if SCH: kvloads()
        if io: em(f's_mov_b32 s{S_WOK}, 1', f's_add_u32 s{T0}, s{S_S}, 3', f's_min_u32 s{T0}, s{T0}, 63', f's_lshl_b32 s{T0}, s{T0}, 5',
                  f's_add_u32 s{T0}, s{T0}, s{S_H}', f's_lshl_b32 s{S_WA}, s{T0}, 13')
        em([awrite(c) for c in range(nown)])
        em(f's_branch {B1}')
    if io:
        if 'steps' in EXP:
            em('s_memtime s[74:75]', f's_lshl_b32 s{T0}, s{S_H}, 6', f's_add_u32 s{T0}, s{T0}, s{S_S}', f's_lshl_b32 s{T0}, s{T0}, 3',
               f's_add_u32 s{T0}, s{T0}, {PROF + 0x10000}', 's_waitcnt lgkmcnt(0)', 'v_mov_b32 v8, s74', 'v_mov_b32 v9, s75', 'v_mov_b32 v10, 0',
               's_mov_b64 exec, 1', f'buffer_store_dwordx2 v[8:9], v10, {WS}, s{T0} offen', 's_mov_b64 exec, -1')
        em(prep())
        if SCH: kvloads(); kvcheck(1)
        else: kvcheck()
    elif not red:
        if SCH: kvloads()
    elif red:
        late = w == 1
        em(f's_xor_b32 s{S_CRD}, s{S_CP}, 294912', f's_add_u32 s{S_CRD}, s{S_CRD}, s{S_CR}')
        NS = knob('ns', 3)
        SETS = [8, 24, 64][:NS]
        SEL, RA, RT = 56, 60, 54
        def cload(b):
            return [f'buffer_load_dwordx4 v[{b+4*i}:{b+4*i+3}], v{V_EX}, {WS}, s{S_CRD} offen offset:{i*1024} sc1' for i in range(4)]
        selr = [f's_add_u32 s{T1}, s{S_MB}, s{S_O0}',
                f'v_and_b32 v{RT}, 64, v{V_EX}', f'v_lshrrev_b32 v{RT}, 2, v{RT}', f'v_mov_b32 v{RT+1}, 0x3f80', f'v_lshlrev_b32 v{RT}, v{RT}, v{RT+1}'] + \
               [f'v_cndmask_b32 v{SEL+r}, 0, v{RT}, s[{S_RM+2*r}:{S_RM+2*r+1}]' for r in range(4)]
        X4 = knob('x4') and role != 'r2'
        if X4:
            selr = [f's_add_u32 s{T1}, s{S_MB}, s{S_O0}',
                    f'v_and_b32 v{RT}, 16, v{V_EX}', f'v_mov_b32 v{RT+1}, 0x3f80', f'v_lshlrev_b32 v{RT}, v{RT}, v{RT+1}'] + \
                   [f'v_cndmask_b32 v{SEL+r}, 0, v{RT}, s[{S_RM+2*r}:{S_RM+2*r+1}]' for r in range(4)]
        zq = [zero(r) for r in range(QA, RT, 2)]
        if PZ == 4: zq = zq + ones4
        if PZ == 2:
            em('v_mov_b64 v[44:45], -1', 'v_mov_b64 v[46:47], -1', f's_add_u32 s{T2}, s{S_CR}, s{S_CP}', f's_add_u32 s{T3}, s{S_MB}, s{S_O1}')
            em(poison(44, T2, T3))
        if late:
            em(selr, zq)
            delay(a, knob('d1'))
            em(cload(SETS[0]))
            for b in SETS[1:]:
                delay(a, knob('g1', 16)); em(cload(b))
        else:
            delay(a, knob('d0'))
            em(cload(SETS[0]), selr)
            if NS > 1: delay(a, knob('g0', 8)); em(cload(SETS[1]))
            em(zq)
            if NS > 2: delay(a, knob('g0', 8)); em(cload(SETS[2]))
        if SCH: kvloads(T2, T3)
        def creduce(sb, first=False):
            mf = lambda i: f'v_mfma_f32_16x16x32_bf16 v[{RA}:{RA+3}], v[{SEL}:{SEL+3}], v[{sb+4*i}:{sb+4*i+3}], {"0" if i == 0 else f"v[{RA}:{RA+3}]"}'
            if PZ == 5 and X4:
                mf = lambda i: f'v_mfma_f32_16x16x32_bf16 v[{RA}:{RA+3}], v[{sb+4*i}:{sb+4*i+3}], v[{SEL}:{SEL+3}], {"0" if i == 0 else f"v[{RA}:{RA+3}]"}'
                xo = lambda d, x, y: f'v_bitop3_b32 v{d}, v{x}, v{y}, s{S_TR} bitop3:0x7e'
                em(mf(0), mf(1), xo(RT, sb, sb + 4), mf(2), mf(3), xo(RT + 1, sb + 8, sb + 12))
                em(f'v_bitop3_b32 v{RT}, v{RT}, v{RT+1}, 1 bitop3:0xa8', f'v_cmp_ne_u32 vcc, 0, v{RT}', 's_cmp_eq_u64 vcc, 0')
                return
            if PZ == 5:
                stp = 1 if role == 'r2' else 2
                xo = lambda d, x, y: f'v_bitop3_b32 v{d}, v{x}, v{y}, s{S_TR} bitop3:0x7e'
                for i in range(4):
                    b = sb + 4*i
                    a(mf(i))
                    if stp == 2:
                        if i == 0: em(xo(RT, b, b + 2))
                        elif i == 1: em(xo(RT + 1, b, b + 2))
                        elif i == 2: em(f'v_or_b32 v{RT}, v{RT}, v{RT+1}', xo(RT + 1, b, b + 2))
                        else: em(f'v_or_b32 v{RT}, v{RT}, v{RT+1}', xo(RT + 1, b, b + 2))
                    else:
                        if i == 0: em(xo(RT, b, b + 1), xo(RT + 1, b + 2, b + 3))
                        else: em(f'v_or_b32 v{RT}, v{RT}, v{RT+1}', xo(RT + 1, b, b + 1), f'v_or_b32 v{RT}, v{RT}, v{RT+1}', xo(RT + 1, b + 2, b + 3))
                em(f'v_bitop3_b32 v{RT}, v{RT}, v{RT+1}, 1 bitop3:0xa8', f'v_cmp_ne_u32 vcc, 0, v{RT}', 's_cmp_eq_u64 vcc, 0')
                return
            if first:
                b = sb
                em(f'v_max3_u32 v{RT}, v{b}, v{b+1}, v{b+2}', f'v_max3_u32 v{RT+1}, v{b+3}, v{b+4}, v{b+5}', mf(0),
                   f'v_max3_u32 v{RT}, v{RT}, v{b+6}, v{b+7}', mf(1),
                   f'v_max3_u32 v{RT+1}, v{RT+1}, v{b+8}, v{b+9}', f'v_max3_u32 v{RT}, v{RT}, v{b+10}, v{b+11}', mf(2),
                   f'v_max3_u32 v{RT+1}, v{RT+1}, v{b+12}, v{b+13}', f'v_max3_u32 v{RT}, v{RT}, v{b+14}, v{b+15}', mf(3))
            else:
                for i in range(4):
                    b = sb + 4*i
                    a(mf(i))
                    if i == 0: em(f'v_max3_u32 v{RT}, v{b}, v{b+1}, v{b+2}', f'v_mov_b32 v{RT+1}, v{b+3}')
                    else: em(f'v_max3_u32 v{RT}, v{RT}, v{b}, v{b+1}', f'v_max3_u32 v{RT+1}, v{RT+1}, v{b+2}, v{b+3}')
            em(f'v_max_u32 v{RT}, v{RT}, v{RT+1}', f'v_cmp_eq_u32 vcc, -1, v{RT}', 's_cmp_eq_u64 vcc, 0')
        RL, RD = f'L_rp{t_}', f'L_rpd{t_}'
        if knob('md') == 2:
            assert PZ == 5
            NB = knob('nb1' if late else 'nb0', 2)
            cregs = list(range(8, 24))
            RX = f'L_rx{t_}'
            if PROF_STEP is not None: em('s_waitcnt vmcnt(0)'); prof(a, 10)
            creduce(8); em(f's_cbranch_scc1 {RD}')
            a.retok(cregs, 'cstale')
            a.label(RL)
            em(f's_cmp_eq_u32 s{S_BUD}, 0', f's_cbranch_scc1 {RX}', f's_sub_u32 s{S_BUD}, s{S_BUD}, 1')
            if 'cnt' in EXP: em('s_add_u32 s98, s98, 1')
            em('s_mov_b64 exec, vcc', cload(8))
            a.retok(cregs, 'cstale')
            em(f's_waitcnt vmcnt({4*(NB-1)})')
            stp = 1 if role == 'r2' else 2
            xo = lambda d, x, y: f'v_bitop3_b32 v{d}, v{x}, v{y}, s{S_TR} bitop3:0x7e'
            mf = lambda i: f'v_mfma_f32_16x16x32_bf16 v[{RA}:{RA+3}], v[{SEL}:{SEL+3}], v[{8+4*i}:{8+4*i+3}], {"0" if i == 0 else f"v[{RA}:{RA+3}]"}'
            ml = knob('mlate')
            for i in range(4):
                b = 8 + 4*i
                if stp == 2:
                    if i == 0: em(xo(RT, b, b + 2))
                    else: em(xo(RT + 1, b, b + 2), f'v_or_b32 v{RT}, v{RT}, v{RT+1}')
                else:
                    if i == 0: em(xo(RT, b, b + 1), xo(RT + 1, b + 2, b + 3), f'v_or_b32 v{RT}, v{RT}, v{RT+1}')
                    else: em(xo(RT + 1, b, b + 1), f'v_or_b32 v{RT}, v{RT}, v{RT+1}', xo(RT + 1, b + 2, b + 3), f'v_or_b32 v{RT}, v{RT}, v{RT+1}')
                if not ml and i > 0: a(mf(i - 1))
            em(f'v_and_b32 v{RT}, 1, v{RT}', f'v_cmp_ne_u32 vcc, 0, v{RT}')
            if not ml: a(mf(3))
            em('s_cmp_eq_u64 vcc, 0', f's_cbranch_scc0 {RL}')
            a.label(RX)
            em('s_mov_b64 exec, -1')
            if knob('mlate'):
                for i in range(4): a(mf(i))
        elif knob('md'):
            NB = knob('nb1' if late else 'nb0', 1)
            cregs = list(range(8, 24))
            for j in range(1, NB):
                delay(a, knob('gb1' if late else 'gb0', 16)); em(cload(8))
            em(f's_waitcnt vmcnt({4*(NB-1)})'); a.retok(cregs, 'cstale')
            creduce(8, NB > 1); em(f's_cbranch_scc1 {RD}')
            RM = f'L_rm{t_}'
            a.label(RL)
            em(f's_cmp_eq_u32 s{S_BUD}, 0', f's_cbranch_scc1 {RM}', f's_sub_u32 s{S_BUD}, s{S_BUD}, 1')
            if 'cnt' in EXP: em('s_add_u32 s98, s98, 1')
            em('s_mov_b64 exec, vcc', cload(8), 's_mov_b64 exec, -1')
            em(f's_waitcnt vmcnt({4*(NB-1)})'); a.retok(cregs, 'cstale')
            em(f'v_max3_u32 v{RT}, v8, v9, v10', f'v_max3_u32 v{RT+1}, v11, v12, v13')
            for b in range(14, 22, 4): em(f'v_max3_u32 v{RT}, v{RT}, v{b}, v{b+1}', f'v_max3_u32 v{RT+1}, v{RT+1}, v{b+2}, v{b+3}')
            em(f'v_max3_u32 v{RT}, v{RT}, v22, v23', f'v_max_u32 v{RT}, v{RT}, v{RT+1}', f'v_cmp_eq_u32 vcc, -1, v{RT}', 's_cmp_eq_u64 vcc, 0')
            em(f's_cbranch_scc0 {RL}')
            a.label(RM)
            for i in range(4):
                b = 8 + 4*i
                a(f'v_mfma_f32_16x16x32_bf16 v[{RA}:{RA+3}], v[{SEL}:{SEL+3}], v[{b}:{b+3}], {"0" if i == 0 else f"v[{RA}:{RA+3}]"}')
        elif SCH:
            assert NS == 1
            if PROF_STEP is not None: a.needr(*range(8, 24)); prof(a, 10)
            creduce(8); em(f's_cbranch_scc1 {RD}')
            a.label(RL)
            em(f's_cmp_eq_u32 s{S_BUD}, 0', f's_cbranch_scc1 {RD}', f's_sub_u32 s{S_BUD}, s{S_BUD}, 1')
            if 'cnt' in EXP: em('s_add_u32 s98, s98, 1')
            em(cload(8))
            creduce(8); em(f's_cbranch_scc0 {RL}')
        else:
            if PROF_STEP is not None: em('s_waitcnt vmcnt(0)'); prof(a, 10)
            a.label(RL)
            for j, b in enumerate(SETS):
                creduce(b); em(f's_cbranch_scc1 {RD}')
                if j == NS - 1: em(f's_cmp_eq_u32 s{S_BUD}, 0', f's_cbranch_scc1 {RD}', f's_sub_u32 s{S_BUD}, s{S_BUD}, 1')
                if 'cnt' in EXP: em('s_add_u32 s98, s98, 1')
                em(cload(b))
            em(f's_branch {RL}')
        a.label(RD)
        if X4:
            em(f'v_permlane32_swap_b32 v{RA}, v{RA+2}', f'v_permlane32_swap_b32 v{RA+1}, v{RA+3}',
               f'v_add_f32 v{RA}, v{RA}, v{RA+2}', f'v_add_f32 v{RA+1}, v{RA+1}, v{RA+3}', cvt(RA, RA))
        else:
            em(f'v_add_f32_dpp v{RA}, v{RA}, v{RA} row_ror:8 row_mask:0xf bank_mask:0xf',
               f'v_add_f32_dpp v{RA+1}, v{RA+1}, v{RA+1} row_ror:8 row_mask:0xf bank_mask:0xf', cvt(RA, RA))
        em(f'buffer_store_dword v{RA}, v{V_M2O}, {WS}, s{T1} offen{sc}')
    prof(a, 9)
    a('s_barrier')
    real = REAL[w]
    em(f's_add_u32 s{T0}, s{S_O0}, {M2 + real[0]*1024}')
    if io: em(f's_add_u32 s{T1}, s{S_O0}, {M2 + real[2]*1024}')
    MS = knob('ms', 3)
    msets = ([[8, 12, 16], [64, 68, 72]] if io else [[8, 12], [64, 68], [72, 76]])[:MS]
    def mload(st):
        o = [f'buffer_load_dwordx4 v[{st[c]}:{st[c]+3}], v{V_EX}, {WS}, s{T0} offen offset:{(real[c]-real[0])*1024} sc1' for c in range(2)]
        if io: o.append(f'buffer_load_dwordx4 v[{st[2]}:{st[2]+3}], v{V_EX}, {WS}, s{T1} offen sc1')
        return o
    CT = 20 if io else 16
    def mcheck(st, first=False):
        x, y = st[0], st[1]
        aw = lambda c: f'ds_write_b128 v{V_EX}, v[{st[c]}:{st[c]+3}] offset:{X_MEM + REAL[w][c]*1024}'
        if first:
            em(f'v_max3_u32 v{CT}, v{x}, v{x+1}, v{x+2}', f'v_max3_u32 v{CT+1}, v{x+3}, v{y}, v{y+1}', aw(0),
               f'v_max3_u32 v{CT}, v{CT}, v{y+2}, v{y+3}', aw(1))
            if io:
                z = st[2]
                em(f'v_max3_u32 v{CT+1}, v{CT+1}, v{z}, v{z+1}', f'v_max3_u32 v{CT}, v{CT}, v{z+2}, v{z+3}', aw(2))
        else:
            em(aw(0), f'v_max3_u32 v{CT}, v{x}, v{x+1}, v{x+2}', aw(1),
               f'v_max3_u32 v{CT}, v{CT}, v{x+3}, v{y}', f'v_max3_u32 v{CT+1}, v{y+1}, v{y+2}, v{y+3}')
            if io:
                z = st[2]
                em(aw(2), f'v_max3_u32 v{CT}, v{CT}, v{z}, v{z+1}', f'v_max3_u32 v{CT+1}, v{CT+1}, v{z+2}, v{z+3}')
        em(f'v_max_u32 v{CT}, v{CT}, v{CT+1}', f'v_cmp_eq_u32 vcc, -1, v{CT}', 's_cmp_eq_u64 vcc, 0')
    fill = [] if io else ([zero(r) for r in range(RT if red else QA, QA + 24, 2)], lr(('Q', 0)))
    if fill and knob('pre02' if w in (0, 2) else 'pre1'):
        em(fill); fill = []
    delay(a, knob('d2' if w in (0, 2) else 'd3'))
    em(mload(msets[0]))
    if fill: em(fill[0])
    if len(msets) > 1:
        delay(a, knob('g2', 0 if fill else 16)); em(mload(msets[1]))
    if fill: em(fill[1])
    if red and PZ == 1:
        em('v_mov_b64 v[20:21], -1', 'v_mov_b64 v[22:23], -1', f's_add_u32 s{T2}, s{S_MB}, s{S_O2}')
        em(poison(20, S_CRD, T2))
    if len(msets) > 2:
        delay(a, knob('g3', 8)); em(mload(msets[2]))
    PL = f'L_pm{t_}'
    if knob('mm') == 2:
        MB_ = knob('mb02' if w in (0, 2) else ('mb1' if w == 1 else 'mb3'), 2)
        st = msets[0]
        mregs = list(range(8, 8 + 4 * len(st)))
        PX = f'L_px{t_}'
        if PROF_STEP is not None: em('s_waitcnt vmcnt(0)'); prof(a, 11, 0)
        mcheck(st); em(f's_cbranch_scc1 {B1}')
        a.retok(mregs, 'mstale')
        a.label(PL)
        em(f's_cmp_eq_u32 s{S_BUD}, 0', f's_cbranch_scc1 {PX}', f's_sub_u32 s{S_BUD}, s{S_BUD}, 1')
        if 'cnt' in EXP: em('s_add_u32 s99, s99, 1')
        em('s_mov_b64 exec, vcc', mload(st))
        a.retok(mregs, 'mstale')
        em(f's_waitcnt vmcnt({len(st)*(MB_-1)})')
        mcheck(st, True); em(f's_cbranch_scc0 {PL}')
        a.label(PX)
        em('s_mov_b64 exec, -1')
    elif knob('mm'):
        MB_ = knob('mb02' if w in (0, 2) else ('mb1' if w == 1 else 'mb3'), 1)
        st = msets[0]
        mregs = list(range(8, 8 + 4 * len(st)))
        for j in range(1, MB_):
            delay(a, knob('gm02' if w in (0, 2) else ('gm1' if w == 1 else 'gm3'), 16)); em(mload(st))
        em(f's_waitcnt vmcnt({len(st)*(MB_-1)})'); a.retok(mregs, 'mstale')
        mcheck(st, MB_ > 1); em(f's_cbranch_scc1 {B1}')
        a.label(PL)
        em(f's_cmp_eq_u32 s{S_BUD}, 0', f's_cbranch_scc1 {B1}', f's_sub_u32 s{S_BUD}, s{S_BUD}, 1')
        if 'cnt' in EXP: em('s_add_u32 s99, s99, 1')
        em('s_mov_b64 exec, vcc', mload(st), 's_mov_b64 exec, -1')
        em(f's_waitcnt vmcnt({len(st)*(MB_-1)})'); a.retok(mregs, 'mstale')
        mcheck(st, MB_ > 1); em(f's_cbranch_scc0 {PL}')
    else:
        if PROF_STEP is not None: em('s_waitcnt vmcnt(0)'); prof(a, 11, 0)
        a.label(PL)
        DL = [B1] + [f'L_pd{j}{t_}' for j in range(1, len(msets))]
        for j, st in enumerate(msets):
            mcheck(st); em(f's_cbranch_scc1 {DL[j]}')
            if j == len(msets) - 1: em(f's_cmp_eq_u32 s{S_BUD}, 0', f's_cbranch_scc1 {DL[j]}', f's_sub_u32 s{S_BUD}, s{S_BUD}, 1')
            if 'cnt' in EXP: em('s_add_u32 s99, s99, 1')
            em(mload(st))
        em(f's_branch {PL}')
        for j in range(len(msets) - 1, 0, -1):
            a.label(DL[j])
            regs = list(range(8, 8 + 4 * len(msets[j])))
            a.retok(regs, 'mstale')
            for c in range(len(msets[j])):
                em(f'v_mov_b64 v[{8+4*c}:{8+4*c+1}], v[{msets[j][c]}:{msets[j][c]+1}]', f'v_mov_b64 v[{8+4*c+2}:{8+4*c+3}], v[{msets[j][c]+2}:{msets[j][c]+3}]')
            if j > 1: em(f's_branch {B1}')
    a.label(B1)
    prof(a, 1)
    if SCH:
        sched1(a, locals()); return
    q = lambda c, t, sl: mm1('Q', c, t, sl)
    k = lambda c, t, sl: mm1('K', c, t, sl)
    v = lambda c, t, sl: mm1('V', c, t, sl)
    r2 = lr(('K', 2))
    em(q(0, 0, 0), q(0, 1, 0), r2[0], r2[1], q(1, 0, 1), r2[2], r2[3], q(1, 1, 1), k(0, 0, 0), k(0, 1, 0), k(1, 0, 1), k(1, 1, 1))
    a('s_waitcnt lgkmcnt(4)')
    a('s_barrier')
    prof(a, 2)
    if io:
        kvloads()
        em(f'v_lshlrev_b32 v20, 3, v{V_EX}', f'v_mov_b32 v21, s{S_S}')
        em(f's_lshl_b32 s{T2}, s{S_H}, 7', f's_add_u32 s{T2}, s{T2}, {F_CH}')
        em('s_mov_b64 exec, 1', f'buffer_store_dword v21, v20, {WS}, s{T2} offen sc1', 's_mov_b64 exec, -1')
        NW = f'L_nw{t_}'
        em(f's_cmp_eq_u32 s{S_WOK}, 0', f's_cbranch_scc1 {NW}')
        em(f's_add_u32 s{T1}, s{S_WA}, {KF}', f's_add_u32 s{T2}, s{S_WA}, {VF}')
        em(f'buffer_load_dword v{V_M2O}, v20, {WS}, s{T1} offen', f'buffer_load_dword v{V_M2O}, v20, {WS}, s{T2} offen')
        a.label(NW)
        em(aread(3, 3))
    else:
        em(aread(2, 2), aread(3, 3))
        if not (red and PZ == 4): kvloads()
    r3, r4, r5 = lr(('K', 4)), lr(('K', 5)), lr(('V', 5))
    X = [[] for _ in range(12)]
    if red and PZ == 4:
        kv = kvl()
        pz = poison(VX, S_CRD, T3)
        em(kv[0], f's_add_u32 s{T3}, s{S_MB}, s{S_O2}')
        seq = kv[1] + pz + kv[2]
        st0 = knob('x0', 0)
        if knob('xs', 1) == 1:
            for i, x in enumerate(seq): X[st0 + i].append(x)
        else:
            for i, x in enumerate(seq): X[st0 + i // 2].append(x)
    em(v(0, 0, 0), X[0], v(0, 1, 0), X[1])
    a.need('mstale')
    em(aread(4, 0), v(1, 0, 1), X[2], v(1, 1, 1), X[3], aread(5, 1))
    em(q(2, 0, 2), X[4], q(2, 1, 2), X[5], k(2, 0, 2), X[6], k(2, 1, 2), X[7], aread(6, 2), r3[0])
    em(q(3, 0, 3), X[8], r3[1], r3[2], q(3, 1, 3), X[9], r3[3], k(3, 0, 3), X[10], k(3, 1, 3), X[11], aread(7, 3))
    em(q(4, 0, 0), q(4, 1, 0), k(4, 0, 0), k(4, 1, 0), aread(8, 0), r4[0])
    em(q(5, 0, 1), r4[1], r4[2], q(5, 1, 1), r4[3], q(6, 0, 2), q(6, 1, 2), q(7, 0, 3), q(7, 1, 3), q(8, 0, 0), q(8, 1, 0))
    em(k(5, 0, 1), k(5, 1, 1), r5[0], r5[1], cvt(QA, QA), k(6, 0, 2), r5[2], r5[3], cvt(QA + 1, QA + 2), k(6, 1, 2), cvt(QB, QB),
       k(7, 0, 3), cvt(QB + 1, QB + 2), k(7, 1, 3), k(8, 0, 0), k(8, 1, 0))
    prof(a, 3)
    em(tr(QA), cvt(KA, KA), cvt(KA + 1, KA + 2))
    em(tr(QB), cvt(KB, KB), cvt(KB + 1, KB + 2))
    em(tr(KA), cvt(QA, QA), cvt(QA + 1, QA + 2))
    em(tr(KB), cvt(QA + 2, QB), cvt(QA + 3, QB + 2))
    em(f'v_mfma_f32_16x16x32_bf16 v[{KX}:{KX+3}], v[{KX}:{KX+3}], v[{QA}:{QA+3}], 0', cvt(KA, KA), cvt(KA + 1, KA + 2))
    em(f'v_mfma_f32_16x16x32_bf16 v[{KX+4}:{KX+7}], v[{KX+4}:{KX+7}], v[{QA}:{QA+3}], 0', cvt(KA + 2, KB), cvt(KA + 3, KB + 2))
    em(f'v_mfma_f32_16x16x32_bf16 v[{QB}:{QB+3}], v[{KA}:{KA+3}], v[{QA}:{QA+3}], 0')
    em(f's_add_u32 s{T0}, s{S_SEGO}, {KM}')
    em(f'buffer_store_dwordx4 v[{KA}:{KA+3}], v{V_EX}, {WS}, s{T0} offen sc1')
    for r in range(4):
        a(f'v_mov_b32_dpp v{KX+r}, v{KX+4+r} quad_perm:[0,1,2,3] row_mask:0xf bank_mask:0xc')
    NM, GM = f's[{S_NM}:{S_NM+1}]', f's[{S_GM}:{S_GM+1}]'
    em(f'v_cndmask_b32 v{KB}, v{QB+1}, v{QB}, {NM}', f'v_cndmask_b32 v{KB+1}, v{QB+3}, v{QB+2}, {NM}',
       f'v_cndmask_b32 v{KB}, v{KB}, v{KB+1}, {GM}')
    em(f'ds_write_b32 v{V_EX}, v{KB} offset:{X_SM + 4*w}', f'ds_write_b128 v{V_EX}, v[{KX}:{KX+3}] offset:{X_TOK + w*1024}')
    prof(a, 4)
    em(v(5, 0, 1), v(5, 1, 1), aread(2, 1), v(6, 0, 2), v(6, 1, 2), aread(3, 2), v(7, 0, 3), v(7, 1, 3), aread(4, 3))
    a('s_waitcnt lgkmcnt(3)')
    a('s_barrier')
    prof(a, 5)
    a(f'ds_read_b128 v[64:67], v{V_EX} offset:{X_SM}')
    for kk in range(4):
        a(f'ds_read_b128 v[{40+4*kk}:{43+4*kk}], v{V_EX} offset:{X_TOK + kk*1024}')
    em(v(8, 0, 0), v(8, 1, 0), v(2, 0, 1), v(2, 1, 1))
    em(v(3, 0, 2), 'v_add_f32 v64, v64, v65', v(3, 1, 2), 'v_add_f32 v66, v66, v67', 'v_add_f32 v64, v64, v66')
    em(pka(40, 40, 44), pka(42, 42, 46), pka(40, 40, 48), pka(42, 42, 50), pka(44, 40, 52), pka(46, 42, 54))
    pre = lread(5, 8) + lread(6, 24)
    em('v_max3_f32 v68, v44, v45, v46', 'v_max3_f32 v68, v68, v47, v64')
    em(v(4, 0, 3), pre[4])
    em('v_max_f32_dpp v68, v68, v68 row_ror:8 row_mask:0xf bank_mask:0xf', 'v_mov_b32 v69, v68')
    em(v(4, 1, 3), pre[5])
    em('v_permlane32_swap_b32 v68, v69', 'v_max_f32 v68, v68, v69', 'v_mov_b32 v69, v68')
    em(pre[6], pre[7])
    em('v_permlane16_swap_b32 v68, v69', 'v_max_f32 v68, v68, v69', f'v_mul_f32 v68, s{S_C}, v68')
    em(pre[0], f'v_fma_f32 v64, v64, s{S_C}, -v68', pre[1])
    for d in (44, 46):
        a(f'v_pk_fma_f32 v[{d}:{d+1}], v[{d}:{d+1}], s[{S_C}:{S_C+1}], v[68:69] op_sel_hi:[1,1,0] neg_lo:[0,0,1] neg_hi:[0,0,1]')
    em('v_exp_f32 v64, v64', cvt(VA, VA), 'v_exp_f32 v44, v44', cvt(VA + 1, VA + 2), 'v_exp_f32 v45, v45',
       'v_mov_b32_dpp v65, v64 row_ror:8 row_mask:0xf bank_mask:0xf', 'v_exp_f32 v46, v46', cvt(VA + 2, VB), 'v_exp_f32 v47, v47', cvt(VA + 3, VB + 2))
    em(cvt(41, 64), pre[2], cvt(42, 44), 'v_mov_b32 v40, v41', pre[3], cvt(43, 46))
    em('v_permlane32_swap_b32 v40, v41')
    em(f'v_mov_b64 v[48:49], s[{S_Q4}:{S_Q4+1}]', f'v_mov_b64 v[50:51], s[{S_ONE}:{S_ONE+1}]')
    em(f's_add_u32 s{T0}, s{S_SEGO}, {KM}')
    a(f'buffer_store_dwordx4 v[{VA}:{VA+3}], v{V_EX}, {WS}, s{T0} offen offset:1024 sc1', tok='kmvm')
    em(f's_cmp_eq_u32 s{S_S}, 63', 's_cbranch_scc1 L_chx')
    em('v_mov_b32_dpp v44, v42 row_ror:8 row_mask:0xf bank_mask:0xf', 'v_mov_b32_dpp v45, v43 row_ror:8 row_mask:0xf bank_mask:0xf')
    em('v_mfma_f32_16x16x32_bf16 v[52:55], v[48:51], v[40:43], 0')
    em(f'v_mfma_f32_16x16x16_bf16 v[64:67], v[{VA}:{VA+1}], v[40:41], 0')
    em(f'v_lshrrev_b32 v48, 1, v{V_EX}', 'v_and_b32 v48, 0x180, v48')
    em(f'v_mfma_f32_16x16x16_bf16 v[68:71], v[{VA+2}:{VA+3}], v[40:41], 0')
    em(f'v_and_b32 v49, 0x70, v{V_EX}', 'v_or_b32 v48, v48, v49')
    em(f'v_mfma_f32_16x16x32_bf16 v[64:67], v[{VX}:{VX+3}], v[42:45], v[64:67]')
    em('v_add_f32_dpp v52, v52, v52 row_ror:8 row_mask:0xf bank_mask:0xf', f'v_bfe_u32 v50, v{V_EX}, 7, 1')
    em(f'v_mfma_f32_16x16x32_bf16 v[68:71], v[{VX+4}:{VX+7}], v[42:45], v[68:71]')
    em('v_rcp_f32 v52, v52', 'v_lshl_add_u32 v49, v50, 3, v48', 'v_lshl_add_u32 v50, v50, 9, v48')
    for d in (64, 66, 68, 70):
        a(f'v_pk_mul_f32 v[{d}:{d+1}], v[{d}:{d+1}], v[52:53] op_sel_hi:[1,0]')
    em(cvt(68, 68), cvt(69, 70), cvt(64, 64), cvt(65, 66))
    em('v_mov_b32_dpp v64, v68 row_ror:8 row_mask:0xf bank_mask:0xc', 'v_mov_b32_dpp v65, v69 row_ror:8 row_mask:0xf bank_mask:0xc')
    em(f'ds_write_b64 v49, v[64:65] offset:{X_O + w*512}')
    prof(a, 6)
    if red and PZ == 3:
        em('v_mov_b64 v[60:61], -1', 'v_mov_b64 v[62:63], -1', f's_add_u32 s{T1}, s{S_MB}, s{S_O2}')
        em(poison(60, S_CRD, T1, range(5)[:knob('pa', 2)]))
        em([zero(r) for r in range(52, 60, 2)])
    elif red and PZ == 0: em([zero(r) for r in range(52, 60, 2)], 'v_mov_b64 v[60:61], -1', 'v_mov_b64 v[62:63], -1')
    elif red and PZ == 5: em([zero(r) for r in range(52, 60, 2)], 'v_mov_b64 v[60:61], -1', zero(62))
    else: em([zero(r) for r in range(52, 64, 2)])
    a('s_waitcnt lgkmcnt(0)')
    a('s_barrier')
    prof(a, 7)
    for jj in range(2):
        a(f'ds_read_b128 v[{40+4*jj}:{43+4*jj}], v50 offset:{X_O + jj*1024}')
    for e in range(4):
        a(f'ds_read_b128 v[{64+4*e}:{67+4*e}], v48 offset:{X_O + e*512}')
    em(zero(48), zero(50))
    if red and PZ in (0, 3):
        em(f's_add_u32 s{T1}, s{S_MB}, s{S_O2}')
        em(poison(60, S_CRD, T1, range(5)[(knob('pa', 2) if PZ == 3 else 0):]))
    if PZ == 5:
        if red: em(f's_add_u32 s{T1}, s{S_MB}, s{S_O2}', poison(60, S_CRD, T1, [4]))
        em(f's_lshl_b32 s{S_TO}, s{S_S}, 15', f's_and_b32 s{S_TO}, s{S_TO}, 0x10000', f's_xor_b32 s{S_TA}, s{S_TO}, 0x10000',
           f's_bfe_i32 s{S_TR}, s{S_TO}, 0x10010')
    em(f's_add_u32 s{T0}, s{S_CS}, s{S_CP}', f's_add_u32 s{T1}, s{S_CSS}, s{S_CP}')
    ring = [8, 16, 24, 32]
    nxt = lread(7, 8) + lread(8, 24)
    GS, GA, GB, GC, GD = 48, 52, 56, 60, 40
    VM = 44
    def tagv(t):
        return [f'v_add_u32 v{t}, s{S_TA}, v{t}', f'v_and_or_b32 v{t}, v{t}, v{VM}, s{S_TO}'] if PZ == 5 else []
    def epi(t, img):
        return [[tagv(t), cvt(t, t)], cvt(t + 1, t + 2), f's_add_u32 s{T2}, s{T0}, {img*65536}',
                f'buffer_store_dwordx2 v[{t}:{t+1}], v{V_C1}, {WS}, s{T2} offen{sc}']
    em([smf(GS, 40 + 4*jj, opreg(('S',), jj)) for jj in range(2)])
    ga = [smf(GA, 64 + 4*e, f'v[{ring[e]}:{ring[e]+7}]') for e in range(4)]
    gb = [smf(GB, 64 + 4*e, opreg(('O', 0, e >> 1), e & 1)) for e in range(4)]
    gc = [smf(GC, 64 + 4*e, opreg(('O', 1, e >> 1), e & 1)) for e in range(4)]
    gd = [smf(GD, 64 + 4*e, f'v[{ring[e]}:{ring[e]+7}]') for e in range(4)]
    em(ga[0], nxt[0], nxt[1], zero(GD), ga[1], nxt[2], nxt[3], zero(GD + 2))
    if PZ == 5: em(f'v_mov_b32 v{VM}, 0xfffe0000')
    em(ga[2], nxt[4], nxt[5], f'v_permlane32_swap_b32 v{GS}, v{GS+2}', ga[3], nxt[6], nxt[7], f'v_permlane32_swap_b32 v{GS+1}, v{GS+3}')
    zc = [zero(60), zero(62)] if red and PZ in (0, 3) else [zero(60) if red and PZ == 5 else [], []]
    em(gb[0], f'v_add_f32 v{GS}, v{GS}, v{GS+2}', zc[0], gb[1], f'v_add_f32 v{GS+1}, v{GS+1}, v{GS+3}', zc[1], tagv(GS), gb[2], cvt(GS, GS),
       f'buffer_store_dword v{GS}, v{V_CS}, {WS}, s{T1} offen{sc}')
    e = epi(GA, 2)
    em(gb[3], e[0], gc[0], e[1:], gc[1])
    e = epi(GB, 0)
    em(gc[2], e[0], gc[3], e[1:])
    em(gd[0], gd[1])
    e = epi(GC, 1)
    em(e[0], gd[2], e[1:], gd[3])
    em(f's_mov_b32 s{T3}, s{S_O0}', f's_mov_b32 s{S_O0}, s{S_O1}', f's_mov_b32 s{S_O1}, s{S_O2}', f's_mov_b32 s{S_O2}, s{T3}')
    em(f's_xor_b32 s{S_CP}, s{S_CP}, 294912', f's_add_u32 s{S_S}, s{S_S}, 1', f's_add_u32 s{S_SEGO}, s{S_SEGO}, {32*8192}')
    em(epi(GD, 3))
    prof2 = PROF_STEP is not None
    if prof2:
        sk = a.uid('L_pf')
        a(f's_cmp_lg_u32 s{S_S}, {PROF_STEP + 1}'); a(f's_cbranch_scc1 {sk}')
        a.rawins(f's_mem{"real" if PROF_REAL else ""}time s[{PS+16}:{PS+17}]')
        a.label(sk)
    a(f's_branch {LS}')

def sched1(a, L):
    em, mm1, lr, aread, cvt, tr, pka, zero, poison = (L[k] for k in ('em', 'mm1', 'lr', 'aread', 'cvt', 'tr', 'pka', 'zero', 'poison'))
    io, red, w, WS, sc, PZ, LS, t_, SL, warm = (L[k] for k in ('io', 'red', 'w', 'WS', 'sc', 'PZ', 'LS', 't_', 'SL', 'warm'))
    assert PZ == 5
    q = lambda c, t, sl: mm1('Q', c, t, sl)
    k = lambda c, t, sl: mm1('K', c, t, sl)
    v = lambda c, t, sl: mm1('V', c, t, sl)
    class Wt:
        def __init__(s, *r): s.r = r
    def slot(i): return Wt(*range(SL(i), SL(i) + 4))
    def lrw(*qs): return Wt(*[LR + 4*x + j for x in qs for j in range(4)])
    def st(*xs):
        for x in xs:
            if x is None: continue
            if isinstance(x, (list, tuple)): st(*x)
            elif isinstance(x, Wt): a.needr(*x.r)
            else: a(x)
    pkm = lambda d, s_: f'v_pk_mul_f32 v[{d}:{d+1}], v[{d}:{d+1}], s[{s_}:{s_+1}]'
    k2, k4, k5, v5 = lr(('K', 2)), lr(('K', 4)), lr(('K', 5)), lr(('V', 5))
    st(q(0, 0, 0), k2[0], q(0, 1, 0), k2[1], q(1, 0, 1), k2[2], q(1, 1, 1), k2[3])
    if io: st(q(2, 0, 2), q(2, 1, 2))
    a('s_waitcnt lgkmcnt(4)')
    a('s_barrier')
    prof(a, 2)
    X = [[] for _ in range(8)]
    if io:
        TV = 62
        X[0] = [f's_lshl_b32 s{T3}, s{S_H}, 7', f's_add_u32 s{T3}, s{T3}, {F_CH}', f'v_mov_b32 v{TV}, s{S_S}']
        X[2] = ['s_mov_b64 exec, 1', f'buffer_store_dword v{TV}, v{V_EX}, {WS}, s{T3} offen sc1', 's_mov_b64 exec, -1']
        wm = warm(TV + 1)
        X[3] = [wm[1], wm[2], wm[0]]
        X[4] = [wm[3]]
        X[5] = [wm[4]]
        X[6] = [zero(TV)]
        st(aread(3, 3))
    else:
        st(aread(2, 2), aread(3, 3))
    st(k(0, 0, 0), X[0], k(0, 1, 0), aread(4, 0), k(1, 0, 1), X[2], k(1, 1, 1), aread(5, 1))
    if io: st(X[3])
    else: st(slot(2), q(2, 0, 2), q(2, 1, 2))
    st(k(2, 0, 2), k5[0], X[4], k(2, 1, 2), aread(6, 2), slot(3))
    st(q(3, 0, 3), k5[1], X[5], q(3, 1, 3), aread(7, 3), slot(0))
    st(q(4, 0, 0), k5[2], X[6], q(4, 1, 0), aread(8, 0), slot(1))
    st(q(5, 0, 1), k5[3], q(5, 1, 1), slot(2), q(6, 0, 2), q(6, 1, 2), slot(3))
    st(q(7, 0, 3), slot(0), q(8, 0, 0), q(7, 1, 3), lrw(0, 1, 2, 3), q(8, 1, 0), pkm(QA, S_C))
    st(k(5, 0, 1), k4[0], pkm(QA + 2, S_C))
    st(k(5, 1, 1), aread(3, 1), cvt(QA, QA))
    st(k(6, 0, 2), k4[1], cvt(QA + 1, QA + 2))
    st(k(6, 1, 2), aread(4, 2), pkm(QB, S_C))
    st(tr(QA), k4[2], pkm(QB + 2, S_C))
    st(k(7, 0, 3), k4[3], cvt(QB, QB))
    st(k(8, 0, 0), slot(1), cvt(QB + 1, QB + 2))
    st(k(3, 0, 1), cvt(QA, QA))
    st(tr(QB), cvt(QA + 1, QA + 2))
    st(k(7, 1, 3), slot(2), lrw(0, 1))
    st(k(4, 0, 2), v5[0], cvt(QA + 2, QB))
    st(k(8, 1, 0), v5[1], cvt(QA + 3, QB + 2))
    st(k(3, 1, 1), lrw(2, 3), cvt(KA, KA))
    KXr = Wt(*range(KX, KX + 8))
    st(k(4, 1, 2), v5[2], KXr, cvt(KA + 1, KA + 2))
    prof(a, 3)
    sc0 = f'v_mfma_f32_16x16x32_bf16 v[{KX}:{KX+3}], v[{KX}:{KX+3}], v[{QA}:{QA+3}], 0'
    sc1_ = f'v_mfma_f32_16x16x32_bf16 v[{KX+4}:{KX+7}], v[{KX+4}:{KX+7}], v[{QA}:{QA+3}], 0'
    scm = f'v_mfma_f32_16x16x32_bf16 v[{QB}:{QB+3}], v[{KA}:{KA+3}], v[{QA}:{QA+3}], 0'
    dm = [f'v_mov_b32_dpp v{KX+r}, v{KX+4+r} quad_perm:[0,1,2,3] row_mask:0xf bank_mask:0xc' for r in range(4)]
    NM, GM = f's[{S_NM}:{S_NM+1}]', f's[{S_GM}:{S_GM+1}]'
    wtok = f'ds_write_b128 v{V_EX}, v[{KX}:{KX+3}] offset:{X_TOK + w*1024}'
    cnd = [f'v_cndmask_b32 v{KB}, v{QB+1}, v{QB}, {NM}', f'v_cndmask_b32 v{KB+1}, v{QB+3}, v{QB+2}, {NM}', f'v_cndmask_b32 v{KB}, v{KB}, v{KB+1}, {GM}']
    wsm = f'ds_write_b32 v{V_EX}, v{KB} offset:{X_SM + 4*w}'
    kmst = f'buffer_store_dwordx4 v[{KA}:{KA+3}], v{V_EX}, {WS}, s{T0} offen sc1'
    P2N = knob('p2n')
    if P2N:
        st(v5[3], f's_add_u32 s{T0}, s{S_SEGO}, {KM}')
        st(tr(KA))
        st(sc0, cvt(KB, KB), cvt(KB + 1, KB + 2))
        st(sc1_)
        st(tr(KB), cvt(KA, KA), cvt(KA + 1, KA + 2))
        st(v(7, 0, 3), dm[0], dm[1])
        st(v(7, 1, 3), aread(0, 3), cvt(KA + 2, KB), cvt(KA + 3, KB + 2), dm[2], dm[3])
        st(scm, wtok)
        st(v(8, 0, 0), kmst, v(8, 1, 0), aread(1, 0), cnd, wsm)
        prof(a, 4)
        if P2N == 1:
            st(v(3, 0, 1), v(3, 1, 1), aread(2, 1), v(4, 0, 2), v(4, 1, 2), aread(5, 2))
            a('s_waitcnt lgkmcnt(2)')
        else:
            st(v(3, 0, 1), v(3, 1, 1), aread(2, 1), v(4, 0, 2))
            a('s_waitcnt lgkmcnt(1)')
        a('s_barrier')
    else:
        st(v5[3], f's_add_u32 s{T0}, s{S_SEGO}, {KM}')
        st(tr(KA), cvt(KB, KB), cvt(KB + 1, KB + 2))
        st(sc0)
        st(tr(KB), cvt(KA, KA), cvt(KA + 1, KA + 2))
        st(sc1_)
        st(cvt(KA + 2, KB), cvt(KA + 3, KB + 2))
        st(scm)
        st(dm, v(7, 0, 3), wtok)
        st(cnd)
        st(wsm)
        prof(a, 4)
        st(v(7, 1, 3), aread(0, 3), v(8, 0, 0), kmst,
           v(8, 1, 0), aread(1, 0), v(3, 0, 1), v(3, 1, 1), aread(2, 1))
        a('s_waitcnt lgkmcnt(3)')
        a('s_barrier')
    prof(a, 5); mark(a, 'P3start')
    a(f'ds_read_b128 v[64:67], v{V_EX} offset:{X_SM}')
    for kk in range(4):
        a(f'ds_read_b128 v[{40+4*kk}:{43+4*kk}], v{V_EX} offset:{X_TOK + kk*1024}')
    pre = lread(5, 8) + lread(6, 24)
    P5N = knob('p5n')
    cst = [f'v_mov_b64 v[48:49], s[{S_Q4}:{S_Q4+1}]', f'v_mov_b64 v[50:51], s[{S_ONE}:{S_ONE+1}]']
    if P2N:
        if P2N == 2: st(v(4, 1, 2), aread(5, 2))
        st(slot(3), v(0, 0, 3), v(0, 1, 3), aread(6, 3), slot(0), v(1, 0, 0), v(1, 1, 0), slot(1), Wt(64, 65, 66, 67))
        st(v(2, 0, 1), 'v_add_f32 v64, v64, v65', v(2, 1, 1), slot(2), lrw(0, 1, 2, 3), Wt(*range(40, 48)), 'v_add_f32 v66, v66, v67')
        st(v(5, 0, 2), pka(40, 40, 44), v(5, 1, 2), Wt(*range(48, 52)), pka(42, 42, 46))
        mark(a, 'P3a')
        st(pka(40, 40, 48), pka(42, 42, 50), 'v_add_f32 v64, v64, v66', Wt(*range(52, 56)), pka(44, 40, 52), pka(46, 42, 54))
        mark(a, 'P3b')
        st(slot(3), v(6, 0, 3), 'v_max3_f32 v68, v44, v45, v46', cst[0], v(6, 1, 3), pre[4], 'v_max3_f32 v68, v68, v47, v64')
        st(cst[1], pre[5],
           'v_max_f32_dpp v69, v68, v68 row_ror:8 row_mask:0xf bank_mask:0xf', 'v_max_f32_dpp v68, v68, v68 row_ror:8 row_mask:0xf bank_mask:0xf')
        st(pre[6], pre[7], 'v_permlane32_swap_b32 v68, v69')
        mark(a, 'P3c')
        st('v_max_f32 v70, v68, v69', 'v_max_f32 v71, v68, v69', pre[0], pre[1], 'v_permlane16_swap_b32 v70, v71')
        st(pre[2], 'v_max_f32 v68, v70, v71')
        st('v_sub_f32 v64, v64, v68')
        for d in (44, 46):
            a(f'v_pk_add_f32 v[{d}:{d+1}], v[{d}:{d+1}], v[68:69] op_sel_hi:[1,0] neg_lo:[0,1] neg_hi:[0,1]')
        mark(a, 'P3d')
        st('v_exp_f32 v64, v64', pre[3], 'v_exp_f32 v44, v44', 'v_mov_b32_dpp v65, v64 row_ror:8 row_mask:0xf bank_mask:0xf', 'v_exp_f32 v45, v45',
           cvt(VA, VA), 'v_exp_f32 v46, v46', cvt(40, 64), cvt(41, 64), 'v_exp_f32 v47, v47', cvt(VA + 1, VA + 2))
        st(cvt(42, 44), 'v_permlane32_swap_b32 v40, v41', cvt(VA + 2, VB), cvt(43, 46), cvt(VA + 3, VB + 2))
        mark(a, 'P3e')
    else:
        st(v(4, 0, 2), v(4, 1, 2), aread(5, 2), slot(3), v(0, 0, 3), v(0, 1, 3), aread(6, 3), slot(0), Wt(64, 65, 66, 67))
        st(v(1, 0, 0), 'v_add_f32 v64, v64, v65', v(1, 1, 0), slot(1), Wt(*range(40, 48)), 'v_add_f32 v66, v66, v67')
        st(v(2, 0, 1), pka(40, 40, 44), v(2, 1, 1), Wt(*range(48, 52)), pka(42, 42, 46))
        mark(a, 'P3a')
        st(pka(40, 40, 48), pka(42, 42, 50), 'v_add_f32 v64, v64, v66', Wt(*range(52, 56)), pka(44, 40, 52), pka(46, 42, 54))
        mark(a, 'P3b')
        st(slot(2), lrw(0, 1, 2, 3), v(5, 0, 2), 'v_max3_f32 v68, v44, v45, v46', v(5, 1, 2), 'v_max3_f32 v68, v68, v47, v64')
        st(slot(3), v(6, 0, 3),
           'v_max_f32_dpp v69, v68, v68 row_ror:8 row_mask:0xf bank_mask:0xf', 'v_max_f32_dpp v68, v68, v68 row_ror:8 row_mask:0xf bank_mask:0xf')
        st(v(6, 1, 3), pre[4], 'v_permlane32_swap_b32 v68, v69')
        mark(a, 'P3c')
        st('v_max_f32 v70, v68, v69', 'v_max_f32 v71, v68, v69', pre[5], pre[6], 'v_permlane16_swap_b32 v70, v71')
        st(pre[7], 'v_max_f32 v68, v70, v71')
        st('v_sub_f32 v64, v64, v68')
        for d in (44, 46):
            a(f'v_pk_add_f32 v[{d}:{d+1}], v[{d}:{d+1}], v[68:69] op_sel_hi:[1,0] neg_lo:[0,1] neg_hi:[0,1]')
        mark(a, 'P3d')
        st('v_exp_f32 v64, v64', pre[0], 'v_exp_f32 v44, v44', 'v_mov_b32_dpp v65, v64 row_ror:8 row_mask:0xf bank_mask:0xf', 'v_exp_f32 v45, v45',
           pre[1], cvt(VA, VA), 'v_exp_f32 v46, v46', cvt(40, 64), cvt(41, 64), 'v_exp_f32 v47, v47', cvt(VA + 1, VA + 2), pre[2])
        st(cvt(42, 44), 'v_permlane32_swap_b32 v40, v41', cvt(VA + 2, VB), pre[3], cvt(43, 46), cvt(VA + 3, VB + 2))
        mark(a, 'P3e')
        st(cst)
    st(f's_add_u32 s{T0}, s{S_SEGO}, {KM}')
    LAST = f'L_last{t_}'
    st('v_mov_b32_dpp v44, v42 row_ror:8 row_mask:0xf bank_mask:0xf', f's_cmp_eq_u32 s{S_S}, 63',
       'v_mov_b32_dpp v45, v43 row_ror:8 row_mask:0xf bank_mask:0xf', f's_cbranch_scc1 {LAST}')
    vmst = f'buffer_store_dwordx4 v[{VA}:{VA+3}], v{V_EX}, {WS}, s{T0} offen offset:1024 sc1'
    mark(a, 'P3f')
    ring = [8, 16, 24, 32]
    nxt = lread(7, 8) + lread(8, 24)
    tag = lambda t: f'v_and_or_b32 v{t}, v{t}, -2, s{S_TO}'
    adr = lambda img: f's_add_u32 s{T2}, s{T0}, {img*65536}'
    sto = lambda t: f'buffer_store_dwordx2 v[{t}:{t+1}], v{V_C1}, {WS}, s{T2} offen{sc}'
    RG = lambda e: Wt(*range(ring[e], ring[e] + 8))
    rot = [f's_mov_b32 s{T3}, s{S_O0}', f's_mov_b32 s{S_O0}, s{S_O1}', f's_mov_b32 s{S_O1}, s{S_O2}', f's_mov_b32 s{S_O2}, s{T3}',
           f's_xor_b32 s{S_CP}, s{S_CP}, 294912', f's_add_u32 s{S_S}, s{S_S}, 1', f's_add_u32 s{S_SEGO}, s{S_SEGO}, {32*8192}']
    if P5N:
        GS, GA, GB, GC, GD = 52, 48, 56, 60, 40
        AX, AY = 46, 47
        ER = {w: 64}
        others = [e for e in range(4) if e != w]
        for j, e in enumerate(others): ER[e] = 68 + 4*j
        E = lambda e: Wt(*range(ER[e], ER[e] + 4))
        S_ = [smf(GS, 40 + 4*jj, opreg(('S',), jj)) for jj in range(2)]
        ga = [smf(GA, ER[e], f'v[{ring[e]}:{ring[e]+7}]') for e in range(4)]
        gb = [smf(GB, ER[e], opreg(('O', 0, e >> 1), e & 1)) for e in range(4)]
        gc = [smf(GC, ER[e], opreg(('O', 1, e >> 1), e & 1)) for e in range(4)]
        gd = [smf(GD, ER[e], f'v[{ring[e]}:{ring[e]+7}]') for e in range(4)]
        st('v_mfma_f32_16x16x32_bf16 v[52:55], v[48:51], v[40:43], 0', f'v_lshrrev_b32 v{AX}, 1, v{V_EX}', f'v_and_b32 v{AY}, 0x70, v{V_EX}')
        st(f'v_mfma_f32_16x16x16_bf16 v[64:67], v[{VA}:{VA+1}], v[40:41], 0', f'v_and_b32 v{AX}, 0x180, v{AX}', zero(60))
        st(f'v_mfma_f32_16x16x16_bf16 v[68:71], v[{VA+2}:{VA+3}], v[40:41], 0', f'v_or_b32 v{AX}, v{AX}, v{AY}', zero(62))
        a(vmst, tok='kmvm')
        st(f'v_mfma_f32_16x16x32_bf16 v[64:67], v[{VX}:{VX+3}], v[42:45], v[64:67]',
           'v_add_f32_dpp v52, v52, v52 row_ror:8 row_mask:0xf bank_mask:0xf', f'v_bfe_u32 v{AY}, v{V_EX}, 7, 1')
        st(f'v_mfma_f32_16x16x32_bf16 v[68:71], v[{VX+4}:{VX+7}], v[42:45], v[68:71]',
           'v_rcp_f32 v52, v52', f'v_lshl_add_u32 v{AY}, v{AY}, 9, v{AX}', zero(48), zero(50), zero(56), zero(58))
        mark(a, 'P3g')
        for d in (64, 66, 68, 70):
            a(f'v_pk_mul_f32 v[{d}:{d+1}], v[{d}:{d+1}], v[52:53] op_sel_hi:[1,0]')
        st(cvt(64, 64), cvt(65, 66), cvt(66, 68), cvt(67, 70))
        st(f's_mov_b64 exec, s[{S_NM}:{S_NM+1}]', f'ds_write_b128 v{AX}, v[64:67] offset:{X_O + w*512}', 's_mov_b64 exec, -1')
        st([f'v_mov_b32_dpp v{64+r}, v{64+r} row_ror:8 row_mask:0xf bank_mask:0xc' for r in range(4)])
        prof(a, 6); mark(a, 'P3i')
        st(f's_bfe_u32 s{S_TO}, s{S_S}, 0x10001', f's_sub_u32 s{S_TR}, 0, s{S_TO}')
        st(RG(w), ga[w], nxt[2*w], nxt[2*w+1], zero(52))
        if red: st(gb[w], f's_add_u32 s{T1}, s{S_MB}, s{S_O2}', 'v_mov_b32 v44, -1', gc[w], poison(44, None, T1, [4]), zero(54))
        else: st(gb[w], zero(54), gc[w])
        st(f's_add_u32 s{T0}, s{S_CS}, s{S_CP}', f's_add_u32 s{T1}, s{S_CSS}, s{S_CP}')
        a('s_waitcnt lgkmcnt(2)')
        a('s_barrier')
        prof(a, 7); mark(a, 'P3j')
        for e in others:
            a(f'ds_read_b128 v[{ER[e]}:{ER[e]+3}], v{AX} offset:{X_O + e*512}')
        for jj in range(2):
            a(f'ds_read_b128 v[{40+4*jj}:{43+4*jj}], v{AY} offset:{X_O + jj*1024}')
        e1, e2, e3 = others
        nx = lambda e: [nxt[2*e], nxt[2*e+1]]
        if knob('x4'):
            sw = lambda x, y: f'v_permlane16_swap_b32 v{x}, v{y}'
            st4 = lambda t: f'buffer_store_dwordx4 v[{t}:{t+3}], v{V_C1}, {WS}, s{T2} offen{sc}'
            st(E(e1), ga[e1], nx(e1)[0], E(e2), ga[e2], nx(e1)[1], E(e3), ga[e3], nx(e2)[0], Wt(40, 41, 42, 43))
            st(gb[e1], nx(e2)[1], gb[e2], nx(e3)[0], cvt(48, 48))
            st(gb[e3], nx(e3)[1], cvt(49, 50))
            st(S_[0], adr(0), zero(GD), Wt(44, 45, 46, 47))
            st(S_[1], cvt(50, 56))
            st(gc[e1], cvt(51, 58), zero(GD + 2))
            st(gc[e2], sw(48, 50), f'v_permlane32_swap_b32 v{GS}, v{GS+2}')
            st(gc[e3], sw(49, 51), f'v_permlane32_swap_b32 v{GS+1}, v{GS+3}')
            st(RG(w), gd[w], tag(48), f'v_add_f32 v{GS}, v{GS}, v{GS+2}')
            st(RG(e1), gd[e1], st4(48), f'v_add_f32 v{GS+1}, v{GS+1}, v{GS+3}', cvt(63, 62))
            st(RG(e2), gd[e2], adr(1), cvt(GS, GS), cvt(62, 60))
            st(RG(e3), gd[e3], tag(GS), f'buffer_store_dword v{GS}, v{V_CS}, {WS}, s{T1} offen{sc}')
            st(rot[:5])
            st(cvt(60, 40), cvt(61, 42), rot[5:], sw(60, 62), sw(61, 63), tag(60), st4(60))
        else:
            st(E(e1), ga[e1], nx(e1)[0], E(e2), ga[e2], nx(e1)[1], E(e3), ga[e3], nx(e2)[0], Wt(40, 41, 42, 43))
            st(S_[0], nx(e2)[1], Wt(44, 45, 46, 47), S_[1], nx(e3)[0], cvt(GA, GA))
            st(gb[e1], nx(e3)[1], adr(2), cvt(GA + 1, GA + 2))
            st(gb[e2], tag(GA), f'v_permlane32_swap_b32 v{GS}, v{GS+2}')
            st(gb[e3], sto(GA), f'v_permlane32_swap_b32 v{GS+1}, v{GS+3}')
            st(gc[e1], zero(GD), f'v_add_f32 v{GS}, v{GS}, v{GS+2}')
            st(gc[e2], zero(GD + 2), f'v_add_f32 v{GS+1}, v{GS+1}, v{GS+3}')
            st(gc[e3], adr(0), cvt(GB, GB), cvt(GS, GS))
            st(RG(w), gd[w], cvt(GB + 1, GB + 2), tag(GS))
            st(RG(e1), gd[e1], f'buffer_store_dword v{GS}, v{V_CS}, {WS}, s{T1} offen{sc}', tag(GB), cvt(GC, GC))
            st(RG(e2), gd[e2], sto(GB), adr(1), cvt(GC + 1, GC + 2))
            st(RG(e3), gd[e3], tag(GC), sto(GC), adr(3))
            st(rot)
            st(cvt(GD, GD), cvt(GD + 1, GD + 2), tag(GD), sto(GD))
    else:
        sched1_p5(a, locals(), L)
    if PROF_STEP is not None:
        sk = a.uid('L_pf')
        a(f's_cmp_lg_u32 s{S_S}, {PROF_STEP + 1}'); a(f's_cbranch_scc1 {sk}')
        a.rawins(f's_mem{"real" if PROF_REAL else ""}time s[{PS+16}:{PS+17}]')
        a.label(sk)
    a(f's_branch {LS}')
    a.label(LAST)
    a(vmst, tok='kmvm')
    a('s_branch L_chx')

def sched1_p5(a, M, L):
    st, Wt, vmst, tag, adr, sto, RG, ring, nxt, rot, cvt, zero, poison, red, w, WS, sc = (M[k] for k in
        ('st', 'Wt', 'vmst', 'tag', 'adr', 'sto', 'RG', 'ring', 'nxt', 'rot', 'cvt', 'zero', 'poison', 'red', 'w', 'WS', 'sc'))
    st('v_mfma_f32_16x16x32_bf16 v[52:55], v[48:51], v[40:43], 0')
    st(f'v_mfma_f32_16x16x16_bf16 v[64:67], v[{VA}:{VA+1}], v[40:41], 0')
    st(f'v_lshrrev_b32 v48, 1, v{V_EX}', 'v_and_b32 v48, 0x180, v48')
    st(f'v_mfma_f32_16x16x16_bf16 v[68:71], v[{VA+2}:{VA+3}], v[40:41], 0')
    st(f'v_and_b32 v49, 0x70, v{V_EX}', 'v_or_b32 v48, v48, v49')
    st(f'v_mfma_f32_16x16x32_bf16 v[64:67], v[{VX}:{VX+3}], v[42:45], v[64:67]')
    st('v_add_f32_dpp v52, v52, v52 row_ror:8 row_mask:0xf bank_mask:0xf', f'v_bfe_u32 v50, v{V_EX}, 7, 1')
    st(f'v_mfma_f32_16x16x32_bf16 v[68:71], v[{VX+4}:{VX+7}], v[42:45], v[68:71]')
    st('v_rcp_f32 v52, v52', 'v_lshl_add_u32 v49, v50, 3, v48', 'v_lshl_add_u32 v50, v50, 9, v48')
    mark(a, 'P3g')
    a(vmst, tok='kmvm')
    mark(a, 'P3h')
    for d in (64, 66, 68, 70):
        a(f'v_pk_mul_f32 v[{d}:{d+1}], v[{d}:{d+1}], v[52:53] op_sel_hi:[1,0]')
    st(cvt(68, 68), cvt(69, 70), cvt(64, 64), cvt(65, 66))
    st('v_mov_b32_dpp v64, v68 row_ror:8 row_mask:0xf bank_mask:0xc', 'v_mov_b32_dpp v65, v69 row_ror:8 row_mask:0xf bank_mask:0xc')
    st(f'ds_write_b64 v49, v[64:65] offset:{X_O + w*512}')
    prof(a, 6); mark(a, 'P3i')
    if red:
        st(f's_add_u32 s{T1}, s{S_MB}, s{S_O2}', 'v_mov_b32 v60, -1', poison(60, None, T1, [4]))
    st([zero(r) for r in range(52, 64, 2)])
    st(f's_bfe_u32 s{S_TO}, s{S_S}, 0x10001', f's_sub_u32 s{S_TR}, 0, s{S_TO}')
    st(f's_add_u32 s{T0}, s{S_CS}, s{S_CP}', f's_add_u32 s{T1}, s{S_CSS}, s{S_CP}')
    a('s_waitcnt lgkmcnt(0)')
    a('s_barrier')
    prof(a, 7); mark(a, 'P3j')
    for jj in range(2):
        a(f'ds_read_b128 v[{40+4*jj}:{43+4*jj}], v50 offset:{X_O + jj*1024}')
    for e in range(4):
        a(f'ds_read_b128 v[{64+4*e}:{67+4*e}], v48 offset:{X_O + e*512}')
    st(zero(48), zero(50))
    GS, GA, GB, GC, GD = 48, 52, 56, 60, 40
    E = lambda e: Wt(*range(64 + 4*e, 68 + 4*e))
    S_ = [smf(GS, 40 + 4*jj, opreg(('S',), jj)) for jj in range(2)]
    ga = [smf(GA, 64 + 4*e, f'v[{ring[e]}:{ring[e]+7}]') for e in range(4)]
    gb = [smf(GB, 64 + 4*e, opreg(('O', 0, e >> 1), e & 1)) for e in range(4)]
    gc = [smf(GC, 64 + 4*e, opreg(('O', 1, e >> 1), e & 1)) for e in range(4)]
    gd = [smf(GD, 64 + 4*e, f'v[{ring[e]}:{ring[e]+7}]') for e in range(4)]
    st(S_[0], Wt(44, 45, 46, 47), S_[1], E(0), zero(GD))
    st(ga[0], nxt[0], E(1), zero(GD + 2))
    st(ga[1], nxt[1], E(2), f'v_permlane32_swap_b32 v{GS}, v{GS+2}')
    st(ga[2], nxt[2], E(3), f'v_permlane32_swap_b32 v{GS+1}, v{GS+3}')
    st(ga[3], nxt[3], f'v_add_f32 v{GS}, v{GS}, v{GS+2}')
    st(gb[0], nxt[4], f'v_add_f32 v{GS+1}, v{GS+1}, v{GS+3}')
    st(gb[1], nxt[5], cvt(GS, GS))
    st(gb[2], nxt[6], tag(GS))
    st(gb[3], f'buffer_store_dword v{GS}, v{V_CS}, {WS}, s{T1} offen{sc}', cvt(GA, GA))
    st(gc[0], nxt[7], adr(2), cvt(GA + 1, GA + 2))
    st(gc[1], tag(GA))
    st(gc[2], sto(GA), cvt(GB, GB))
    st(gc[3], adr(0), RG(0), cvt(GB + 1, GB + 2))
    st(gd[0], RG(1), tag(GB))
    st(gd[1], sto(GB), RG(2), cvt(GC, GC))
    st(gd[2], adr(1), RG(3), cvt(GC + 1, GC + 2))
    st(gd[3], tag(GC), sto(GC), adr(3))
    st(rot)
    st(cvt(GD, GD), cvt(GD + 1, GD + 2), tag(GD), sto(GD))

def chain_role(a):
    stamp(a, 1)
    setup(a)
    stamp(a, 2)
    if not knob('ea'): team_barrier(a)
    stamp(a, 3)
    if 'setuponly' in EXP or 'so2' in EXP:
        a('s_branch L_exit')
    a(f's_mov_b32 s{S_S}, 0'); a(f's_mov_b32 s{S_O0}, 0'); a(f's_mov_b32 s{S_O1}, 9216'); a(f's_mov_b32 s{S_O2}, 18432')
    a(f's_mov_b32 s{S_CP}, 0')
    if 'cnt' in EXP: a('s_mov_b32 s98, 0'); a('s_mov_b32 s99, 0')
    variants = getattr(chain_role, 'variants', 'both')
    vs = {'both': [('', 'l'), (' sc1', 'f')], 'loc': [('', 'l')], 'for': [(' sc1', 'f')]}[variants]
    if variants == 'both':
        a(f's_cmp_lg_u32 s{S_FOREIGN}, 0'); a('s_cbranch_scc1 L_cdf')
    for sc, tag in vs:
        a.label(f'L_cd{tag}')
        a(f's_cmp_eq_u32 s{S_W}, 3'); a(f's_cbranch_scc1 L_ce{tag}io')
        a(f's_cmp_eq_u32 s{S_W}, 1'); a(f's_cbranch_scc1 L_ce{tag}r1')
        a(f's_cmp_eq_u32 s{S_W}, 0'); a(f's_cbranch_scc1 L_ce{tag}r0')
        a(f's_cmp_lt_u32 s{S_H}, 8'); a(f's_cbranch_scc1 L_ce{tag}r2')
        a(f's_branch L_ce{tag}n2')
        for role in ('r0', 'r1', 'r2', 'n2', 'io'):
            loop(a, sc, tag, role)
    a.label('L_chx')
    WS = f's[{S_WS}:{S_WS+3}]'
    a('s_waitcnt vmcnt(0)')
    a('s_barrier')
    sk = a.uid('L_x')
    a(f's_cmp_lg_u32 s{S_W}, 3'); a(f's_cbranch_scc1 {sk}')
    a(f'v_lshlrev_b32 v60, 3, v{V_EX}'); a('v_mov_b32 v61, 64')
    a(f's_lshl_b32 s{T2}, s{S_H}, 7'); a(f's_add_u32 s{T2}, s{T2}, {F_CH}')
    a('s_mov_b64 exec, 1')
    a(f'buffer_store_dword v61, v60, {WS}, s{T2} offen sc1')
    a('s_mov_b64 exec, -1')
    a.label(sk)
    if 'cnt' in EXP:
        a(f's_lshl_b32 s{T0}, s{S_H}, 2'); a(f's_add_u32 s{T0}, s{T0}, s{S_W}'); a(f's_lshl_b32 s{T0}, s{T0}, 7'); a(f's_add_u32 s{T0}, s{T0}, {PROF}')
        a('v_mov_b32 v10, 0'); a('v_mov_b32 v8, s98'); a('v_mov_b32 v9, s99'); a('s_mov_b64 exec, 1')
        a(f'buffer_store_dwordx2 v[8:9], v10, {WS}, s{T0} offen')
        a('s_mov_b64 exec, -1')
    if PROF_STEP is not None:
        a('s_waitcnt lgkmcnt(0)')
        a(f's_lshl_b32 s{T0}, s{S_H}, 2'); a(f's_add_u32 s{T0}, s{T0}, s{S_W}'); a(f's_lshl_b32 s{T0}, s{T0}, 7'); a(f's_add_u32 s{T0}, s{T0}, {PROF}')
        a('v_mov_b32 v10, 0'); a('s_mov_b64 exec, 1')
        for k in range(13):
            a(f'v_mov_b32 v8, s{PS+2*k}'); a(f'v_mov_b32 v9, s{PS+2*k+1}')
            a(f'buffer_store_dwordx2 v[8:9], v10, {WS}, s{T0} offen offset:{8*k}')
        a('s_mov_b64 exec, -1')
    stamp(a, 4)
```

```python
import sys
from gen_base import *
import gen_bulk as B
import gen_shadow as SH
import gen_chain as CH

def build(roles=('ln', 'kv', 'f1'), out='k.s'):
    a = Asm()
    entry(a)
    if CH.knob('cx'):
        a(f's_add_u32 s{S_X}, s{S_X}, {8 - CH.knob("cx")}'); a(f's_and_b32 s{S_X}, s{S_X}, 7')
    stamp(a, 0)
    a(f's_lshl_b32 s33, s{S_X}, 5'); a(f's_add_u32 s33, s33, s{S_T}'); a('s_lshl_b32 s33, s33, 5')
    a('v_mov_b32 v2, 0'); a('v_mov_b32 v3, 0'); a('v_mov_b32 v4, 0'); a('v_mov_b32 v5, 0'); a(f'v_lshlrev_b32 v6, 4, v{V_LANE}')
    a('s_mov_b64 exec, 3')
    a(f'buffer_store_dwordx4 v[2:5], v6, s[{S_WS}:{S_WS+3}], s33 offen sc1')
    a('s_mov_b64 exec, -1')
    a(f's_cmp_eq_u32 s{S_X}, 0')
    a('s_cbranch_scc1 L_chain')
    if 'setuponly' in roles:
        gbar_arrive(a); a('s_branch L_exit')
    a(f's_sub_u32 s38, s{S_X}, 1')
    a(f's_mul_i32 s39, s{S_T}, 7'); a('s_add_u32 s39, s39, s38')
    RI = CH.rl_items()
    if RI: a('s_mov_b32 s42, 0')
    TP = CH.knob('tp') == 1
    a('s_cmp_ge_u32 s39, 128'); a(f's_cbranch_scc1 {"L_tpz" if TP else "L_noln"}')
    if RI:
        a(f's_cmp_ge_u32 s39, {8 * len(RI)}'); a('s_cbranch_scc1 L_nocp')
        enc = lambda vals, bits: sum(v << (bits * i) for i, v in enumerate(vals))
        mc, cc, rc = enc(['QKV'.index(m) for m, _ in RI], 2), enc([c for _, c in RI], 4), enc([CH.rl_res(j) for j in range(len(RI))], 2)
        a('s_lshr_b32 s40, s39, 3'); a('s_and_b32 s41, s39, 7')
        a('s_lshl_b32 s33, s40, 1'); a(f's_lshr_b32 s34, {mc:#x}, s33'); a('s_and_b32 s34, s34, 3')
        a(f's_lshr_b32 s35, {rc:#x}, s33'); a('s_and_b32 s35, s35, 3')
        a('s_lshl_b32 s33, s40, 2'); a(f's_mov_b32 s44, {cc & 0xffffffff:#x}'); a(f's_mov_b32 s45, {cc >> 32:#x}'); a('s_lshr_b64 s[44:45], s[44:45], s33')
        a('s_and_b32 s36, s44, 15')
        a('s_lshl_b32 s43, s36, 19'); a('s_lshl_b32 s33, s41, 10'); a('s_add_u32 s43, s43, s33'); a('s_add_u32 s43, s43, 256')
        a('s_lshl_b32 s44, s39, 16'); a('s_lshl_b32 s35, s35, 8'); a('s_add_u32 s44, s44, s35'); a(f's_add_u32 s44, s44, {CH.RLB}')
        a('s_lshl_b32 s42, s41, 2'); a(f's_add_u32 s42, s42, {CH.D_RL}')
        lab = [a.uid('L_cm') for _ in range(4)]
        a('s_cmp_eq_u32 s34, 1'); a(f's_cbranch_scc1 {lab[1]}'); a('s_cmp_eq_u32 s34, 2'); a(f's_cbranch_scc1 {lab[2]}')
        for m in range(3):
            if m: a.label(lab[m])
            srd(a, S_B, 16 + 8 * m, 576 * 8192)
            if m < 2: a(f's_branch {lab[3]}')
        a.label(lab[3])
        a(f'v_lshrrev_b32 v2, 4, v{V_LANE}'); a(f's_lshl_b32 s33, s{S_W}, 2'); a('v_add_u32 v2, s33, v2')
        a(f'v_and_b32 v3, 15, v{V_LANE}'); a('v_lshlrev_b32 v3, 4, v3')
        a('v_lshl_add_u32 v136, v2, 13, v3'); a('v_lshl_add_u32 v137, v2, 10, v3')
        a('s_waitcnt lgkmcnt(0)'); srd_fix(a, S_B)
        for q in range(4):
            a(f's_add_u32 s33, s43, {q * 16 * 8192}')
            a(f'buffer_load_dwordx4 v[{120+4*q}:{123+4*q}], v136, s[{S_B}:{S_B+3}], s33 offen')
        def mid():
            if CH.knob('rlbad'):
                for q in range(16): a(f'v_mov_b32 v{120+q}, 0')
            for q in range(4):
                a(f's_add_u32 s35, s44, {q * 16 * 1024}')
                a(f'buffer_store_dwordx4 v[{120+4*q}:{123+4*q}], v137, s[{S_WS}:{S_WS+3}], s35 offen sc1')
        B.ln_role(a, 39, mid)
        a('s_branch L_noln')
        a.label('L_nocp')
    B.ln_role(a, 39)
    if TP:
        a('s_branch L_noln')
        a.label('L_tpz')
        NK = CH.knob('tpk', 1)
        NKW = (NK * 32 * 8192 + 32767) // 32768
        REP = (NKW + 23) // 24
        assert NKW % REP == 0
        a('s_sub_u32 s40, s39, 128'); a(f's_cmp_ge_u32 s40, {72 + NKW // REP}'); a('s_cbranch_scc1 L_noln')
        a('s_lshl_b32 s41, s40, 15'); a(f's_mul_i32 s43, s40, {REP * 32768}'); a('s_cmp_lt_u32 s40, 72')
        a(f's_mov_b32 s42, {PART + 62 * 32 * 36864:#x}')
        a(f's_cselect_b32 s40, s42, {KM + (64 - NK) * 32 * 8192 - 72 * REP * 32768:#x}'); a('s_cselect_b32 s41, s41, s43')
        a(f's_cselect_b32 s43, 1, {REP}'); a('s_add_u32 s41, s41, s40')
        a(f's_lshl_b32 s40, s{S_W}, 10'); a(f'v_lshlrev_b32 v2, 4, v{V_LANE}'); a('v_add_u32 v2, s40, v2')
        for r in range(4): a(f'v_mov_b32 v{4 + r}, -1')
        a.label('L_tpl')
        for q in range(8):
            a(f'buffer_store_dwordx4 v[4:7], v2, s[{S_WS}:{S_WS+3}], s41 offen sc1')
            a('s_add_u32 s41, s41, 4096')
        a('s_sub_u32 s43, s43, 1'); a('s_cmp_lg_u32 s43, 0'); a('s_cbranch_scc1 L_tpl')
    a.label('L_noln')
    gbar_arrive(a, 42 if RI else None)
    stamp(a, 1)
    a(f's_cmp_lt_u32 s{S_T}, 12'); a('s_cbranch_scc1 L_ffn')
    a(f's_sub_u32 s39, s{S_T}, 12'); a('s_mul_i32 s39, s39, 7'); a('s_add_u32 s39, s39, s38')
    a('s_cmp_ge_u32 s39, 128'); a('s_cbranch_scc1 L_spare')
    a('s_cmp_lt_u32 s39, 64'); a('s_cbranch_scc1 L_shadow')
    a('s_sub_u32 s39, s39, 64'); a('s_and_b32 s40, s39, 31'); a('s_lshr_b32 s41, s39, 5')
    if 'kv' in roles:
        B.ws_gemm(a, 'kv')
    a(f's_lshl_b32 s64, s41, 5'); a('s_add_u32 s64, s64, s40')
    a('s_branch L_fin')
    a.label('L_ffn')
    a(f's_lshr_b32 s39, s{S_T}, 2'); a('s_mul_i32 s39, s39, 7'); a('s_add_u32 s39, s39, s38')
    a('s_cmp_ge_u32 s39, 18'); a('s_cbranch_scc1 L_spare')
    a(f's_and_b32 s52, s{S_T}, 3'); a('s_lshl_b32 s39, s39, 2'); a('s_add_u32 s52, s52, s39')
    a('s_mul_i32 s41, s52, 3641'); a('s_lshr_b32 s41, s41, 16')
    a('s_mul_i32 s40, s41, 18'); a('s_sub_u32 s40, s52, s40')
    if 'f1' in roles:
        B.ws_gemm(a, 'f1')
    if 'f2' in roles:
        B.ffn2_role(a)
    a('s_add_u32 s64, s52, 64')
    a('s_branch L_fin')
    a.label('L_shadow')
    a('s_and_b32 s40, s39, 31'); a('s_lshr_b32 s41, s39, 5')
    if 'sh' in roles:
        SH.shadow_role(a)
    a('s_branch L_exit')
    a.label('L_spare')
    a(f's_cmp_lt_u32 s{S_T}, 12'); a('s_cbranch_scc0 L_spare2')
    a('s_sub_u32 s39, s39, 18'); a('s_lshl_b32 s39, s39, 2'); a(f's_and_b32 s33, s{S_T}, 3'); a('s_add_u32 s64, s39, s33')
    a('s_branch L_spare3')
    a.label('L_spare2')
    a('s_sub_u32 s64, s39, 116')
    a.label('L_spare3')
    a('s_add_u32 s64, s64, 136')
    gbar_wait(a)
    a.label('L_fin')
    if 'fin' in roles:
        SH.finisher_role(a)
    a('s_branch L_exit')
    a.label('L_chain')
    if 'ch' not in roles:
        gbar_arrive(a)
        gbar_wait(a)
        a(f's_lshl_b32 s33, s{S_T}, 7'); a(f's_add_u32 s33, s33, {F_CH}')
        a('v_mov_b32 v2, 64'); a('v_mov_b32 v3, 0'); a('s_mov_b64 exec, 1')
        a(f'buffer_store_dword v2, v3, s[{S_WS}:{S_WS+3}], s33 offen sc1')
        a('s_mov_b64 exec, -1')
    else:
        CH.chain_role(a)
    a.label('L_exit')
    a('s_endpgm')
    txt = header() + a.finalize() + footer()
    open(out, 'w').write(txt)
    return txt

if __name__ == '__main__':
    roles = sys.argv[1].split(',') if len(sys.argv) > 1 else ('ln', 'kv', 'f1')
    t = build(roles)
    print(len(t), 'bytes')
```

```python
from gen_base import *
import struct
def f2u(x): return struct.unpack('<I', struct.pack('<f', x))[0]

X_MEM, X_TOK, X_SM, X_O, RESB = 0, 9216, 13312, 14336, 16384
V_EX, V_RES, V_CS, V_C1, V_M2O, V_IDX, V_SEL = 0, 1, 2, 3, 4, 5, 6
AR, LR = 8, 24
QA, QB, KA, KB, VA, VB = 40, 44, 48, 52, 56, 60
KX, VX = 64, 72
PROF = 0x20000
PROF_STEP = None
PROF_REAL = False
EXP = set()

REAL = [[2, 3, 4, 5, 6, 7, 8, 0, 1], [0, 1, 2, 3, 4, 5, 6, 7, 8], [6, 7, 8, 0, 1, 2, 3, 4, 5], [4, 5, 8, 6, 7, 0, 1, 2, 3]]
def knob(name, dflt=0):
    for x in EXP:
        if x.startswith(name + '='): return int(x[len(name)+1:])
    return dflt
def delay(a, n):
    while n > 0:
        a.rawins(f's_nop {min(n, 16) - 1}'); n -= 16
RESIDENT = [('Q', 0), ('K', 2), ('K', 4), ('K', 5), ('V', 5), ('O', 2, 0), ('O', 2, 1), ('O', 3, 0), ('O', 3, 1)]
REGIMG = [(m, c) for c in range(9) for m in 'QKV' if (m, c) not in RESIDENT] + \
         [('O', 0, 0), ('O', 0, 1), ('O', 1, 0), ('O', 1, 1), ('S',)]
assert len(REGIMG) == 27
MIXED = [[('K', 2), ('K', 7), ('Q', 0), ('V', 2), ('Q', 2), ('K', 1), ('V', 5), ('K', 0), ('Q', 4), ('V', 7), ('V', 0), ('K', 8), ('K', 5), ('K', 4), ('K', 6), ('Q', 6)],
         [('Q', 2), ('K', 5), ('K', 6), ('V', 7), ('K', 4), ('K', 2), ('Q', 6), ('V', 0), ('K', 0), ('V', 2), ('K', 7), ('Q', 4), ('K', 1), ('V', 5), ('K', 8), ('Q', 0)]]
RLB, D_RL = 0xB000000, 192
def rl_items():
    n = knob('rlc')
    return MIXED[knob('nx', 1)][16 - n:] if n else []
def rl_res(j): return (0, 2, 3)[j % 3]
def opbase(k):
    return ('a', 8 * k) if k < 32 else ('v', 80 + 8 * (k - 32))
def opreg(img, tau):
    k = 2 * REGIMG.index(img) + tau
    f, b = opbase(k)
    return f'{f}[{b}:{b+7}]'

S_CRD = 37
S_WOK, S_WA = 38, 39
S_H, S_S = 40, 41
S_O0, S_O1, S_O2 = 42, 43, 44
S_MR = 45
S_MB = 46
S_CP = 47
S_CS = 48
S_CR = 49
S_K0, S_K1 = 50, 51
S_HB, S_B = 52, 53
S_C = 54
S_NM = 56
S_SEGO = 58
S_CSS = 59
S_GM = 60
S_RM = 62
S_Q4 = 70
S_ONE = 72
S_TO, S_TA, S_TR = 52, 53, 45
T0, T1, T2, T3 = 33, 34, 35, 36
PS = 74

def pmode():
    for x in EXP:
        if x.startswith('pm='): return x[3:]
    return None
PM_IDS = {}
def mark(a, name):
    pm = pmode()
    if PROF_STEP is None or pm is None or not name.startswith(pm): return
    k = PM_IDS.setdefault(name, len(PM_IDS) + 1)
    assert k <= 11
    prof(a, k, force=True)
def prof(a, k, _=0, force=False):
    if PROF_STEP is None: return
    if pmode() and not force and k not in (0, 12): return
    sk = a.uid('L_pf')
    a(f's_cmp_lg_u32 s{S_S}, {PROF_STEP + (1 if k >= 12 else 0)}'); a(f's_cbranch_scc1 {sk}')
    a.rawins(f's_mem{"real" if PROF_REAL else ""}time s[{PS+2*k}:{PS+2*k+1}]')
    a.label(sk)

def smf(d, av, b):
    return f'v_smfmac_f32_16x16x64_bf16 v[{d}:{d+3}], v[{av}:{av+3}], {b}, v{V_IDX}'

def lread(slot, dst):
    return [f'ds_read_b128 v[{dst+4*q}:{dst+4*q+3}], v{V_RES} offset:{slot*4096 + q*1024}' for q in range(4)]

S_B_, S_C_ = 20, 24

def setup(a):
    W = S_W
    WS = f's[{S_WS}:{S_WS+3}]'
    if 'hx' in EXP: a(f's_xor_b32 s{S_H}, s{S_T}, 1')
    else: a(f's_mov_b32 s{S_H}, s{S_T}')
    srd(a, S_A, 16, 576 * 8192); srd(a, S_B_, 24, 576 * 8192); srd(a, S_C_, 32, 576 * 8192); srd(a, S_D, 40, 32 * 147456)
    EA = knob('ea')
    S_M0 = 76
    if EA: srd(a, S_M0, 8, 9216)
    a(f'v_mov_b32 v79, v{V_LANE}')
    L = 79
    a(f'v_lshlrev_b32 v{V_EX}, 4, v{L}')
    a(f's_mul_i32 s{T0}, s{W}, 36864'); a(f's_add_u32 s{T0}, s{T0}, {RESB}'); a(f'v_add_u32 v{V_RES}, s{T0}, v{V_EX}')
    a(f'v_bfe_u32 v9, v{L}, 3, 1'); a('v_lshlrev_b32 v9, 12, v9')
    a(f'v_and_b32 v10, 7, v{L}'); a('v_lshl_add_u32 v9, v10, 3, v9')
    a(f'v_bfe_u32 v10, v{L}, 4, 1'); a('v_lshl_add_u32 v9, v10, 6, v9')
    a(f'v_lshrrev_b32 v10, 5, v{L}')
    a(f'v_lshl_add_u32 v{V_C1}, v10, 13, v9')
    a(f'v_lshl_add_u32 v{V_CS}, v10, 2, v9')
    if knob('x4'):
        a(f'v_bfe_u32 v9, v{L}, 3, 1'); a('v_lshlrev_b32 v9, 12, v9')
        a(f'v_and_b32 v11, 7, v{L}'); a('v_lshl_add_u32 v9, v11, 4, v9')
        a(f'v_lshl_add_u32 v9, v10, 13, v9')
        a(f'v_bfe_u32 v11, v{L}, 4, 1'); a('v_xor_b32 v11, 1, v11'); a(f'v_lshl_add_u32 v{V_C1}, v11, 17, v9')
    a(f'v_bfe_u32 v9, v{L}, 2, 1'); a('v_lshlrev_b32 v9, 2, v9'); a(f'v_lshrrev_b32 v10, 4, v{L}'); a('v_add_u32 v9, v9, v10')
    a(f'v_and_b32 v10, 3, v{L}'); a('v_lshlrev_b32 v10, 2, v10'); a(f'v_lshl_add_u32 v{V_M2O}, v9, 4, v10')
    if knob('x4'):
        a(f'v_and_b32 v9, 7, v{L}'); a(f'v_bfe_u32 v10, v{L}, 4, 1'); a(f'v_lshrrev_b32 v11, 5, v{L}'); a('v_lshl_add_u32 v10, v10, 1, v11')
        a('v_lshlrev_b32 v10, 2, v10'); a('v_lshl_add_u32 v9, v9, 4, v10')
        a(f's_cmp_lt_u32 s{W}, 2'); a('s_cselect_b64 vcc, -1, 0'); a(f'v_cndmask_b32 v{V_M2O}, v{V_M2O}, v9, vcc')
    a(f'v_bfe_u32 v10, v{L}, 3, 1'); a('v_mul_u32_u24 v10, 0xaaaa, v10'); a(f'v_add_u32 v{V_IDX}, 0x4444, v10')
    a(f'v_and_b32 v9, 7, v{L}'); a(f'v_bfe_u32 v10, v{L}, 4, 1'); a('v_lshlrev_b32 v10, 2, v10')
    a('v_sub_u32 v9, v9, v10')
    for r in range(2):
        a(f'v_mov_b32 v11, 0'); a('v_mov_b32 v12, 0x3f80'); a(f'v_cmp_eq_u32 vcc, {2*r}, v9'); a('v_cndmask_b32 v11, v11, v12, vcc')
        a('v_mov_b32 v12, 0x3f800000'); a(f'v_cmp_eq_u32 vcc, {2*r+1}, v9'); a(f'v_cndmask_b32 v{V_SEL+r}, v11, v12, vcc')
    a(f's_mov_b32 s{S_C}, {f2u(128 ** -0.5 * 1.4426950408889634):#x}'); a(f's_mov_b32 s{S_C+1}, s{S_C}')
    a(f's_mov_b32 s{S_NM}, 0x00ff00ff'); a(f's_mov_b32 s{S_NM+1}, 0x00ff00ff')
    a(f's_mov_b32 s{S_GM}, 0'); a(f's_mov_b32 s{S_GM+1}, -1')
    for r, m in enumerate((0x0011, 0x1100, 0x0022, 0x2200)):
        a(f's_mov_b32 s{S_RM+2*r}, {m * 0x10001:#x}'); a(f's_mov_b32 s{S_RM+2*r+1}, {m * 0x10001:#x}')
    if knob('x4'):
        a(f's_cmp_lt_u32 s{W}, 2')
        for r in range(4):
            a(f's_cselect_b32 s{S_RM+2*r}, {(0x0303 << 2*r) * 0x10001:#x}, s{S_RM+2*r}'); a(f's_mov_b32 s{S_RM+2*r+1}, s{S_RM+2*r}')
    a(f's_mov_b32 s{S_Q4}, 0x3e803e80'); a(f's_mov_b32 s{S_Q4+1}, 0x3e803e80')
    a(f's_mov_b32 s{S_ONE}, 0x3f803f80'); a(f's_mov_b32 s{S_ONE+1}, 0x3f803f80')
    a(f's_lshl_b32 s{T0}, s{W}, 11')
    a(f's_lshl_b32 s{T1}, s{S_H}, 13'); a(f's_add_u32 s{S_SEGO}, s{T0}, s{T1}')
    a(f's_cmp_lt_u32 s{S_H}, 16')
    a(f's_cselect_b32 s{T0}, 32, -16'); a(f's_cselect_b32 s{T1}, 16, 32')
    a(f's_cmp_eq_u32 s{W}, 1'); a(f's_cselect_b32 s{T0}, s{T1}, s{T0}')
    a(f's_cmp_eq_u32 s{W}, 2'); a(f's_cselect_b32 s{T0}, 64, s{T0}')
    a(f's_add_u32 s{S_B}, s{T0}, s{S_H}')
    a(f's_cmp_lt_u32 s{S_H}, 8'); a(f's_cselect_b32 s{S_HB}, 1, 0')
    a(f's_cmp_lt_u32 s{W}, 2'); a(f's_cselect_b32 s{S_HB}, 1, s{S_HB}')
    a(f's_cmp_eq_u32 s{W}, 3'); a(f's_cselect_b32 s{S_HB}, 0, s{S_HB}')
    a(f's_min_u32 s{S_B}, s{S_B}, 71')
    a(f's_lshl_b32 s{T0}, s{S_B}, 7'); a(f's_add_u32 s{S_MB}, s{T0}, {M2}')
    a(f's_lshl_b32 s{T0}, s{S_B}, 12'); a(f's_add_u32 s{S_CR}, s{T0}, {C1}')
    a(f's_lshl_b32 s{T0}, s{W}, 14'); a(f's_lshl_b32 s{T1}, s{S_H}, 7'); a(f's_add_u32 s{T0}, s{T0}, s{T1}')
    a(f's_add_u32 s{S_CS}, s{T0}, {C1}')
    a(f's_lshl_b32 s{T0}, s{W}, 13'); a(f's_add_u32 s{T0}, s{T0}, s{T1}'); a(f's_add_u32 s{S_CSS}, s{T0}, {C1 + 64*4096}')
    a(f's_mov_b32 s{S_K0}, 0'); a(f's_mov_b32 s{S_K1}, 0')
    a('s_waitcnt lgkmcnt(0)')
    for s_ in (S_A, S_B_, S_C_, S_D): srd_fix(a, s_)
    if EA:
        srd_fix(a, S_M0)
        a(f'v_and_b32 v72, 7, v{L}'); a('v_mul_u32_u24 v72, 1152, v72')
        a(f'v_lshrrev_b32 v73, 3, v{L}'); a('v_lshl_add_u32 v72, v73, 4, v72')
        a('v_mov_b32 v74, 0'); a(f'v_lshlrev_b32 v75, 7, v{L}')
    u0, p0, tau, p2, p3, p1 = 8, 9, 10, 11, 12, 13
    a(f'v_and_b32 v{u0}, 1, v{L}'); a(f'v_bfe_u32 v{p0}, v{L}, 4, 1'); a(f'v_bfe_u32 v{tau}, v{L}, 1, 1')
    a(f'v_bfe_u32 v{p2}, v{L}, 2, 1'); a(f'v_bfe_u32 v{p3}, v{L}, 3, 1'); a(f'v_bfe_u32 v{p1}, v{L}, 5, 1')
    VQ, VO, VS_, VT0, VT1, VU0, VU1 = 20, 21, 22, 23, 24, 25, 26
    a(f'v_lshlrev_b32 v14, 5, v{tau}'); a(f'v_lshl_add_u32 v14, v{u0}, 4, v14'); a(f's_lshl_b32 s{T0}, s{W}, 6'); a(f'v_add_u32 v14, s{T0}, v14')
    a(f'v_lshl_add_u32 v16, v{p1}, 1, v{p3}'); a(f'v_lshl_add_u32 v16, v{p2}, 4, v16'); a(f'v_lshl_add_u32 v16, v{p0}, 5, v16')
    a(f'v_mul_u32_u24 v17, 1152, v16'); a(f'v_add_u32 v{VO}, v17, v14')
    a(f'v_xor_b32 v{tau}, v{tau}, v{p0}')
    a(f'v_lshlrev_b32 v14, 5, v{tau}'); a(f'v_lshl_add_u32 v14, v{u0}, 4, v14'); a(f's_lshl_b32 s{T0}, s{W}, 6'); a(f'v_add_u32 v14, s{T0}, v14')
    a(f'v_lshl_add_u32 v15, v{p1}, 1, v{p0}')
    a(f'v_lshl_add_u32 v16, v{p2}, 2, v15'); a(f'v_lshl_add_u32 v16, v{p3}, 3, v16')
    a(f'v_lshl_add_u32 v{VQ}, v16, 13, v14')
    if 'pB' in EXP:
        a(f'v_lshrrev_b32 v16, 4, v{L}'); a(f's_lshl_b32 s{T0}, s{W}, 4'); a(f'v_add_u32 v16, s{T0}, v16')
        a(f'v_and_b32 v14, 15, v{L}'); a('v_lshlrev_b32 v14, 4, v14'); a(f'v_lshl_add_u32 v{VQ}, v16, 13, v14')
    a(f'v_lshl_add_u32 v16, v{p2}, 4, v15'); a(f'v_lshl_add_u32 v16, v{p3}, 5, v16')
    a(f'v_lshl_add_u32 v16, v{tau}, 6, v16'); a('v_mul_u32_u24 v17, 1152, v16')
    a(f'v_lshlrev_b32 v18, 4, v{u0}'); a(f's_lshl_b32 s{T0}, s{W}, 5'); a(f's_add_u32 s{T0}, s{T0}, 1024')
    a(f'v_add_u32 v18, s{T0}, v18'); a(f'v_add_u32 v{VS_}, v17, v18')
    a(f'v_bfe_u32 v{u0}, v{L}, 1, 1'); a(f'v_bfe_u32 v{p0}, v{L}, 2, 1'); a(f'v_bfe_u32 v{p3}, v{L}, 3, 1')
    a(f'v_bfe_u32 v{p2}, v{L}, 4, 1'); a(f'v_bfe_u32 v14, v{L}, 5, 1')
    a(f'v_and_b32 v18, 1, v{L}'); a('v_lshlrev_b32 v18, 3, v18'); a(f's_mul_i32 s{T0}, s{W}, 36864'); a(f's_add_u32 s37, s{T0}, {RESB}')
    a('v_add_u32 v18, s37, v18')
    a(f'v_lshl_add_u32 v15, v{p2}, 2, v{u0}'); a(f'v_lshl_add_u32 v15, v{p3}, 3, v15'); a(f'v_lshl_add_u32 v15, v{p0}, 4, v15')
    a('v_lshl_add_u32 v15, v14, 6, v15')
    a(f'v_lshl_add_u32 v16, v{p0}, 1, v15')
    a(f'v_xor_b32 v17, 2, v16')
    a(f'v_lshl_add_u32 v{VT0}, v16, 4, v18'); a(f'v_lshl_add_u32 v{VT1}, v17, 4, v18')
    a(f'v_lshl_add_u32 v15, v{p3}, 1, v{u0}'); a(f'v_lshl_add_u32 v15, v{p2}, 2, v15'); a(f'v_lshl_add_u32 v15, v{p0}, 3, v15')
    a('v_lshl_add_u32 v15, v14, 6, v15')
    a(f'v_lshl_add_u32 v{VU0}, v15, 4, v18'); a(f'v_add_u32 v{VU1}, 256, v{VU0}')
    PB = knob('pb')
    VQB, VTB, VUB, VXT, VXO, VXP = 27, 48, 56, 60, 62, 64
    VRA, VRZ, VRF = 64, 66, 68
    if PB == 2:
        a(f's_lshl_b32 s{T0}, s{W}, 12'); a(f's_sub_u32 s{T0}, s{T0}, s37')
        for k_, r_ in enumerate((VT0, VT1, VU0, VU1)): a(f'v_add_u32 v{VXP + k_}, s{T0}, v{r_}')
    if PB == 1:
        b = [8, 9, 10, 11, 12, 13]
        for i in range(6): a(f'v_bfe_u32 v{b[i]}, v{L}, {i}, 1')
        a(f's_and_b32 s{T0}, s{W}, 1'); a(f's_lshr_b32 s{T1}, s{W}, 1')
        a(f'v_xor_b32 v14, v{b[1]}, v{b[4]}'); a(f'v_lshl_add_u32 v14, v14, 1, v{b[0]}')
        a(f'v_xor_b32 v15, v{b[2]}, v{b[5]}'); a('v_lshl_add_u32 v14, v15, 2, v14'); a(f'v_lshl_add_u32 v14, v{b[3]}, 3, v14')
        a(f'v_lshl_add_u32 v15, v{b[5]}, 2, v{b[4]}')
        a(f's_lshl_b32 s{T2}, s{T0}, 1'); a(f's_lshl_b32 s{T3}, s{T1}, 5'); a(f's_add_u32 s{T2}, s{T2}, s{T3}'); a(f'v_add_u32 v15, s{T2}, v15')
        a('v_lshlrev_b32 v14, 4, v14'); a(f'v_lshl_add_u32 v{VQ}, v15, 13, v14'); a(f'v_xor_b32 v{VQB}, 0x80, v{VQ}')
        a(f'v_lshl_add_u32 v14, v{b[1]}, 1, v{b[0]}')
        a(f'v_xor_b32 v15, v{b[2]}, v{b[4]}'); a('v_lshl_add_u32 v14, v15, 2, v14')
        a(f'v_xor_b32 v15, v{b[3]}, v{b[5]}'); a('v_lshl_add_u32 v14, v15, 3, v14')
        a(f'v_lshl_add_u32 v15, v{b[5]}, 4, v{b[4]}')
        a(f's_lshl_b32 s{T2}, s{T0}, 1'); a(f's_lshl_b32 s{T3}, s{T1}, 3'); a(f's_add_u32 s{T2}, s{T2}, s{T3}'); a(f'v_add_u32 v15, s{T2}, v15')
        a('v_mul_u32_u24 v15, 1152, v15'); a(f'v_lshl_add_u32 v{VO}, v14, 4, v15')
        if knob('rlc'):
            a(f'v_lshrrev_b32 v14, 13, v{VQ}'); a(f'v_and_b32 v15, 0xff, v{VQ}'); a(f'v_lshl_add_u32 v{VRA}, v14, 10, v15')
            a(f'v_xor_b32 v{VRA + 1}, 0x80, v{VRA}'); a(f'v_mov_b32 v{VRZ}, 0')
            a(f's_and_b32 s41, s{S_H}, 3'); a('s_cmp_eq_u32 s41, 1'); a(f's_cselect_b32 s41, {knob("rlc")}, -1')
            a(f's_lshr_b32 s43, s{S_H}, 2'); a('s_lshl_b32 s42, s43, 2'); a(f's_add_u32 s42, s42, {D_RL}')
            a('s_lshl_b32 s43, s43, 16'); a(f's_add_u32 s43, s43, {RLB}'); a('s_mov_b32 s39, 0')
        a(f'v_lshlrev_b32 v16, 3, v{b[0]}'); a(f'v_add_u32 v16, {RESB}, v16')
        a(f'v_lshl_add_u32 v16, v{b[2]}, 8, v16'); a(f'v_lshl_add_u32 v16, v{b[4]}, 9, v16'); a(f'v_lshl_add_u32 v16, v{b[1]}, 4, v16')
        a(f'v_xor_b32 v14, s{T0}, v{b[4]}'); a('v_lshl_add_u32 v17, v14, 6, v16')
        a(f'v_xor_b32 v14, s{T1}, v{b[3]}'); a('v_lshl_add_u32 v17, v14, 7, v17')
        a(f'v_lshl_add_u32 v17, v{b[3]}, 10, v17'); a(f'v_lshl_add_u32 v17, v{b[5]}, 11, v17')
        a(f'v_lshl_add_u32 v17, v{b[2]}, 5, v17')
        for t in range(2):
            if t: a('v_xor_b32 v17, 32, v17')
            for wp in range(4): a(f'v_add_u32 v{VTB + 4*t + wp}, {wp * 36864}, v17')
            a(f'v_subrev_u32 v{VXT + t}, {RESB}, v17')
        a(f'v_lshl_add_u32 v17, v{b[3]}, 5, v16')
        a(f'v_xor_b32 v14, s{T0}, v{b[2]}'); a('v_lshl_add_u32 v17, v14, 6, v17')
        a(f'v_xor_b32 v14, s{T1}, v{b[4]}'); a('v_lshl_add_u32 v17, v14, 7, v17')
        a(f'v_lshl_add_u32 v17, v{b[5]}, 10, v17')
        for wp in range(4): a(f'v_add_u32 v{VUB + wp}, {wp * 36864}, v17')
        a(f'v_subrev_u32 v{VXO}, {RESB}, v17')
    a(f's_lshl_b32 s{T2}, s{S_H}, 8')
    a(f's_mul_i32 s{T3}, s{S_H}, 147456')
    def poison():
        sk = a.uid('L_np')
        a(f's_cmp_eq_u32 s{S_HB}, 0'); a(f's_cbranch_scc1 {sk}')
        if 'nopoison' in EXP: a(f's_branch {sk}')
        for r in range(4): a(f'v_mov_b32 v{8+r}, -1')
        for par in range(2):
            a(f's_add_u32 s{T0}, s{S_CR}, {par*294912}')
            for i in range(4):
                a(f'buffer_store_dwordx4 v[8:11], v{V_EX}, {WS}, s{T0} offen offset:{i*1024} sc1')
        for k in (1, 2):
            a(f's_add_u32 s{T0}, s{S_MB}, {9216*k}')
            a(f'buffer_store_dword v8, v{V_M2O}, {WS}, s{T0} offen sc1')
        a.label(sk)

    def worder(w):
        order = [('O', 0, 0), ('O', 0, 1), ('O', 1, 0), ('O', 1, 1), ('S',)] + \
                [(m, REAL[w].index(r)) for r in range(9) for m in 'QKV'] + [x for x in RESIDENT if x[0] == 'O']
        if 'qkv1' in EXP: order = order[5:32] + order[:5] + order[32:]
        assert sorted(map(str, order)) == sorted(map(str, REGIMG + RESIDENT))
        return order
    def plan(w):
        order = worder(w)
        pos = {img: i for i, img in enumerate(order)}
        free = set(range(9)); slot_of = {}; st_ = {'nxt': 0}
        def issue():
            out = []
            while st_['nxt'] < 36:
                i = st_['nxt']; img = order[i]
                if img in RESIDENT:
                    sl = RESIDENT.index(img)
                    if sl not in free: break
                else:
                    cand = [j for j in free if pos[RESIDENT[j]] > i]
                    if not cand: break
                    sl = max(cand, key=lambda j: pos[RESIDENT[j]])
                free.discard(sl); slot_of[i] = sl
                out.append(i); st_['nxt'] += 1
            return out
        first = issue(); after = []
        for i in range(36):
            assert i in slot_of
            if order[i] not in RESIDENT: free.add(slot_of[i])
            after.append(issue())
        return order, slot_of, first, after
    def plan2(w, nx):
        mixed = MIXED[nx]
        pure = [(m, r) for r in range(9) for m in 'QKV' if (m, r) not in mixed]
        order = [('O', 0, 0), ('O', 0, 1), ('O', 1, 0), ('O', 1, 1), ('S',)] + [(m, REAL[w].index(r)) for m, r in pure + mixed] + \
                [x for x in RESIDENT if x[0] == 'O']
        if knob('ois'):
            qkv = order[5:32]; ins = {knob('oi0', 3) + knob('ois') * j: order[j] for j in range(5)}
            for j in range(4): ins[35 - knob('ros', 1) * (3 - j)] = order[32 + j]
            assert len(ins) == 9
            it = iter(qkv); order = [ins[i] if i in ins else next(it) for i in range(36)]
        assert sorted(map(str, order)) == sorted(map(str, REGIMG + RESIDENT))
        pos = {img: i for i, img in enumerate(order)}
        hp = [pos[RESIDENT[j]] for j in range(9)] + [99] * nx
        free = set(range(9 + nx)); slot_of = {}; st_ = {'nxt': 0}
        def issue():
            out = []
            while st_['nxt'] < 36:
                i = st_['nxt']
                cand = [j for j in sorted(free) if hp[j] >= i and not (j == 9 and order[i] == ('S',))]
                if not cand: break
                sl = min(cand, key=lambda j: hp[j])
                free.discard(sl); slot_of[i] = sl; out.append(i); st_['nxt'] += 1
            return out
        first = issue(); after = []
        for i in range(36):
            assert i in slot_of
            if hp[slot_of[i]] != i: free.add(slot_of[i])
            after.append(issue())
        for i in range(2, 36): assert i in first or i not in after[i - 1]
        assert slot_of[pos[('S',)]] != 9
        return order, slot_of, first, after
    PLAN = [plan2(w, knob('nx', 1)) if PB else plan(w) for w in range(4)]
    SHARED = PB == 1
    def wload(w):
        order, slot_of, first, after = PLAN[w]
        def dma(i):
            img = order[i]; slot = slot_of[i]
            rows = [0, 1, 2, 3]
            if img[0] in 'QKV':
                sr = {'Q': S_A, 'K': S_B_, 'V': S_C_}[img[0]]; vo = [VQ] * 4; st = 16 * 8192
                if 'pB' in EXP: st = 4 * 8192
                so = [n * st for n in rows]
                if SHARED: vo = [VQ, VQB, VQ, VQB]; so = [(8 * (n & 1) + 16 * (n >> 1)) * 8192 for n in rows]
                a(f's_add_u32 s53, s{T2}, {REAL[w][img[1]] << 19}')
            elif img[0] == 'O':
                sr = S_D; vo = [VO] * 4; so = [n * 4 * 1152 for n in rows]
                if SHARED: so = [(4 * (n & 1) + 32 * (n >> 1)) * 1152 for n in rows]
                a(f's_add_u32 s53, s{T3}, {img[2] * 64 * 1152 + img[1] * 256}')
            else:
                sr = S_D; vo = [VS_] * 4; so = [n * 4 * 1152 for n in rows]
                a(f's_mov_b32 s53, s{T3}')
            RI = rl_items()
            if img[0] in 'QKV' and (img[0], REAL[w][img[1]]) in RI:
                j = RI.index((img[0], REAL[w][img[1]]))
                lr_, ld_ = a.uid('L_rl'), a.uid('L_rd')
                a('s_cmp_eq_u32 s39, 1'); a(f's_cbranch_scc1 {lr_}')
                for n in range(4):
                    if slot == 9: a(f's_mov_b32 m0, {w*4096 + n*1024}')
                    else: a(f's_add_u32 m0, s37, {slot*4096 + n*1024}')
                    a(f's_add_u32 s38, s53, {so[n]}')
                    a(f'buffer_load_dwordx4 v{vo[n]}, s[{sr}:{sr+3}], s38 offen lds', tok=f'cw{w}_{i}')
                a(f's_branch {ld_}')
                a.label(lr_)
                for n in range(4):
                    if slot == 9: a(f's_mov_b32 m0, {w*4096 + n*1024}')
                    else: a(f's_add_u32 m0, s37, {slot*4096 + n*1024}')
                    a(f's_add_u32 s38, s43, {j * 8 * 65536 + rl_res(j) * 256 + (8 * (n & 1) + 16 * (n >> 1)) * 1024}')
                    a(f'buffer_load_dwordx4 v{VRA + (n & 1)}, {WS}, s38 offen{" sc1" if knob("rsc", 1) else ""} lds', tok=f'cw{w}_{i}')
                a.label(ld_)
                return
            for n in range(4):
                if slot == 9: a(f's_mov_b32 m0, {w*4096 + n*1024}')
                else: a(f's_add_u32 m0, s37, {slot*4096 + n*1024}')
                a(f's_add_u32 s38, s53, {so[n]}')
                a(f'buffer_load_dwordx4 v{vo[n]}, s[{sr}:{sr+3}], s38 offen{" nt" if "wnt" in EXP else ""}{" sc1" if "wsc1" in EXP else ""} lds', tok=f'cw{w}_{i}')
        def wback(i):
            if order[i] in RESIDENT:
                for q in range(4):
                    a(f'ds_write_b128 v{V_RES}, v[{32+4*q}:{32+4*q+3}] offset:{RESIDENT.index(order[i])*4096 + q*1024}')
        if 'wst2' in EXP and w == 0: stamp(a, 5)
        for i in first: dma(i)
        if 'wst2' in EXP and w == 0: stamp(a, 6)
        poison()
        for i in range(36):
            img = order[i]; slot = slot_of[i]
            a.need(f'cw{w}_{i}')
            if w == 0 and i == 0:
                a(f's_lshl_b32 s53, s{S_X}, 2'); a(f's_add_u32 s53, s53, {D_LN}')
                a('v_mov_b32 v8, 1'); a('v_mov_b32 v9, 0'); a('s_mov_b64 exec, 1')
                a(f'buffer_atomic_add v8, v9, s[{S_DBG}:{S_DBG+3}], s53 offen sc1')
                a('s_mov_b64 exec, -1')
            if SHARED:
                a('s_barrier')
                SMP = {knob('rs0', 7) + knob('rsd', 2) * k_: k_ for k_ in range(knob('rsn', 3))} if knob('rlc') else {}
                if i - 9 in SMP:
                    a(f'v_readfirstlane_b32 s38, v{VRF + SMP[i - 9]}'); a('s_cmp_ge_u32 s38, s41'); a('s_cselect_b32 s39, 1, s39')
                if i in SMP: a(f'buffer_load_dword v{VRF + SMP[i]}, v{VRZ}, s[{S_DBG}:{S_DBG+3}], s42 offen sc1')
                if EA and i == 11 and w == 0:
                    a(f's_lshl_b32 s38, s{S_FOREIGN}, 16'); a('s_add_u32 s38, s38, 1'); a('v_mov_b32 v8, s38'); a('s_mov_b64 exec, 1')
                    a(f'buffer_atomic_add v8, v74, s[{S_DBG}:{S_DBG+3}], 0 offen offset:{D_CHB} sc1')
                    a('s_mov_b64 exec, -1')
                if EA and i == knob('eas', 21):
                    a(f'buffer_load_dword v71, v74, s[{S_DBG}:{S_DBG+3}], 0 offen offset:{D_CHB} sc1')
                if EA and i == knob('eae', 30):
                    a('v_readfirstlane_b32 s38, v71'); a('s_lshr_b32 s45, s38, 16'); a('s_and_b32 s38, s38, 0xffff')
                    a('s_cmp_ge_u32 s38, 32'); a('s_cselect_b32 s44, 1, 0')
                    if w == 3:
                        sk = a.uid('L_kv0')
                        a(f's_cbranch_scc0 {sk}')
                        a(f's_lshl_b32 s38, s{S_H}, 2'); a(f's_add_u32 s38, s38, {F_KV}')
                        a('s_mov_b64 exec, 3'); a(f'buffer_load_dword v73, v75, {WS}, s38 offen sc1'); a('s_mov_b64 exec, -1')
                        a.label(sk)
                    for c in range(3 if w == 3 else 2):
                        a(f'buffer_load_dwordx4 v[{AR+4*c}:{AR+4*c+3}], v72, s[{S_M0}:{S_M0+3}], 0 offen offset:{REAL[w][c]*128}')
                if i:
                    wback(i - 1)
                    for j in after[i - 1]: dma(j)
            vt = VU0 if img[0] == 'O' else VT0
            for t in range(2):
                if img in RESIDENT: f, b = 'v', 32 + 8 * t
                else: f, b = opbase(2 * REGIMG.index(img) + t)
                for hb in range(2):
                    for rd in range(2):
                        r = b + 4 * hb + 2 * rd
                        if SHARED and img[0] != 'S':
                            wp = rd + 2 * hb; so = PLAN[wp][1][i] * 4096
                            if so == 9 * 4096:
                                if img[0] == 'O': adr = f'v{VXO} offset:{wp * 4096 + t * 2048}'
                                else: adr = f'v{VXT + t} offset:{wp * 4096}'
                            elif img[0] == 'O': adr = f'v{VUB + wp} offset:{so + t * 2048}'
                            else: adr = f'v{VTB + 4*t + wp} offset:{so}'
                        elif slot == 9: adr = f'v{VXP + (2 if img[0] == "O" else 0) + t} offset:{hb*2048 + rd*512}'
                        else: adr = f'v{vt+t} offset:{slot*4096 + hb*2048 + rd*512}'
                        a(f'ds_read_b64_tr_b16 {f}[{r}:{r+1}], {adr}')
            a('s_waitcnt lgkmcnt(0)')
            if not SHARED:
                wback(i)
                for j in after[i]: dma(j)
            if 'wst2' in EXP and w == 0 and i == 0: stamp(a, 7)
            if 'wst' in EXP and w == 0 and i in (4, 18, 31): stamp(a, {4: 5, 18: 6, 31: 7}[i])
        if SHARED:
            a('s_barrier'); wback(35)
        if EA:
            for c in range(3 if w == 3 else 2):
                a(f'ds_write_b128 v{V_EX}, v[{AR+4*c}:{AR+4*c+3}] offset:{X_MEM + REAL[w][c]*1024}')
        a('s_waitcnt lgkmcnt(0)')
        if EA:
            ok, dn = a.uid('L_eok'), a.uid('L_edn')
            a('s_cmp_eq_u32 s44, 1'); a(f's_cbranch_scc1 {ok}')
            a('v_mov_b32 v76, 32')
            poll(a, f'buffer_load_dword v77, v74, s[{S_DBG}:{S_DBG+3}], 0 offen offset:{D_CHB} sc1',
                 'v_and_b32 v78, 0xffff, v77\nv_cmp_le_u32 vcc, v76, v78', sleep=6)
            a('v_readfirstlane_b32 s45, v77'); a('s_lshr_b32 s45, s45, 16')
            a(f's_branch {dn}')
            a.label(ok)
            if w == 3: a(f'v_readlane_b32 s{S_K0}, v73, 0'); a(f'v_readlane_b32 s{S_K1}, v73, 1')
            a.label(dn)
            a(f's_mov_b32 s{S_FOREIGN}, s45')
    done = a.uid('L_wl')
    lbl = [a.uid('L_wl') for _ in range(4)]
    if 'half' in EXP:
        a(f's_bitcmp1_b32 s{S_H}, 1'); a(f's_cbranch_scc1 {done}')
    for w in range(1, 4):
        a(f's_cmp_eq_u32 s{W}, {w}'); a(f's_cbranch_scc1 {lbl[w]}')
    for w in range(4):
        a.label(lbl[w])
        wload(w)
        if w < 3: a(f's_branch {done}')
    a.label(done)
    if 'rsv' in EXP:
        sk = a.uid('L_rsv')
        a(f's_cmp_lg_u32 s{W}, 0'); a(f's_cbranch_scc1 {sk}')
        a(f's_lshl_b32 s38, s{S_X}, 5'); a(f's_add_u32 s38, s38, s{S_T}'); a('s_lshl_b32 s38, s38, 7'); a(f's_add_u32 s38, s38, {STAMPS}')
        a('v_mov_b32 v72, 0'); a('s_mov_b64 exec, 1')
        for k_ in range(3): a(f'buffer_store_dword v{68 + k_}, v72, {WS}, s38 offen offset:{8 * (5 + k_)}')
        a('s_mov_b64 exec, -1')
        a.label(sk)

def team_barrier(a):
    a('s_waitcnt vmcnt(0)')
    a('s_barrier')
    sk = a.uid('L_tb')
    a(f's_cmp_lg_u32 s{S_W}, 0'); a(f's_cbranch_scc1 {sk}')
    a(f's_lshl_b32 s{T0}, s{S_FOREIGN}, 16'); a(f's_add_u32 s{T0}, s{T0}, 1')
    a(f'v_mov_b32 v8, s{T0}'); a('v_mov_b32 v9, 0')
    a('s_mov_b64 exec, 1')
    a(f'buffer_atomic_add v8, v9, s[{S_DBG}:{S_DBG+3}], 0 offen offset:{D_CHB} sc1')
    a('s_mov_b64 exec, -1')
    a('v_mov_b32 v9, 0'); a('v_mov_b32 v11, 32')
    poll(a, f'buffer_load_dword v8, v9, s[{S_DBG}:{S_DBG+3}], 0 offen offset:{D_CHB} sc1',
         'v_and_b32 v10, 0xffff, v8\nv_cmp_le_u32 vcc, v11, v10', sleep=6)
    a('v_lshrrev_b32 v8, 16, v8')
    a('ds_write_b32 v9, v8')
    a('s_waitcnt lgkmcnt(0)')
    a.label(sk)
    a('s_barrier')
    a('v_mov_b32 v9, 0')
    a('ds_read_b32 v8, v9')
    a('s_waitcnt lgkmcnt(0)')
    a(f'v_readfirstlane_b32 s{S_FOREIGN}, v8')
    a('s_barrier')

def loop(a, sc, tag, role):
    WS = f's[{S_WS}:{S_WS+3}]'
    w = {'r0': 0, 'r1': 1, 'r2': 2, 'n2': 2, 'io': 3}[role]
    red = role[0] == 'r'
    io = role == 'io'
    t_ = tag + role
    LS, LE = f'L_cs{t_}', f'L_ce{t_}'
    acc = {'Q': (QA, QB), 'K': (KA, KB), 'V': (VA, VB)}
    SL = lambda i: AR + 4*i
    def W(m, c, t):
        if (m, c) in RESIDENT: return f'v[{LR+8*t}:{LR+8*t+7}]'
        return opreg((m, c), t)
    def mm1(m, c, t, slot): return smf(acc[m][t], SL(slot), W(m, c, t))
    def lr(img): return lread(RESIDENT.index(img), LR)
    def aread(c, slot): return f'ds_read_b128 v[{SL(slot)}:{SL(slot)+3}], v{V_EX} offset:{X_MEM + REAL[w][c]*1024}'
    def awrite(c): return f'ds_write_b128 v{V_EX}, v[{SL(c)}:{SL(c)+3}] offset:{X_MEM + REAL[w][c]*1024}'
    def cvt(d, s0): return f'v_cvt_pk_bf16_f32 v{d}, v{s0}, v{s0+1}'
    def tr(d): return f'v_mfma_f32_16x16x16_bf16 v[{d}:{d+3}], v[{d}:{d+1}], v[{V_SEL}:{V_SEL+1}], 0'
    def pka(d, x, y): return f'v_pk_add_f32 v[{d}:{d+1}], v[{x}:{x+1}], v[{y}:{y+1}]'
    def zero(r): return f'v_mov_b64 v[{r}:{r+1}], 0'
    def em(*xs):
        for x in xs:
            if isinstance(x, (list, tuple)): em(*x)
            else: a(x)
    nown = 3 if io else 2
    RT = 54
    def prep(): return [[zero(r) for r in range(QA, QA + 24, 2)], lr(('Q', 0))]
    B1 = f'L_b1{t_}'
    PZ = knob('pz', 0)
    SCH = knob('sch', 0)
    def poison(d, caddr, maddr, part=range(5)):
        o = []
        for i in part:
            if i < 4: o.append(f'buffer_store_dwordx4 v[{d}:{d+3}], v{V_EX}, {WS}, s{caddr} offen offset:{i*1024}{sc}')
            else: o.append(f'buffer_store_dword v{d}, v{V_M2O}, {WS}, s{maddr} offen{sc}')
        return o

    def kvcheck(off=0, lazy=False, va=8):
        u = a.uid('')
        if off:
            em(f's_add_u32 s{T1}, s{S_S}, {off}', f's_lshr_b32 s{T1}, s{T1}, 1', f's_add_u32 s{T1}, s{T1}, 1', f's_min_u32 s{T1}, s{T1}, 32')
        else:
            em(f's_lshr_b32 s{T1}, s{S_S}, 1', f's_add_u32 s{T1}, s{T1}, 1')
        if lazy: em(f's_mov_b32 s{T2}, s{T1}')
        else: em(f's_add_u32 s{T2}, s{T1}, 1', f's_min_u32 s{T2}, s{T2}, 32')
        par = 's_cbranch_scc0' if off & 1 else None
        sel = (lambda: em(f's_bitcmp1_b32 s{S_S}, 0', f's_cselect_b32 s{T0}, s{S_K0}, s{S_K1}')) if off & 1 else \
              (lambda: em(f's_bitcmp1_b32 s{S_S}, 0', f's_cselect_b32 s{T0}, s{S_K1}, s{S_K0}'))
        sel()
        OK, FL = f'L_ok{t_}{u}', f'L_fl{t_}{u}'
        em(f's_cmp_ge_u32 s{T0}, s{T2}', f's_cbranch_scc1 {OK}')
        em(f'v_lshlrev_b32 v{va+1}, 3, v{V_EX}')
        em(f's_lshl_b32 s{T3}, s{S_H}, 2', f's_add_u32 s{T3}, s{T3}, {F_KV}')
        a.label(FL)
        em('s_mov_b64 exec, 3', f'buffer_load_dword v{va}, v{va+1}, {WS}, s{T3} offen sc1', 's_mov_b64 exec, -1')
        em(f'v_readlane_b32 s{S_K0}, v{va}, 0', f'v_readlane_b32 s{S_K1}, v{va}, 1')
        sel()
        em(f's_cmp_ge_u32 s{T0}, s{T1}', f's_cbranch_scc1 {OK}')
        em(f's_cmp_eq_u32 s{S_BUD}, 0', f's_cbranch_scc1 {OK}')
        em(f's_sub_u32 s{S_BUD}, s{S_BUD}, 1', f's_branch {FL}')
        a.label(OK)
        if SCH:
            em(f's_add_u32 s{T1}, s{T1}, 1', f's_cmp_ge_u32 s{T0}, s{T1}', f's_cselect_b32 s{T0}, {off + 2}, {off}',
               f's_add_u32 s{T0}, s{T0}, s{S_S}', f's_min_u32 s{T0}, s{T0}, 63',
               f's_lshl_b32 s{T0}, s{T0}, 5', f's_add_u32 s{T0}, s{T0}, s{S_H}', f's_lshl_b32 s{S_WA}, s{T0}, 13')
            return
        em(f's_add_u32 s{T1}, s{T1}, 1', f's_cmp_ge_u32 s{T0}, s{T1}', f's_cselect_b32 s{S_WOK}, 1, 0')
        em(f's_add_u32 s{T0}, s{S_S}, 2', f's_lshl_b32 s{T0}, s{T0}, 5', f's_add_u32 s{T0}, s{T0}, s{S_H}', f's_lshl_b32 s{S_WA}, s{T0}, 13')

    def kvl(ta=T1, tb=T2):
        return [[f's_add_u32 s{ta}, s{S_SEGO}, {KF}', f's_add_u32 s{tb}, s{S_SEGO}, {VF}'],
                [f'buffer_load_dwordx4 v[{KX+4*k}:{KX+4*k+3}], v{V_EX}, {WS}, s{ta} offen offset:{k*1024}' for k in range(2)],
                [f'buffer_load_dwordx4 v[{VX+4*k}:{VX+4*k+3}], v{V_EX}, {WS}, s{tb} offen offset:{k*1024}' for k in range(2)]]
    def kvloads(ta=T1, tb=T2): em(kvl(ta, tb))
    def warm(t):
        return [f'v_lshlrev_b32 v{t}, 3, v{V_EX}', f's_add_u32 s{T1}, s{S_WA}, {KF}', f's_add_u32 s{T2}, s{S_WA}, {VF}',
                f'buffer_load_dword v{V_M2O}, v{t}, {WS}, s{T1} offen', f'buffer_load_dword v{V_M2O}, v{t}, {WS}, s{T2} offen']
    ones4 = [f'v_mov_b64 v[{VX}:{VX+1}], -1', f'v_mov_b64 v[{VX+2}:{VX+3}], -1']

    a.label(LE)
    em(prep())
    if knob('ea'):
        assert SCH
        if io: kvcheck(0, True, 20)
        a('s_barrier')
        kvloads()
        if io: em(warm(20)); kvcheck(1, True, 20)
        if red: em(f's_add_u32 s{S_CRD}, s{S_CR}, 294912')
        if red and PZ == 4: em(ones4)
        em(f's_branch {B1}')
    if io and not knob('ea'):
        kvcheck()
        if SCH: em(warm(9)); kvcheck(1)
    if not knob('ea'):
        srd(a, S_A, 8, 9216)
        a(f'v_lshrrev_b32 v21, 4, v{V_EX}')
        a('v_and_b32 v22, 7, v21'); a('v_mul_u32_u24 v22, 1152, v22')
        a('v_lshrrev_b32 v23, 3, v21'); a('v_lshl_add_u32 v22, v23, 4, v22')
        a('s_waitcnt lgkmcnt(0)')
        srd_fix(a, S_A)
        a('s_barrier')
        for c in range(nown):
            a(f'buffer_load_dwordx4 v[{SL(c)}:{SL(c)+3}], v22, s[{S_A}:{S_A+3}], 0 offen offset:{REAL[w][c]*128}')
    if not knob('ea'):
        if SCH: kvloads()
        if red: em(f's_add_u32 s{S_CRD}, s{S_CR}, 294912')
        if red and PZ == 4: em(ones4)
        em([awrite(c) for c in range(nown)])
        em(f's_branch {B1}')

    a.label(LS)
    prof(a, 12)
    prof(a, 0)
    if 'nocomm' in EXP:
        em(prep())
        if SCH: kvloads()
        if io: em(f's_mov_b32 s{S_WOK}, 1', f's_add_u32 s{T0}, s{S_S}, 3', f's_min_u32 s{T0}, s{T0}, 63', f's_lshl_b32 s{T0}, s{T0}, 5',
                  f's_add_u32 s{T0}, s{T0}, s{S_H}', f's_lshl_b32 s{S_WA}, s{T0}, 13')
        em([awrite(c) for c in range(nown)])
        em(f's_branch {B1}')
    if io:
        if 'steps' in EXP:
            em('s_memtime s[74:75]', f's_lshl_b32 s{T0}, s{S_H}, 6', f's_add_u32 s{T0}, s{T0}, s{S_S}', f's_lshl_b32 s{T0}, s{T0}, 3',
               f's_add_u32 s{T0}, s{T0}, {PROF + 0x10000}', 's_waitcnt lgkmcnt(0)', 'v_mov_b32 v8, s74', 'v_mov_b32 v9, s75', 'v_mov_b32 v10, 0',
               's_mov_b64 exec, 1', f'buffer_store_dwordx2 v[8:9], v10, {WS}, s{T0} offen', 's_mov_b64 exec, -1')
        em(prep())
        if SCH: kvloads(); kvcheck(1)
        else: kvcheck()
    elif not red:
        if SCH: kvloads()
    elif red:
        late = w == 1
        em(f's_xor_b32 s{S_CRD}, s{S_CP}, 294912', f's_add_u32 s{S_CRD}, s{S_CRD}, s{S_CR}')
        NS = knob('ns', 3)
        SETS = [8, 24, 64][:NS]
        SEL, RA, RT = 56, 60, 54
        def cload(b):
            return [f'buffer_load_dwordx4 v[{b+4*i}:{b+4*i+3}], v{V_EX}, {WS}, s{S_CRD} offen offset:{i*1024} sc1' for i in range(4)]
        selr = [f's_add_u32 s{T1}, s{S_MB}, s{S_O0}',
                f'v_and_b32 v{RT}, 64, v{V_EX}', f'v_lshrrev_b32 v{RT}, 2, v{RT}', f'v_mov_b32 v{RT+1}, 0x3f80', f'v_lshlrev_b32 v{RT}, v{RT}, v{RT+1}'] + \
               [f'v_cndmask_b32 v{SEL+r}, 0, v{RT}, s[{S_RM+2*r}:{S_RM+2*r+1}]' for r in range(4)]
        X4 = knob('x4') and role != 'r2'
        if X4:
            selr = [f's_add_u32 s{T1}, s{S_MB}, s{S_O0}',
                    f'v_and_b32 v{RT}, 16, v{V_EX}', f'v_mov_b32 v{RT+1}, 0x3f80', f'v_lshlrev_b32 v{RT}, v{RT}, v{RT+1}'] + \
                   [f'v_cndmask_b32 v{SEL+r}, 0, v{RT}, s[{S_RM+2*r}:{S_RM+2*r+1}]' for r in range(4)]
        zq = [zero(r) for r in range(QA, RT, 2)]
        if PZ == 4: zq = zq + ones4
        if PZ == 2:
            em('v_mov_b64 v[44:45], -1', 'v_mov_b64 v[46:47], -1', f's_add_u32 s{T2}, s{S_CR}, s{S_CP}', f's_add_u32 s{T3}, s{S_MB}, s{S_O1}')
            em(poison(44, T2, T3))
        if late:
            em(selr, zq)
            delay(a, knob('d1'))
            em(cload(SETS[0]))
            for b in SETS[1:]:
                delay(a, knob('g1', 16)); em(cload(b))
        else:
            delay(a, knob('d0'))
            em(cload(SETS[0]), selr)
            if NS > 1: delay(a, knob('g0', 8)); em(cload(SETS[1]))
            em(zq)
            if NS > 2: delay(a, knob('g0', 8)); em(cload(SETS[2]))
        if SCH: kvloads(T2, T3)
        def creduce(sb, first=False):
            mf = lambda i: f'v_mfma_f32_16x16x32_bf16 v[{RA}:{RA+3}], v[{SEL}:{SEL+3}], v[{sb+4*i}:{sb+4*i+3}], {"0" if i == 0 else f"v[{RA}:{RA+3}]"}'
            if PZ == 5 and X4:
                mf = lambda i: f'v_mfma_f32_16x16x32_bf16 v[{RA}:{RA+3}], v[{sb+4*i}:{sb+4*i+3}], v[{SEL}:{SEL+3}], {"0" if i == 0 else f"v[{RA}:{RA+3}]"}'
                xo = lambda d, x, y: f'v_bitop3_b32 v{d}, v{x}, v{y}, s{S_TR} bitop3:0x7e'
                em(mf(0), mf(1), xo(RT, sb, sb + 4), mf(2), mf(3), xo(RT + 1, sb + 8, sb + 12))
                em(f'v_bitop3_b32 v{RT}, v{RT}, v{RT+1}, 1 bitop3:0xa8', f'v_cmp_ne_u32 vcc, 0, v{RT}', 's_cmp_eq_u64 vcc, 0')
                return
            if PZ == 5:
                stp = 1 if role == 'r2' else 2
                xo = lambda d, x, y: f'v_bitop3_b32 v{d}, v{x}, v{y}, s{S_TR} bitop3:0x7e'
                for i in range(4):
                    b = sb + 4*i
                    a(mf(i))
                    if stp == 2:
                        if i == 0: em(xo(RT, b, b + 2))
                        elif i == 1: em(xo(RT + 1, b, b + 2))
                        elif i == 2: em(f'v_or_b32 v{RT}, v{RT}, v{RT+1}', xo(RT + 1, b, b + 2))
                        else: em(f'v_or_b32 v{RT}, v{RT}, v{RT+1}', xo(RT + 1, b, b + 2))
                    else:
                        if i == 0: em(xo(RT, b, b + 1), xo(RT + 1, b + 2, b + 3))
                        else: em(f'v_or_b32 v{RT}, v{RT}, v{RT+1}', xo(RT + 1, b, b + 1), f'v_or_b32 v{RT}, v{RT}, v{RT+1}', xo(RT + 1, b + 2, b + 3))
                em(f'v_bitop3_b32 v{RT}, v{RT}, v{RT+1}, 1 bitop3:0xa8', f'v_cmp_ne_u32 vcc, 0, v{RT}', 's_cmp_eq_u64 vcc, 0')
                return
            if first:
                b = sb
                em(f'v_max3_u32 v{RT}, v{b}, v{b+1}, v{b+2}', f'v_max3_u32 v{RT+1}, v{b+3}, v{b+4}, v{b+5}', mf(0),
                   f'v_max3_u32 v{RT}, v{RT}, v{b+6}, v{b+7}', mf(1),
                   f'v_max3_u32 v{RT+1}, v{RT+1}, v{b+8}, v{b+9}', f'v_max3_u32 v{RT}, v{RT}, v{b+10}, v{b+11}', mf(2),
                   f'v_max3_u32 v{RT+1}, v{RT+1}, v{b+12}, v{b+13}', f'v_max3_u32 v{RT}, v{RT}, v{b+14}, v{b+15}', mf(3))
            else:
                for i in range(4):
                    b = sb + 4*i
                    a(mf(i))
                    if i == 0: em(f'v_max3_u32 v{RT}, v{b}, v{b+1}, v{b+2}', f'v_mov_b32 v{RT+1}, v{b+3}')
                    else: em(f'v_max3_u32 v{RT}, v{RT}, v{b}, v{b+1}', f'v_max3_u32 v{RT+1}, v{RT+1}, v{b+2}, v{b+3}')
            em(f'v_max_u32 v{RT}, v{RT}, v{RT+1}', f'v_cmp_eq_u32 vcc, -1, v{RT}', 's_cmp_eq_u64 vcc, 0')
        RL, RD = f'L_rp{t_}', f'L_rpd{t_}'
        if knob('md') == 2:
            assert PZ == 5
            NB = knob('nb1' if late else 'nb0', 2)
            cregs = list(range(8, 24))
            RX = f'L_rx{t_}'
            if PROF_STEP is not None: em('s_waitcnt vmcnt(0)'); prof(a, 10)
            creduce(8); em(f's_cbranch_scc1 {RD}')
            a.retok(cregs, 'cstale')
            a.label(RL)
            em(f's_cmp_eq_u32 s{S_BUD}, 0', f's_cbranch_scc1 {RX}', f's_sub_u32 s{S_BUD}, s{S_BUD}, 1')
            if 'cnt' in EXP: em('s_add_u32 s98, s98, 1')
            em('s_mov_b64 exec, vcc', cload(8))
            a.retok(cregs, 'cstale')
            em(f's_waitcnt vmcnt({4*(NB-1)})')
            stp = 1 if role == 'r2' else 2
            xo = lambda d, x, y: f'v_bitop3_b32 v{d}, v{x}, v{y}, s{S_TR} bitop3:0x7e'
            mf = lambda i: f'v_mfma_f32_16x16x32_bf16 v[{RA}:{RA+3}], v[{SEL}:{SEL+3}], v[{8+4*i}:{8+4*i+3}], {"0" if i == 0 else f"v[{RA}:{RA+3}]"}'
            ml = knob('mlate')
            for i in range(4):
                b = 8 + 4*i
                if stp == 2:
                    if i == 0: em(xo(RT, b, b + 2))
                    else: em(xo(RT + 1, b, b + 2), f'v_or_b32 v{RT}, v{RT}, v{RT+1}')
                else:
                    if i == 0: em(xo(RT, b, b + 1), xo(RT + 1, b + 2, b + 3), f'v_or_b32 v{RT}, v{RT}, v{RT+1}')
                    else: em(xo(RT + 1, b, b + 1), f'v_or_b32 v{RT}, v{RT}, v{RT+1}', xo(RT + 1, b + 2, b + 3), f'v_or_b32 v{RT}, v{RT}, v{RT+1}')
                if not ml and i > 0: a(mf(i - 1))
            em(f'v_and_b32 v{RT}, 1, v{RT}', f'v_cmp_ne_u32 vcc, 0, v{RT}')
            if not ml: a(mf(3))
            em('s_cmp_eq_u64 vcc, 0', f's_cbranch_scc0 {RL}')
            a.label(RX)
            em('s_mov_b64 exec, -1')
            if knob('mlate'):
                for i in range(4): a(mf(i))
        elif knob('md'):
            NB = knob('nb1' if late else 'nb0', 1)
            cregs = list(range(8, 24))
            for j in range(1, NB):
                delay(a, knob('gb1' if late else 'gb0', 16)); em(cload(8))
            em(f's_waitcnt vmcnt({4*(NB-1)})'); a.retok(cregs, 'cstale')
            creduce(8, NB > 1); em(f's_cbranch_scc1 {RD}')
            RM = f'L_rm{t_}'
            a.label(RL)
            em(f's_cmp_eq_u32 s{S_BUD}, 0', f's_cbranch_scc1 {RM}', f's_sub_u32 s{S_BUD}, s{S_BUD}, 1')
            if 'cnt' in EXP: em('s_add_u32 s98, s98, 1')
            em('s_mov_b64 exec, vcc', cload(8), 's_mov_b64 exec, -1')
            em(f's_waitcnt vmcnt({4*(NB-1)})'); a.retok(cregs, 'cstale')
            em(f'v_max3_u32 v{RT}, v8, v9, v10', f'v_max3_u32 v{RT+1}, v11, v12, v13')
            for b in range(14, 22, 4): em(f'v_max3_u32 v{RT}, v{RT}, v{b}, v{b+1}', f'v_max3_u32 v{RT+1}, v{RT+1}, v{b+2}, v{b+3}')
            em(f'v_max3_u32 v{RT}, v{RT}, v22, v23', f'v_max_u32 v{RT}, v{RT}, v{RT+1}', f'v_cmp_eq_u32 vcc, -1, v{RT}', 's_cmp_eq_u64 vcc, 0')
            em(f's_cbranch_scc0 {RL}')
            a.label(RM)
            for i in range(4):
                b = 8 + 4*i
                a(f'v_mfma_f32_16x16x32_bf16 v[{RA}:{RA+3}], v[{SEL}:{SEL+3}], v[{b}:{b+3}], {"0" if i == 0 else f"v[{RA}:{RA+3}]"}')
        elif SCH:
            assert NS == 1
            if PROF_STEP is not None: a.needr(*range(8, 24)); prof(a, 10)
            creduce(8); em(f's_cbranch_scc1 {RD}')
            a.label(RL)
            em(f's_cmp_eq_u32 s{S_BUD}, 0', f's_cbranch_scc1 {RD}', f's_sub_u32 s{S_BUD}, s{S_BUD}, 1')
            if 'cnt' in EXP: em('s_add_u32 s98, s98, 1')
            em(cload(8))
            creduce(8); em(f's_cbranch_scc0 {RL}')
        else:
            if PROF_STEP is not None: em('s_waitcnt vmcnt(0)'); prof(a, 10)
            a.label(RL)
            for j, b in enumerate(SETS):
                creduce(b); em(f's_cbranch_scc1 {RD}')
                if j == NS - 1: em(f's_cmp_eq_u32 s{S_BUD}, 0', f's_cbranch_scc1 {RD}', f's_sub_u32 s{S_BUD}, s{S_BUD}, 1')
                if 'cnt' in EXP: em('s_add_u32 s98, s98, 1')
                em(cload(b))
            em(f's_branch {RL}')
        a.label(RD)
        if X4:
            em(f'v_permlane32_swap_b32 v{RA}, v{RA+2}', f'v_permlane32_swap_b32 v{RA+1}, v{RA+3}',
               f'v_add_f32 v{RA}, v{RA}, v{RA+2}', f'v_add_f32 v{RA+1}, v{RA+1}, v{RA+3}', cvt(RA, RA))
        else:
            em(f'v_add_f32_dpp v{RA}, v{RA}, v{RA} row_ror:8 row_mask:0xf bank_mask:0xf',
               f'v_add_f32_dpp v{RA+1}, v{RA+1}, v{RA+1} row_ror:8 row_mask:0xf bank_mask:0xf', cvt(RA, RA))
        em(f'buffer_store_dword v{RA}, v{V_M2O}, {WS}, s{T1} offen{sc}')
    prof(a, 9)
    a('s_barrier')
    real = REAL[w]
    em(f's_add_u32 s{T0}, s{S_O0}, {M2 + real[0]*1024}')
    if io: em(f's_add_u32 s{T1}, s{S_O0}, {M2 + real[2]*1024}')
    MS = knob('ms', 3)
    msets = ([[8, 12, 16], [64, 68, 72]] if io else [[8, 12], [64, 68], [72, 76]])[:MS]
    def mload(st):
        o = [f'buffer_load_dwordx4 v[{st[c]}:{st[c]+3}], v{V_EX}, {WS}, s{T0} offen offset:{(real[c]-real[0])*1024} sc1' for c in range(2)]
        if io: o.append(f'buffer_load_dwordx4 v[{st[2]}:{st[2]+3}], v{V_EX}, {WS}, s{T1} offen sc1')
        return o
    CT = 20 if io else 16
    def mcheck(st, first=False):
        x, y = st[0], st[1]
        aw = lambda c: f'ds_write_b128 v{V_EX}, v[{st[c]}:{st[c]+3}] offset:{X_MEM + REAL[w][c]*1024}'
        if first:
            em(f'v_max3_u32 v{CT}, v{x}, v{x+1}, v{x+2}', f'v_max3_u32 v{CT+1}, v{x+3}, v{y}, v{y+1}', aw(0),
               f'v_max3_u32 v{CT}, v{CT}, v{y+2}, v{y+3}', aw(1))
            if io:
                z = st[2]
                em(f'v_max3_u32 v{CT+1}, v{CT+1}, v{z}, v{z+1}', f'v_max3_u32 v{CT}, v{CT}, v{z+2}, v{z+3}', aw(2))
        else:
            em(aw(0), f'v_max3_u32 v{CT}, v{x}, v{x+1}, v{x+2}', aw(1),
               f'v_max3_u32 v{CT}, v{CT}, v{x+3}, v{y}', f'v_max3_u32 v{CT+1}, v{y+1}, v{y+2}, v{y+3}')
            if io:
                z = st[2]
                em(aw(2), f'v_max3_u32 v{CT}, v{CT}, v{z}, v{z+1}', f'v_max3_u32 v{CT+1}, v{CT+1}, v{z+2}, v{z+3}')
        em(f'v_max_u32 v{CT}, v{CT}, v{CT+1}', f'v_cmp_eq_u32 vcc, -1, v{CT}', 's_cmp_eq_u64 vcc, 0')
    fill = [] if io else ([zero(r) for r in range(RT if red else QA, QA + 24, 2)], lr(('Q', 0)))
    if fill and knob('pre02' if w in (0, 2) else 'pre1'):
        em(fill); fill = []
    delay(a, knob('d2' if w in (0, 2) else 'd3'))
    em(mload(msets[0]))
    if fill: em(fill[0])
    if len(msets) > 1:
        delay(a, knob('g2', 0 if fill else 16)); em(mload(msets[1]))
    if fill: em(fill[1])
    if red and PZ == 1:
        em('v_mov_b64 v[20:21], -1', 'v_mov_b64 v[22:23], -1', f's_add_u32 s{T2}, s{S_MB}, s{S_O2}')
        em(poison(20, S_CRD, T2))
    if len(msets) > 2:
        delay(a, knob('g3', 8)); em(mload(msets[2]))
    PL = f'L_pm{t_}'
    if knob('mm') == 2:
        MB_ = knob('mb02' if w in (0, 2) else ('mb1' if w == 1 else 'mb3'), 2)
        st = msets[0]
        mregs = list(range(8, 8 + 4 * len(st)))
        PX = f'L_px{t_}'
        if PROF_STEP is not None: em('s_waitcnt vmcnt(0)'); prof(a, 11, 0)
        mcheck(st); em(f's_cbranch_scc1 {B1}')
        a.retok(mregs, 'mstale')
        a.label(PL)
        em(f's_cmp_eq_u32 s{S_BUD}, 0', f's_cbranch_scc1 {PX}', f's_sub_u32 s{S_BUD}, s{S_BUD}, 1')
        if 'cnt' in EXP: em('s_add_u32 s99, s99, 1')
        em('s_mov_b64 exec, vcc', mload(st))
        a.retok(mregs, 'mstale')
        em(f's_waitcnt vmcnt({len(st)*(MB_-1)})')
        mcheck(st, True); em(f's_cbranch_scc0 {PL}')
        a.label(PX)
        em('s_mov_b64 exec, -1')
    elif knob('mm'):
        MB_ = knob('mb02' if w in (0, 2) else ('mb1' if w == 1 else 'mb3'), 1)
        st = msets[0]
        mregs = list(range(8, 8 + 4 * len(st)))
        for j in range(1, MB_):
            delay(a, knob('gm02' if w in (0, 2) else ('gm1' if w == 1 else 'gm3'), 16)); em(mload(st))
        em(f's_waitcnt vmcnt({len(st)*(MB_-1)})'); a.retok(mregs, 'mstale')
        mcheck(st, MB_ > 1); em(f's_cbranch_scc1 {B1}')
        a.label(PL)
        em(f's_cmp_eq_u32 s{S_BUD}, 0', f's_cbranch_scc1 {B1}', f's_sub_u32 s{S_BUD}, s{S_BUD}, 1')
        if 'cnt' in EXP: em('s_add_u32 s99, s99, 1')
        em('s_mov_b64 exec, vcc', mload(st), 's_mov_b64 exec, -1')
        em(f's_waitcnt vmcnt({len(st)*(MB_-1)})'); a.retok(mregs, 'mstale')
        mcheck(st, MB_ > 1); em(f's_cbranch_scc0 {PL}')
    else:
        if PROF_STEP is not None: em('s_waitcnt vmcnt(0)'); prof(a, 11, 0)
        a.label(PL)
        DL = [B1] + [f'L_pd{j}{t_}' for j in range(1, len(msets))]
        for j, st in enumerate(msets):
            mcheck(st); em(f's_cbranch_scc1 {DL[j]}')
            if j == len(msets) - 1: em(f's_cmp_eq_u32 s{S_BUD}, 0', f's_cbranch_scc1 {DL[j]}', f's_sub_u32 s{S_BUD}, s{S_BUD}, 1')
            if 'cnt' in EXP: em('s_add_u32 s99, s99, 1')
            em(mload(st))
        em(f's_branch {PL}')
        for j in range(len(msets) - 1, 0, -1):
            a.label(DL[j])
            regs = list(range(8, 8 + 4 * len(msets[j])))
            a.retok(regs, 'mstale')
            for c in range(len(msets[j])):
                em(f'v_mov_b64 v[{8+4*c}:{8+4*c+1}], v[{msets[j][c]}:{msets[j][c]+1}]', f'v_mov_b64 v[{8+4*c+2}:{8+4*c+3}], v[{msets[j][c]+2}:{msets[j][c]+3}]')
            if j > 1: em(f's_branch {B1}')
    a.label(B1)
    prof(a, 1)
    if SCH:
        sched1(a, locals()); return
    q = lambda c, t, sl: mm1('Q', c, t, sl)
    k = lambda c, t, sl: mm1('K', c, t, sl)
    v = lambda c, t, sl: mm1('V', c, t, sl)
    r2 = lr(('K', 2))
    em(q(0, 0, 0), q(0, 1, 0), r2[0], r2[1], q(1, 0, 1), r2[2], r2[3], q(1, 1, 1), k(0, 0, 0), k(0, 1, 0), k(1, 0, 1), k(1, 1, 1))
    a('s_waitcnt lgkmcnt(4)')
    a('s_barrier')
    prof(a, 2)
    if io:
        kvloads()
        em(f'v_lshlrev_b32 v20, 3, v{V_EX}', f'v_mov_b32 v21, s{S_S}')
        em(f's_lshl_b32 s{T2}, s{S_H}, 7', f's_add_u32 s{T2}, s{T2}, {F_CH}')
        em('s_mov_b64 exec, 1', f'buffer_store_dword v21, v20, {WS}, s{T2} offen sc1', 's_mov_b64 exec, -1')
        NW = f'L_nw{t_}'
        em(f's_cmp_eq_u32 s{S_WOK}, 0', f's_cbranch_scc1 {NW}')
        em(f's_add_u32 s{T1}, s{S_WA}, {KF}', f's_add_u32 s{T2}, s{S_WA}, {VF}')
        em(f'buffer_load_dword v{V_M2O}, v20, {WS}, s{T1} offen', f'buffer_load_dword v{V_M2O}, v20, {WS}, s{T2} offen')
        a.label(NW)
        em(aread(3, 3))
    else:
        em(aread(2, 2), aread(3, 3))
        if not (red and PZ == 4): kvloads()
    r3, r4, r5 = lr(('K', 4)), lr(('K', 5)), lr(('V', 5))
    X = [[] for _ in range(12)]
    if red and PZ == 4:
        kv = kvl()
        pz = poison(VX, S_CRD, T3)
        em(kv[0], f's_add_u32 s{T3}, s{S_MB}, s{S_O2}')
        seq = kv[1] + pz + kv[2]
        st0 = knob('x0', 0)
        if knob('xs', 1) == 1:
            for i, x in enumerate(seq): X[st0 + i].append(x)
        else:
            for i, x in enumerate(seq): X[st0 + i // 2].append(x)
    em(v(0, 0, 0), X[0], v(0, 1, 0), X[1])
    a.need('mstale')
    em(aread(4, 0), v(1, 0, 1), X[2], v(1, 1, 1), X[3], aread(5, 1))
    em(q(2, 0, 2), X[4], q(2, 1, 2), X[5], k(2, 0, 2), X[6], k(2, 1, 2), X[7], aread(6, 2), r3[0])
    em(q(3, 0, 3), X[8], r3[1], r3[2], q(3, 1, 3), X[9], r3[3], k(3, 0, 3), X[10], k(3, 1, 3), X[11], aread(7, 3))
    em(q(4, 0, 0), q(4, 1, 0), k(4, 0, 0), k(4, 1, 0), aread(8, 0), r4[0])
    em(q(5, 0, 1), r4[1], r4[2], q(5, 1, 1), r4[3], q(6, 0, 2), q(6, 1, 2), q(7, 0, 3), q(7, 1, 3), q(8, 0, 0), q(8, 1, 0))
    em(k(5, 0, 1), k(5, 1, 1), r5[0], r5[1], cvt(QA, QA), k(6, 0, 2), r5[2], r5[3], cvt(QA + 1, QA + 2), k(6, 1, 2), cvt(QB, QB),
       k(7, 0, 3), cvt(QB + 1, QB + 2), k(7, 1, 3), k(8, 0, 0), k(8, 1, 0))
    prof(a, 3)
    em(tr(QA), cvt(KA, KA), cvt(KA + 1, KA + 2))
    em(tr(QB), cvt(KB, KB), cvt(KB + 1, KB + 2))
    em(tr(KA), cvt(QA, QA), cvt(QA + 1, QA + 2))
    em(tr(KB), cvt(QA + 2, QB), cvt(QA + 3, QB + 2))
    em(f'v_mfma_f32_16x16x32_bf16 v[{KX}:{KX+3}], v[{KX}:{KX+3}], v[{QA}:{QA+3}], 0', cvt(KA, KA), cvt(KA + 1, KA + 2))
    em(f'v_mfma_f32_16x16x32_bf16 v[{KX+4}:{KX+7}], v[{KX+4}:{KX+7}], v[{QA}:{QA+3}], 0', cvt(KA + 2, KB), cvt(KA + 3, KB + 2))
    em(f'v_mfma_f32_16x16x32_bf16 v[{QB}:{QB+3}], v[{KA}:{KA+3}], v[{QA}:{QA+3}], 0')
    em(f's_add_u32 s{T0}, s{S_SEGO}, {KM}')
    em(f'buffer_store_dwordx4 v[{KA}:{KA+3}], v{V_EX}, {WS}, s{T0} offen sc1')
    for r in range(4):
        a(f'v_mov_b32_dpp v{KX+r}, v{KX+4+r} quad_perm:[0,1,2,3] row_mask:0xf bank_mask:0xc')
    NM, GM = f's[{S_NM}:{S_NM+1}]', f's[{S_GM}:{S_GM+1}]'
    em(f'v_cndmask_b32 v{KB}, v{QB+1}, v{QB}, {NM}', f'v_cndmask_b32 v{KB+1}, v{QB+3}, v{QB+2}, {NM}',
       f'v_cndmask_b32 v{KB}, v{KB}, v{KB+1}, {GM}')
    em(f'ds_write_b32 v{V_EX}, v{KB} offset:{X_SM + 4*w}', f'ds_write_b128 v{V_EX}, v[{KX}:{KX+3}] offset:{X_TOK + w*1024}')
    prof(a, 4)
    em(v(5, 0, 1), v(5, 1, 1), aread(2, 1), v(6, 0, 2), v(6, 1, 2), aread(3, 2), v(7, 0, 3), v(7, 1, 3), aread(4, 3))
    a('s_waitcnt lgkmcnt(3)')
    a('s_barrier')
    prof(a, 5)
    a(f'ds_read_b128 v[64:67], v{V_EX} offset:{X_SM}')
    for kk in range(4):
        a(f'ds_read_b128 v[{40+4*kk}:{43+4*kk}], v{V_EX} offset:{X_TOK + kk*1024}')
    em(v(8, 0, 0), v(8, 1, 0), v(2, 0, 1), v(2, 1, 1))
    em(v(3, 0, 2), 'v_add_f32 v64, v64, v65', v(3, 1, 2), 'v_add_f32 v66, v66, v67', 'v_add_f32 v64, v64, v66')
    em(pka(40, 40, 44), pka(42, 42, 46), pka(40, 40, 48), pka(42, 42, 50), pka(44, 40, 52), pka(46, 42, 54))
    pre = lread(5, 8) + lread(6, 24)
    em('v_max3_f32 v68, v44, v45, v46', 'v_max3_f32 v68, v68, v47, v64')
    em(v(4, 0, 3), pre[4])
    em('v_max_f32_dpp v68, v68, v68 row_ror:8 row_mask:0xf bank_mask:0xf', 'v_mov_b32 v69, v68')
    em(v(4, 1, 3), pre[5])
    em('v_permlane32_swap_b32 v68, v69', 'v_max_f32 v68, v68, v69', 'v_mov_b32 v69, v68')
    em(pre[6], pre[7])
    em('v_permlane16_swap_b32 v68, v69', 'v_max_f32 v68, v68, v69', f'v_mul_f32 v68, s{S_C}, v68')
    em(pre[0], f'v_fma_f32 v64, v64, s{S_C}, -v68', pre[1])
    for d in (44, 46):
        a(f'v_pk_fma_f32 v[{d}:{d+1}], v[{d}:{d+1}], s[{S_C}:{S_C+1}], v[68:69] op_sel_hi:[1,1,0] neg_lo:[0,0,1] neg_hi:[0,0,1]')
    em('v_exp_f32 v64, v64', cvt(VA, VA), 'v_exp_f32 v44, v44', cvt(VA + 1, VA + 2), 'v_exp_f32 v45, v45',
       'v_mov_b32_dpp v65, v64 row_ror:8 row_mask:0xf bank_mask:0xf', 'v_exp_f32 v46, v46', cvt(VA + 2, VB), 'v_exp_f32 v47, v47', cvt(VA + 3, VB + 2))
    em(cvt(41, 64), pre[2], cvt(42, 44), 'v_mov_b32 v40, v41', pre[3], cvt(43, 46))
    em('v_permlane32_swap_b32 v40, v41')
    em(f'v_mov_b64 v[48:49], s[{S_Q4}:{S_Q4+1}]', f'v_mov_b64 v[50:51], s[{S_ONE}:{S_ONE+1}]')
    em(f's_add_u32 s{T0}, s{S_SEGO}, {KM}')
    a(f'buffer_store_dwordx4 v[{VA}:{VA+3}], v{V_EX}, {WS}, s{T0} offen offset:1024 sc1', tok='kmvm')
    em(f's_cmp_eq_u32 s{S_S}, 63', 's_cbranch_scc1 L_chx')
    em('v_mov_b32_dpp v44, v42 row_ror:8 row_mask:0xf bank_mask:0xf', 'v_mov_b32_dpp v45, v43 row_ror:8 row_mask:0xf bank_mask:0xf')
    em('v_mfma_f32_16x16x32_bf16 v[52:55], v[48:51], v[40:43], 0')
    em(f'v_mfma_f32_16x16x16_bf16 v[64:67], v[{VA}:{VA+1}], v[40:41], 0')
    em(f'v_lshrrev_b32 v48, 1, v{V_EX}', 'v_and_b32 v48, 0x180, v48')
    em(f'v_mfma_f32_16x16x16_bf16 v[68:71], v[{VA+2}:{VA+3}], v[40:41], 0')
    em(f'v_and_b32 v49, 0x70, v{V_EX}', 'v_or_b32 v48, v48, v49')
    em(f'v_mfma_f32_16x16x32_bf16 v[64:67], v[{VX}:{VX+3}], v[42:45], v[64:67]')
    em('v_add_f32_dpp v52, v52, v52 row_ror:8 row_mask:0xf bank_mask:0xf', f'v_bfe_u32 v50, v{V_EX}, 7, 1')
    em(f'v_mfma_f32_16x16x32_bf16 v[68:71], v[{VX+4}:{VX+7}], v[42:45], v[68:71]')
    em('v_rcp_f32 v52, v52', 'v_lshl_add_u32 v49, v50, 3, v48', 'v_lshl_add_u32 v50, v50, 9, v48')
    for d in (64, 66, 68, 70):
        a(f'v_pk_mul_f32 v[{d}:{d+1}], v[{d}:{d+1}], v[52:53] op_sel_hi:[1,0]')
    em(cvt(68, 68), cvt(69, 70), cvt(64, 64), cvt(65, 66))
    em('v_mov_b32_dpp v64, v68 row_ror:8 row_mask:0xf bank_mask:0xc', 'v_mov_b32_dpp v65, v69 row_ror:8 row_mask:0xf bank_mask:0xc')
    em(f'ds_write_b64 v49, v[64:65] offset:{X_O + w*512}')
    prof(a, 6)
    if red and PZ == 3:
        em('v_mov_b64 v[60:61], -1', 'v_mov_b64 v[62:63], -1', f's_add_u32 s{T1}, s{S_MB}, s{S_O2}')
        em(poison(60, S_CRD, T1, range(5)[:knob('pa', 2)]))
        em([zero(r) for r in range(52, 60, 2)])
    elif red and PZ == 0: em([zero(r) for r in range(52, 60, 2)], 'v_mov_b64 v[60:61], -1', 'v_mov_b64 v[62:63], -1')
    elif red and PZ == 5: em([zero(r) for r in range(52, 60, 2)], 'v_mov_b64 v[60:61], -1', zero(62))
    else: em([zero(r) for r in range(52, 64, 2)])
    a('s_waitcnt lgkmcnt(0)')
    a('s_barrier')
    prof(a, 7)
    for jj in range(2):
        a(f'ds_read_b128 v[{40+4*jj}:{43+4*jj}], v50 offset:{X_O + jj*1024}')
    for e in range(4):
        a(f'ds_read_b128 v[{64+4*e}:{67+4*e}], v48 offset:{X_O + e*512}')
    em(zero(48), zero(50))
    if red and PZ in (0, 3):
        em(f's_add_u32 s{T1}, s{S_MB}, s{S_O2}')
        em(poison(60, S_CRD, T1, range(5)[(knob('pa', 2) if PZ == 3 else 0):]))
    if PZ == 5:
        if red: em(f's_add_u32 s{T1}, s{S_MB}, s{S_O2}', poison(60, S_CRD, T1, [4]))
        em(f's_lshl_b32 s{S_TO}, s{S_S}, 15', f's_and_b32 s{S_TO}, s{S_TO}, 0x10000', f's_xor_b32 s{S_TA}, s{S_TO}, 0x10000',
           f's_bfe_i32 s{S_TR}, s{S_TO}, 0x10010')
    em(f's_add_u32 s{T0}, s{S_CS}, s{S_CP}', f's_add_u32 s{T1}, s{S_CSS}, s{S_CP}')
    ring = [8, 16, 24, 32]
    nxt = lread(7, 8) + lread(8, 24)
    GS, GA, GB, GC, GD = 48, 52, 56, 60, 40
    VM = 44
    def tagv(t):
        return [f'v_add_u32 v{t}, s{S_TA}, v{t}', f'v_and_or_b32 v{t}, v{t}, v{VM}, s{S_TO}'] if PZ == 5 else []
    def epi(t, img):
        return [[tagv(t), cvt(t, t)], cvt(t + 1, t + 2), f's_add_u32 s{T2}, s{T0}, {img*65536}',
                f'buffer_store_dwordx2 v[{t}:{t+1}], v{V_C1}, {WS}, s{T2} offen{sc}']
    em([smf(GS, 40 + 4*jj, opreg(('S',), jj)) for jj in range(2)])
    ga = [smf(GA, 64 + 4*e, f'v[{ring[e]}:{ring[e]+7}]') for e in range(4)]
    gb = [smf(GB, 64 + 4*e, opreg(('O', 0, e >> 1), e & 1)) for e in range(4)]
    gc = [smf(GC, 64 + 4*e, opreg(('O', 1, e >> 1), e & 1)) for e in range(4)]
    gd = [smf(GD, 64 + 4*e, f'v[{ring[e]}:{ring[e]+7}]') for e in range(4)]
    em(ga[0], nxt[0], nxt[1], zero(GD), ga[1], nxt[2], nxt[3], zero(GD + 2))
    if PZ == 5: em(f'v_mov_b32 v{VM}, 0xfffe0000')
    em(ga[2], nxt[4], nxt[5], f'v_permlane32_swap_b32 v{GS}, v{GS+2}', ga[3], nxt[6], nxt[7], f'v_permlane32_swap_b32 v{GS+1}, v{GS+3}')
    zc = [zero(60), zero(62)] if red and PZ in (0, 3) else [zero(60) if red and PZ == 5 else [], []]
    em(gb[0], f'v_add_f32 v{GS}, v{GS}, v{GS+2}', zc[0], gb[1], f'v_add_f32 v{GS+1}, v{GS+1}, v{GS+3}', zc[1], tagv(GS), gb[2], cvt(GS, GS),
       f'buffer_store_dword v{GS}, v{V_CS}, {WS}, s{T1} offen{sc}')
    e = epi(GA, 2)
    em(gb[3], e[0], gc[0], e[1:], gc[1])
    e = epi(GB, 0)
    em(gc[2], e[0], gc[3], e[1:])
    em(gd[0], gd[1])
    e = epi(GC, 1)
    em(e[0], gd[2], e[1:], gd[3])
    em(f's_mov_b32 s{T3}, s{S_O0}', f's_mov_b32 s{S_O0}, s{S_O1}', f's_mov_b32 s{S_O1}, s{S_O2}', f's_mov_b32 s{S_O2}, s{T3}')
    em(f's_xor_b32 s{S_CP}, s{S_CP}, 294912', f's_add_u32 s{S_S}, s{S_S}, 1', f's_add_u32 s{S_SEGO}, s{S_SEGO}, {32*8192}')
    em(epi(GD, 3))
    prof2 = PROF_STEP is not None
    if prof2:
        sk = a.uid('L_pf')
        a(f's_cmp_lg_u32 s{S_S}, {PROF_STEP + 1}'); a(f's_cbranch_scc1 {sk}')
        a.rawins(f's_mem{"real" if PROF_REAL else ""}time s[{PS+16}:{PS+17}]')
        a.label(sk)
    a(f's_branch {LS}')

def sched1(a, L):
    em, mm1, lr, aread, cvt, tr, pka, zero, poison = (L[k] for k in ('em', 'mm1', 'lr', 'aread', 'cvt', 'tr', 'pka', 'zero', 'poison'))
    io, red, w, WS, sc, PZ, LS, t_, SL, warm = (L[k] for k in ('io', 'red', 'w', 'WS', 'sc', 'PZ', 'LS', 't_', 'SL', 'warm'))
    assert PZ == 5
    q = lambda c, t, sl: mm1('Q', c, t, sl)
    k = lambda c, t, sl: mm1('K', c, t, sl)
    v = lambda c, t, sl: mm1('V', c, t, sl)
    class Wt:
        def __init__(s, *r): s.r = r
    def slot(i): return Wt(*range(SL(i), SL(i) + 4))
    def lrw(*qs): return Wt(*[LR + 4*x + j for x in qs for j in range(4)])
    def st(*xs):
        for x in xs:
            if x is None: continue
            if isinstance(x, (list, tuple)): st(*x)
            elif isinstance(x, Wt): a.needr(*x.r)
            else: a(x)
    pkm = lambda d, s_: f'v_pk_mul_f32 v[{d}:{d+1}], v[{d}:{d+1}], s[{s_}:{s_+1}]'
    k2, k4, k5, v5 = lr(('K', 2)), lr(('K', 4)), lr(('K', 5)), lr(('V', 5))
    st(q(0, 0, 0), k2[0], q(0, 1, 0), k2[1], q(1, 0, 1), k2[2], q(1, 1, 1), k2[3])
    if io: st(q(2, 0, 2), q(2, 1, 2))
    a('s_waitcnt lgkmcnt(4)')
    a('s_barrier')
    prof(a, 2)
    X = [[] for _ in range(8)]
    if io:
        TV = 62
        X[0] = [f's_lshl_b32 s{T3}, s{S_H}, 7', f's_add_u32 s{T3}, s{T3}, {F_CH}', f'v_mov_b32 v{TV}, s{S_S}']
        X[2] = ['s_mov_b64 exec, 1', f'buffer_store_dword v{TV}, v{V_EX}, {WS}, s{T3} offen sc1', 's_mov_b64 exec, -1']
        wm = warm(TV + 1)
        X[3] = [wm[1], wm[2], wm[0]]
        X[4] = [wm[3]]
        X[5] = [wm[4]]
        X[6] = [zero(TV)]
        st(aread(3, 3))
    else:
        st(aread(2, 2), aread(3, 3))
    st(k(0, 0, 0), X[0], k(0, 1, 0), aread(4, 0), k(1, 0, 1), X[2], k(1, 1, 1), aread(5, 1))
    if io: st(X[3])
    else: st(slot(2), q(2, 0, 2), q(2, 1, 2))
    st(k(2, 0, 2), k5[0], X[4], k(2, 1, 2), aread(6, 2), slot(3))
    st(q(3, 0, 3), k5[1], X[5], q(3, 1, 3), aread(7, 3), slot(0))
    st(q(4, 0, 0), k5[2], X[6], q(4, 1, 0), aread(8, 0), slot(1))
    st(q(5, 0, 1), k5[3], q(5, 1, 1), slot(2), q(6, 0, 2), q(6, 1, 2), slot(3))
    st(q(7, 0, 3), slot(0), q(8, 0, 0), q(7, 1, 3), lrw(0, 1, 2, 3), q(8, 1, 0), pkm(QA, S_C))
    st(k(5, 0, 1), k4[0], pkm(QA + 2, S_C))
    st(k(5, 1, 1), aread(3, 1), cvt(QA, QA))
    st(k(6, 0, 2), k4[1], cvt(QA + 1, QA + 2))
    st(k(6, 1, 2), aread(4, 2), pkm(QB, S_C))
    st(tr(QA), k4[2], pkm(QB + 2, S_C))
    st(k(7, 0, 3), k4[3], cvt(QB, QB))
    st(k(8, 0, 0), slot(1), cvt(QB + 1, QB + 2))
    st(k(3, 0, 1), cvt(QA, QA))
    st(tr(QB), cvt(QA + 1, QA + 2))
    st(k(7, 1, 3), slot(2), lrw(0, 1))
    st(k(4, 0, 2), v5[0], cvt(QA + 2, QB))
    st(k(8, 1, 0), v5[1], cvt(QA + 3, QB + 2))
    st(k(3, 1, 1), lrw(2, 3), cvt(KA, KA))
    KXr = Wt(*range(KX, KX + 8))
    st(k(4, 1, 2), v5[2], KXr, cvt(KA + 1, KA + 2))
    prof(a, 3)
    sc0 = f'v_mfma_f32_16x16x32_bf16 v[{KX}:{KX+3}], v[{KX}:{KX+3}], v[{QA}:{QA+3}], 0'
    sc1_ = f'v_mfma_f32_16x16x32_bf16 v[{KX+4}:{KX+7}], v[{KX+4}:{KX+7}], v[{QA}:{QA+3}], 0'
    scm = f'v_mfma_f32_16x16x32_bf16 v[{QB}:{QB+3}], v[{KA}:{KA+3}], v[{QA}:{QA+3}], 0'
    dm = [f'v_mov_b32_dpp v{KX+r}, v{KX+4+r} quad_perm:[0,1,2,3] row_mask:0xf bank_mask:0xc' for r in range(4)]
    NM, GM = f's[{S_NM}:{S_NM+1}]', f's[{S_GM}:{S_GM+1}]'
    wtok = f'ds_write_b128 v{V_EX}, v[{KX}:{KX+3}] offset:{X_TOK + w*1024}'
    cnd = [f'v_cndmask_b32 v{KB}, v{QB+1}, v{QB}, {NM}', f'v_cndmask_b32 v{KB+1}, v{QB+3}, v{QB+2}, {NM}', f'v_cndmask_b32 v{KB}, v{KB}, v{KB+1}, {GM}']
    wsm = f'ds_write_b32 v{V_EX}, v{KB} offset:{X_SM + 4*w}'
    kmst = f'buffer_store_dwordx4 v[{KA}:{KA+3}], v{V_EX}, {WS}, s{T0} offen sc1'
    P2N = knob('p2n')
    if P2N:
        st(v5[3], f's_add_u32 s{T0}, s{S_SEGO}, {KM}')
        st(tr(KA))
        st(sc0, cvt(KB, KB), cvt(KB + 1, KB + 2))
        st(sc1_)
        st(tr(KB), cvt(KA, KA), cvt(KA + 1, KA + 2))
        st(v(7, 0, 3), dm[0], dm[1])
        st(v(7, 1, 3), aread(0, 3), cvt(KA + 2, KB), cvt(KA + 3, KB + 2), dm[2], dm[3])
        st(scm, wtok)
        st(v(8, 0, 0), kmst, v(8, 1, 0), aread(1, 0), cnd, wsm)
        prof(a, 4)
        if P2N == 1:
            st(v(3, 0, 1), v(3, 1, 1), aread(2, 1), v(4, 0, 2), v(4, 1, 2), aread(5, 2))
            a('s_waitcnt lgkmcnt(2)')
        else:
            st(v(3, 0, 1), v(3, 1, 1), aread(2, 1), v(4, 0, 2))
            a('s_waitcnt lgkmcnt(1)')
        a('s_barrier')
    else:
        st(v5[3], f's_add_u32 s{T0}, s{S_SEGO}, {KM}')
        st(tr(KA), cvt(KB, KB), cvt(KB + 1, KB + 2))
        st(sc0)
        st(tr(KB), cvt(KA, KA), cvt(KA + 1, KA + 2))
        st(sc1_)
        st(cvt(KA + 2, KB), cvt(KA + 3, KB + 2))
        st(scm)
        st(dm, v(7, 0, 3), wtok)
        st(cnd)
        st(wsm)
        prof(a, 4)
        st(v(7, 1, 3), aread(0, 3), v(8, 0, 0), kmst,
           v(8, 1, 0), aread(1, 0), v(3, 0, 1), v(3, 1, 1), aread(2, 1))
        a('s_waitcnt lgkmcnt(3)')
        a('s_barrier')
    prof(a, 5); mark(a, 'P3start')
    a(f'ds_read_b128 v[64:67], v{V_EX} offset:{X_SM}')
    for kk in range(4):
        a(f'ds_read_b128 v[{40+4*kk}:{43+4*kk}], v{V_EX} offset:{X_TOK + kk*1024}')
    pre = lread(5, 8) + lread(6, 24)
    P5N = knob('p5n')
    cst = [f'v_mov_b64 v[48:49], s[{S_Q4}:{S_Q4+1}]', f'v_mov_b64 v[50:51], s[{S_ONE}:{S_ONE+1}]']
    if P2N:
        if P2N == 2: st(v(4, 1, 2), aread(5, 2))
        st(slot(3), v(0, 0, 3), v(0, 1, 3), aread(6, 3), slot(0), v(1, 0, 0), v(1, 1, 0), slot(1), Wt(64, 65, 66, 67))
        st(v(2, 0, 1), 'v_add_f32 v64, v64, v65', v(2, 1, 1), slot(2), lrw(0, 1, 2, 3), Wt(*range(40, 48)), 'v_add_f32 v66, v66, v67')
        st(v(5, 0, 2), pka(40, 40, 44), v(5, 1, 2), Wt(*range(48, 52)), pka(42, 42, 46))
        mark(a, 'P3a')
        st(pka(40, 40, 48), pka(42, 42, 50), 'v_add_f32 v64, v64, v66', Wt(*range(52, 56)), pka(44, 40, 52), pka(46, 42, 54))
        mark(a, 'P3b')
        st(slot(3), v(6, 0, 3), 'v_max3_f32 v68, v44, v45, v46', cst[0], v(6, 1, 3), pre[4], 'v_max3_f32 v68, v68, v47, v64')
        st(cst[1], pre[5],
           'v_max_f32_dpp v69, v68, v68 row_ror:8 row_mask:0xf bank_mask:0xf', 'v_max_f32_dpp v68, v68, v68 row_ror:8 row_mask:0xf bank_mask:0xf')
        st(pre[6], pre[7], 'v_permlane32_swap_b32 v68, v69')
        mark(a, 'P3c')
        st('v_max_f32 v70, v68, v69', 'v_max_f32 v71, v68, v69', pre[0], pre[1], 'v_permlane16_swap_b32 v70, v71')
        st(pre[2], 'v_max_f32 v68, v70, v71')
        st('v_sub_f32 v64, v64, v68')
        for d in (44, 46):
            a(f'v_pk_add_f32 v[{d}:{d+1}], v[{d}:{d+1}], v[68:69] op_sel_hi:[1,0] neg_lo:[0,1] neg_hi:[0,1]')
        mark(a, 'P3d')
        st('v_exp_f32 v64, v64', pre[3], 'v_exp_f32 v44, v44', 'v_mov_b32_dpp v65, v64 row_ror:8 row_mask:0xf bank_mask:0xf', 'v_exp_f32 v45, v45',
           cvt(VA, VA), 'v_exp_f32 v46, v46', cvt(40, 64), cvt(41, 64), 'v_exp_f32 v47, v47', cvt(VA + 1, VA + 2))
        st(cvt(42, 44), 'v_permlane32_swap_b32 v40, v41', cvt(VA + 2, VB), cvt(43, 46), cvt(VA + 3, VB + 2))
        mark(a, 'P3e')
    else:
        st(v(4, 0, 2), v(4, 1, 2), aread(5, 2), slot(3), v(0, 0, 3), v(0, 1, 3), aread(6, 3), slot(0), Wt(64, 65, 66, 67))
        st(v(1, 0, 0), 'v_add_f32 v64, v64, v65', v(1, 1, 0), slot(1), Wt(*range(40, 48)), 'v_add_f32 v66, v66, v67')
        st(v(2, 0, 1), pka(40, 40, 44), v(2, 1, 1), Wt(*range(48, 52)), pka(42, 42, 46))
        mark(a, 'P3a')
        st(pka(40, 40, 48), pka(42, 42, 50), 'v_add_f32 v64, v64, v66', Wt(*range(52, 56)), pka(44, 40, 52), pka(46, 42, 54))
        mark(a, 'P3b')
        st(slot(2), lrw(0, 1, 2, 3), v(5, 0, 2), 'v_max3_f32 v68, v44, v45, v46', v(5, 1, 2), 'v_max3_f32 v68, v68, v47, v64')
        st(slot(3), v(6, 0, 3),
           'v_max_f32_dpp v69, v68, v68 row_ror:8 row_mask:0xf bank_mask:0xf', 'v_max_f32_dpp v68, v68, v68 row_ror:8 row_mask:0xf bank_mask:0xf')
        st(v(6, 1, 3), pre[4], 'v_permlane32_swap_b32 v68, v69')
        mark(a, 'P3c')
        st('v_max_f32 v70, v68, v69', 'v_max_f32 v71, v68, v69', pre[5], pre[6], 'v_permlane16_swap_b32 v70, v71')
        st(pre[7], 'v_max_f32 v68, v70, v71')
        st('v_sub_f32 v64, v64, v68')
        for d in (44, 46):
            a(f'v_pk_add_f32 v[{d}:{d+1}], v[{d}:{d+1}], v[68:69] op_sel_hi:[1,0] neg_lo:[0,1] neg_hi:[0,1]')
        mark(a, 'P3d')
        st('v_exp_f32 v64, v64', pre[0], 'v_exp_f32 v44, v44', 'v_mov_b32_dpp v65, v64 row_ror:8 row_mask:0xf bank_mask:0xf', 'v_exp_f32 v45, v45',
           pre[1], cvt(VA, VA), 'v_exp_f32 v46, v46', cvt(40, 64), cvt(41, 64), 'v_exp_f32 v47, v47', cvt(VA + 1, VA + 2), pre[2])
        st(cvt(42, 44), 'v_permlane32_swap_b32 v40, v41', cvt(VA + 2, VB), pre[3], cvt(43, 46), cvt(VA + 3, VB + 2))
        mark(a, 'P3e')
        st(cst)
    st(f's_add_u32 s{T0}, s{S_SEGO}, {KM}')
    LAST = f'L_last{t_}'
    st('v_mov_b32_dpp v44, v42 row_ror:8 row_mask:0xf bank_mask:0xf', f's_cmp_eq_u32 s{S_S}, 63',
       'v_mov_b32_dpp v45, v43 row_ror:8 row_mask:0xf bank_mask:0xf', f's_cbranch_scc1 {LAST}')
    vmst = f'buffer_store_dwordx4 v[{VA}:{VA+3}], v{V_EX}, {WS}, s{T0} offen offset:1024 sc1'
    mark(a, 'P3f')
    ring = [8, 16, 24, 32]
    nxt = lread(7, 8) + lread(8, 24)
    tag = lambda t: f'v_and_or_b32 v{t}, v{t}, -2, s{S_TO}'
    adr = lambda img: f's_add_u32 s{T2}, s{T0}, {img*65536}'
    sto = lambda t: f'buffer_store_dwordx2 v[{t}:{t+1}], v{V_C1}, {WS}, s{T2} offen{sc}'
    RG = lambda e: Wt(*range(ring[e], ring[e] + 8))
    rot = [f's_mov_b32 s{T3}, s{S_O0}', f's_mov_b32 s{S_O0}, s{S_O1}', f's_mov_b32 s{S_O1}, s{S_O2}', f's_mov_b32 s{S_O2}, s{T3}',
           f's_xor_b32 s{S_CP}, s{S_CP}, 294912', f's_add_u32 s{S_S}, s{S_S}, 1', f's_add_u32 s{S_SEGO}, s{S_SEGO}, {32*8192}']
    if P5N:
        GS, GA, GB, GC, GD = 52, 48, 56, 60, 40
        AX, AY = 46, 47
        ER = {w: 64}
        others = [e for e in range(4) if e != w]
        for j, e in enumerate(others): ER[e] = 68 + 4*j
        E = lambda e: Wt(*range(ER[e], ER[e] + 4))
        S_ = [smf(GS, 40 + 4*jj, opreg(('S',), jj)) for jj in range(2)]
        ga = [smf(GA, ER[e], f'v[{ring[e]}:{ring[e]+7}]') for e in range(4)]
        gb = [smf(GB, ER[e], opreg(('O', 0, e >> 1), e & 1)) for e in range(4)]
        gc = [smf(GC, ER[e], opreg(('O', 1, e >> 1), e & 1)) for e in range(4)]
        gd = [smf(GD, ER[e], f'v[{ring[e]}:{ring[e]+7}]') for e in range(4)]
        st('v_mfma_f32_16x16x32_bf16 v[52:55], v[48:51], v[40:43], 0', f'v_lshrrev_b32 v{AX}, 1, v{V_EX}', f'v_and_b32 v{AY}, 0x70, v{V_EX}')
        st(f'v_mfma_f32_16x16x16_bf16 v[64:67], v[{VA}:{VA+1}], v[40:41], 0', f'v_and_b32 v{AX}, 0x180, v{AX}', zero(60))
        st(f'v_mfma_f32_16x16x16_bf16 v[68:71], v[{VA+2}:{VA+3}], v[40:41], 0', f'v_or_b32 v{AX}, v{AX}, v{AY}', zero(62))
        a(vmst, tok='kmvm')
        st(f'v_mfma_f32_16x16x32_bf16 v[64:67], v[{VX}:{VX+3}], v[42:45], v[64:67]',
           'v_add_f32_dpp v52, v52, v52 row_ror:8 row_mask:0xf bank_mask:0xf', f'v_bfe_u32 v{AY}, v{V_EX}, 7, 1')
        st(f'v_mfma_f32_16x16x32_bf16 v[68:71], v[{VX+4}:{VX+7}], v[42:45], v[68:71]',
           'v_rcp_f32 v52, v52', f'v_lshl_add_u32 v{AY}, v{AY}, 9, v{AX}', zero(48), zero(50), zero(56), zero(58))
        mark(a, 'P3g')
        for d in (64, 66, 68, 70):
            a(f'v_pk_mul_f32 v[{d}:{d+1}], v[{d}:{d+1}], v[52:53] op_sel_hi:[1,0]')
        st(cvt(64, 64), cvt(65, 66), cvt(66, 68), cvt(67, 70))
        st(f's_mov_b64 exec, s[{S_NM}:{S_NM+1}]', f'ds_write_b128 v{AX}, v[64:67] offset:{X_O + w*512}', 's_mov_b64 exec, -1')
        st([f'v_mov_b32_dpp v{64+r}, v{64+r} row_ror:8 row_mask:0xf bank_mask:0xc' for r in range(4)])
        prof(a, 6); mark(a, 'P3i')
        st(f's_bfe_u32 s{S_TO}, s{S_S}, 0x10001', f's_sub_u32 s{S_TR}, 0, s{S_TO}')
        st(RG(w), ga[w], nxt[2*w], nxt[2*w+1], zero(52))
        if red: st(gb[w], f's_add_u32 s{T1}, s{S_MB}, s{S_O2}', 'v_mov_b32 v44, -1', gc[w], poison(44, None, T1, [4]), zero(54))
        else: st(gb[w], zero(54), gc[w])
        st(f's_add_u32 s{T0}, s{S_CS}, s{S_CP}', f's_add_u32 s{T1}, s{S_CSS}, s{S_CP}')
        a('s_waitcnt lgkmcnt(2)')
        a('s_barrier')
        prof(a, 7); mark(a, 'P3j')
        for e in others:
            a(f'ds_read_b128 v[{ER[e]}:{ER[e]+3}], v{AX} offset:{X_O + e*512}')
        for jj in range(2):
            a(f'ds_read_b128 v[{40+4*jj}:{43+4*jj}], v{AY} offset:{X_O + jj*1024}')
        e1, e2, e3 = others
        nx = lambda e: [nxt[2*e], nxt[2*e+1]]
        if knob('x4'):
            sw = lambda x, y: f'v_permlane16_swap_b32 v{x}, v{y}'
            st4 = lambda t: f'buffer_store_dwordx4 v[{t}:{t+3}], v{V_C1}, {WS}, s{T2} offen{sc}'
            st(E(e1), ga[e1], nx(e1)[0], E(e2), ga[e2], nx(e1)[1], E(e3), ga[e3], nx(e2)[0], Wt(40, 41, 42, 43))
            st(gb[e1], nx(e2)[1], gb[e2], nx(e3)[0], cvt(48, 48))
            st(gb[e3], nx(e3)[1], cvt(49, 50))
            st(S_[0], adr(0), zero(GD), Wt(44, 45, 46, 47))
            st(S_[1], cvt(50, 56))
            st(gc[e1], cvt(51, 58), zero(GD + 2))
            st(gc[e2], sw(48, 50), f'v_permlane32_swap_b32 v{GS}, v{GS+2}')
            st(gc[e3], sw(49, 51), f'v_permlane32_swap_b32 v{GS+1}, v{GS+3}')
            st(RG(w), gd[w], tag(48), f'v_add_f32 v{GS}, v{GS}, v{GS+2}')
            st(RG(e1), gd[e1], st4(48), f'v_add_f32 v{GS+1}, v{GS+1}, v{GS+3}', cvt(63, 62))
            st(RG(e2), gd[e2], adr(1), cvt(GS, GS), cvt(62, 60))
            st(RG(e3), gd[e3], tag(GS), f'buffer_store_dword v{GS}, v{V_CS}, {WS}, s{T1} offen{sc}')
            st(rot[:5])
            st(cvt(60, 40), cvt(61, 42), rot[5:], sw(60, 62), sw(61, 63), tag(60), st4(60))
        else:
            st(E(e1), ga[e1], nx(e1)[0], E(e2), ga[e2], nx(e1)[1], E(e3), ga[e3], nx(e2)[0], Wt(40, 41, 42, 43))
            st(S_[0], nx(e2)[1], Wt(44, 45, 46, 47), S_[1], nx(e3)[0], cvt(GA, GA))
            st(gb[e1], nx(e3)[1], adr(2), cvt(GA + 1, GA + 2))
            st(gb[e2], tag(GA), f'v_permlane32_swap_b32 v{GS}, v{GS+2}')
            st(gb[e3], sto(GA), f'v_permlane32_swap_b32 v{GS+1}, v{GS+3}')
            st(gc[e1], zero(GD), f'v_add_f32 v{GS}, v{GS}, v{GS+2}')
            st(gc[e2], zero(GD + 2), f'v_add_f32 v{GS+1}, v{GS+1}, v{GS+3}')
            st(gc[e3], adr(0), cvt(GB, GB), cvt(GS, GS))
            st(RG(w), gd[w], cvt(GB + 1, GB + 2), tag(GS))
            st(RG(e1), gd[e1], f'buffer_store_dword v{GS}, v{V_CS}, {WS}, s{T1} offen{sc}', tag(GB), cvt(GC, GC))
            st(RG(e2), gd[e2], sto(GB), adr(1), cvt(GC + 1, GC + 2))
            st(RG(e3), gd[e3], tag(GC), sto(GC), adr(3))
            st(rot)
            st(cvt(GD, GD), cvt(GD + 1, GD + 2), tag(GD), sto(GD))
    else:
        sched1_p5(a, locals(), L)
    if PROF_STEP is not None:
        sk = a.uid('L_pf')
        a(f's_cmp_lg_u32 s{S_S}, {PROF_STEP + 1}'); a(f's_cbranch_scc1 {sk}')
        a.rawins(f's_mem{"real" if PROF_REAL else ""}time s[{PS+16}:{PS+17}]')
        a.label(sk)
    a(f's_branch {LS}')
    a.label(LAST)
    a(vmst, tok='kmvm')
    a('s_branch L_chx')

def sched1_p5(a, M, L):
    st, Wt, vmst, tag, adr, sto, RG, ring, nxt, rot, cvt, zero, poison, red, w, WS, sc = (M[k] for k in
        ('st', 'Wt', 'vmst', 'tag', 'adr', 'sto', 'RG', 'ring', 'nxt', 'rot', 'cvt', 'zero', 'poison', 'red', 'w', 'WS', 'sc'))
    st('v_mfma_f32_16x16x32_bf16 v[52:55], v[48:51], v[40:43], 0')
    st(f'v_mfma_f32_16x16x16_bf16 v[64:67], v[{VA}:{VA+1}], v[40:41], 0')
    st(f'v_lshrrev_b32 v48, 1, v{V_EX}', 'v_and_b32 v48, 0x180, v48')
    st(f'v_mfma_f32_16x16x16_bf16 v[68:71], v[{VA+2}:{VA+3}], v[40:41], 0')
    st(f'v_and_b32 v49, 0x70, v{V_EX}', 'v_or_b32 v48, v48, v49')
    st(f'v_mfma_f32_16x16x32_bf16 v[64:67], v[{VX}:{VX+3}], v[42:45], v[64:67]')
    st('v_add_f32_dpp v52, v52, v52 row_ror:8 row_mask:0xf bank_mask:0xf', f'v_bfe_u32 v50, v{V_EX}, 7, 1')
    st(f'v_mfma_f32_16x16x32_bf16 v[68:71], v[{VX+4}:{VX+7}], v[42:45], v[68:71]')
    st('v_rcp_f32 v52, v52', 'v_lshl_add_u32 v49, v50, 3, v48', 'v_lshl_add_u32 v50, v50, 9, v48')
    mark(a, 'P3g')
    a(vmst, tok='kmvm')
    mark(a, 'P3h')
    for d in (64, 66, 68, 70):
        a(f'v_pk_mul_f32 v[{d}:{d+1}], v[{d}:{d+1}], v[52:53] op_sel_hi:[1,0]')
    st(cvt(68, 68), cvt(69, 70), cvt(64, 64), cvt(65, 66))
    st('v_mov_b32_dpp v64, v68 row_ror:8 row_mask:0xf bank_mask:0xc', 'v_mov_b32_dpp v65, v69 row_ror:8 row_mask:0xf bank_mask:0xc')
    st(f'ds_write_b64 v49, v[64:65] offset:{X_O + w*512}')
    prof(a, 6); mark(a, 'P3i')
    if red:
        st(f's_add_u32 s{T1}, s{S_MB}, s{S_O2}', 'v_mov_b32 v60, -1', poison(60, None, T1, [4]))
    st([zero(r) for r in range(52, 64, 2)])
    st(f's_bfe_u32 s{S_TO}, s{S_S}, 0x10001', f's_sub_u32 s{S_TR}, 0, s{S_TO}')
    st(f's_add_u32 s{T0}, s{S_CS}, s{S_CP}', f's_add_u32 s{T1}, s{S_CSS}, s{S_CP}')
    a('s_waitcnt lgkmcnt(0)')
    a('s_barrier')
    prof(a, 7); mark(a, 'P3j')
    for jj in range(2):
        a(f'ds_read_b128 v[{40+4*jj}:{43+4*jj}], v50 offset:{X_O + jj*1024}')
    for e in range(4):
        a(f'ds_read_b128 v[{64+4*e}:{67+4*e}], v48 offset:{X_O + e*512}')
    st(zero(48), zero(50))
    GS, GA, GB, GC, GD = 48, 52, 56, 60, 40
    E = lambda e: Wt(*range(64 + 4*e, 68 + 4*e))
    S_ = [smf(GS, 40 + 4*jj, opreg(('S',), jj)) for jj in range(2)]
    ga = [smf(GA, 64 + 4*e, f'v[{ring[e]}:{ring[e]+7}]') for e in range(4)]
    gb = [smf(GB, 64 + 4*e, opreg(('O', 0, e >> 1), e & 1)) for e in range(4)]
    gc = [smf(GC, 64 + 4*e, opreg(('O', 1, e >> 1), e & 1)) for e in range(4)]
    gd = [smf(GD, 64 + 4*e, f'v[{ring[e]}:{ring[e]+7}]') for e in range(4)]
    st(S_[0], Wt(44, 45, 46, 47), S_[1], E(0), zero(GD))
    st(ga[0], nxt[0], E(1), zero(GD + 2))
    st(ga[1], nxt[1], E(2), f'v_permlane32_swap_b32 v{GS}, v{GS+2}')
    st(ga[2], nxt[2], E(3), f'v_permlane32_swap_b32 v{GS+1}, v{GS+3}')
    st(ga[3], nxt[3], f'v_add_f32 v{GS}, v{GS}, v{GS+2}')
    st(gb[0], nxt[4], f'v_add_f32 v{GS+1}, v{GS+1}, v{GS+3}')
    st(gb[1], nxt[5], cvt(GS, GS))
    st(gb[2], nxt[6], tag(GS))
    st(gb[3], f'buffer_store_dword v{GS}, v{V_CS}, {WS}, s{T1} offen{sc}', cvt(GA, GA))
    st(gc[0], nxt[7], adr(2), cvt(GA + 1, GA + 2))
    st(gc[1], tag(GA))
    st(gc[2], sto(GA), cvt(GB, GB))
    st(gc[3], adr(0), RG(0), cvt(GB + 1, GB + 2))
    st(gd[0], RG(1), tag(GB))
    st(gd[1], sto(GB), RG(2), cvt(GC, GC))
    st(gd[2], adr(1), RG(3), cvt(GC + 1, GC + 2))
    st(gd[3], tag(GC), sto(GC), adr(3))
    st(rot)
    st(cvt(GD, GD), cvt(GD + 1, GD + 2), tag(GD), sto(GD))

def chain_role(a):
    stamp(a, 1)
    setup(a)
    stamp(a, 2)
    if not knob('ea'): team_barrier(a)
    stamp(a, 3)
    if 'setuponly' in EXP or 'so2' in EXP:
        a('s_branch L_exit')
    a(f's_mov_b32 s{S_S}, 0'); a(f's_mov_b32 s{S_O0}, 0'); a(f's_mov_b32 s{S_O1}, 9216'); a(f's_mov_b32 s{S_O2}, 18432')
    a(f's_mov_b32 s{S_CP}, 0')
    if 'cnt' in EXP: a('s_mov_b32 s98, 0'); a('s_mov_b32 s99, 0')
    variants = getattr(chain_role, 'variants', 'both')
    vs = {'both': [('', 'l'), (' sc1', 'f')], 'loc': [('', 'l')], 'for': [(' sc1', 'f')]}[variants]
    if variants == 'both':
        a(f's_cmp_lg_u32 s{S_FOREIGN}, 0'); a('s_cbranch_scc1 L_cdf')
    for sc, tag in vs:
        a.label(f'L_cd{tag}')
        a(f's_cmp_eq_u32 s{S_W}, 3'); a(f's_cbranch_scc1 L_ce{tag}io')
        a(f's_cmp_eq_u32 s{S_W}, 1'); a(f's_cbranch_scc1 L_ce{tag}r1')
        a(f's_cmp_eq_u32 s{S_W}, 0'); a(f's_cbranch_scc1 L_ce{tag}r0')
        a(f's_cmp_lt_u32 s{S_H}, 8'); a(f's_cbranch_scc1 L_ce{tag}r2')
        a(f's_branch L_ce{tag}n2')
        for role in ('r0', 'r1', 'r2', 'n2', 'io'):
            loop(a, sc, tag, role)
    a.label('L_chx')
    WS = f's[{S_WS}:{S_WS+3}]'
    a('s_waitcnt vmcnt(0)')
    a('s_barrier')
    sk = a.uid('L_x')
    a(f's_cmp_lg_u32 s{S_W}, 3'); a(f's_cbranch_scc1 {sk}')
    a(f'v_lshlrev_b32 v60, 3, v{V_EX}'); a('v_mov_b32 v61, 64')
    a(f's_lshl_b32 s{T2}, s{S_H}, 7'); a(f's_add_u32 s{T2}, s{T2}, {F_CH}')
    a('s_mov_b64 exec, 1')
    a(f'buffer_store_dword v61, v60, {WS}, s{T2} offen sc1')
    a('s_mov_b64 exec, -1')
    a.label(sk)
    if 'cnt' in EXP:
        a(f's_lshl_b32 s{T0}, s{S_H}, 2'); a(f's_add_u32 s{T0}, s{T0}, s{S_W}'); a(f's_lshl_b32 s{T0}, s{T0}, 7'); a(f's_add_u32 s{T0}, s{T0}, {PROF}')
        a('v_mov_b32 v10, 0'); a('v_mov_b32 v8, s98'); a('v_mov_b32 v9, s99'); a('s_mov_b64 exec, 1')
        a(f'buffer_store_dwordx2 v[8:9], v10, {WS}, s{T0} offen')
        a('s_mov_b64 exec, -1')
    if PROF_STEP is not None:
        a('s_waitcnt lgkmcnt(0)')
        a(f's_lshl_b32 s{T0}, s{S_H}, 2'); a(f's_add_u32 s{T0}, s{T0}, s{S_W}'); a(f's_lshl_b32 s{T0}, s{T0}, 7'); a(f's_add_u32 s{T0}, s{T0}, {PROF}')
        a('v_mov_b32 v10, 0'); a('s_mov_b64 exec, 1')
        for k in range(13):
            a(f'v_mov_b32 v8, s{PS+2*k}'); a(f'v_mov_b32 v9, s{PS+2*k+1}')
            a(f'buffer_store_dwordx2 v[8:9], v10, {WS}, s{T0} offen offset:{8*k}')
        a('s_mov_b64 exec, -1')
    stamp(a, 4)
```

```python
from gen_base import *
from gen_bulk import ws_flag

NEG = 0xff800000
def wreg(f):
    if f < 64:
        return f'a[{4*f}:{4*f+3}]'
    b = 208 + 4 * (f - 64)
    return f'v[{b}:{b+3}]'
def wreg_half(f, hf):
    if f < 64:
        return f'a[{4*f+2*hf}:{4*f+2*hf+1}]'
    b = 208 + 4 * (f - 64) + 2 * hf
    return f'v[{b}:{b+1}]'
def fq(k, c): return k * 2 + c
def fo(pp, ab, ke): return 36 + (pp * 2 + ab) * 4 + ke

PROF_IT = None
EXP = set()
def sprof(a, k):
    if PROF_IT is None: return
    sk = a.uid('L_sp')
    a(f's_cmp_lg_u32 s44, {PROF_IT + (1 if k == 11 else 0)}'); a(f's_cbranch_scc1 {sk}')
    a.rawins(f's_memtime s[{64+2*k}:{65+2*k}]')
    a.label(sk)

def sknob(name, dflt=0):
    for x in EXP:
        if x.startswith(name + '='): return int(x[len(name)+1:])
    return dflt

def shadow_role(a):
    srd(a, S_A, 16, 576 * 8192)
    srd(a, S_B, 40, 32 * 147456)
    a('s_lshl_b32 s42, s40, 8')
    a(f'v_lshrrev_b32 v2, 4, v{V_LANE}'); a(f'v_and_b32 v3, 15, v{V_LANE}')
    a(f'v_lshlrev_b32 v4, 1, v2'); a(f'v_xor_b32 v5, v3, v4'); a(f'v_xor_b32 v6, 8, v5')
    a(f'v_mul_u32_u24 v2, 8192, v2'); a(f'v_lshl_add_u32 v5, v5, 4, v2'); a(f'v_lshl_add_u32 v6, v6, 4, v2')
    a(f'v_lshrrev_b32 v7, 4, v{V_LANE}'); a(f'v_bfe_u32 v8, v{V_LANE}, 2, 2'); a(f'v_and_b32 v9, 3, v{V_LANE}')
    a(f'v_and_b32 v10, 1, v7'); a(f'v_lshl_or_b32 v10, v10, 2, v8'); a(f'v_lshlrev_b32 v10, 1, v10')
    a(f'v_lshrrev_b32 v11, 1, v9'); a(f's_lshl_b32 s33, s{S_W}, 2'); a(f'v_add_u32 v11, s33, v11')
    a(f'v_add_u32 v12, 2, v11'); a(f'v_xor_b32 v11, v11, v10'); a(f'v_xor_b32 v12, v12, v10')
    a(f'v_lshl_add_u32 v13, v7, 3, v8'); a(f'v_lshlrev_b32 v13, 8, v13'); a(f'v_and_b32 v9, 1, v9')
    a(f'v_lshl_add_u32 v13, v9, 3, v13'); a(f'v_lshl_add_u32 v11, v11, 4, v13'); a(f'v_lshl_add_u32 v12, v12, 4, v13')
    a(f'v_add_u32 v14, {73728}, v11'); a(f'v_add_u32 v15, {73728}, v12')
    for n, r in enumerate((11, 12, 14, 15)):
        a(f'v_add_u32 v{18+n}, {65536}, v{r}')
    a('s_waitcnt lgkmcnt(0)')
    srd_fix(a, S_A); srd_fix(a, S_B)
    a(f's_bitcmp1_b32 s{S_W}, 0'); a(f's_cselect_b64 vcc, -1, 0')
    a(f'v_cndmask_b32 v16, v5, v6, vcc'); a(f'v_cndmask_b32 v17, v6, v5, vcc')
    for hf in range(2):
        a(f's_mul_i32 s33, s{S_W}, {18*1024}'); a(f's_add_u32 s33, s33, {hf*73728}')
        a(f's_mul_i32 s34, s{S_W}, {18*4*8192}'); a('s_add_u32 s34, s34, s42'); a(f's_add_u32 s34, s34, {hf*288*8192}')
        for n in range(18):
            a('s_mov_b32 m0, s33')
            a(f'buffer_load_dwordx4 v{16 if ((n>>1)&1)==0 else 17}, s[{S_A}:{S_A+3}], s34 offen lds', tok=f'sq{hf}')
            if n < 17:
                a('s_add_u32 s33, s33, 1024'); a(f's_add_u32 s34, s34, {4*8192}')
    def tr_q(hf):
        for kk in range(9):
            k = hf * 9 + kk
            for c in range(2):
                ad = (11 + c) if hf == 0 else (14 + c)
                for h2 in range(2):
                    if kk == 8:
                        a(f'ds_read_b64_tr_b16 {wreg_half(fq(k,c), h2)}, v{ {11:18,12:19,14:20,15:21}[ad] } offset:{h2*1024}')
                    else:
                        a(f'ds_read_b64_tr_b16 {wreg_half(fq(k,c), h2)}, v{ad} offset:{kk*8192 + h2*1024}')
    def dma_o(hf):
        a(f's_mul_i32 s33, s{S_W}, {18*1024}')
        a(f's_mul_i32 s34, s40, 147456'); a('s_add_u32 s34, s34, s33'); a(f's_add_u32 s34, s34, {hf*73728}')
        a(f's_add_u32 s33, s33, {hf*73728}')
        for n in range(18):
            a('s_mov_b32 m0, s33')
            a(f'buffer_load_dwordx4 v22, s[{S_B}:{S_B+3}], s34 offen lds', tok=f'so{hf}')
            if n < 17:
                a('s_add_u32 s33, s33, 1024'); a('s_add_u32 s34, s34, 1024')
    a(f'v_lshlrev_b32 v22, 4, v{V_LANE}')
    a(f'v_lshrrev_b32 v23, 4, v{V_LANE}'); a(f'v_bfe_u32 v24, v{V_LANE}, 2, 2')
    a(f'v_lshl_add_u32 v23, v23, 2, v24'); a(f'v_mul_u32_u24 v23, 1152, v23')
    a(f'v_and_b32 v24, 3, v{V_LANE}'); a(f'v_lshl_add_u32 v23, v24, 4, v23')
    a(f's_mul_i32 s33, s{S_W}, 9'); a('s_lshr_b32 s43, s33, 1')
    a('s_lshl_b32 s33, s43, 6'); a('v_add_u32 v23, s33, v23')
    a(f'v_add_u32 v24, {73728}, v23')
    def tr_o(hf):
        for k2 in range(2):
            ke = hf * 2 + k2
            for pp in range(5):
                for ab in range(2):
                    for h2 in range(2):
                        off = k2 * 32 * 1152 + h2 * 16 * 1152 + pp * 64 + ab * 8
                        a(f'ds_read_b64_tr_b16 {wreg_half(fo(pp, ab, ke), h2)}, v{23+hf} offset:{off}')
    a.need('sq0'); a('s_barrier'); tr_q(0); a('s_waitcnt lgkmcnt(0)'); a('s_barrier'); dma_o(0)
    a.need('sq1'); a('s_barrier'); tr_q(1); a('s_waitcnt lgkmcnt(0)'); a('s_barrier'); dma_o(1)
    a.need('so0'); a('s_barrier'); tr_o(0)
    a.need('so1'); a('s_waitcnt lgkmcnt(0)'); a('s_barrier'); tr_o(1); a('s_waitcnt lgkmcnt(0)'); a('s_barrier')
    stamp(a, 2)
    gbar_wait(a)
    stamp(a, 3)
    V_L16, V_SET, V_SQ, V_SE, V_OW = 2, 3, 4, 5, 6
    V_RD = 3
    V_Z, V_FL = 0, 1
    BIAS = 8
    XR = 16
    QA = 48
    KF_ = 64
    KMF = 96
    VF_ = 112
    VMF = 128
    OA = 136
    S_IT, S_BUF, S_SEG, S_KVP, S_CHP = 44, 45, 46, 53, 54
    S_E, S_NS, S_FA = 57, 58, 59
    WS = f's[{S_WS}:{S_WS+3}]'
    def em(xs):
        for x in xs: a(x)
    def dma(src_sreg, off=0):
        return f'buffer_load_dwordx4 v{V_L16}, {WS}, s{src_sreg} offen offset:{off} lds'
    def grouped(xs):
        groups = []; cur = []
        for x in xs:
            cur.append(x)
            if x.startswith('buffer_'):
                groups.append(cur); cur = []
        assert not cur
        return groups
    a(f'v_lshlrev_b32 v{V_L16}, 4, v{V_LANE}')
    a(f's_and_b32 s55, s{S_W}, 1'); a(f's_lshr_b32 s56, s{S_W}, 1')
    def x_dma(it_sreg, buf_sreg):
        o = [f's_lshl_b32 s48, s{it_sreg}, 1', 's_add_u32 s48, s48, s41', 's_min_u32 s48, s48, 63', 's_mul_i32 s48, s48, 36864',
             f's_mul_i32 s49, s{S_W}, 9216', 's_add_u32 s48, s48, s49', f's_add_u32 s48, s48, {XN}', f's_add_u32 s49, s49, s{buf_sreg}']
        for grp, cnt in ((0, 4), (1, 4), (2, 1)):
            o.append('s_mov_b32 m0, s49')
            o += [dma(48, 1024 * n) for n in range(cnt)]
            if grp < 2: o += ['s_add_u32 s49, s49, 4096', 's_add_u32 s48, s48, 4096']
        return o
    a(f's_mov_b32 s{S_IT}, 0'); a(f's_mov_b32 s{S_BUF}, 0'); em(x_dma(S_IT, S_BUF))
    a(f's_mov_b32 s{S_IT}, 1'); a(f's_mov_b32 s{S_BUF}, 36864'); em(x_dma(S_IT, S_BUF))
    a(f's_mov_b32 s{S_IT}, 0'); a(f's_mov_b32 s{S_BUF}, 0')
    a('s_waitcnt vmcnt(9)')
    L1 = a.uid('L_sq')
    a.label(L1)
    a('s_waitcnt vmcnt(11)')
    a('s_barrier')
    a(f'v_add_u32 v{V_RD}, s{S_BUF}, v{V_L16}')
    reads = []
    for k in range(18):
        for tau in range(2):
            slot = (2 * k + tau) % 8
            reads.append(f'ds_read_b128 v[{XR+4*slot}:{XR+4*slot+3}], v{V_RD} offset:{tau*18432 + k*1024}')
    for r in reads[:6]: a(r)
    a(f's_add_u32 s50, s{S_IT}, 2'); a(f's_add_u32 s51, s{S_BUF}, {2*36864}'); a(f's_cmp_ge_u32 s51, {3*36864}')
    a(f's_cselect_b32 s47, {3*36864}, 0'); a('s_sub_u32 s51, s51, s47')
    groups = grouped(x_dma(50, 51))
    ri = 6
    for k in range(18):
        for c in range(2):
            for tau in range(2):
                slot = (2 * k + tau) % 8
                t = QA + 4 * (c * 2 + tau)
                a(f'v_mfma_f32_16x16x32_bf16 v[{t}:{t+3}], {wreg(fq(k,c))}, v[{XR+4*slot}:{XR+4*slot+3}], {"0" if k == 0 else f"v[{t}:{t+3}]"}')
            if c == 0 and ri < len(reads):
                a(reads[ri]); a(reads[ri+1]); ri += 2
            if c == 1 and k % 2 == 0 and groups: em(groups.pop(0))
    assert not groups
    a(f's_lshl_b32 s47, s{S_IT}, 1'); a('s_add_u32 s47, s47, s41'); a('s_lshl_b32 s47, s47, 5'); a('s_add_u32 s47, s47, s40')
    a('s_lshl_b32 s47, s47, 13'); a(f's_lshl_b32 s48, s{S_W}, 10'); a('s_add_u32 s47, s47, s48'); a(f's_add_u32 s47, s47, {QF}')
    a('s_add_u32 s48, s47, 4096')
    for tau in range(2):
        d = KF_ + 4 * tau
        s0, s1 = QA + 4 * tau, QA + 4 * (2 + tau)
        a(f'v_cvt_pk_bf16_f32 v{d}, v{s0}, v{s0+1}'); a(f'v_cvt_pk_bf16_f32 v{d+1}, v{s0+2}, v{s0+3}')
        a(f'v_cvt_pk_bf16_f32 v{d+2}, v{s1}, v{s1+1}'); a(f'v_cvt_pk_bf16_f32 v{d+3}, v{s1+2}, v{s1+3}')
        a(f'buffer_store_dwordx4 v[{d}:{d+3}], v{V_L16}, {WS}, s{47+tau} offen')
    a(f's_add_u32 s{S_BUF}, s{S_BUF}, 36864'); a(f's_cmp_ge_u32 s{S_BUF}, {3*36864}'); a(f's_cselect_b32 s{S_BUF}, 0, s{S_BUF}')
    a(f's_add_u32 s{S_IT}, s{S_IT}, 1'); a(f's_cmp_lt_u32 s{S_IT}, 32'); a(f's_cbranch_scc1 {L1}')
    a('s_waitcnt vmcnt(0)')
    a('s_barrier')
    stamp(a, 5)
    LO, LS = 0, 8192
    LE = 73728
    OQ, OK, OV, OM = 0, 8192, 16384, 24576
    a(f'v_add_u32 v{V_SET}, {LS}, v{V_L16}')
    a('s_lshl_b32 s33, s55, 12'); a(f'v_add_u32 v{V_SQ}, s33, v{V_SET}')
    a('s_lshl_b32 s33, s56, 12'); a(f'v_add_u32 v{V_SE}, s33, v{V_SET}')
    a(f'v_add_u32 v7, s33, v{V_L16}')
    a('s_lshl_b32 s33, s55, 12'); a('s_lshl_b32 s34, s56, 11'); a('s_add_u32 s33, s33, s34'); a(f's_add_u32 s33, s33, {LO}')
    a(f'v_add_u32 v{V_OW}, s33, v{V_L16}')
    a(f'v_and_b32 v48, 15, v{V_LANE}'); a('s_lshl_b32 s33, s55, 4'); a('v_add_u32 v48, s33, v48')
    a(f'v_lshrrev_b32 v49, 4, v{V_LANE}'); a('v_lshlrev_b32 v49, 2, v49')
    a(f'v_mov_b32 v50, {NEG:#x}'); a('v_mov_b32 v52, 0')
    for kap in range(2):
        for i in range(4):
            a(f'v_add_u32 v51, {16*kap+i}, v49')
            a('v_cmp_le_u32 vcc, v51, v48')
            a(f'v_cndmask_b32 v{BIAS+4*kap+i}, v50, v52, vcc')
    a(f'v_mov_b32 v{V_Z}, 0')
    def seg_base(seg, lset):
        return [f's_lshl_b32 s50, s{seg}, 5', 's_add_u32 s50, s50, s40', 's_lshl_b32 s50, s50, 13', f's_lshl_b32 s51, s{S_W}, 11',
                's_add_u32 s50, s50, s51', f's_add_u32 s51, s51, s{lset}']
    def set_dma(lbase, gbase):
        return [f's_add_u32 m0, s51, {lbase}', f's_add_u32 s52, s50, {gbase}', dma(52, 0), dma(52, 1024)]
    def kv_wait(it_sreg):
        sk = a.uid('L_kvok')
        a(f's_min_u32 s34, s{it_sreg}, 31')
        a(f's_cmp_gt_u32 s{S_KVP}, s34'); a(f's_cbranch_scc1 {sk}')
        a('s_add_u32 s34, s34, 1')
        a('s_lshl_b32 s33, s41, 7'); a('s_lshl_b32 s35, s40, 2'); a('s_add_u32 s33, s33, s35'); a(f's_add_u32 s33, s33, {F_KV}')
        poll(a, f'buffer_load_dword v62, v{V_Z}, {WS}, s33 offen sc1', 'v_cmp_le_u32 vcc, s34, v62', sleep=2)
        a(f'v_readfirstlane_b32 s{S_KVP}, v62')
        a.label(sk)
    a(f's_lshl_b32 s{S_FA}, s40, 7'); a(f's_add_u32 s{S_FA}, s{S_FA}, {F_CH}')
    a(f's_mov_b32 s{S_IT}, 0'); a(f's_mov_b32 s{S_BUF}, {LS}')
    a(f's_mov_b32 s{S_KVP}, 0'); a(f's_mov_b32 s{S_CHP}, 0'); a(f's_mov_b32 s{S_E}, 0')
    a(f's_mov_b32 s{S_SEG}, s41')
    kv_wait(S_IT)
    em(seg_base(S_SEG, S_BUF)); em(set_dma(OQ, QF)); em(set_dma(OK, KF)); em(set_dma(OV, VF))
    a('s_waitcnt vmcnt(0)')
    def units_of(odd):
        return [(pp, tau) for pp in range(4) for tau in range(2)] + [(4, 0)] if odd == 0 else \
               [(0, 1)] + [(pp, tau) for pp in range(1, 5) for tau in range(2)]
    S_PB = 60
    L = a.uid('L_sh')
    a.label(L)
    sprof(a, 11); sprof(a, 0)
    a('s_waitcnt vmcnt(9)')
    a('s_barrier')
    sprof(a, 1)
    for sl in range(4):
        d = XR + 4 * sl
        a(f'ds_read_b128 v[{d}:{d+3}], v{V_SQ} offset:{OQ + sl*1024}')
        for kap in range(2):
            a(f'ds_read_b128 v[{KF_+4*(sl*2+kap)}:{KF_+4*(sl*2+kap)+3}], v{V_SET} offset:{OK + sl*2048 + kap*1024}')
    a(f's_add_u32 s{S_NS}, s{S_SEG}, 2'); a('s_add_u32 s33, s41, 62'); a(f's_min_u32 s{S_NS}, s{S_NS}, s33')
    S0 = QA
    sk = a.uid('L_chok'); sk2 = a.uid('L_late'); sk3 = a.uid('L_chok')
    for sl in range(4):
        for kap in range(2):
            t = S0 + 4 * kap
            kf = KF_ + 4 * (sl * 2 + kap)
            cin = f'v[{BIAS+4*kap}:{BIAS+4*kap+3}]' if sl == 0 else f'v[{t}:{t+3}]'
            a(f'v_mfma_f32_16x16x32_bf16 v[{t}:{t+3}], v[{kf}:{kf+3}], v[{XR+4*sl}:{XR+4*sl+3}], {cin}')
        if sl == 1:
            a(f's_cmp_eq_u32 s{S_E}, 0'); a(f's_cbranch_scc1 {sk2}')
            for s2 in range(4):
                a(f'ds_read_b128 v[{KMF+4*s2}:{KMF+4*s2+3}], v{V_SET} offset:{OM + s2*2048}')
            for z in range(2):
                a(f'ds_read_b128 v[{VMF+4*z}:{VMF+4*z+3}], v{V_SE} offset:{OM + 1024 + z*2048}')
            a.label(sk2)
    for z in range(4):
        a(f'ds_read_b128 v[{VF_+4*z}:{VF_+4*z+3}], v{V_SE} offset:{OV + z*1024}')
    sprof(a, 2)
    a(f's_add_u32 s37, s{S_IT}, 1')
    kv_wait(37)
    skf = a.uid('L_nofl')
    a(f's_cmp_lg_u32 s{S_W}, 0'); a(f's_cbranch_scc1 {skf}')
    a(f'buffer_load_dword v{V_FL}, v{V_Z}, {WS}, s{S_FA} offen sc1')
    a.label(skf)
    a(f's_xor_b32 s36, s{S_BUF}, 32768')
    em(seg_base(S_NS, 36)); em(set_dma(OQ, QF)); em(set_dma(OK, KF)); em(set_dma(OV, VF))
    sprof(a, 3)
    a(f's_cmp_lg_u32 s{S_E}, 0'); a(f's_cbranch_scc1 {sk}')
    TP = sknob('tp')
    if TP:
        DP = a.uid('L_dp'); DPB = sk
        a(f's_cmp_ge_u32 s{S_SEG}, {64 - sknob("tpk", 1)}'); a(f's_cbranch_scc1 {DP}')
    a(f's_cmp_gt_u32 s{S_CHP}, s{S_SEG}'); a(f's_cbranch_scc1 {sk3}')
    a(f's_add_u32 s34, s{S_SEG}, 1')
    poll(a, f'buffer_load_dword v60, v{V_Z}, {WS}, s{S_FA} offen sc1', 'v_cmp_le_u32 vcc, s34, v60', sleep=1)
    a(f'v_readfirstlane_b32 s{S_CHP}, v60')
    a.label(sk3)
    a(f's_lshl_b32 s47, s{S_SEG}, 5'); a('s_add_u32 s47, s47, s40'); a('s_lshl_b32 s47, s47, 13'); a(f's_add_u32 s47, s47, {KM}')
    a('s_add_u32 s48, s47, 4096')
    for sl in range(4):
        d = KMF + 4 * sl
        o = sl * 2048
        a(f'buffer_load_dwordx4 v[{d}:{d+3}], v{V_L16}, {WS}, s{47 + o // 4096} offen offset:{o % 4096}')
    for z in range(2):
        d = VMF + 4 * z
        a(f'buffer_load_dwordx4 v[{d}:{d+3}], v7, {WS}, s47 offen offset:{1024 + z*2048}')
    a('s_waitcnt vmcnt(0)')
    a.label(sk)
    t = S0 + 8
    for sl in range(4):
        a(f'v_mfma_f32_16x16x32_bf16 v[{t}:{t+3}], v[{KMF+4*sl}:{KMF+4*sl+3}], v[{XR+4*sl}:{XR+4*sl+3}], {"0" if sl == 0 else f"v[{t}:{t+3}]"}')
    sprof(a, 4)
    a(f'v_max3_f32 v60, v{S0}, v{S0+1}, v{S0+2}'); a(f'v_max3_f32 v61, v{S0+3}, v{S0+4}, v{S0+5}')
    a(f'v_max3_f32 v60, v60, v{S0+6}, v{S0+7}')
    C = 128 ** -0.5 * 1.4426950408889634
    a(f's_mov_b32 s34, {f2u(C):#x}'); a('s_mov_b32 s35, s34')
    a(f'v_max3_f32 v61, v61, v{S0+8}, v{S0+9}')
    a(f'v_max3_f32 v60, v60, v{S0+10}, v{S0+11}'); a('v_max_f32 v60, v60, v61')
    a('v_mov_b32 v61, v60'); a('v_permlane32_swap_b32 v60, v61'); a('v_max_f32 v60, v60, v61')
    a('v_mov_b32 v61, v60'); a('v_permlane16_swap_b32 v60, v61'); a('v_max_f32 v60, v60, v61')
    a('v_mul_f32 v60, s34, v60')
    for n in range(0, 12, 2):
        a(f'v_pk_fma_f32 v[{S0+n}:{S0+n+1}], v[{S0+n}:{S0+n+1}], s[34:35], v[60:61] op_sel_hi:[1,1,0] neg_lo:[0,0,1] neg_hi:[0,0,1]')
    P, PM = XR + 16, XR + 20
    ONE, HALF = XR + 24, XR + 28
    fill = [f'v_mov_b32 v{ONE+n}, 0x3f803f80' for n in range(4)] + [f'v_mov_b32 v{HALF+n}, 0x3f003f00' for n in range(2)]
    cv = [f'v_cvt_pk_bf16_f32 v{P+n}, v{S0+2*n}, v{S0+2*n+1}' for n in range(4)] + \
         [f'v_cvt_pk_bf16_f32 v{PM}, v{S0+8}, v{S0+9}', f'v_cvt_pk_bf16_f32 v{PM+1}, v{S0+10}, v{S0+11}']
    seq = [fill[0], fill[1], fill[2], cv[0], fill[3], cv[1], fill[4], cv[2], fill[5], cv[3], None, cv[4]]
    for n in range(12):
        a(f'v_exp_f32 v{S0+n}, v{S0+n}')
        if seq[n]: a(seq[n])
    a(cv[5])
    SUM = 56
    OT = KF_
    def pv(z): return f'v_mfma_f32_16x16x32_bf16 v[{OT+4*z}:{OT+4*z+3}], v[{VF_+4*z}:{VF_+4*z+3}], v[{P}:{P+3}], 0'
    def pm(z):
        vm = VMF + 4 * (z >> 1) + 2 * (z & 1)
        return f'v_mfma_f32_16x16x16_bf16 v[{OT+4*z}:{OT+4*z+3}], v[{vm}:{vm+1}], v[{PM}:{PM+1}], v[{OT+4*z}:{OT+4*z+3}]'
    a(f'v_mfma_f32_16x16x32_bf16 v[{SUM}:{SUM+3}], v[{ONE}:{ONE+3}], v[{P}:{P+3}], 0')
    a(pv(0))
    a(f'v_mfma_f32_16x16x16_bf16 v[{SUM}:{SUM+3}], v[{HALF}:{HALF+1}], v[{PM}:{PM+1}], v[{SUM}:{SUM+3}]')
    a(pv(1)); a(pv(2)); a(pv(3)); a(pm(0)); a(f'v_rcp_f32 v{SUM}, v{SUM}'); a(pm(1)); a(pm(2)); a(pm(3))
    sprof(a, 5)
    for zz in range(2):
        for n in range(0, 8, 2):
            r = OT + 8 * zz + n
            a(f'v_pk_mul_f32 v[{r}:{r+1}], v[{r}:{r+1}], v[{SUM}:{SUM+1}] op_sel_hi:[1,0]')
        d = XR + 4 * zz
        s0, s1 = OT + 8 * zz, OT + 8 * zz + 4
        a(f'v_cvt_pk_bf16_f32 v{d}, v{s0}, v{s0+1}'); a(f'v_cvt_pk_bf16_f32 v{d+1}, v{s0+2}, v{s0+3}')
        a(f'v_cvt_pk_bf16_f32 v{d+2}, v{s1}, v{s1+1}'); a(f'v_cvt_pk_bf16_f32 v{d+3}, v{s1+2}, v{s1+3}')
        a(f'ds_write_b128 v{V_OW}, v[{d}:{d+3}] offset:{zz*1024}')
    sprof(a, 6)
    a('s_waitcnt vmcnt(6)')
    skf = a.uid('L_nofl')
    a(f'v_mov_b32 v61, {LE}')
    a(f's_cmp_lg_u32 s{S_W}, 0'); a(f's_cbranch_scc1 {skf}')
    a(f'v_max_u32 v{V_FL}, s{S_CHP}, v{V_FL}')
    a(f'ds_write_b32 v61, v{V_FL}')
    a.label(skf)
    a(f's_lshl_b32 s47, s{S_SEG}, 5'); a('s_add_u32 s47, s47, s40'); a('s_mul_i32 s47, s47, 36864')
    a('s_lshl_b32 s48, s43, 10'); a('s_add_u32 s47, s47, s48'); a(f's_add_u32 s{S_PB}, s47, {PART}')
    sprof(a, 8)
    a('s_waitcnt lgkmcnt(0)')
    a('s_barrier')
    sprof(a, 9)
    for odd in range(2):
        lab = a.uid('L_op')
        if odd == 0:
            a(f's_bitcmp1_b32 s{S_W}, 0'); a(f's_cbranch_scc1 {lab}_odd')
            first = lab
        units = units_of(odd)
        for tau in ((0, 1) if odd == 0 else (1, 0)):
            for ke in range(4):
                d = XR + 4 * (tau * 4 + ke)
                a(f'ds_read_b128 v[{d}:{d+3}], v{V_L16} offset:{LO + tau*4096 + ke*1024}')
        a(f'ds_read_b32 v{V_FL}, v61')
        if odd == 0:
            sk = a.uid('L_shf')
            a(f's_cmp_lg_u32 s{S_W}, 0'); a(f's_cbranch_scc1 {sk}')
            a(f's_cmp_eq_u32 s{S_IT}, 0'); a(f's_cbranch_scc1 {sk}')
            sh_flag(a, f's_mov_b32 s47, s{S_IT}')
            a.label(sk)
        sk = a.uid('L_noe')
        a(f'v_readfirstlane_b32 s33, v{V_FL}')
        a(f's_max_u32 s{S_CHP}, s{S_CHP}, s33')
        a(f's_cmp_gt_u32 s33, s{S_NS}'); a(f's_cselect_b32 s{S_E}, 1, 0')
        a(f's_cmp_eq_u32 s{S_IT}, 31'); a(f's_cselect_b32 s{S_E}, 0, s{S_E}')
        a(f's_cmp_eq_u32 s{S_E}, 0'); a(f's_cbranch_scc1 {sk}')
        a(f's_xor_b32 s36, s{S_BUF}, 32768')
        em(seg_base(S_NS, 36)); em(set_dma(OM, KM))
        a.label(sk)
        def epi(u):
            pp, tau = units[u]
            t = OA + 8 * u
            return [f'v_cvt_pk_bf16_f32 v{t}, v{t}, v{t+1}', f'v_cvt_pk_bf16_f32 v{t+1}, v{t+2}, v{t+3}',
                    f'v_cvt_pk_bf16_f32 v{t+2}, v{t+4}, v{t+5}', f'v_cvt_pk_bf16_f32 v{t+3}, v{t+6}, v{t+7}',
                    f's_add_u32 s48, s{S_PB}, {tau*18432 + pp*1024}',
                    f'buffer_store_dwordx4 v[{t}:{t+3}], v{V_L16}, {WS}, s48 offen sc1']
        for u, (pp, tau) in enumerate(units):
            e = epi(u - 1) if u > 0 else []
            n = 0
            for ke in range(4):
                for ab in range(2):
                    t = OA + 8 * u + 4 * ab
                    o = XR + 4 * (tau * 4 + ke)
                    a(f'v_mfma_f32_16x16x32_bf16 v[{t}:{t+3}], {wreg(fo(pp, ab, ke))}, v[{o}:{o+3}], {"0" if ke == 0 else f"v[{t}:{t+3}]"}')
                    n += 1
                    if e and n == 3: a(e[0]); a(e[1])
                    if e and n == 4: a(e[2]); a(e[3])
                    if e and n == 5: a(e[4]); a(e[5])
        for x in epi(len(units) - 1): a(x)
        if odd == 0:
            a(f's_branch {first}_join')
            a.label(f'{first}_odd')
    a.label(f'{first}_join')
    sprof(a, 10)
    a(f's_xor_b32 s{S_BUF}, s{S_BUF}, 32768')
    for r in (V_SET, V_SQ, V_SE): a(f'v_xor_b32 v{r}, 32768, v{r}')
    a(f's_mov_b32 s{S_SEG}, s{S_NS}')
    a(f's_add_u32 s{S_IT}, s{S_IT}, 1'); a(f's_cmp_lt_u32 s{S_IT}, 32'); a(f's_cbranch_scc1 {L}')
    if TP:
        ex, dl, d3 = a.uid('L_dpx'), a.uid('L_dpl'), a.uid('L_dp3')
        a(f's_branch {ex}')
        a.label(DP)
        if sknob('tpf', 1):
            a(f's_cmp_ge_u32 s{S_CHP}, s{S_SEG}'); a(f's_cbranch_scc1 {d3}')
            a(f's_mov_b32 s34, s{S_SEG}')
            poll(a, f'buffer_load_dword v60, v{V_Z}, {WS}, s{S_FA} offen sc1', 'v_cmp_le_u32 vcc, s34, v60', sleep=1)
            a(f'v_readfirstlane_b32 s{S_CHP}, v60')
        a.label(d3)
        a(f's_lshl_b32 s47, s{S_SEG}, 5'); a('s_add_u32 s47, s47, s40'); a('s_lshl_b32 s47, s47, 13'); a(f's_add_u32 s47, s47, {KM}')
        a('s_add_u32 s48, s47, 4096')
        a.label(dl)
        for sl in range(4):
            d = KMF + 4 * sl; o = sl * 2048
            a(f'buffer_load_dwordx4 v[{d}:{d+3}], v{V_L16}, {WS}, s{47 + o // 4096} offen offset:{o % 4096} sc1')
        for z in range(2):
            d = VMF + 4 * z
            a(f'buffer_load_dwordx4 v[{d}:{d+3}], v7, {WS}, s47 offen offset:{1024 + z*2048} sc1')
        a('s_waitcnt vmcnt(0)')
        rs = list(range(KMF, KMF + 16)) + list(range(VMF, VMF + 8))
        a(f'v_max3_u32 v60, v{rs[0]}, v{rs[1]}, v{rs[2]}'); a(f'v_max3_u32 v61, v{rs[3]}, v{rs[4]}, v{rs[5]}')
        for n, i in enumerate(range(6, 24, 2)):
            t = 60 + (n & 1); a(f'v_max3_u32 v{t}, v{t}, v{rs[i]}, v{rs[i+1]}')
        a('v_max_u32 v60, v60, v61')
        a('v_cmp_eq_u32 vcc, -1, v60'); a('s_cmp_eq_u64 vcc, 0'); a(f's_cbranch_scc1 {DPB}')
        a(f's_cmp_eq_u32 s{S_BUD}, 0'); a(f's_cbranch_scc1 {DPB}')
        a(f's_sub_u32 s{S_BUD}, s{S_BUD}, 1')
        a(f's_branch {dl}')
        a.label(ex)
    a('s_waitcnt vmcnt(0)')
    a('s_barrier')
    sk = a.uid('L_shf')
    a(f's_cmp_lg_u32 s{S_W}, 0'); a(f's_cbranch_scc1 {sk}')
    sh_flag(a, 's_mov_b32 s47, 32')
    a.label(sk)
    if PROF_IT is not None:
        a('s_waitcnt lgkmcnt(0)')
        a('s_lshl_b32 s33, s41, 5'); a('s_add_u32 s33, s33, s40'); a('s_lshl_b32 s33, s33, 2'); a(f's_add_u32 s33, s33, s{S_W}')
        a('s_lshl_b32 s33, s33, 7'); a(f's_add_u32 s33, s33, {0x40000}')
        a('v_mov_b32 v10, 0'); a('s_mov_b64 exec, 1')
        for k in range(12):
            a(f'v_mov_b32 v8, s{64+2*k}'); a(f'v_mov_b32 v9, s{65+2*k}')
            a(f'buffer_store_dwordx2 v[8:9], v10, {WS}, s33 offen offset:{8*k}')
        a('s_mov_b64 exec, -1')
    stamp(a, 4)

import struct
def f2u(x): return struct.unpack('<I', struct.pack('<f', x))[0]

def sh_flag(a, valtext):
    a(valtext)
    a('s_lshl_b32 s48, s41, 7'); a('s_lshl_b32 s49, s40, 2'); a('s_add_u32 s48, s48, s49'); a(f's_add_u32 s48, s48, {F_SH}')
    a('v_mov_b32 v62, s47'); a('v_mov_b32 v63, 0')
    a('s_mov_b64 exec, 1')
    a(f'buffer_store_dword v62, v63, s[{S_WS}:{S_WS+3}], s48 offen sc1')
    a('s_mov_b64 exec, -1')


NFW = 640
def finisher_role(a):
    srd(a, S_A, 0, 2048 * 1152)
    srd(a, S_B, 80, 2048 * 1152)
    S_TK, S_S = 65, 66
    a(f's_lshl_b32 s{S_TK}, s64, 2'); a(f's_add_u32 s{S_TK}, s{S_TK}, s{S_W}')
    n_, g_ = 2, 3
    a(f'v_and_b32 v{n_}, 15, v{V_LANE}'); a(f'v_lshrrev_b32 v{g_}, 4, v{V_LANE}')
    a(f'v_and_b32 v4, 1, v{g_}'); a('v_mul_u32_u24 v4, 36864, v4')
    a(f'v_lshrrev_b32 v5, 1, v{g_}'); a(f'v_lshl_add_u32 v5, v5, 4, v{n_}'); a('v_lshl_add_u32 v4, v5, 4, v4')
    a(f'v_lshrrev_b32 v5, 1, v{g_}'); a(f'v_lshrrev_b32 v6, 3, v{n_}'); a('v_cmp_eq_u32 s[68:69], v5, v6')
    a(f'v_and_b32 v5, 7, v{n_}')
    for r in range(4):
        a(f'v_cmp_eq_u32 vcc, {2*r}, v5'); a(f'v_mov_b32 v6, 0'); a(f'v_mov_b32 v7, 0x3f80'); a(f'v_cndmask_b32 v6, v6, v7, vcc')
        a(f'v_cmp_eq_u32 vcc, {2*r+1}, v5'); a(f'v_mov_b32 v7, 0x3f800000'); a(f'v_cndmask_b32 v6, v6, v7, vcc')
        a(f'v_mov_b32 v7, 0'); a(f'v_cndmask_b32 v{8+r}, v7, v6, s[68:69]')
    a(f'v_mul_u32_u24 v12, 2304, v{n_}'); a(f'v_lshl_add_u32 v12, v{g_}, 4, v12')
    a(f'v_mul_u32_u24 v13, 1152, v{n_}'); a(f'v_lshl_add_u32 v13, v{g_}, 3, v13')
    a(f'v_lshlrev_b32 v14, 2, v{V_LANE}')
    a('s_waitcnt lgkmcnt(0)')
    srd_fix(a, S_A); srd_fix(a, S_B)
    a('s_mov_b32 s67, -1')
    L = a.uid('L_fin'); E = a.uid('L_finx')
    a.label(L)
    a(f's_cmp_ge_u32 s{S_TK}, {64*72}'); a(f's_cbranch_scc1 {E}')
    a(f's_mul_i32 s{S_S}, s{S_TK}, 58255'); a(f's_lshr_b32 s{S_S}, s{S_S}, 22')
    a(f's_mul_i32 s33, s{S_S}, 72'); a(f's_sub_u32 s70, s{S_TK}, s33')
    a('s_cmp_ge_u32 s70, 36'); a('s_cselect_b32 s71, 1, 0')
    a('s_mul_i32 s33, s71, 36'); a('s_sub_u32 s70, s70, s33')
    a('s_lshr_b32 s72, s70, 1'); a('s_and_b32 s73, s70, 1')
    sk = a.uid('L_fok'); sw = a.uid('L_fw')
    a(f's_cmp_eq_u32 s67, s{S_S}'); a(f's_cbranch_scc1 {sk}')
    a(f's_cmp_lg_u32 s{S_W}, 0'); a(f's_cbranch_scc1 {sw}')
    a(f's_and_b32 s33, s{S_S}, 1'); a('s_lshl_b32 s33, s33, 7'); a(f's_add_u32 s33, s33, {F_SH}')
    a(f's_lshr_b32 s34, s{S_S}, 3'); a('s_lshl_b32 s34, s34, 5'); a(f's_add_u32 s34, s34, {F_F - 128}')
    a(f's_lshr_b32 s35, s{S_S}, 1'); a('s_add_u32 s35, s35, 1')
    TP = sknob('tp')
    if TP: a('s_min_u32 s35, s35, 31')
    a(f'v_cmp_gt_u32 vcc, 32, v{V_LANE}')
    a('v_mov_b32 v15, s34'); a('v_mov_b32 v16, s33'); a('v_cndmask_b32 v15, v15, v16, vcc'); a('v_add_u32 v15, v15, v14')
    a('v_mov_b32 v17, 1'); a('v_mov_b32 v16, s35'); a('v_cndmask_b32 v17, v17, v16, vcc')
    a('s_mov_b32 exec_lo, -1'); a('s_mov_b32 exec_hi, 0xff')
    PL, PD, PS_ = a.uid('L_fp'), a.uid('L_fpd'), a.uid('L_fps')
    a.label(PL)
    a(f'buffer_load_dword v16, v15, s[{S_WS}:{S_WS+3}], 0 offen sc1')
    a('s_waitcnt vmcnt(0)')
    a('v_cmp_le_u32 vcc, v17, v16')
    a('s_cmp_eq_u64 vcc, exec'); a(f's_cbranch_scc1 {PD}')
    a(f's_cmp_eq_u32 s{S_BUD}, 0'); a(f's_cbranch_scc1 {PD}')
    a(f's_sub_u32 s{S_BUD}, s{S_BUD}, 1')
    a('v_add_u32 v18, 1, v16'); a('v_cmp_le_u32 vcc, v17, v18')
    a('s_cmp_eq_u64 vcc, exec'); a(f's_cbranch_scc1 {PS_}')
    a('s_sleep 24')
    a.label(PS_)
    a('s_sleep 2')
    a(f's_branch {PL}')
    a.label(PD)
    a('s_mov_b64 exec, -1')
    a.label(sw)
    a('s_barrier')
    a(f's_mov_b32 s67, s{S_S}')
    a.label(sk)
    D = 32
    def partials():
        a(f's_lshl_b32 s33, s{S_S}, 5'); a('s_mul_i32 s33, s33, 36864'); a('s_mul_i32 s34, s71, 18432'); a('s_add_u32 s33, s33, s34')
        a('s_lshl_b32 s34, s72, 10'); a('s_add_u32 s33, s33, s34'); a('s_lshl_b32 s34, s73, 9'); a('s_add_u32 s33, s33, s34')
        a(f's_add_u32 s33, s33, {PART}')
        for i in range(16):
            a(f'buffer_load_dwordx4 v[{D+4*i}:{D+4*i+3}], v4, s[{S_WS}:{S_WS+3}], s33 offen sc1')
            if i < 15: a(f's_add_u32 s33, s33, {2*36864}')
    if not TP: partials()
    a(f's_lshl_b32 s33, s{S_S}, 5'); a('s_lshl_b32 s34, s71, 4'); a('s_add_u32 s33, s33, s34')
    a('s_lshl_b32 s34, s72, 5'); a('s_lshl_b32 s35, s73, 4'); a('s_add_u32 s34, s34, s35')
    a('s_mul_i32 s35, s33, 2304'); a('s_lshl_b32 s36, s34, 2'); a('s_add_u32 s35, s35, s36'); a(f's_add_u32 s35, s35, {FF}')
    a(f'buffer_load_dwordx4 v[20:23], v12, s[{S_WS}:{S_WS+3}], s35 offen sc1')
    a(f's_add_u32 s35, s35, {2048*2304}')
    a(f'buffer_load_dwordx4 v[24:27], v12, s[{S_WS}:{S_WS+3}], s35 offen sc1')
    a('s_mul_i32 s35, s33, 1152'); a('s_lshl_b32 s36, s34, 1'); a('s_add_u32 s35, s35, s36')
    a(f'buffer_load_dwordx2 v[28:29], v13, s[{S_A}:{S_A+3}], s35 offen')
    if TP:
        pl, pk = a.uid('L_fdl'), a.uid('L_fdk')
        a.label(pl)
        partials()
        a(f's_cmp_lt_u32 s{S_S}, 62'); a(f's_cbranch_scc1 {pk}')
        a('s_waitcnt vmcnt(0)')
        a(f'v_max3_u32 v18, v{D}, v{D+1}, v{D+2}'); a(f'v_max3_u32 v19, v{D+3}, v{D+4}, v{D+5}')
        for n, i in enumerate(range(6, 64, 2)):
            t = 18 + (n & 1); a(f'v_max3_u32 v{t}, v{t}, v{D+i}, v{D+i+1}')
        a('v_max_u32 v18, v18, v19')
        a('v_cmp_eq_u32 vcc, -1, v18'); a('s_cmp_eq_u64 vcc, 0'); a(f's_cbranch_scc1 {pk}')
        a(f's_cmp_eq_u32 s{S_BUD}, 0'); a(f's_cbranch_scc1 {pk}')
        a(f's_sub_u32 s{S_BUD}, s{S_BUD}, 1')
        a(f's_branch {pl}')
        a.label(pk)
    for i in range(16):
        a(f'v_mfma_f32_16x16x32_bf16 v[100:103], v[8:11], v[{D+4*i}:{D+4*i+3}], {"0" if i == 0 else "v[100:103]"}')
    for r in range(4):
        a(f'v_add_f32 v{20+r}, v{20+r}, v{24+r}')
    a('v_lshlrev_b32 v24, 16, v28'); a('v_and_b32 v25, 0xffff0000, v28'); a('v_lshlrev_b32 v26, 16, v29'); a('v_and_b32 v27, 0xffff0000, v29')
    for r in range(4):
        a(f'v_add_f32 v{20+r}, v{20+r}, v{24+r}')
    for r in range(4):
        a(f'v_add_f32 v{20+r}, v{20+r}, v{100+r}')
    a('v_cvt_pk_bf16_f32 v20, v20, v21'); a('v_cvt_pk_bf16_f32 v21, v22, v23')
    a(f'buffer_store_dwordx2 v[20:21], v13, s[{S_B}:{S_B+3}], s35 offen')
    a(f's_add_u32 s{S_TK}, s{S_TK}, {NFW}')
    a(f's_branch {L}')
    a.label(E)
    stamp(a, 7)
```

```python
from gen_base import *

def ln_role(a, s_tile, mid=None):
    srd(a, S_A, 0, 2048 * 1152)
    a(f'v_lshrrev_b32 v2, 4, v{V_LANE}')
    a(f'v_and_b32 v3, 15, v{V_LANE}')
    a(f's_lshl_b32 s33, s{S_W}, 2')
    a(f'v_add_u32 v2, s33, v2')
    a(f's_lshl_b32 s34, s{s_tile}, 4')
    a(f'v_add_u32 v4, s34, v2')
    a(f'v_mul_u32_u24 v4, 1152, v4')
    a(f'v_lshl_add_u32 v4, v3, 4, v4')
    a('s_waitcnt lgkmcnt(0)')
    srd_fix(a, S_A)
    for i in range(5):
        a(f'buffer_load_dwordx4 v[{8+4*i}:{11+4*i}], v4, s[{S_A}:{S_A+3}], 0 offen offset:{256*i}')
    if mid: mid()
    a('v_lshrrev_b32 v5, 2, v3')
    a('v_lshlrev_b32 v5, 10, v5')
    a('v_and_b32 v6, 3, v3')
    a('v_lshl_add_u32 v5, v6, 8, v5')
    a('v_lshl_add_u32 v5, v2, 4, v5')
    a(f's_mul_i32 s34, s{s_tile}, 18432')
    a(f's_add_u32 s34, s34, {XN}')
    a('v_cmp_gt_u32 vcc, 8, v3')
    a('v_cndmask_b32 v7, 0, 1.0, vcc')
    X = 30
    for i in range(5):
        for r in range(4):
            a(f'v_lshlrev_b32 v{X+8*i+2*r}, 16, v{8+4*i+r}')
            a(f'v_and_b32 v{X+8*i+2*r+1}, 0xffff0000, v{8+4*i+r}')
    def reduce(vals_main, vals_tail, acc, dst):
        for k in range(4):
            a(f'v_add_f32 v{acc+k}, v{vals_main[k]}, v{vals_main[k+4]}')
        for n in range(8, 32):
            a(f'v_add_f32 v{acc+(n&3)}, v{acc+(n&3)}, v{vals_main[n]}')
        a(f'v_add_f32 v{acc}, v{acc}, v{acc+1}')
        a(f'v_add_f32 v{acc+2}, v{acc+2}, v{acc+3}')
        a(f'v_add_f32 v{acc}, v{acc}, v{acc+2}')
        a(f'v_add_f32 v{acc+1}, v{vals_tail[0]}, v{vals_tail[1]}')
        for n in range(2, 8):
            a(f'v_add_f32 v{acc+1}, v{acc+1}, v{vals_tail[n]}')
        a(f'v_fmac_f32 v{acc}, v{acc+1}, v7')
        for sh in (8, 4, 2, 1):
            a(f'v_add_f32_dpp v{acc}, v{acc}, v{acc} row_ror:{sh} row_mask:0xf bank_mask:0xf')
        a(f'v_mov_b32 v{dst}, v{acc}')
    reduce([X+n for n in range(32)], [X+32+n for n in range(8)], 72, 76)
    a(f'v_mul_f32 v76, {1.0/576.0!r}, v76')
    for n in range(40):
        a(f'v_sub_f32 v{X+n}, v{X+n}, v76')
    Q = 80
    for n in range(40):
        a(f'v_mul_f32 v{Q+n}, v{X+n}, v{X+n}')
    reduce([Q+n for n in range(32)], [Q+32+n for n in range(8)], 72, 77)
    a(f'v_mov_b32 v78, 0x3727c5ac')
    a(f'v_fmac_f32 v78, {1.0/576.0!r}, v77')
    a('v_rsq_f32 v78, v78')
    for n in range(40):
        a(f'v_mul_f32 v{X+n}, v{X+n}, v78')
    for n in range(20):
        a(f'v_cvt_pk_bf16_f32 v{8+n}, v{X+2*n}, v{X+2*n+1}')
    for i in range(4):
        a(f's_add_u32 s35, s34, {4096*i}')
        a(f'buffer_store_dwordx4 v[{8+4*i}:{11+4*i}], v5, s[{S_WS}:{S_WS+3}], s35 offen sc1')
    a(f's_add_u32 s35, s34, {4096*4}')
    a('s_mov_b32 s36, 0x00ff00ff')
    a('s_mov_b32 exec_lo, s36')
    a('s_mov_b32 exec_hi, s36')
    a(f'buffer_store_dwordx4 v[24:27], v5, s[{S_WS}:{S_WS+3}], s35 offen sc1')
    a('s_mov_b64 exec, -1')


def wreg(f):
    if f < 64:
        return f'a[{4*f}:{4*f+3}]'
    b = 224 + 4 * (f - 64)
    return f'v[{b}:{b+3}]'

def wreg_half(f, hf):
    if f < 64:
        return f'a[{4*f+2*hf}:{4*f+2*hf+1}]'
    b = 224 + 4 * (f - 64) + 2 * hf
    return f'v[{b}:{b+1}]'

def load_weights_128(a, srds, soffs, row_stride, frag_of, ntile, tile_col):
    raise NotImplementedError

def ws_prologue(a, mats, row_stride):
    a(f'v_lshrrev_b32 v2, 4, v{V_LANE}')
    a(f'v_and_b32 v3, 15, v{V_LANE}')
    a(f'v_lshlrev_b32 v4, 1, v2')
    a(f'v_xor_b32 v5, v3, v4')
    a(f'v_xor_b32 v6, 8, v5')
    a(f'v_mul_u32_u24 v2, {row_stride}, v2')
    a(f'v_lshl_add_u32 v5, v5, 4, v2')
    a(f'v_lshl_add_u32 v6, v6, 4, v2')
    a(f'v_lshrrev_b32 v7, 4, v{V_LANE}')
    a(f'v_bfe_u32 v8, v{V_LANE}, 2, 2')
    a(f'v_and_b32 v9, 3, v{V_LANE}')
    a(f'v_and_b32 v10, 1, v7')
    a(f'v_lshl_or_b32 v10, v10, 2, v8')
    a(f'v_lshlrev_b32 v10, 1, v10')
    a(f'v_lshrrev_b32 v11, 1, v9')
    a(f's_lshl_b32 s33, s{S_W}, 2')
    a(f'v_add_u32 v11, s33, v11')
    a(f'v_add_u32 v12, 2, v11')
    a(f'v_xor_b32 v11, v11, v10')
    a(f'v_xor_b32 v12, v12, v10')
    a(f'v_lshl_add_u32 v13, v7, 3, v8')
    a(f'v_lshlrev_b32 v13, 8, v13')
    a(f'v_and_b32 v9, 1, v9')
    a(f'v_lshl_add_u32 v13, v9, 3, v13')
    a(f'v_lshl_add_u32 v11, v11, 4, v13')
    a(f'v_lshl_add_u32 v12, v12, 4, v13')
    a(f'v_add_u32 v14, {73728}, v11')
    a(f'v_add_u32 v15, {73728}, v12')
    for n, r in enumerate((11, 12, 14, 15)):
        a(f'v_add_u32 v{18+n}, {65536}, v{r}')
    def dma(q):
        m, hf = q >> 1, q & 1
        sr, so = mats[m]
        buf = (q & 1) * 73728
        a(f's_mul_i32 s33, s{S_W}, {18*1024}')
        a(f's_add_u32 s33, s33, {buf}')
        a(f's_mul_i32 s34, s{S_W}, {18*4*row_stride}')
        a(f's_add_u32 s34, s34, s{so}')
        a(f's_add_u32 s34, s34, {hf*288*row_stride}')
        a(f's_bitcmp1_b32 s{S_W}, 0')
        a(f's_cselect_b64 vcc, -1, 0')
        a(f'v_cndmask_b32 v16, v5, v6, vcc')
        a(f'v_cndmask_b32 v17, v6, v5, vcc')
        for n in range(18):
            a('s_mov_b32 m0, s33')
            vr = 16 if ((n >> 1) & 1) == 0 else 17
            a(f'buffer_load_dwordx4 v{vr}, s[{sr}:{sr+3}], s34 offen lds', tok=f'wq{q}')
            if n < 17:
                a('s_add_u32 s33, s33, 1024')
                a(f's_add_u32 s34, s34, {4*row_stride}')
    def trread(q):
        m, hf = q >> 1, q & 1
        for kk in range(9):
            k = hf * 9 + kk
            for c in range(2):
                f = k * 4 + m * 2 + c
                ad = (11 + c) if (q & 1) == 0 else (14 + c)
                for h2 in range(2):
                    if kk == 8:
                        ad2 = {11: 18, 12: 19, 14: 20, 15: 21}[ad]
                        a(f'ds_read_b64_tr_b16 {wreg_half(f, h2)}, v{ad2} offset:{h2*1024}')
                    else:
                        a(f'ds_read_b64_tr_b16 {wreg_half(f, h2)}, v{ad} offset:{kk*8192 + h2*1024}')
    dma(0); dma(1)
    for q in range(4):
        a.need(f'wq{q}')
        a('s_barrier')
        trread(q)
        if q + 2 < 4:
            a('s_waitcnt lgkmcnt(0)')
            a('s_barrier')
            dma(q + 2)
    a('s_waitcnt lgkmcnt(0)')
    a('s_barrier')


def ws_gemm(a, kind):
    NIT = 32 if kind == 'kv' else 16
    if kind == 'kv':
        srd(a, S_A, 24, 576 * 8192)
        srd(a, S_B, 32, 576 * 8192)
        a('s_lshl_b32 s42, s40, 8')
        a('s_mov_b32 s43, s42')
        a('s_waitcnt lgkmcnt(0)')
        srd_fix(a, S_A); srd_fix(a, S_B)
        ws_prologue(a, [(S_A, 42), (S_B, 43)], 8192)
    else:
        srd(a, S_A, 64, 576 * 9216)
        a('s_lshl_b32 s42, s40, 9')
        a('s_add_u32 s43, s42, 256')
        a('s_waitcnt lgkmcnt(0)')
        srd_fix(a, S_A)
        ws_prologue(a, [(S_A, 42), (S_A, 43)], 9216)
    stamp(a, 2)
    gbar_wait(a)
    stamp(a, 3)
    V_L16, V_RD = 2, 3
    XR, ACC, EP = 96, 128, 80
    a(f'v_lshlrev_b32 v{V_L16}, 4, v{V_LANE}')
    S_IT, S_BUF, S_SEG = 44, 45, 46
    def seg_of(dst, it):
        if kind == 'kv':
            a(f's_lshl_b32 s{dst}, s{it}, 1')
            a(f's_add_u32 s{dst}, s{dst}, s41')
        else:
            a(f's_lshr_b32 s{dst}, s{it}, 3')
            a(f's_lshl_b32 s{dst}, s{dst}, 5')
            a(f's_and_b32 s47, s{it}, 7')
            a(f's_add_u32 s{dst}, s{dst}, s47')
            a(f's_lshl_b32 s47, s41, 3')
            a(f's_add_u32 s{dst}, s{dst}, s47')
    def xdma(it_sreg, buf_sreg):
        seg_of(48, it_sreg)
        a(f's_min_u32 s48, s48, 63')
        a(f's_mul_i32 s48, s48, 36864')
        a(f's_mul_i32 s49, s{S_W}, 9216')
        a(f's_add_u32 s48, s48, s49')
        a(f's_add_u32 s48, s48, {XN}')
        a(f's_add_u32 s49, s49, s{buf_sreg}')
        for grp, cnt in ((0, 4), (1, 4), (2, 1)):
            a('s_mov_b32 m0, s49')
            for n in range(cnt):
                a(f'buffer_load_dwordx4 v{V_L16}, s[{S_WS}:{S_WS+3}], s48 offen offset:{1024*n} lds')
            if grp < 2:
                a('s_add_u32 s49, s49, 4096')
                a('s_add_u32 s48, s48, 4096')
    a(f's_mov_b32 s{S_IT}, 0'); a(f's_mov_b32 s{S_BUF}, 0')
    xdma(S_IT, S_BUF)
    a(f's_mov_b32 s{S_IT}, 1'); a(f's_mov_b32 s{S_BUF}, 36864')
    xdma(S_IT, S_BUF)
    a(f's_mov_b32 s{S_IT}, 0'); a(f's_mov_b32 s{S_BUF}, 0')
    a('s_waitcnt vmcnt(9)')
    L = a.uid('L_ws')
    a.label(L)
    a('s_waitcnt vmcnt(13)')
    a('s_barrier')
    sk = a.uid('L_wsf')
    a(f's_cmp_lg_u32 s{S_W}, 0'); a(f's_cbranch_scc1 {sk}')
    a(f's_cmp_lt_u32 s{S_IT}, 2'); a(f's_cbranch_scc1 {sk}')
    ws_flag(a, kind, f's_sub_u32 s47, s{S_IT}, 1')
    a.label(sk)
    a(f's_add_u32 s50, s{S_IT}, 2')
    a(f's_add_u32 s51, s{S_BUF}, {2*36864}')
    a(f's_cmp_ge_u32 s51, {3*36864}')
    a(f's_cselect_b32 s47, {3*36864}, 0')
    a(f's_sub_u32 s51, s51, s47')
    xdma(50, 51)
    a(f'v_add_u32 v{V_RD}, s{S_BUF}, v{V_L16}')
    reads = []
    for k in range(18):
        for tau in range(2):
            slot = (2 * k + tau) % 8
            reads.append(f'ds_read_b128 v[{XR+4*slot}:{XR+4*slot+3}], v{V_RD} offset:{tau*18432 + k*1024}')
    for r in reads[:6]:
        a(r)
    ri = 6
    for k in range(18):
        for m in range(2):
            for c in range(2):
                for tau in range(2):
                    slot = (2 * k + tau) % 8
                    x = f'v[{XR+4*slot}:{XR+4*slot+3}]'
                    w = wreg(k * 4 + m * 2 + c)
                    t = ACC + 4 * (m * 4 + c * 2 + tau)
                    acc = f'v[{t}:{t+3}]'
                    cin = '0' if k == 0 else acc
                    if m == 1 and kind == 'kv':
                        a(f'v_mfma_f32_16x16x32_bf16 {acc}, {x}, {w}, {cin}')
                    else:
                        a(f'v_mfma_f32_16x16x32_bf16 {acc}, {w}, {x}, {cin}')
            if m == 0 and ri < len(reads):
                a(reads[ri]); a(reads[ri + 1]); ri += 2
    seg_of(S_SEG, S_IT)
    def T(m, c, tau): return ACC + 4 * (m * 4 + c * 2 + tau)
    outs = []
    for m in range(2):
        for z in range(2):
            d = EP + 4 * (m * 2 + z)
            if m == 1 and kind == 'kv':
                srcs = (T(1, z, 0), T(1, z, 1))
            else:
                srcs = (T(m, 0, z), T(m, 1, z))
            if kind == 'f1':
                for sr in srcs:
                    for r in range(4):
                        a(f'v_max_f32 v{sr+r}, 0, v{sr+r}')
            a(f'v_cvt_pk_bf16_f32 v{d}, v{srcs[0]}, v{srcs[0]+1}')
            a(f'v_cvt_pk_bf16_f32 v{d+1}, v{srcs[0]+2}, v{srcs[0]+3}')
            a(f'v_cvt_pk_bf16_f32 v{d+2}, v{srcs[1]}, v{srcs[1]+1}')
            a(f'v_cvt_pk_bf16_f32 v{d+3}, v{srcs[1]+2}, v{srcs[1]+3}')
            outs.append((m, z, d))
    if kind == 'kv':
        import gen_chain as CH
        if CH.knob('tp') == 2:
            NK = CH.knob('tpk', 6); sk = a.uid('L_arm')
            a(f's_cmp_lg_u32 s{S_IT}, 4'); a(f's_cbranch_scc1 {sk}')
            a(f's_add_u32 s47, s41, {64 - NK}'); a('s_lshl_b32 s47, s47, 5'); a('s_add_u32 s47, s47, s40')
            a(f's_lshl_b32 s47, s47, 2'); a(f's_add_u32 s47, s47, s{S_W}'); a('s_lshl_b32 s47, s47, 11'); a(f's_add_u32 s47, s47, {KM}')
            for r in range(4): a(f'v_mov_b32 v{XR + r}, -1')
            for k in range(NK // 2):
                for z in range(2):
                    a(f'buffer_store_dwordx4 v[{XR}:{XR+3}], v{V_L16}, s[{S_WS}:{S_WS+3}], s47 offen offset:{1024*z} sc1')
                a(f's_add_u32 s47, s47, {2 * 32 * 8192}')
            a.label(sk)
        a(f's_lshl_b32 s47, s{S_SEG}, 5'); a('s_add_u32 s47, s47, s40')
        a(f's_lshl_b32 s47, s47, 2'); a(f's_add_u32 s47, s47, s{S_W}')
        a('s_lshl_b32 s47, s47, 11')
        a(f's_add_u32 s48, s47, {KF}'); a(f's_add_u32 s49, s47, {VF}')
        for m, z, d in outs:
            a(f'buffer_store_dwordx4 v[{d}:{d+3}], v{V_L16}, s[{S_WS}:{S_WS+3}], s{48+m} offen offset:{1024*z} sc1')
    else:
        a(f's_mul_i32 s47, s{S_SEG}, {2*144}')
        a(f's_lshl_b32 s48, s40, 3'); a('s_add_u32 s47, s47, s48'); a(f's_add_u32 s47, s47, s{S_W}')
        a('s_lshl_b32 s47, s47, 10'); a(f's_add_u32 s47, s47, {HH}')
        for m, z, d in outs:
            a(f's_add_u32 s48, s47, {(z*144 + 4*m)*1024}')
            a(f'buffer_store_dwordx4 v[{d}:{d+3}], v{V_L16}, s[{S_WS}:{S_WS+3}], s48 offen sc1')
    a(f's_add_u32 s{S_BUF}, s{S_BUF}, 36864')
    a(f's_cmp_ge_u32 s{S_BUF}, {3*36864}')
    a(f's_cselect_b32 s{S_BUF}, 0, s{S_BUF}')
    a(f's_add_u32 s{S_IT}, s{S_IT}, 1')
    a(f's_cmp_lt_u32 s{S_IT}, {NIT}')
    a(f's_cbranch_scc1 {L}')
    a('s_waitcnt vmcnt(0)')
    a('s_barrier')
    sk = a.uid('L_wsf')
    a(f's_cmp_lg_u32 s{S_W}, 0'); a(f's_cbranch_scc1 {sk}')
    ws_flag(a, kind, f's_mov_b32 s47, {NIT}')
    a.label(sk)
    stamp(a, 4)

def ws_flag(a, kind, valtext):
    a(valtext)
    a('s_lshl_b32 s48, s41, 7')
    a('s_lshl_b32 s49, s40, 2')
    a('s_add_u32 s48, s48, s49')
    a(f's_add_u32 s48, s48, {F_KV if kind == "kv" else F_H}')
    a('v_mov_b32 v4, s47')
    a('v_mov_b32 v5, 0')
    a('s_mov_b64 exec, 1')
    a(f'buffer_store_dword v4, v5, s[{S_WS}:{S_WS+3}], s48 offen sc1')
    a('s_mov_b64 exec, -1')


def ffn2_role(a):
    done = a.uid('L_f2x')
    a('s_cmp_ge_u32 s52, 64'); a(f's_cbranch_scc1 {done}')
    srd(a, S_A, 72, 4608 * 1152)
    a('s_and_b32 s53, s52, 3')
    a('s_bfe_u32 s54, s52, 0x10002')
    a('s_lshr_b32 s55, s52, 3')
    V_L16, V_TR = 2, 3
    VD = 4
    HR, WR = 16, 80
    a(f'v_lshlrev_b32 v{V_L16}, 4, v{V_LANE}')
    for n in range(9):
        a(f's_mul_i32 s33, s{S_W}, {9*64}')
        a(f's_add_u32 s33, s33, {64*n}')
        a(f'v_add_u32 v13, s33, v{V_LANE}')
        a(f'v_mul_u32_u24 v14, 3641, v13')
        a(f'v_lshrrev_b32 v14, 16, v14')
        a(f'v_mul_u32_u24 v15, 18, v14')
        a(f'v_sub_u32 v15, v13, v15')
        a(f'v_mul_u32_u24 v14, 1152, v14')
        a(f'v_lshl_add_u32 v{VD+n}, v15, 4, v14')
    a(f'v_lshrrev_b32 v13, 4, v{V_LANE}')
    a(f'v_bfe_u32 v14, v{V_LANE}, 2, 2')
    a(f'v_lshl_add_u32 v13, v13, 2, v14')
    a(f'v_mul_u32_u24 v13, 288, v13')
    a(f'v_and_b32 v14, 3, v{V_LANE}')
    a(f'v_lshl_add_u32 v13, v14, 3, v13')
    a('s_waitcnt lgkmcnt(0)')
    srd_fix(a, S_A)
    S_SRC, S_LB, S_IT = 56, 57, 58
    a(f's_mul_i32 s{S_SRC}, s54, {2304*1152}')
    a(f's_mul_i32 s33, s53, 288')
    a(f's_add_u32 s{S_SRC}, s{S_SRC}, s33')
    def dma(lbuf_sreg):
        a(f's_mul_i32 s33, s{S_W}, 9216')
        a(f's_add_u32 s33, s33, s{lbuf_sreg}')
        for n in range(9):
            a('s_mov_b32 m0, s33')
            a(f'buffer_load_dwordx4 v{VD+n}, s[{S_A}:{S_A+3}], s{S_SRC} offen lds')
            if n < 8:
                a('s_add_u32 s33, s33, 1024')
        a(f's_add_u32 s{S_SRC}, s{S_SRC}, {128*1152}')
    a('s_mov_b32 s59, 0'); dma(59)
    a('s_mov_b32 s59, 36864'); dma(59)
    sk = a.uid('L_f2w')
    a(f's_cmp_lg_u32 s{S_W}, 0'); a(f's_cbranch_scc1 {sk}')
    a('s_and_b32 s33, s55, 3'); a('s_lshl_b32 s33, s33, 7')
    a('s_mul_i32 s34, s54, 36'); a('s_add_u32 s33, s33, s34'); a(f's_add_u32 s33, s33, {F_H}')
    a('s_lshr_b32 s34, s55, 2'); a('s_add_u32 s34, s34, 1'); a('s_lshl_b32 s34, s34, 3')
    a(f'v_lshlrev_b32 v15, 2, v{V_LANE}')
    a('s_mov_b64 exec, 0x1ff')
    poll(a, f'buffer_load_dword v14, v15, s[{S_WS}:{S_WS+3}], s33 offen sc1', 'v_cmp_le_u32 vcc, s34, v14')
    a('s_mov_b64 exec, -1')
    a.label(sk)
    a('s_barrier')
    SH = 60
    a('s_lshl_b32 s33, s55, 4'); a(f's_lshl_b32 s34, s{S_W}, 2'); a('s_add_u32 s33, s33, s34')
    a('s_mul_i32 s33, s33, 144'); a('s_mul_i32 s34, s54, 72'); a('s_add_u32 s33, s33, s34')
    a('s_lshl_b32 s33, s33, 10'); a(f's_add_u32 s{SH}, s33, {HH}')
    for i in range(1, 4):
        a(f's_add_u32 s{SH+i}, s{SH}, {i*144*1024}')
    def hload(kk):
        for i in range(4):
            d = HR + 16 * (kk % 4) + 4 * i
            a(f'buffer_load_dwordx4 v[{d}:{d+3}], v{V_L16}, s[{S_WS}:{S_WS+3}], s{SH+i} offen offset:{(kk%4)*1024} sc1')
    for kk in range(4):
        hload(kk)
    for i in range(4):
        a(f's_add_u32 s{SH+i}, s{SH+i}, 4096')
    for n in range(144):
        a(f'v_accvgpr_write_b32 a{n}, 0')
    a(f's_mov_b32 s{S_IT}, 0'); a(f's_mov_b32 s{S_LB}, 0')
    a('s_waitcnt vmcnt(25)')
    L = a.uid('L_f2')
    a.label(L)
    a('s_waitcnt vmcnt(41)')
    a('s_barrier')
    a(f's_add_u32 s59, s{S_LB}, {2*36864}')
    a(f's_cmp_ge_u32 s59, {4*36864}')
    a(f's_cselect_b32 s33, {4*36864}, 0')
    a(f's_sub_u32 s59, s59, s33')
    dma(59)
    a(f'v_add_u32 v{V_TR}, s{S_LB}, v13')
    def wread(q):
        kk, ct = divmod(q, 9)
        d = WR + 4 * (q % 4)
        return [f'ds_read_b64_tr_b16 v[{d}:{d+1}], v{V_TR} offset:{kk*32*288 + ct*32}',
                f'ds_read_b64_tr_b16 v[{d+2}:{d+3}], v{V_TR} offset:{kk*32*288 + 16*288 + ct*32}']
    for q in range(3):
        for t in wread(q): a(t)
    for q in range(36):
        kk, ct = divmod(q, 9)
        w = WR + 4 * (q % 4)
        for i in range(4):
            h = HR + 16 * kk + 4 * i
            t = 4 * (ct * 4 + i)
            a(f'v_mfma_f32_16x16x32_bf16 a[{t}:{t+3}], v[{w}:{w+3}], v[{h}:{h+3}], a[{t}:{t+3}]')
            if i == 0 and q + 3 < 36:
                for tx in wread(q + 3): a(tx)
        if ct == 8:
            hload(kk)
    for i in range(4):
        a(f's_add_u32 s{SH+i}, s{SH+i}, 4096')
    a(f's_add_u32 s{S_LB}, s{S_LB}, 36864')
    a(f's_cmp_ge_u32 s{S_LB}, {4*36864}')
    a(f's_cselect_b32 s{S_LB}, 0, s{S_LB}')
    a(f's_add_u32 s{S_IT}, s{S_IT}, 1')
    a(f's_cmp_lt_u32 s{S_IT}, 18')
    a(f's_cbranch_scc1 {L}')
    a(f'v_and_b32 v14, 15, v{V_LANE}')
    a(f'v_mul_u32_u24 v14, 2304, v14')
    a(f'v_lshrrev_b32 v15, 4, v{V_LANE}')
    a(f'v_lshl_add_u32 v14, v15, 4, v14')
    a(f's_mul_i32 s33, s54, {2048*2304}')
    a('s_lshl_b32 s34, s55, 8'); a(f's_lshl_b32 s59, s{S_W}, 6'); a('s_add_u32 s34, s34, s59')
    a('s_mul_i32 s34, s34, 2304'); a('s_add_u32 s33, s33, s34')
    a('s_mul_i32 s34, s53, 576'); a('s_add_u32 s33, s33, s34'); a(f's_add_u32 s33, s33, {FF}')
    for i in range(4):
        for ct in range(9):
            t = 4 * (ct * 4 + i)
            a(f'buffer_store_dwordx4 a[{t}:{t+3}], v14, s[{S_WS}:{S_WS+3}], s33 offen offset:{ct*64} sc1')
        a(f's_add_u32 s33, s33, {16*2304}')
    a('s_waitcnt vmcnt(0)')
    a('s_barrier')
    sk = a.uid('L_f2f')
    a(f's_cmp_lg_u32 s{S_W}, 0'); a(f's_cbranch_scc1 {sk}')
    a('s_lshl_b32 s33, s52, 2'); a(f's_add_u32 s33, s33, {F_F}')
    a('v_mov_b32 v14, 1'); a('v_mov_b32 v15, 0')
    a('s_mov_b64 exec, 1')
    a(f'buffer_store_dword v14, v15, s[{S_WS}:{S_WS+3}], s33 offen sc1')
    a('s_mov_b64 exec, -1')
    a.label(sk)
    stamp(a, 5)
    a.label(done)
```

```python
from gen_base import *
from gen_bulk import ws_flag

NEG = 0xff800000
def wreg(f):
    if f < 64:
        return f'a[{4*f}:{4*f+3}]'
    b = 208 + 4 * (f - 64)
    return f'v[{b}:{b+3}]'
def wreg_half(f, hf):
    if f < 64:
        return f'a[{4*f+2*hf}:{4*f+2*hf+1}]'
    b = 208 + 4 * (f - 64) + 2 * hf
    return f'v[{b}:{b+1}]'
def fq(k, c): return k * 2 + c
def fo(pp, ab, ke): return 36 + (pp * 2 + ab) * 4 + ke

PROF_IT = None
EXP = set()
def sprof(a, k):
    if PROF_IT is None: return
    sk = a.uid('L_sp')
    a(f's_cmp_lg_u32 s44, {PROF_IT + (1 if k == 11 else 0)}'); a(f's_cbranch_scc1 {sk}')
    a.rawins(f's_memtime s[{64+2*k}:{65+2*k}]')
    a.label(sk)

def sknob(name, dflt=0):
    for x in EXP:
        if x.startswith(name + '='): return int(x[len(name)+1:])
    return dflt

def shadow_role(a):
    srd(a, S_A, 16, 576 * 8192)
    srd(a, S_B, 40, 32 * 147456)
    a('s_lshl_b32 s42, s40, 8')
    a(f'v_lshrrev_b32 v2, 4, v{V_LANE}'); a(f'v_and_b32 v3, 15, v{V_LANE}')
    a(f'v_lshlrev_b32 v4, 1, v2'); a(f'v_xor_b32 v5, v3, v4'); a(f'v_xor_b32 v6, 8, v5')
    a(f'v_mul_u32_u24 v2, 8192, v2'); a(f'v_lshl_add_u32 v5, v5, 4, v2'); a(f'v_lshl_add_u32 v6, v6, 4, v2')
    a(f'v_lshrrev_b32 v7, 4, v{V_LANE}'); a(f'v_bfe_u32 v8, v{V_LANE}, 2, 2'); a(f'v_and_b32 v9, 3, v{V_LANE}')
    a(f'v_and_b32 v10, 1, v7'); a(f'v_lshl_or_b32 v10, v10, 2, v8'); a(f'v_lshlrev_b32 v10, 1, v10')
    a(f'v_lshrrev_b32 v11, 1, v9'); a(f's_lshl_b32 s33, s{S_W}, 2'); a(f'v_add_u32 v11, s33, v11')
    a(f'v_add_u32 v12, 2, v11'); a(f'v_xor_b32 v11, v11, v10'); a(f'v_xor_b32 v12, v12, v10')
    a(f'v_lshl_add_u32 v13, v7, 3, v8'); a(f'v_lshlrev_b32 v13, 8, v13'); a(f'v_and_b32 v9, 1, v9')
    a(f'v_lshl_add_u32 v13, v9, 3, v13'); a(f'v_lshl_add_u32 v11, v11, 4, v13'); a(f'v_lshl_add_u32 v12, v12, 4, v13')
    a(f'v_add_u32 v14, {73728}, v11'); a(f'v_add_u32 v15, {73728}, v12')
    for n, r in enumerate((11, 12, 14, 15)):
        a(f'v_add_u32 v{18+n}, {65536}, v{r}')
    a('s_waitcnt lgkmcnt(0)')
    srd_fix(a, S_A); srd_fix(a, S_B)
    a(f's_bitcmp1_b32 s{S_W}, 0'); a(f's_cselect_b64 vcc, -1, 0')
    a(f'v_cndmask_b32 v16, v5, v6, vcc'); a(f'v_cndmask_b32 v17, v6, v5, vcc')
    for hf in range(2):
        a(f's_mul_i32 s33, s{S_W}, {18*1024}'); a(f's_add_u32 s33, s33, {hf*73728}')
        a(f's_mul_i32 s34, s{S_W}, {18*4*8192}'); a('s_add_u32 s34, s34, s42'); a(f's_add_u32 s34, s34, {hf*288*8192}')
        for n in range(18):
            a('s_mov_b32 m0, s33')
            a(f'buffer_load_dwordx4 v{16 if ((n>>1)&1)==0 else 17}, s[{S_A}:{S_A+3}], s34 offen lds', tok=f'sq{hf}')
            if n < 17:
                a('s_add_u32 s33, s33, 1024'); a(f's_add_u32 s34, s34, {4*8192}')
    def tr_q(hf):
        for kk in range(9):
            k = hf * 9 + kk
            for c in range(2):
                ad = (11 + c) if hf == 0 else (14 + c)
                for h2 in range(2):
                    if kk == 8:
                        a(f'ds_read_b64_tr_b16 {wreg_half(fq(k,c), h2)}, v{ {11:18,12:19,14:20,15:21}[ad] } offset:{h2*1024}')
                    else:
                        a(f'ds_read_b64_tr_b16 {wreg_half(fq(k,c), h2)}, v{ad} offset:{kk*8192 + h2*1024}')
    def dma_o(hf):
        a(f's_mul_i32 s33, s{S_W}, {18*1024}')
        a(f's_mul_i32 s34, s40, 147456'); a('s_add_u32 s34, s34, s33'); a(f's_add_u32 s34, s34, {hf*73728}')
        a(f's_add_u32 s33, s33, {hf*73728}')
        for n in range(18):
            a('s_mov_b32 m0, s33')
            a(f'buffer_load_dwordx4 v22, s[{S_B}:{S_B+3}], s34 offen lds', tok=f'so{hf}')
            if n < 17:
                a('s_add_u32 s33, s33, 1024'); a('s_add_u32 s34, s34, 1024')
    a(f'v_lshlrev_b32 v22, 4, v{V_LANE}')
    a(f'v_lshrrev_b32 v23, 4, v{V_LANE}'); a(f'v_bfe_u32 v24, v{V_LANE}, 2, 2')
    a(f'v_lshl_add_u32 v23, v23, 2, v24'); a(f'v_mul_u32_u24 v23, 1152, v23')
    a(f'v_and_b32 v24, 3, v{V_LANE}'); a(f'v_lshl_add_u32 v23, v24, 4, v23')
    a(f's_mul_i32 s33, s{S_W}, 9'); a('s_lshr_b32 s43, s33, 1')
    a('s_lshl_b32 s33, s43, 6'); a('v_add_u32 v23, s33, v23')
    a(f'v_add_u32 v24, {73728}, v23')
    def tr_o(hf):
        for k2 in range(2):
            ke = hf * 2 + k2
            for pp in range(5):
                for ab in range(2):
                    for h2 in range(2):
                        off = k2 * 32 * 1152 + h2 * 16 * 1152 + pp * 64 + ab * 8
                        a(f'ds_read_b64_tr_b16 {wreg_half(fo(pp, ab, ke), h2)}, v{23+hf} offset:{off}')
    a.need('sq0'); a('s_barrier'); tr_q(0); a('s_waitcnt lgkmcnt(0)'); a('s_barrier'); dma_o(0)
    a.need('sq1'); a('s_barrier'); tr_q(1); a('s_waitcnt lgkmcnt(0)'); a('s_barrier'); dma_o(1)
    a.need('so0'); a('s_barrier'); tr_o(0)
    a.need('so1'); a('s_waitcnt lgkmcnt(0)'); a('s_barrier'); tr_o(1); a('s_waitcnt lgkmcnt(0)'); a('s_barrier')
    stamp(a, 2)
    gbar_wait(a)
    stamp(a, 3)
    V_L16, V_SET, V_SQ, V_SE, V_OW = 2, 3, 4, 5, 6
    V_RD = 3
    V_Z, V_FL = 0, 1
    BIAS = 8
    XR = 16
    QA = 48
    KF_ = 64
    KMF = 96
    VF_ = 112
    VMF = 128
    OA = 136
    S_IT, S_BUF, S_SEG, S_KVP, S_CHP = 44, 45, 46, 53, 54
    S_E, S_NS, S_FA = 57, 58, 59
    WS = f's[{S_WS}:{S_WS+3}]'
    def em(xs):
        for x in xs: a(x)
    def dma(src_sreg, off=0):
        return f'buffer_load_dwordx4 v{V_L16}, {WS}, s{src_sreg} offen offset:{off} lds'
    def grouped(xs):
        groups = []; cur = []
        for x in xs:
            cur.append(x)
            if x.startswith('buffer_'):
                groups.append(cur); cur = []
        assert not cur
        return groups
    a(f'v_lshlrev_b32 v{V_L16}, 4, v{V_LANE}')
    a(f's_and_b32 s55, s{S_W}, 1'); a(f's_lshr_b32 s56, s{S_W}, 1')
    def x_dma(it_sreg, buf_sreg):
        o = [f's_lshl_b32 s48, s{it_sreg}, 1', 's_add_u32 s48, s48, s41', 's_min_u32 s48, s48, 63', 's_mul_i32 s48, s48, 36864',
             f's_mul_i32 s49, s{S_W}, 9216', 's_add_u32 s48, s48, s49', f's_add_u32 s48, s48, {XN}', f's_add_u32 s49, s49, s{buf_sreg}']
        for grp, cnt in ((0, 4), (1, 4), (2, 1)):
            o.append('s_mov_b32 m0, s49')
            o += [dma(48, 1024 * n) for n in range(cnt)]
            if grp < 2: o += ['s_add_u32 s49, s49, 4096', 's_add_u32 s48, s48, 4096']
        return o
    a(f's_mov_b32 s{S_IT}, 0'); a(f's_mov_b32 s{S_BUF}, 0'); em(x_dma(S_IT, S_BUF))
    a(f's_mov_b32 s{S_IT}, 1'); a(f's_mov_b32 s{S_BUF}, 36864'); em(x_dma(S_IT, S_BUF))
    a(f's_mov_b32 s{S_IT}, 0'); a(f's_mov_b32 s{S_BUF}, 0')
    a('s_waitcnt vmcnt(9)')
    L1 = a.uid('L_sq')
    a.label(L1)
    a('s_waitcnt vmcnt(11)')
    a('s_barrier')
    a(f'v_add_u32 v{V_RD}, s{S_BUF}, v{V_L16}')
    reads = []
    for k in range(18):
        for tau in range(2):
            slot = (2 * k + tau) % 8
            reads.append(f'ds_read_b128 v[{XR+4*slot}:{XR+4*slot+3}], v{V_RD} offset:{tau*18432 + k*1024}')
    for r in reads[:6]: a(r)
    a(f's_add_u32 s50, s{S_IT}, 2'); a(f's_add_u32 s51, s{S_BUF}, {2*36864}'); a(f's_cmp_ge_u32 s51, {3*36864}')
    a(f's_cselect_b32 s47, {3*36864}, 0'); a('s_sub_u32 s51, s51, s47')
    groups = grouped(x_dma(50, 51))
    ri = 6
    for k in range(18):
        for c in range(2):
            for tau in range(2):
                slot = (2 * k + tau) % 8
                t = QA + 4 * (c * 2 + tau)
                a(f'v_mfma_f32_16x16x32_bf16 v[{t}:{t+3}], {wreg(fq(k,c))}, v[{XR+4*slot}:{XR+4*slot+3}], {"0" if k == 0 else f"v[{t}:{t+3}]"}')
            if c == 0 and ri < len(reads):
                a(reads[ri]); a(reads[ri+1]); ri += 2
            if c == 1 and k % 2 == 0 and groups: em(groups.pop(0))
    assert not groups
    a(f's_lshl_b32 s47, s{S_IT}, 1'); a('s_add_u32 s47, s47, s41'); a('s_lshl_b32 s47, s47, 5'); a('s_add_u32 s47, s47, s40')
    a('s_lshl_b32 s47, s47, 13'); a(f's_lshl_b32 s48, s{S_W}, 10'); a('s_add_u32 s47, s47, s48'); a(f's_add_u32 s47, s47, {QF}')
    a('s_add_u32 s48, s47, 4096')
    for tau in range(2):
        d = KF_ + 4 * tau
        s0, s1 = QA + 4 * tau, QA + 4 * (2 + tau)
        a(f'v_cvt_pk_bf16_f32 v{d}, v{s0}, v{s0+1}'); a(f'v_cvt_pk_bf16_f32 v{d+1}, v{s0+2}, v{s0+3}')
        a(f'v_cvt_pk_bf16_f32 v{d+2}, v{s1}, v{s1+1}'); a(f'v_cvt_pk_bf16_f32 v{d+3}, v{s1+2}, v{s1+3}')
        a(f'buffer_store_dwordx4 v[{d}:{d+3}], v{V_L16}, {WS}, s{47+tau} offen')
    a(f's_add_u32 s{S_BUF}, s{S_BUF}, 36864'); a(f's_cmp_ge_u32 s{S_BUF}, {3*36864}'); a(f's_cselect_b32 s{S_BUF}, 0, s{S_BUF}')
    a(f's_add_u32 s{S_IT}, s{S_IT}, 1'); a(f's_cmp_lt_u32 s{S_IT}, 32'); a(f's_cbranch_scc1 {L1}')
    a('s_waitcnt vmcnt(0)')
    a('s_barrier')
    stamp(a, 5)
    LO, LS = 0, 8192
    LE = 73728
    OQ, OK, OV, OM = 0, 8192, 16384, 24576
    a(f'v_add_u32 v{V_SET}, {LS}, v{V_L16}')
    a('s_lshl_b32 s33, s55, 12'); a(f'v_add_u32 v{V_SQ}, s33, v{V_SET}')
    a('s_lshl_b32 s33, s56, 12'); a(f'v_add_u32 v{V_SE}, s33, v{V_SET}')
    a(f'v_add_u32 v7, s33, v{V_L16}')
    a('s_lshl_b32 s33, s55, 12'); a('s_lshl_b32 s34, s56, 11'); a('s_add_u32 s33, s33, s34'); a(f's_add_u32 s33, s33, {LO}')
    a(f'v_add_u32 v{V_OW}, s33, v{V_L16}')
    a(f'v_and_b32 v48, 15, v{V_LANE}'); a('s_lshl_b32 s33, s55, 4'); a('v_add_u32 v48, s33, v48')
    a(f'v_lshrrev_b32 v49, 4, v{V_LANE}'); a('v_lshlrev_b32 v49, 2, v49')
    a(f'v_mov_b32 v50, {NEG:#x}'); a('v_mov_b32 v52, 0')
    for kap in range(2):
        for i in range(4):
            a(f'v_add_u32 v51, {16*kap+i}, v49')
            a('v_cmp_le_u32 vcc, v51, v48')
            a(f'v_cndmask_b32 v{BIAS+4*kap+i}, v50, v52, vcc')
    a(f'v_mov_b32 v{V_Z}, 0')
    def seg_base(seg, lset):
        return [f's_lshl_b32 s50, s{seg}, 5', 's_add_u32 s50, s50, s40', 's_lshl_b32 s50, s50, 13', f's_lshl_b32 s51, s{S_W}, 11',
                's_add_u32 s50, s50, s51', f's_add_u32 s51, s51, s{lset}']
    def set_dma(lbase, gbase):
        return [f's_add_u32 m0, s51, {lbase}', f's_add_u32 s52, s50, {gbase}', dma(52, 0), dma(52, 1024)]
    def kv_wait(it_sreg):
        sk = a.uid('L_kvok')
        a(f's_min_u32 s34, s{it_sreg}, 31')
        a(f's_cmp_gt_u32 s{S_KVP}, s34'); a(f's_cbranch_scc1 {sk}')
        a('s_add_u32 s34, s34, 1')
        a('s_lshl_b32 s33, s41, 7'); a('s_lshl_b32 s35, s40, 2'); a('s_add_u32 s33, s33, s35'); a(f's_add_u32 s33, s33, {F_KV}')
        poll(a, f'buffer_load_dword v62, v{V_Z}, {WS}, s33 offen sc1', 'v_cmp_le_u32 vcc, s34, v62', sleep=2)
        a(f'v_readfirstlane_b32 s{S_KVP}, v62')
        a.label(sk)
    a(f's_lshl_b32 s{S_FA}, s40, 7'); a(f's_add_u32 s{S_FA}, s{S_FA}, {F_CH}')
    a(f's_mov_b32 s{S_IT}, 0'); a(f's_mov_b32 s{S_BUF}, {LS}')
    a(f's_mov_b32 s{S_KVP}, 0'); a(f's_mov_b32 s{S_CHP}, 0'); a(f's_mov_b32 s{S_E}, 0')
    a(f's_mov_b32 s{S_SEG}, s41')
    kv_wait(S_IT)
    em(seg_base(S_SEG, S_BUF)); em(set_dma(OQ, QF)); em(set_dma(OK, KF)); em(set_dma(OV, VF))
    a('s_waitcnt vmcnt(0)')
    def units_of(odd):
        return [(pp, tau) for pp in range(4) for tau in range(2)] + [(4, 0)] if odd == 0 else \
               [(0, 1)] + [(pp, tau) for pp in range(1, 5) for tau in range(2)]
    S_PB = 60
    L = a.uid('L_sh')
    a.label(L)
    sprof(a, 11); sprof(a, 0)
    a('s_waitcnt vmcnt(9)')
    a('s_barrier')
    sprof(a, 1)
    for sl in range(4):
        d = XR + 4 * sl
        a(f'ds_read_b128 v[{d}:{d+3}], v{V_SQ} offset:{OQ + sl*1024}')
        for kap in range(2):
            a(f'ds_read_b128 v[{KF_+4*(sl*2+kap)}:{KF_+4*(sl*2+kap)+3}], v{V_SET} offset:{OK + sl*2048 + kap*1024}')
    a(f's_add_u32 s{S_NS}, s{S_SEG}, 2'); a('s_add_u32 s33, s41, 62'); a(f's_min_u32 s{S_NS}, s{S_NS}, s33')
    S0 = QA
    sk = a.uid('L_chok'); sk2 = a.uid('L_late'); sk3 = a.uid('L_chok')
    for sl in range(4):
        for kap in range(2):
            t = S0 + 4 * kap
            kf = KF_ + 4 * (sl * 2 + kap)
            cin = f'v[{BIAS+4*kap}:{BIAS+4*kap+3}]' if sl == 0 else f'v[{t}:{t+3}]'
            a(f'v_mfma_f32_16x16x32_bf16 v[{t}:{t+3}], v[{kf}:{kf+3}], v[{XR+4*sl}:{XR+4*sl+3}], {cin}')
        if sl == 1:
            a(f's_cmp_eq_u32 s{S_E}, 0'); a(f's_cbranch_scc1 {sk2}')
            for s2 in range(4):
                a(f'ds_read_b128 v[{KMF+4*s2}:{KMF+4*s2+3}], v{V_SET} offset:{OM + s2*2048}')
            for z in range(2):
                a(f'ds_read_b128 v[{VMF+4*z}:{VMF+4*z+3}], v{V_SE} offset:{OM + 1024 + z*2048}')
            a.label(sk2)
    for z in range(4):
        a(f'ds_read_b128 v[{VF_+4*z}:{VF_+4*z+3}], v{V_SE} offset:{OV + z*1024}')
    sprof(a, 2)
    a(f's_add_u32 s37, s{S_IT}, 1')
    kv_wait(37)
    skf = a.uid('L_nofl')
    a(f's_cmp_lg_u32 s{S_W}, 0'); a(f's_cbranch_scc1 {skf}')
    a(f'buffer_load_dword v{V_FL}, v{V_Z}, {WS}, s{S_FA} offen sc1')
    a.label(skf)
    a(f's_xor_b32 s36, s{S_BUF}, 32768')
    em(seg_base(S_NS, 36)); em(set_dma(OQ, QF)); em(set_dma(OK, KF)); em(set_dma(OV, VF))
    sprof(a, 3)
    a(f's_cmp_lg_u32 s{S_E}, 0'); a(f's_cbranch_scc1 {sk}')
    TP = sknob('tp')
    if TP:
        DP = a.uid('L_dp'); DPB = sk
        a(f's_cmp_ge_u32 s{S_SEG}, {64 - sknob("tpk", 1)}'); a(f's_cbranch_scc1 {DP}')
    a(f's_cmp_gt_u32 s{S_CHP}, s{S_SEG}'); a(f's_cbranch_scc1 {sk3}')
    a(f's_add_u32 s34, s{S_SEG}, 1')
    poll(a, f'buffer_load_dword v60, v{V_Z}, {WS}, s{S_FA} offen sc1', 'v_cmp_le_u32 vcc, s34, v60', sleep=1)
    a(f'v_readfirstlane_b32 s{S_CHP}, v60')
    a.label(sk3)
    a(f's_lshl_b32 s47, s{S_SEG}, 5'); a('s_add_u32 s47, s47, s40'); a('s_lshl_b32 s47, s47, 13'); a(f's_add_u32 s47, s47, {KM}')
    a('s_add_u32 s48, s47, 4096')
    for sl in range(4):
        d = KMF + 4 * sl
        o = sl * 2048
        a(f'buffer_load_dwordx4 v[{d}:{d+3}], v{V_L16}, {WS}, s{47 + o // 4096} offen offset:{o % 4096}')
    for z in range(2):
        d = VMF + 4 * z
        a(f'buffer_load_dwordx4 v[{d}:{d+3}], v7, {WS}, s47 offen offset:{1024 + z*2048}')
    a('s_waitcnt vmcnt(0)')
    a.label(sk)
    t = S0 + 8
    for sl in range(4):
        a(f'v_mfma_f32_16x16x32_bf16 v[{t}:{t+3}], v[{KMF+4*sl}:{KMF+4*sl+3}], v[{XR+4*sl}:{XR+4*sl+3}], {"0" if sl == 0 else f"v[{t}:{t+3}]"}')
    sprof(a, 4)
    a(f'v_max3_f32 v60, v{S0}, v{S0+1}, v{S0+2}'); a(f'v_max3_f32 v61, v{S0+3}, v{S0+4}, v{S0+5}')
    a(f'v_max3_f32 v60, v60, v{S0+6}, v{S0+7}')
    C = 128 ** -0.5 * 1.4426950408889634
    a(f's_mov_b32 s34, {f2u(C):#x}'); a('s_mov_b32 s35, s34')
    a(f'v_max3_f32 v61, v61, v{S0+8}, v{S0+9}')
    a(f'v_max3_f32 v60, v60, v{S0+10}, v{S0+11}'); a('v_max_f32 v60, v60, v61')
    a('v_mov_b32 v61, v60'); a('v_permlane32_swap_b32 v60, v61'); a('v_max_f32 v60, v60, v61')
    a('v_mov_b32 v61, v60'); a('v_permlane16_swap_b32 v60, v61'); a('v_max_f32 v60, v60, v61')
    a('v_mul_f32 v60, s34, v60')
    for n in range(0, 12, 2):
        a(f'v_pk_fma_f32 v[{S0+n}:{S0+n+1}], v[{S0+n}:{S0+n+1}], s[34:35], v[60:61] op_sel_hi:[1,1,0] neg_lo:[0,0,1] neg_hi:[0,0,1]')
    P, PM = XR + 16, XR + 20
    ONE, HALF = XR + 24, XR + 28
    fill = [f'v_mov_b32 v{ONE+n}, 0x3f803f80' for n in range(4)] + [f'v_mov_b32 v{HALF+n}, 0x3f003f00' for n in range(2)]
    cv = [f'v_cvt_pk_bf16_f32 v{P+n}, v{S0+2*n}, v{S0+2*n+1}' for n in range(4)] + \
         [f'v_cvt_pk_bf16_f32 v{PM}, v{S0+8}, v{S0+9}', f'v_cvt_pk_bf16_f32 v{PM+1}, v{S0+10}, v{S0+11}']
    seq = [fill[0], fill[1], fill[2], cv[0], fill[3], cv[1], fill[4], cv[2], fill[5], cv[3], None, cv[4]]
    for n in range(12):
        a(f'v_exp_f32 v{S0+n}, v{S0+n}')
        if seq[n]: a(seq[n])
    a(cv[5])
    SUM = 56
    OT = KF_
    def pv(z): return f'v_mfma_f32_16x16x32_bf16 v[{OT+4*z}:{OT+4*z+3}], v[{VF_+4*z}:{VF_+4*z+3}], v[{P}:{P+3}], 0'
    def pm(z):
        vm = VMF + 4 * (z >> 1) + 2 * (z & 1)
        return f'v_mfma_f32_16x16x16_bf16 v[{OT+4*z}:{OT+4*z+3}], v[{vm}:{vm+1}], v[{PM}:{PM+1}], v[{OT+4*z}:{OT+4*z+3}]'
    a(f'v_mfma_f32_16x16x32_bf16 v[{SUM}:{SUM+3}], v[{ONE}:{ONE+3}], v[{P}:{P+3}], 0')
    a(pv(0))
    a(f'v_mfma_f32_16x16x16_bf16 v[{SUM}:{SUM+3}], v[{HALF}:{HALF+1}], v[{PM}:{PM+1}], v[{SUM}:{SUM+3}]')
    a(pv(1)); a(pv(2)); a(pv(3)); a(pm(0)); a(f'v_rcp_f32 v{SUM}, v{SUM}'); a(pm(1)); a(pm(2)); a(pm(3))
    sprof(a, 5)
    for zz in range(2):
        for n in range(0, 8, 2):
            r = OT + 8 * zz + n
            a(f'v_pk_mul_f32 v[{r}:{r+1}], v[{r}:{r+1}], v[{SUM}:{SUM+1}] op_sel_hi:[1,0]')
        d = XR + 4 * zz
        s0, s1 = OT + 8 * zz, OT + 8 * zz + 4
        a(f'v_cvt_pk_bf16_f32 v{d}, v{s0}, v{s0+1}'); a(f'v_cvt_pk_bf16_f32 v{d+1}, v{s0+2}, v{s0+3}')
        a(f'v_cvt_pk_bf16_f32 v{d+2}, v{s1}, v{s1+1}'); a(f'v_cvt_pk_bf16_f32 v{d+3}, v{s1+2}, v{s1+3}')
        a(f'ds_write_b128 v{V_OW}, v[{d}:{d+3}] offset:{zz*1024}')
    sprof(a, 6)
    a('s_waitcnt vmcnt(6)')
    skf = a.uid('L_nofl')
    a(f'v_mov_b32 v61, {LE}')
    a(f's_cmp_lg_u32 s{S_W}, 0'); a(f's_cbranch_scc1 {skf}')
    a(f'v_max_u32 v{V_FL}, s{S_CHP}, v{V_FL}')
    a(f'ds_write_b32 v61, v{V_FL}')
    a.label(skf)
    a(f's_lshl_b32 s47, s{S_SEG}, 5'); a('s_add_u32 s47, s47, s40'); a('s_mul_i32 s47, s47, 36864')
    a('s_lshl_b32 s48, s43, 10'); a('s_add_u32 s47, s47, s48'); a(f's_add_u32 s{S_PB}, s47, {PART}')
    sprof(a, 8)
    a('s_waitcnt lgkmcnt(0)')
    a('s_barrier')
    sprof(a, 9)
    if TP == 2:
        sk_ = a.uid('L_arm')
        a(f's_cmp_lg_u32 s{S_IT}, 4'); a(f's_cbranch_scc1 {sk_}')
        a('s_add_u32 s47, s41, 62'); a('s_lshl_b32 s47, s47, 5'); a('s_add_u32 s47, s47, s40'); a('s_mul_i32 s47, s47, 36864')
        a(f's_mul_i32 s48, s{S_W}, 9216'); a('s_add_u32 s47, s47, s48'); a(f's_add_u32 s47, s47, {PART}')
        for r in range(4): a(f'v_mov_b32 v{QA + r}, -1')
        for q in range(9):
            a(f'buffer_store_dwordx4 v[{QA}:{QA+3}], v{V_L16}, {WS}, s47 offen offset:{1024 * (q & 3)} sc1')
            if q & 3 == 3: a('s_add_u32 s47, s47, 4096')
        a.label(sk_)
    for odd in range(2):
        lab = a.uid('L_op')
        if odd == 0:
            a(f's_bitcmp1_b32 s{S_W}, 0'); a(f's_cbranch_scc1 {lab}_odd')
            first = lab
        units = units_of(odd)
        for tau in ((0, 1) if odd == 0 else (1, 0)):
            for ke in range(4):
                d = XR + 4 * (tau * 4 + ke)
                a(f'ds_read_b128 v[{d}:{d+3}], v{V_L16} offset:{LO + tau*4096 + ke*1024}')
        a(f'ds_read_b32 v{V_FL}, v61')
        if odd == 0:
            sk = a.uid('L_shf')
            a(f's_cmp_lg_u32 s{S_W}, 0'); a(f's_cbranch_scc1 {sk}')
            a(f's_cmp_eq_u32 s{S_IT}, 0'); a(f's_cbranch_scc1 {sk}')
            sh_flag(a, f's_mov_b32 s47, s{S_IT}')
            a.label(sk)
        sk = a.uid('L_noe')
        a(f'v_readfirstlane_b32 s33, v{V_FL}')
        a(f's_max_u32 s{S_CHP}, s{S_CHP}, s33')
        a(f's_cmp_gt_u32 s33, s{S_NS}'); a(f's_cselect_b32 s{S_E}, 1, 0')
        a(f's_cmp_eq_u32 s{S_IT}, 31'); a(f's_cselect_b32 s{S_E}, 0, s{S_E}')
        a(f's_cmp_eq_u32 s{S_E}, 0'); a(f's_cbranch_scc1 {sk}')
        a(f's_xor_b32 s36, s{S_BUF}, 32768')
        em(seg_base(S_NS, 36)); em(set_dma(OM, KM))
        a.label(sk)
        def epi(u):
            pp, tau = units[u]
            t = OA + 8 * u
            return [f'v_cvt_pk_bf16_f32 v{t}, v{t}, v{t+1}', f'v_cvt_pk_bf16_f32 v{t+1}, v{t+2}, v{t+3}',
                    f'v_cvt_pk_bf16_f32 v{t+2}, v{t+4}, v{t+5}', f'v_cvt_pk_bf16_f32 v{t+3}, v{t+6}, v{t+7}',
                    f's_add_u32 s48, s{S_PB}, {tau*18432 + pp*1024}',
                    f'buffer_store_dwordx4 v[{t}:{t+3}], v{V_L16}, {WS}, s48 offen sc1']
        for u, (pp, tau) in enumerate(units):
            e = epi(u - 1) if u > 0 else []
            n = 0
            for ke in range(4):
                for ab in range(2):
                    t = OA + 8 * u + 4 * ab
                    o = XR + 4 * (tau * 4 + ke)
                    a(f'v_mfma_f32_16x16x32_bf16 v[{t}:{t+3}], {wreg(fo(pp, ab, ke))}, v[{o}:{o+3}], {"0" if ke == 0 else f"v[{t}:{t+3}]"}')
                    n += 1
                    if e and n == 3: a(e[0]); a(e[1])
                    if e and n == 4: a(e[2]); a(e[3])
                    if e and n == 5: a(e[4]); a(e[5])
        for x in epi(len(units) - 1): a(x)
        if odd == 0:
            a(f's_branch {first}_join')
            a.label(f'{first}_odd')
    a.label(f'{first}_join')
    sprof(a, 10)
    a(f's_xor_b32 s{S_BUF}, s{S_BUF}, 32768')
    for r in (V_SET, V_SQ, V_SE): a(f'v_xor_b32 v{r}, 32768, v{r}')
    a(f's_mov_b32 s{S_SEG}, s{S_NS}')
    a(f's_add_u32 s{S_IT}, s{S_IT}, 1'); a(f's_cmp_lt_u32 s{S_IT}, 32'); a(f's_cbranch_scc1 {L}')
    if TP:
        ex, dl, d3 = a.uid('L_dpx'), a.uid('L_dpl'), a.uid('L_dp3')
        a(f's_branch {ex}')
        a.label(DP)
        if sknob('tpf', 1):
            a(f's_cmp_ge_u32 s{S_CHP}, s{S_SEG}'); a(f's_cbranch_scc1 {d3}')
            a(f's_mov_b32 s34, s{S_SEG}')
            poll(a, f'buffer_load_dword v60, v{V_Z}, {WS}, s{S_FA} offen sc1', 'v_cmp_le_u32 vcc, s34, v60', sleep=1)
            a(f'v_readfirstlane_b32 s{S_CHP}, v60')
        a.label(d3)
        a(f's_lshl_b32 s47, s{S_SEG}, 5'); a('s_add_u32 s47, s47, s40'); a('s_lshl_b32 s47, s47, 13'); a(f's_add_u32 s47, s47, {KM}')
        a('s_add_u32 s48, s47, 4096')
        a.label(dl)
        for sl in range(4):
            d = KMF + 4 * sl; o = sl * 2048
            a(f'buffer_load_dwordx4 v[{d}:{d+3}], v{V_L16}, {WS}, s{47 + o // 4096} offen offset:{o % 4096} sc1')
        for z in range(2):
            d = VMF + 4 * z
            a(f'buffer_load_dwordx4 v[{d}:{d+3}], v7, {WS}, s47 offen offset:{1024 + z*2048} sc1')
        a('s_waitcnt vmcnt(0)')
        rs = list(range(KMF, KMF + 16)) + list(range(VMF, VMF + 8))
        a(f'v_max3_u32 v60, v{rs[0]}, v{rs[1]}, v{rs[2]}'); a(f'v_max3_u32 v61, v{rs[3]}, v{rs[4]}, v{rs[5]}')
        for n, i in enumerate(range(6, 24, 2)):
            t = 60 + (n & 1); a(f'v_max3_u32 v{t}, v{t}, v{rs[i]}, v{rs[i+1]}')
        a('v_max_u32 v60, v60, v61')
        a('v_cmp_eq_u32 vcc, -1, v60'); a('s_cmp_eq_u64 vcc, 0'); a(f's_cbranch_scc1 {DPB}')
        a(f's_cmp_eq_u32 s{S_BUD}, 0'); a(f's_cbranch_scc1 {DPB}')
        a(f's_sub_u32 s{S_BUD}, s{S_BUD}, 1')
        a(f's_branch {dl}')
        a.label(ex)
    a('s_waitcnt vmcnt(0)')
    a('s_barrier')
    sk = a.uid('L_shf')
    a(f's_cmp_lg_u32 s{S_W}, 0'); a(f's_cbranch_scc1 {sk}')
    sh_flag(a, 's_mov_b32 s47, 32')
    a.label(sk)
    if PROF_IT is not None:
        a('s_waitcnt lgkmcnt(0)')
        a('s_lshl_b32 s33, s41, 5'); a('s_add_u32 s33, s33, s40'); a('s_lshl_b32 s33, s33, 2'); a(f's_add_u32 s33, s33, s{S_W}')
        a('s_lshl_b32 s33, s33, 7'); a(f's_add_u32 s33, s33, {0x40000}')
        a('v_mov_b32 v10, 0'); a('s_mov_b64 exec, 1')
        for k in range(12):
            a(f'v_mov_b32 v8, s{64+2*k}'); a(f'v_mov_b32 v9, s{65+2*k}')
            a(f'buffer_store_dwordx2 v[8:9], v10, {WS}, s33 offen offset:{8*k}')
        a('s_mov_b64 exec, -1')
    stamp(a, 4)

import struct
def f2u(x): return struct.unpack('<I', struct.pack('<f', x))[0]

def sh_flag(a, valtext):
    a(valtext)
    a('s_lshl_b32 s48, s41, 7'); a('s_lshl_b32 s49, s40, 2'); a('s_add_u32 s48, s48, s49'); a(f's_add_u32 s48, s48, {F_SH}')
    a('v_mov_b32 v62, s47'); a('v_mov_b32 v63, 0')
    a('s_mov_b64 exec, 1')
    a(f'buffer_store_dword v62, v63, s[{S_WS}:{S_WS+3}], s48 offen sc1')
    a('s_mov_b64 exec, -1')


NFW = 640
def finisher_role(a):
    srd(a, S_A, 0, 2048 * 1152)
    srd(a, S_B, 80, 2048 * 1152)
    S_TK, S_S = 65, 66
    a(f's_lshl_b32 s{S_TK}, s64, 2'); a(f's_add_u32 s{S_TK}, s{S_TK}, s{S_W}')
    n_, g_ = 2, 3
    a(f'v_and_b32 v{n_}, 15, v{V_LANE}'); a(f'v_lshrrev_b32 v{g_}, 4, v{V_LANE}')
    a(f'v_and_b32 v4, 1, v{g_}'); a('v_mul_u32_u24 v4, 36864, v4')
    a(f'v_lshrrev_b32 v5, 1, v{g_}'); a(f'v_lshl_add_u32 v5, v5, 4, v{n_}'); a('v_lshl_add_u32 v4, v5, 4, v4')
    a(f'v_lshrrev_b32 v5, 1, v{g_}'); a(f'v_lshrrev_b32 v6, 3, v{n_}'); a('v_cmp_eq_u32 s[68:69], v5, v6')
    a(f'v_and_b32 v5, 7, v{n_}')
    for r in range(4):
        a(f'v_cmp_eq_u32 vcc, {2*r}, v5'); a(f'v_mov_b32 v6, 0'); a(f'v_mov_b32 v7, 0x3f80'); a(f'v_cndmask_b32 v6, v6, v7, vcc')
        a(f'v_cmp_eq_u32 vcc, {2*r+1}, v5'); a(f'v_mov_b32 v7, 0x3f800000'); a(f'v_cndmask_b32 v6, v6, v7, vcc')
        a(f'v_mov_b32 v7, 0'); a(f'v_cndmask_b32 v{8+r}, v7, v6, s[68:69]')
    a(f'v_mul_u32_u24 v12, 2304, v{n_}'); a(f'v_lshl_add_u32 v12, v{g_}, 4, v12')
    a(f'v_mul_u32_u24 v13, 1152, v{n_}'); a(f'v_lshl_add_u32 v13, v{g_}, 3, v13')
    a(f'v_lshlrev_b32 v14, 2, v{V_LANE}')
    a('s_waitcnt lgkmcnt(0)')
    srd_fix(a, S_A); srd_fix(a, S_B)
    a('s_mov_b32 s67, -1')
    L = a.uid('L_fin'); E = a.uid('L_finx')
    a.label(L)
    a(f's_cmp_ge_u32 s{S_TK}, {64*72}'); a(f's_cbranch_scc1 {E}')
    a(f's_mul_i32 s{S_S}, s{S_TK}, 58255'); a(f's_lshr_b32 s{S_S}, s{S_S}, 22')
    a(f's_mul_i32 s33, s{S_S}, 72'); a(f's_sub_u32 s70, s{S_TK}, s33')
    a('s_cmp_ge_u32 s70, 36'); a('s_cselect_b32 s71, 1, 0')
    a('s_mul_i32 s33, s71, 36'); a('s_sub_u32 s70, s70, s33')
    a('s_lshr_b32 s72, s70, 1'); a('s_and_b32 s73, s70, 1')
    sk = a.uid('L_fok'); sw = a.uid('L_fw')
    a(f's_cmp_eq_u32 s67, s{S_S}'); a(f's_cbranch_scc1 {sk}')
    a(f's_cmp_lg_u32 s{S_W}, 0'); a(f's_cbranch_scc1 {sw}')
    a(f's_and_b32 s33, s{S_S}, 1'); a('s_lshl_b32 s33, s33, 7'); a(f's_add_u32 s33, s33, {F_SH}')
    a(f's_lshr_b32 s34, s{S_S}, 3'); a('s_lshl_b32 s34, s34, 5'); a(f's_add_u32 s34, s34, {F_F - 128}')
    a(f's_lshr_b32 s35, s{S_S}, 1'); a('s_add_u32 s35, s35, 1')
    TP = sknob('tp')
    if TP: a('s_min_u32 s35, s35, 31')
    a(f'v_cmp_gt_u32 vcc, 32, v{V_LANE}')
    a('v_mov_b32 v15, s34'); a('v_mov_b32 v16, s33'); a('v_cndmask_b32 v15, v15, v16, vcc'); a('v_add_u32 v15, v15, v14')
    a('v_mov_b32 v17, 1'); a('v_mov_b32 v16, s35'); a('v_cndmask_b32 v17, v17, v16, vcc')
    a('s_mov_b32 exec_lo, -1'); a('s_mov_b32 exec_hi, 0xff')
    PL, PD, PS_ = a.uid('L_fp'), a.uid('L_fpd'), a.uid('L_fps')
    a.label(PL)
    a(f'buffer_load_dword v16, v15, s[{S_WS}:{S_WS+3}], 0 offen sc1')
    a('s_waitcnt vmcnt(0)')
    a('v_cmp_le_u32 vcc, v17, v16')
    a('s_cmp_eq_u64 vcc, exec'); a(f's_cbranch_scc1 {PD}')
    a(f's_cmp_eq_u32 s{S_BUD}, 0'); a(f's_cbranch_scc1 {PD}')
    a(f's_sub_u32 s{S_BUD}, s{S_BUD}, 1')
    a('v_add_u32 v18, 1, v16'); a('v_cmp_le_u32 vcc, v17, v18')
    a('s_cmp_eq_u64 vcc, exec'); a(f's_cbranch_scc1 {PS_}')
    a('s_sleep 24')
    a.label(PS_)
    a('s_sleep 2')
    a(f's_branch {PL}')
    a.label(PD)
    a('s_mov_b64 exec, -1')
    a.label(sw)
    a('s_barrier')
    a(f's_mov_b32 s67, s{S_S}')
    a.label(sk)
    D = 32
    def partials():
        a(f's_lshl_b32 s33, s{S_S}, 5'); a('s_mul_i32 s33, s33, 36864'); a('s_mul_i32 s34, s71, 18432'); a('s_add_u32 s33, s33, s34')
        a('s_lshl_b32 s34, s72, 10'); a('s_add_u32 s33, s33, s34'); a('s_lshl_b32 s34, s73, 9'); a('s_add_u32 s33, s33, s34')
        a(f's_add_u32 s33, s33, {PART}')
        for i in range(16):
            a(f'buffer_load_dwordx4 v[{D+4*i}:{D+4*i+3}], v4, s[{S_WS}:{S_WS+3}], s33 offen sc1')
            if i < 15: a(f's_add_u32 s33, s33, {2*36864}')
    if not TP: partials()
    a(f's_lshl_b32 s33, s{S_S}, 5'); a('s_lshl_b32 s34, s71, 4'); a('s_add_u32 s33, s33, s34')
    a('s_lshl_b32 s34, s72, 5'); a('s_lshl_b32 s35, s73, 4'); a('s_add_u32 s34, s34, s35')
    a('s_mul_i32 s35, s33, 2304'); a('s_lshl_b32 s36, s34, 2'); a('s_add_u32 s35, s35, s36'); a(f's_add_u32 s35, s35, {FF}')
    a(f'buffer_load_dwordx4 v[20:23], v12, s[{S_WS}:{S_WS+3}], s35 offen sc1')
    a(f's_add_u32 s35, s35, {2048*2304}')
    a(f'buffer_load_dwordx4 v[24:27], v12, s[{S_WS}:{S_WS+3}], s35 offen sc1')
    a('s_mul_i32 s35, s33, 1152'); a('s_lshl_b32 s36, s34, 1'); a('s_add_u32 s35, s35, s36')
    a(f'buffer_load_dwordx2 v[28:29], v13, s[{S_A}:{S_A+3}], s35 offen')
    if TP:
        pl, pk = a.uid('L_fdl'), a.uid('L_fdk')
        a.label(pl)
        partials()
        a(f's_cmp_lt_u32 s{S_S}, 62'); a(f's_cbranch_scc1 {pk}')
        a('s_waitcnt vmcnt(0)')
        a(f'v_max3_u32 v18, v{D}, v{D+1}, v{D+2}'); a(f'v_max3_u32 v19, v{D+3}, v{D+4}, v{D+5}')
        for n, i in enumerate(range(6, 64, 2)):
            t = 18 + (n & 1); a(f'v_max3_u32 v{t}, v{t}, v{D+i}, v{D+i+1}')
        a('v_max_u32 v18, v18, v19')
        a('v_cmp_eq_u32 vcc, -1, v18'); a('s_cmp_eq_u64 vcc, 0'); a(f's_cbranch_scc1 {pk}')
        a(f's_cmp_eq_u32 s{S_BUD}, 0'); a(f's_cbranch_scc1 {pk}')
        a(f's_sub_u32 s{S_BUD}, s{S_BUD}, 1')
        a(f's_branch {pl}')
        a.label(pk)
    for i in range(16):
        a(f'v_mfma_f32_16x16x32_bf16 v[100:103], v[8:11], v[{D+4*i}:{D+4*i+3}], {"0" if i == 0 else "v[100:103]"}')
    for r in range(4):
        a(f'v_add_f32 v{20+r}, v{20+r}, v{24+r}')
    a('v_lshlrev_b32 v24, 16, v28'); a('v_and_b32 v25, 0xffff0000, v28'); a('v_lshlrev_b32 v26, 16, v29'); a('v_and_b32 v27, 0xffff0000, v29')
    for r in range(4):
        a(f'v_add_f32 v{20+r}, v{20+r}, v{24+r}')
    for r in range(4):
        a(f'v_add_f32 v{20+r}, v{20+r}, v{100+r}')
    a('v_cvt_pk_bf16_f32 v20, v20, v21'); a('v_cvt_pk_bf16_f32 v21, v22, v23')
    a(f'buffer_store_dwordx2 v[20:21], v13, s[{S_B}:{S_B+3}], s35 offen' + {0: '', 1: ' sc1', 2: ' sc0 sc1', 3: ' nt', 4: ' nt sc1'}[sknob('osc')])
    a(f's_add_u32 s{S_TK}, s{S_TK}, {NFW}')
    a(f's_branch {L}')
    a.label(E)
    stamp(a, 7)
```

```python
from gen_base import *
import struct
def f2u(x): return struct.unpack('<I', struct.pack('<f', x))[0]

X_MEM, X_TOK, X_SM, X_O, RESB = 0, 9216, 13312, 14336, 16384
V_EX, V_RES, V_CS, V_C1, V_M2O, V_IDX, V_SEL = 0, 1, 2, 3, 4, 5, 6
AR, LR = 8, 24
QA, QB, KA, KB, VA, VB = 40, 44, 48, 52, 56, 60
KX, VX = 64, 72
PROF = 0x20000
PROF_STEP = None
PROF_REAL = False
EXP = set()

REAL = [[2, 3, 4, 5, 6, 7, 8, 0, 1], [0, 1, 2, 3, 4, 5, 6, 7, 8], [6, 7, 8, 0, 1, 2, 3, 4, 5], [4, 5, 8, 6, 7, 0, 1, 2, 3]]
def knob(name, dflt=0):
    for x in EXP:
        if x.startswith(name + '='): return int(x[len(name)+1:])
    return dflt
def delay(a, n):
    while n > 0:
        a.rawins(f's_nop {min(n, 16) - 1}'); n -= 16
RESIDENT = [('Q', 0), ('K', 2), ('K', 4), ('K', 5), ('V', 5), ('O', 2, 0), ('O', 2, 1), ('O', 3, 0), ('O', 3, 1)]
REGIMG = [(m, c) for c in range(9) for m in 'QKV' if (m, c) not in RESIDENT] + \
         [('O', 0, 0), ('O', 0, 1), ('O', 1, 0), ('O', 1, 1), ('S',)]
assert len(REGIMG) == 27
MIXED = [[('K', 2), ('K', 7), ('Q', 0), ('V', 2), ('Q', 2), ('K', 1), ('V', 5), ('K', 0), ('Q', 4), ('V', 7), ('V', 0), ('K', 8), ('K', 5), ('K', 4), ('K', 6), ('Q', 6)],
         [('Q', 2), ('K', 5), ('K', 6), ('V', 7), ('K', 4), ('K', 2), ('Q', 6), ('V', 0), ('K', 0), ('V', 2), ('K', 7), ('Q', 4), ('K', 1), ('V', 5), ('K', 8), ('Q', 0)]]
RLB, D_RL = 0xB000000, 192
def rl_items():
    n = knob('rlc')
    return MIXED[knob('nx', 1)][16 - n:] if n else []
def rl_res(j): return (0, 2, 3)[j % 3]
def opbase(k):
    return ('a', 8 * k) if k < 32 else ('v', 80 + 8 * (k - 32))
def opreg(img, tau):
    k = 2 * REGIMG.index(img) + tau
    f, b = opbase(k)
    return f'{f}[{b}:{b+7}]'

S_CRD = 37
S_WOK, S_WA = 38, 39
S_H, S_S = 40, 41
S_O0, S_O1, S_O2 = 42, 43, 44
S_MR = 45
S_MB = 46
S_CP = 47
S_CS = 48
S_CR = 49
S_K0, S_K1 = 50, 51
S_HB, S_B = 52, 53
S_C = 54
S_NM = 56
S_SEGO = 58
S_CSS = 59
S_GM = 60
S_RM = 62
S_Q4 = 70
S_ONE = 72
S_TO, S_TA, S_TR = 52, 53, 45
T0, T1, T2, T3 = 33, 34, 35, 36
PS = 74

def pmode():
    for x in EXP:
        if x.startswith('pm='): return x[3:]
    return None
PM_IDS = {}
def mark(a, name):
    pm = pmode()
    if PROF_STEP is None or pm is None or not name.startswith(pm): return
    k = PM_IDS.setdefault(name, len(PM_IDS) + 1)
    assert k <= 11
    prof(a, k, force=True)
def prof(a, k, _=0, force=False):
    if PROF_STEP is None: return
    if pmode() and not force and k not in (0, 12): return
    sk = a.uid('L_pf')
    a(f's_cmp_lg_u32 s{S_S}, {PROF_STEP + (1 if k >= 12 else 0)}'); a(f's_cbranch_scc1 {sk}')
    a.rawins(f's_mem{"real" if PROF_REAL else ""}time s[{PS+2*k}:{PS+2*k+1}]')
    a.label(sk)

def smf(d, av, b):
    return f'v_smfmac_f32_16x16x64_bf16 v[{d}:{d+3}], v[{av}:{av+3}], {b}, v{V_IDX}'

def lread(slot, dst):
    return [f'ds_read_b128 v[{dst+4*q}:{dst+4*q+3}], v{V_RES} offset:{slot*4096 + q*1024}' for q in range(4)]

S_B_, S_C_ = 20, 24

def setup(a):
    W = S_W
    WS = f's[{S_WS}:{S_WS+3}]'
    if 'hx' in EXP: a(f's_xor_b32 s{S_H}, s{S_T}, 1')
    else: a(f's_mov_b32 s{S_H}, s{S_T}')
    srd(a, S_A, 16, 576 * 8192); srd(a, S_B_, 24, 576 * 8192); srd(a, S_C_, 32, 576 * 8192); srd(a, S_D, 40, 32 * 147456)
    EA = knob('ea')
    S_M0 = 76
    if EA: srd(a, S_M0, 8, 9216)
    a(f'v_mov_b32 v79, v{V_LANE}')
    L = 79
    a(f'v_lshlrev_b32 v{V_EX}, 4, v{L}')
    a(f's_mul_i32 s{T0}, s{W}, 36864'); a(f's_add_u32 s{T0}, s{T0}, {RESB}'); a(f'v_add_u32 v{V_RES}, s{T0}, v{V_EX}')
    a(f'v_bfe_u32 v9, v{L}, 3, 1'); a('v_lshlrev_b32 v9, 12, v9')
    a(f'v_and_b32 v10, 7, v{L}'); a('v_lshl_add_u32 v9, v10, 3, v9')
    a(f'v_bfe_u32 v10, v{L}, 4, 1'); a('v_lshl_add_u32 v9, v10, 6, v9')
    a(f'v_lshrrev_b32 v10, 5, v{L}')
    a(f'v_lshl_add_u32 v{V_C1}, v10, 13, v9')
    a(f'v_lshl_add_u32 v{V_CS}, v10, 2, v9')
    if knob('x4'):
        a(f'v_bfe_u32 v9, v{L}, 3, 1'); a('v_lshlrev_b32 v9, 12, v9')
        a(f'v_and_b32 v11, 7, v{L}'); a('v_lshl_add_u32 v9, v11, 4, v9')
        a(f'v_lshl_add_u32 v9, v10, 13, v9')
        a(f'v_bfe_u32 v11, v{L}, 4, 1'); a('v_xor_b32 v11, 1, v11'); a(f'v_lshl_add_u32 v{V_C1}, v11, 17, v9')
    a(f'v_bfe_u32 v9, v{L}, 2, 1'); a('v_lshlrev_b32 v9, 2, v9'); a(f'v_lshrrev_b32 v10, 4, v{L}'); a('v_add_u32 v9, v9, v10')
    a(f'v_and_b32 v10, 3, v{L}'); a('v_lshlrev_b32 v10, 2, v10'); a(f'v_lshl_add_u32 v{V_M2O}, v9, 4, v10')
    if knob('x4'):
        a(f'v_and_b32 v9, 7, v{L}'); a(f'v_bfe_u32 v10, v{L}, 4, 1'); a(f'v_lshrrev_b32 v11, 5, v{L}'); a('v_lshl_add_u32 v10, v10, 1, v11')
        a('v_lshlrev_b32 v10, 2, v10'); a('v_lshl_add_u32 v9, v9, 4, v10')
        a(f's_cmp_lt_u32 s{W}, 2'); a('s_cselect_b64 vcc, -1, 0'); a(f'v_cndmask_b32 v{V_M2O}, v{V_M2O}, v9, vcc')
    a(f'v_bfe_u32 v10, v{L}, 3, 1'); a('v_mul_u32_u24 v10, 0xaaaa, v10'); a(f'v_add_u32 v{V_IDX}, 0x4444, v10')
    a(f'v_and_b32 v9, 7, v{L}'); a(f'v_bfe_u32 v10, v{L}, 4, 1'); a('v_lshlrev_b32 v10, 2, v10')
    a('v_sub_u32 v9, v9, v10')
    for r in range(2):
        a(f'v_mov_b32 v11, 0'); a('v_mov_b32 v12, 0x3f80'); a(f'v_cmp_eq_u32 vcc, {2*r}, v9'); a('v_cndmask_b32 v11, v11, v12, vcc')
        a('v_mov_b32 v12, 0x3f800000'); a(f'v_cmp_eq_u32 vcc, {2*r+1}, v9'); a(f'v_cndmask_b32 v{V_SEL+r}, v11, v12, vcc')
    a(f's_mov_b32 s{S_C}, {f2u(128 ** -0.5 * 1.4426950408889634):#x}'); a(f's_mov_b32 s{S_C+1}, s{S_C}')
    a(f's_mov_b32 s{S_NM}, 0x00ff00ff'); a(f's_mov_b32 s{S_NM+1}, 0x00ff00ff')
    a(f's_mov_b32 s{S_GM}, 0'); a(f's_mov_b32 s{S_GM+1}, -1')
    for r, m in enumerate((0x0011, 0x1100, 0x0022, 0x2200)):
        a(f's_mov_b32 s{S_RM+2*r}, {m * 0x10001:#x}'); a(f's_mov_b32 s{S_RM+2*r+1}, {m * 0x10001:#x}')
    if knob('x4'):
        a(f's_cmp_lt_u32 s{W}, 2')
        for r in range(4):
            a(f's_cselect_b32 s{S_RM+2*r}, {(0x0303 << 2*r) * 0x10001:#x}, s{S_RM+2*r}'); a(f's_mov_b32 s{S_RM+2*r+1}, s{S_RM+2*r}')
    a(f's_mov_b32 s{S_Q4}, 0x3e803e80'); a(f's_mov_b32 s{S_Q4+1}, 0x3e803e80')
    a(f's_mov_b32 s{S_ONE}, 0x3f803f80'); a(f's_mov_b32 s{S_ONE+1}, 0x3f803f80')
    a(f's_lshl_b32 s{T0}, s{W}, 11')
    a(f's_lshl_b32 s{T1}, s{S_H}, 13'); a(f's_add_u32 s{S_SEGO}, s{T0}, s{T1}')
    a(f's_cmp_lt_u32 s{S_H}, 16')
    a(f's_cselect_b32 s{T0}, 32, -16'); a(f's_cselect_b32 s{T1}, 16, 32')
    a(f's_cmp_eq_u32 s{W}, 1'); a(f's_cselect_b32 s{T0}, s{T1}, s{T0}')
    a(f's_cmp_eq_u32 s{W}, 2'); a(f's_cselect_b32 s{T0}, 64, s{T0}')
    a(f's_add_u32 s{S_B}, s{T0}, s{S_H}')
    a(f's_cmp_lt_u32 s{S_H}, 8'); a(f's_cselect_b32 s{S_HB}, 1, 0')
    a(f's_cmp_lt_u32 s{W}, 2'); a(f's_cselect_b32 s{S_HB}, 1, s{S_HB}')
    a(f's_cmp_eq_u32 s{W}, 3'); a(f's_cselect_b32 s{S_HB}, 0, s{S_HB}')
    a(f's_min_u32 s{S_B}, s{S_B}, 71')
    a(f's_lshl_b32 s{T0}, s{S_B}, 7'); a(f's_add_u32 s{S_MB}, s{T0}, {M2}')
    a(f's_lshl_b32 s{T0}, s{S_B}, 12'); a(f's_add_u32 s{S_CR}, s{T0}, {C1}')
    a(f's_lshl_b32 s{T0}, s{W}, 14'); a(f's_lshl_b32 s{T1}, s{S_H}, 7'); a(f's_add_u32 s{T0}, s{T0}, s{T1}')
    a(f's_add_u32 s{S_CS}, s{T0}, {C1}')
    a(f's_lshl_b32 s{T0}, s{W}, 13'); a(f's_add_u32 s{T0}, s{T0}, s{T1}'); a(f's_add_u32 s{S_CSS}, s{T0}, {C1 + 64*4096}')
    a(f's_mov_b32 s{S_K0}, 0'); a(f's_mov_b32 s{S_K1}, 0')
    a('s_waitcnt lgkmcnt(0)')
    for s_ in (S_A, S_B_, S_C_, S_D): srd_fix(a, s_)
    if EA:
        srd_fix(a, S_M0)
        a(f'v_and_b32 v72, 7, v{L}'); a('v_mul_u32_u24 v72, 1152, v72')
        a(f'v_lshrrev_b32 v73, 3, v{L}'); a('v_lshl_add_u32 v72, v73, 4, v72')
        a('v_mov_b32 v74, 0'); a(f'v_lshlrev_b32 v75, 7, v{L}')
    u0, p0, tau, p2, p3, p1 = 8, 9, 10, 11, 12, 13
    a(f'v_and_b32 v{u0}, 1, v{L}'); a(f'v_bfe_u32 v{p0}, v{L}, 4, 1'); a(f'v_bfe_u32 v{tau}, v{L}, 1, 1')
    a(f'v_bfe_u32 v{p2}, v{L}, 2, 1'); a(f'v_bfe_u32 v{p3}, v{L}, 3, 1'); a(f'v_bfe_u32 v{p1}, v{L}, 5, 1')
    VQ, VO, VS_, VT0, VT1, VU0, VU1 = 20, 21, 22, 23, 24, 25, 26
    a(f'v_lshlrev_b32 v14, 5, v{tau}'); a(f'v_lshl_add_u32 v14, v{u0}, 4, v14'); a(f's_lshl_b32 s{T0}, s{W}, 6'); a(f'v_add_u32 v14, s{T0}, v14')
    a(f'v_lshl_add_u32 v16, v{p1}, 1, v{p3}'); a(f'v_lshl_add_u32 v16, v{p2}, 4, v16'); a(f'v_lshl_add_u32 v16, v{p0}, 5, v16')
    a(f'v_mul_u32_u24 v17, 1152, v16'); a(f'v_add_u32 v{VO}, v17, v14')
    a(f'v_xor_b32 v{tau}, v{tau}, v{p0}')
    a(f'v_lshlrev_b32 v14, 5, v{tau}'); a(f'v_lshl_add_u32 v14, v{u0}, 4, v14'); a(f's_lshl_b32 s{T0}, s{W}, 6'); a(f'v_add_u32 v14, s{T0}, v14')
    a(f'v_lshl_add_u32 v15, v{p1}, 1, v{p0}')
    a(f'v_lshl_add_u32 v16, v{p2}, 2, v15'); a(f'v_lshl_add_u32 v16, v{p3}, 3, v16')
    a(f'v_lshl_add_u32 v{VQ}, v16, 13, v14')
    if 'pB' in EXP:
        a(f'v_lshrrev_b32 v16, 4, v{L}'); a(f's_lshl_b32 s{T0}, s{W}, 4'); a(f'v_add_u32 v16, s{T0}, v16')
        a(f'v_and_b32 v14, 15, v{L}'); a('v_lshlrev_b32 v14, 4, v14'); a(f'v_lshl_add_u32 v{VQ}, v16, 13, v14')
    a(f'v_lshl_add_u32 v16, v{p2}, 4, v15'); a(f'v_lshl_add_u32 v16, v{p3}, 5, v16')
    a(f'v_lshl_add_u32 v16, v{tau}, 6, v16'); a('v_mul_u32_u24 v17, 1152, v16')
    a(f'v_lshlrev_b32 v18, 4, v{u0}'); a(f's_lshl_b32 s{T0}, s{W}, 5'); a(f's_add_u32 s{T0}, s{T0}, 1024')
    a(f'v_add_u32 v18, s{T0}, v18'); a(f'v_add_u32 v{VS_}, v17, v18')
    a(f'v_bfe_u32 v{u0}, v{L}, 1, 1'); a(f'v_bfe_u32 v{p0}, v{L}, 2, 1'); a(f'v_bfe_u32 v{p3}, v{L}, 3, 1')
    a(f'v_bfe_u32 v{p2}, v{L}, 4, 1'); a(f'v_bfe_u32 v14, v{L}, 5, 1')
    a(f'v_and_b32 v18, 1, v{L}'); a('v_lshlrev_b32 v18, 3, v18'); a(f's_mul_i32 s{T0}, s{W}, 36864'); a(f's_add_u32 s37, s{T0}, {RESB}')
    a('v_add_u32 v18, s37, v18')
    a(f'v_lshl_add_u32 v15, v{p2}, 2, v{u0}'); a(f'v_lshl_add_u32 v15, v{p3}, 3, v15'); a(f'v_lshl_add_u32 v15, v{p0}, 4, v15')
    a('v_lshl_add_u32 v15, v14, 6, v15')
    a(f'v_lshl_add_u32 v16, v{p0}, 1, v15')
    a(f'v_xor_b32 v17, 2, v16')
    a(f'v_lshl_add_u32 v{VT0}, v16, 4, v18'); a(f'v_lshl_add_u32 v{VT1}, v17, 4, v18')
    a(f'v_lshl_add_u32 v15, v{p3}, 1, v{u0}'); a(f'v_lshl_add_u32 v15, v{p2}, 2, v15'); a(f'v_lshl_add_u32 v15, v{p0}, 3, v15')
    a('v_lshl_add_u32 v15, v14, 6, v15')
    a(f'v_lshl_add_u32 v{VU0}, v15, 4, v18'); a(f'v_add_u32 v{VU1}, 256, v{VU0}')
    PB = knob('pb')
    VQB, VTB, VUB, VXT, VXO, VXP = 27, 48, 56, 60, 62, 64
    VRA, VRZ, VRF = 64, 66, 68
    if PB == 2:
        a(f's_lshl_b32 s{T0}, s{W}, 12'); a(f's_sub_u32 s{T0}, s{T0}, s37')
        for k_, r_ in enumerate((VT0, VT1, VU0, VU1)): a(f'v_add_u32 v{VXP + k_}, s{T0}, v{r_}')
    if PB == 1:
        b = [8, 9, 10, 11, 12, 13]
        for i in range(6): a(f'v_bfe_u32 v{b[i]}, v{L}, {i}, 1')
        a(f's_and_b32 s{T0}, s{W}, 1'); a(f's_lshr_b32 s{T1}, s{W}, 1')
        a(f'v_xor_b32 v14, v{b[1]}, v{b[4]}'); a(f'v_lshl_add_u32 v14, v14, 1, v{b[0]}')
        a(f'v_xor_b32 v15, v{b[2]}, v{b[5]}'); a('v_lshl_add_u32 v14, v15, 2, v14'); a(f'v_lshl_add_u32 v14, v{b[3]}, 3, v14')
        a(f'v_lshl_add_u32 v15, v{b[5]}, 2, v{b[4]}')
        a(f's_lshl_b32 s{T2}, s{T0}, 1'); a(f's_lshl_b32 s{T3}, s{T1}, 5'); a(f's_add_u32 s{T2}, s{T2}, s{T3}'); a(f'v_add_u32 v15, s{T2}, v15')
        a('v_lshlrev_b32 v14, 4, v14'); a(f'v_lshl_add_u32 v{VQ}, v15, 13, v14'); a(f'v_xor_b32 v{VQB}, 0x80, v{VQ}')
        a(f'v_lshl_add_u32 v14, v{b[1]}, 1, v{b[0]}')
        a(f'v_xor_b32 v15, v{b[2]}, v{b[4]}'); a('v_lshl_add_u32 v14, v15, 2, v14')
        a(f'v_xor_b32 v15, v{b[3]}, v{b[5]}'); a('v_lshl_add_u32 v14, v15, 3, v14')
        a(f'v_lshl_add_u32 v15, v{b[5]}, 4, v{b[4]}')
        a(f's_lshl_b32 s{T2}, s{T0}, 1'); a(f's_lshl_b32 s{T3}, s{T1}, 3'); a(f's_add_u32 s{T2}, s{T2}, s{T3}'); a(f'v_add_u32 v15, s{T2}, v15')
        a('v_mul_u32_u24 v15, 1152, v15'); a(f'v_lshl_add_u32 v{VO}, v14, 4, v15')
        if knob('rlc'):
            a(f'v_lshrrev_b32 v14, 13, v{VQ}'); a(f'v_and_b32 v15, 0xff, v{VQ}'); a(f'v_lshl_add_u32 v{VRA}, v14, 10, v15')
            a(f'v_xor_b32 v{VRA + 1}, 0x80, v{VRA}'); a(f'v_mov_b32 v{VRZ}, 0')
            a(f's_and_b32 s41, s{S_H}, 3'); a('s_cmp_eq_u32 s41, 1'); a(f's_cselect_b32 s41, {knob("rlc")}, -1')
            a(f's_lshr_b32 s43, s{S_H}, 2'); a('s_lshl_b32 s42, s43, 2'); a(f's_add_u32 s42, s42, {D_RL}')
            a('s_lshl_b32 s43, s43, 16'); a(f's_add_u32 s43, s43, {RLB}'); a('s_mov_b32 s39, 0')
        a(f'v_lshlrev_b32 v16, 3, v{b[0]}'); a(f'v_add_u32 v16, {RESB}, v16')
        a(f'v_lshl_add_u32 v16, v{b[2]}, 8, v16'); a(f'v_lshl_add_u32 v16, v{b[4]}, 9, v16'); a(f'v_lshl_add_u32 v16, v{b[1]}, 4, v16')
        a(f'v_xor_b32 v14, s{T0}, v{b[4]}'); a('v_lshl_add_u32 v17, v14, 6, v16')
        a(f'v_xor_b32 v14, s{T1}, v{b[3]}'); a('v_lshl_add_u32 v17, v14, 7, v17')
        a(f'v_lshl_add_u32 v17, v{b[3]}, 10, v17'); a(f'v_lshl_add_u32 v17, v{b[5]}, 11, v17')
        a(f'v_lshl_add_u32 v17, v{b[2]}, 5, v17')
        for t in range(2):
            if t: a('v_xor_b32 v17, 32, v17')
            for wp in range(4): a(f'v_add_u32 v{VTB + 4*t + wp}, {wp * 36864}, v17')
            a(f'v_subrev_u32 v{VXT + t}, {RESB}, v17')
        a(f'v_lshl_add_u32 v17, v{b[3]}, 5, v16')
        a(f'v_xor_b32 v14, s{T0}, v{b[2]}'); a('v_lshl_add_u32 v17, v14, 6, v17')
        a(f'v_xor_b32 v14, s{T1}, v{b[4]}'); a('v_lshl_add_u32 v17, v14, 7, v17')
        a(f'v_lshl_add_u32 v17, v{b[5]}, 10, v17')
        for wp in range(4): a(f'v_add_u32 v{VUB + wp}, {wp * 36864}, v17')
        a(f'v_subrev_u32 v{VXO}, {RESB}, v17')
    a(f's_lshl_b32 s{T2}, s{S_H}, 8')
    a(f's_mul_i32 s{T3}, s{S_H}, 147456')
    def poison():
        sk = a.uid('L_np')
        a(f's_cmp_eq_u32 s{S_HB}, 0'); a(f's_cbranch_scc1 {sk}')
        if 'nopoison' in EXP: a(f's_branch {sk}')
        for r in range(4): a(f'v_mov_b32 v{8+r}, -1')
        for par in range(2):
            a(f's_add_u32 s{T0}, s{S_CR}, {par*294912}')
            for i in range(4):
                a(f'buffer_store_dwordx4 v[8:11], v{V_EX}, {WS}, s{T0} offen offset:{i*1024} sc1')
        for k in (1, 2):
            a(f's_add_u32 s{T0}, s{S_MB}, {9216*k}')
            a(f'buffer_store_dword v8, v{V_M2O}, {WS}, s{T0} offen sc1')
        a.label(sk)

    def worder(w):
        order = [('O', 0, 0), ('O', 0, 1), ('O', 1, 0), ('O', 1, 1), ('S',)] + \
                [(m, REAL[w].index(r)) for r in range(9) for m in 'QKV'] + [x for x in RESIDENT if x[0] == 'O']
        if 'qkv1' in EXP: order = order[5:32] + order[:5] + order[32:]
        assert sorted(map(str, order)) == sorted(map(str, REGIMG + RESIDENT))
        return order
    def plan(w):
        order = worder(w)
        pos = {img: i for i, img in enumerate(order)}
        free = set(range(9)); slot_of = {}; st_ = {'nxt': 0}
        def issue():
            out = []
            while st_['nxt'] < 36:
                i = st_['nxt']; img = order[i]
                if img in RESIDENT:
                    sl = RESIDENT.index(img)
                    if sl not in free: break
                else:
                    cand = [j for j in free if pos[RESIDENT[j]] > i]
                    if not cand: break
                    sl = max(cand, key=lambda j: pos[RESIDENT[j]])
                free.discard(sl); slot_of[i] = sl
                out.append(i); st_['nxt'] += 1
            return out
        first = issue(); after = []
        for i in range(36):
            assert i in slot_of
            if order[i] not in RESIDENT: free.add(slot_of[i])
            after.append(issue())
        return order, slot_of, first, after
    def plan2(w, nx):
        mixed = MIXED[nx]
        pure = [(m, r) for r in range(9) for m in 'QKV' if (m, r) not in mixed]
        order = [('O', 0, 0), ('O', 0, 1), ('O', 1, 0), ('O', 1, 1), ('S',)] + [(m, REAL[w].index(r)) for m, r in pure + mixed] + \
                [x for x in RESIDENT if x[0] == 'O']
        if knob('ois'):
            qkv = order[5:32]; ins = {knob('oi0', 3) + knob('ois') * j: order[j] for j in range(5)}
            for j in range(4): ins[35 - knob('ros', 1) * (3 - j)] = order[32 + j]
            assert len(ins) == 9
            it = iter(qkv); order = [ins[i] if i in ins else next(it) for i in range(36)]
        assert sorted(map(str, order)) == sorted(map(str, REGIMG + RESIDENT))
        pos = {img: i for i, img in enumerate(order)}
        hp = [pos[RESIDENT[j]] for j in range(9)] + [99] * nx
        free = set(range(9 + nx)); slot_of = {}; st_ = {'nxt': 0}
        def issue():
            out = []
            while st_['nxt'] < 36:
                i = st_['nxt']
                cand = [j for j in sorted(free) if hp[j] >= i and not (j == 9 and order[i] == ('S',))]
                if not cand: break
                sl = min(cand, key=lambda j: hp[j])
                free.discard(sl); slot_of[i] = sl; out.append(i); st_['nxt'] += 1
            return out
        first = issue(); after = []
        for i in range(36):
            assert i in slot_of
            if hp[slot_of[i]] != i: free.add(slot_of[i])
            after.append(issue())
        for i in range(2, 36): assert i in first or i not in after[i - 1]
        assert slot_of[pos[('S',)]] != 9
        return order, slot_of, first, after
    PLAN = [plan2(w, knob('nx', 1)) if PB else plan(w) for w in range(4)]
    SHARED = PB == 1
    def wload(w):
        order, slot_of, first, after = PLAN[w]
        def dma(i):
            img = order[i]; slot = slot_of[i]
            rows = [0, 1, 2, 3]
            if img[0] in 'QKV':
                sr = {'Q': S_A, 'K': S_B_, 'V': S_C_}[img[0]]; vo = [VQ] * 4; st = 16 * 8192
                if 'pB' in EXP: st = 4 * 8192
                so = [n * st for n in rows]
                if SHARED: vo = [VQ, VQB, VQ, VQB]; so = [(8 * (n & 1) + 16 * (n >> 1)) * 8192 for n in rows]
                a(f's_add_u32 s53, s{T2}, {REAL[w][img[1]] << 19}')
            elif img[0] == 'O':
                sr = S_D; vo = [VO] * 4; so = [n * 4 * 1152 for n in rows]
                if SHARED: so = [(4 * (n & 1) + 32 * (n >> 1)) * 1152 for n in rows]
                a(f's_add_u32 s53, s{T3}, {img[2] * 64 * 1152 + img[1] * 256}')
            else:
                sr = S_D; vo = [VS_] * 4; so = [n * 4 * 1152 for n in rows]
                a(f's_mov_b32 s53, s{T3}')
            RI = rl_items()
            if img[0] in 'QKV' and (img[0], REAL[w][img[1]]) in RI:
                j = RI.index((img[0], REAL[w][img[1]]))
                lr_, ld_ = a.uid('L_rl'), a.uid('L_rd')
                a('s_cmp_eq_u32 s39, 1'); a(f's_cbranch_scc1 {lr_}')
                for n in range(4):
                    if slot == 9: a(f's_mov_b32 m0, {w*4096 + n*1024}')
                    else: a(f's_add_u32 m0, s37, {slot*4096 + n*1024}')
                    a(f's_add_u32 s38, s53, {so[n]}')
                    a(f'buffer_load_dwordx4 v{vo[n]}, s[{sr}:{sr+3}], s38 offen lds', tok=f'cw{w}_{i}')
                a(f's_branch {ld_}')
                a.label(lr_)
                for n in range(4):
                    if slot == 9: a(f's_mov_b32 m0, {w*4096 + n*1024}')
                    else: a(f's_add_u32 m0, s37, {slot*4096 + n*1024}')
                    a(f's_add_u32 s38, s43, {j * 8 * 65536 + rl_res(j) * 256 + (8 * (n & 1) + 16 * (n >> 1)) * 1024}')
                    a(f'buffer_load_dwordx4 v{VRA + (n & 1)}, {WS}, s38 offen{" sc1" if knob("rsc", 1) else ""} lds', tok=f'cw{w}_{i}')
                a.label(ld_)
                return
            for n in range(4):
                if slot == 9: a(f's_mov_b32 m0, {w*4096 + n*1024}')
                else: a(f's_add_u32 m0, s37, {slot*4096 + n*1024}')
                a(f's_add_u32 s38, s53, {so[n]}')
                a(f'buffer_load_dwordx4 v{vo[n]}, s[{sr}:{sr+3}], s38 offen{" nt" if "wnt" in EXP else ""}{" sc1" if "wsc1" in EXP else ""} lds', tok=f'cw{w}_{i}')
        def wback(i):
            if order[i] in RESIDENT:
                for q in range(4):
                    a(f'ds_write_b128 v{V_RES}, v[{32+4*q}:{32+4*q+3}] offset:{RESIDENT.index(order[i])*4096 + q*1024}')
        if 'wst2' in EXP and w == 0: stamp(a, 5)
        for i in first: dma(i)
        if 'wst2' in EXP and w == 0: stamp(a, 6)
        poison()
        for i in range(36):
            img = order[i]; slot = slot_of[i]
            a.need(f'cw{w}_{i}')
            if w == 0 and i == 0:
                a(f's_lshl_b32 s53, s{S_X}, 2'); a(f's_add_u32 s53, s53, {D_LN}')
                a('v_mov_b32 v8, 1'); a('v_mov_b32 v9, 0'); a('s_mov_b64 exec, 1')
                a(f'buffer_atomic_add v8, v9, s[{S_DBG}:{S_DBG+3}], s53 offen sc1')
                a('s_mov_b64 exec, -1')
            if SHARED:
                a('s_barrier')
                SMP = {knob('rs0', 7) + knob('rsd', 2) * k_: k_ for k_ in range(knob('rsn', 3))} if knob('rlc') else {}
                if i - 9 in SMP:
                    a(f'v_readfirstlane_b32 s38, v{VRF + SMP[i - 9]}'); a('s_cmp_ge_u32 s38, s41'); a('s_cselect_b32 s39, 1, s39')
                if i in SMP: a(f'buffer_load_dword v{VRF + SMP[i]}, v{VRZ}, s[{S_DBG}:{S_DBG+3}], s42 offen sc1')
                if EA and i == 11 and w == 0:
                    a(f's_lshl_b32 s38, s{S_FOREIGN}, 16'); a('s_add_u32 s38, s38, 1'); a('v_mov_b32 v8, s38'); a('s_mov_b64 exec, 1')
                    a(f'buffer_atomic_add v8, v74, s[{S_DBG}:{S_DBG+3}], 0 offen offset:{D_CHB} sc1')
                    a('s_mov_b64 exec, -1')
                if EA and i == knob('eas', 21):
                    a(f'buffer_load_dword v71, v74, s[{S_DBG}:{S_DBG+3}], 0 offen offset:{D_CHB} sc1')
                if EA and i == knob('eae', 30):
                    a('v_readfirstlane_b32 s38, v71'); a('s_lshr_b32 s45, s38, 16'); a('s_and_b32 s38, s38, 0xffff')
                    a('s_cmp_ge_u32 s38, 32'); a('s_cselect_b32 s44, 1, 0')
                    if w == 3:
                        sk = a.uid('L_kv0')
                        a(f's_cbranch_scc0 {sk}')
                        a(f's_lshl_b32 s38, s{S_H}, 2'); a(f's_add_u32 s38, s38, {F_KV}')
                        a('s_mov_b64 exec, 3'); a(f'buffer_load_dword v73, v75, {WS}, s38 offen sc1'); a('s_mov_b64 exec, -1')
                        a.label(sk)
                    for c in range(3 if w == 3 else 2):
                        a(f'buffer_load_dwordx4 v[{AR+4*c}:{AR+4*c+3}], v72, s[{S_M0}:{S_M0+3}], 0 offen offset:{REAL[w][c]*128}')
                if i:
                    wback(i - 1)
                    for j in after[i - 1]: dma(j)
            vt = VU0 if img[0] == 'O' else VT0
            for t in range(2):
                if img in RESIDENT: f, b = 'v', 32 + 8 * t
                else: f, b = opbase(2 * REGIMG.index(img) + t)
                for hb in range(2):
                    for rd in range(2):
                        r = b + 4 * hb + 2 * rd
                        if SHARED and img[0] != 'S':
                            wp = rd + 2 * hb; so = PLAN[wp][1][i] * 4096
                            if so == 9 * 4096:
                                if img[0] == 'O': adr = f'v{VXO} offset:{wp * 4096 + t * 2048}'
                                else: adr = f'v{VXT + t} offset:{wp * 4096}'
                            elif img[0] == 'O': adr = f'v{VUB + wp} offset:{so + t * 2048}'
                            else: adr = f'v{VTB + 4*t + wp} offset:{so}'
                        elif slot == 9: adr = f'v{VXP + (2 if img[0] == "O" else 0) + t} offset:{hb*2048 + rd*512}'
                        else: adr = f'v{vt+t} offset:{slot*4096 + hb*2048 + rd*512}'
                        a(f'ds_read_b64_tr_b16 {f}[{r}:{r+1}], {adr}')
            a('s_waitcnt lgkmcnt(0)')
            if not SHARED:
                wback(i)
                for j in after[i]: dma(j)
            if 'wst2' in EXP and w == 0 and i == 0: stamp(a, 7)
            if 'wst' in EXP and w == 0 and i in (4, 18, 31): stamp(a, {4: 5, 18: 6, 31: 7}[i])
        if SHARED:
            a('s_barrier'); wback(35)
        if EA:
            for c in range(3 if w == 3 else 2):
                a(f'ds_write_b128 v{V_EX}, v[{AR+4*c}:{AR+4*c+3}] offset:{X_MEM + REAL[w][c]*1024}')
        a('s_waitcnt lgkmcnt(0)')
        if EA:
            ok, dn = a.uid('L_eok'), a.uid('L_edn')
            a('s_cmp_eq_u32 s44, 1'); a(f's_cbranch_scc1 {ok}')
            a('v_mov_b32 v76, 32')
            poll(a, f'buffer_load_dword v77, v74, s[{S_DBG}:{S_DBG+3}], 0 offen offset:{D_CHB} sc1',
                 'v_and_b32 v78, 0xffff, v77\nv_cmp_le_u32 vcc, v76, v78', sleep=6)
            a('v_readfirstlane_b32 s45, v77'); a('s_lshr_b32 s45, s45, 16')
            a(f's_branch {dn}')
            a.label(ok)
            if w == 3: a(f'v_readlane_b32 s{S_K0}, v73, 0'); a(f'v_readlane_b32 s{S_K1}, v73, 1')
            a.label(dn)
            a(f's_mov_b32 s{S_FOREIGN}, s45')
    done = a.uid('L_wl')
    lbl = [a.uid('L_wl') for _ in range(4)]
    if 'half' in EXP:
        a(f's_bitcmp1_b32 s{S_H}, 1'); a(f's_cbranch_scc1 {done}')
    for w in range(1, 4):
        a(f's_cmp_eq_u32 s{W}, {w}'); a(f's_cbranch_scc1 {lbl[w]}')
    for w in range(4):
        a.label(lbl[w])
        wload(w)
        if w < 3: a(f's_branch {done}')
    a.label(done)
    if 'rsv' in EXP:
        sk = a.uid('L_rsv')
        a(f's_cmp_lg_u32 s{W}, 0'); a(f's_cbranch_scc1 {sk}')
        a(f's_lshl_b32 s38, s{S_X}, 5'); a(f's_add_u32 s38, s38, s{S_T}'); a('s_lshl_b32 s38, s38, 7'); a(f's_add_u32 s38, s38, {STAMPS}')
        a('v_mov_b32 v72, 0'); a('s_mov_b64 exec, 1')
        for k_ in range(3): a(f'buffer_store_dword v{68 + k_}, v72, {WS}, s38 offen offset:{8 * (5 + k_)}')
        a('s_mov_b64 exec, -1')
        a.label(sk)

def team_barrier(a):
    a('s_waitcnt vmcnt(0)')
    a('s_barrier')
    sk = a.uid('L_tb')
    a(f's_cmp_lg_u32 s{S_W}, 0'); a(f's_cbranch_scc1 {sk}')
    a(f's_lshl_b32 s{T0}, s{S_FOREIGN}, 16'); a(f's_add_u32 s{T0}, s{T0}, 1')
    a(f'v_mov_b32 v8, s{T0}'); a('v_mov_b32 v9, 0')
    a('s_mov_b64 exec, 1')
    a(f'buffer_atomic_add v8, v9, s[{S_DBG}:{S_DBG+3}], 0 offen offset:{D_CHB} sc1')
    a('s_mov_b64 exec, -1')
    a('v_mov_b32 v9, 0'); a('v_mov_b32 v11, 32')
    poll(a, f'buffer_load_dword v8, v9, s[{S_DBG}:{S_DBG+3}], 0 offen offset:{D_CHB} sc1',
         'v_and_b32 v10, 0xffff, v8\nv_cmp_le_u32 vcc, v11, v10', sleep=6)
    a('v_lshrrev_b32 v8, 16, v8')
    a('ds_write_b32 v9, v8')
    a('s_waitcnt lgkmcnt(0)')
    a.label(sk)
    a('s_barrier')
    a('v_mov_b32 v9, 0')
    a('ds_read_b32 v8, v9')
    a('s_waitcnt lgkmcnt(0)')
    a(f'v_readfirstlane_b32 s{S_FOREIGN}, v8')
    a('s_barrier')

def loop(a, sc, tag, role):
    WS = f's[{S_WS}:{S_WS+3}]'
    w = {'r0': 0, 'r1': 1, 'r2': 2, 'n2': 2, 'io': 3}[role]
    red = role[0] == 'r'
    io = role == 'io'
    t_ = tag + role
    LS, LE = f'L_cs{t_}', f'L_ce{t_}'
    acc = {'Q': (QA, QB), 'K': (KA, KB), 'V': (VA, VB)}
    SL = lambda i: AR + 4*i
    def W(m, c, t):
        if (m, c) in RESIDENT: return f'v[{LR+8*t}:{LR+8*t+7}]'
        return opreg((m, c), t)
    def mm1(m, c, t, slot): return smf(acc[m][t], SL(slot), W(m, c, t))
    def lr(img): return lread(RESIDENT.index(img), LR)
    def aread(c, slot): return f'ds_read_b128 v[{SL(slot)}:{SL(slot)+3}], v{V_EX} offset:{X_MEM + REAL[w][c]*1024}'
    def awrite(c): return f'ds_write_b128 v{V_EX}, v[{SL(c)}:{SL(c)+3}] offset:{X_MEM + REAL[w][c]*1024}'
    def cvt(d, s0): return f'v_cvt_pk_bf16_f32 v{d}, v{s0}, v{s0+1}'
    def tr(d): return f'v_mfma_f32_16x16x16_bf16 v[{d}:{d+3}], v[{d}:{d+1}], v[{V_SEL}:{V_SEL+1}], 0'
    def pka(d, x, y): return f'v_pk_add_f32 v[{d}:{d+1}], v[{x}:{x+1}], v[{y}:{y+1}]'
    def zero(r): return f'v_mov_b64 v[{r}:{r+1}], 0'
    def em(*xs):
        for x in xs:
            if isinstance(x, (list, tuple)): em(*x)
            else: a(x)
    nown = 3 if io else 2
    RT = 54
    def prep(): return [[zero(r) for r in range(QA, QA + 24, 2)], lr(('Q', 0))]
    B1 = f'L_b1{t_}'
    PZ = knob('pz', 0)
    SCH = knob('sch', 0)
    def poison(d, caddr, maddr, part=range(5)):
        o = []
        for i in part:
            if i < 4: o.append(f'buffer_store_dwordx4 v[{d}:{d+3}], v{V_EX}, {WS}, s{caddr} offen offset:{i*1024}{sc}')
            else: o.append(f'buffer_store_dword v{d}, v{V_M2O}, {WS}, s{maddr} offen{sc}')
        return o

    def kvcheck(off=0, lazy=False, va=8):
        u = a.uid('')
        if off:
            em(f's_add_u32 s{T1}, s{S_S}, {off}', f's_lshr_b32 s{T1}, s{T1}, 1', f's_add_u32 s{T1}, s{T1}, 1', f's_min_u32 s{T1}, s{T1}, 32')
        else:
            em(f's_lshr_b32 s{T1}, s{S_S}, 1', f's_add_u32 s{T1}, s{T1}, 1')
        if lazy: em(f's_mov_b32 s{T2}, s{T1}')
        else: em(f's_add_u32 s{T2}, s{T1}, 1', f's_min_u32 s{T2}, s{T2}, 32')
        par = 's_cbranch_scc0' if off & 1 else None
        sel = (lambda: em(f's_bitcmp1_b32 s{S_S}, 0', f's_cselect_b32 s{T0}, s{S_K0}, s{S_K1}')) if off & 1 else \
              (lambda: em(f's_bitcmp1_b32 s{S_S}, 0', f's_cselect_b32 s{T0}, s{S_K1}, s{S_K0}'))
        sel()
        OK, FL = f'L_ok{t_}{u}', f'L_fl{t_}{u}'
        em(f's_cmp_ge_u32 s{T0}, s{T2}', f's_cbranch_scc1 {OK}')
        em(f'v_lshlrev_b32 v{va+1}, 3, v{V_EX}')
        em(f's_lshl_b32 s{T3}, s{S_H}, 2', f's_add_u32 s{T3}, s{T3}, {F_KV}')
        a.label(FL)
        em('s_mov_b64 exec, 3', f'buffer_load_dword v{va}, v{va+1}, {WS}, s{T3} offen sc1', 's_mov_b64 exec, -1')
        em(f'v_readlane_b32 s{S_K0}, v{va}, 0', f'v_readlane_b32 s{S_K1}, v{va}, 1')
        sel()
        em(f's_cmp_ge_u32 s{T0}, s{T1}', f's_cbranch_scc1 {OK}')
        em(f's_cmp_eq_u32 s{S_BUD}, 0', f's_cbranch_scc1 {OK}')
        em(f's_sub_u32 s{S_BUD}, s{S_BUD}, 1', f's_branch {FL}')
        a.label(OK)
        if SCH:
            em(f's_add_u32 s{T1}, s{T1}, 1', f's_cmp_ge_u32 s{T0}, s{T1}', f's_cselect_b32 s{T0}, {off + 2}, {off}',
               f's_add_u32 s{T0}, s{T0}, s{S_S}', f's_min_u32 s{T0}, s{T0}, 63',
               f's_lshl_b32 s{T0}, s{T0}, 5', f's_add_u32 s{T0}, s{T0}, s{S_H}', f's_lshl_b32 s{S_WA}, s{T0}, 13')
            return
        em(f's_add_u32 s{T1}, s{T1}, 1', f's_cmp_ge_u32 s{T0}, s{T1}', f's_cselect_b32 s{S_WOK}, 1, 0')
        em(f's_add_u32 s{T0}, s{S_S}, 2', f's_lshl_b32 s{T0}, s{T0}, 5', f's_add_u32 s{T0}, s{T0}, s{S_H}', f's_lshl_b32 s{S_WA}, s{T0}, 13')

    def kvl(ta=T1, tb=T2):
        return [[f's_add_u32 s{ta}, s{S_SEGO}, {KF}', f's_add_u32 s{tb}, s{S_SEGO}, {VF}'],
                [f'buffer_load_dwordx4 v[{KX+4*k}:{KX+4*k+3}], v{V_EX}, {WS}, s{ta} offen offset:{k*1024}' for k in range(2)],
                [f'buffer_load_dwordx4 v[{VX+4*k}:{VX+4*k+3}], v{V_EX}, {WS}, s{tb} offen offset:{k*1024}' for k in range(2)]]
    def kvloads(ta=T1, tb=T2): em(kvl(ta, tb))
    def warm(t):
        return [f'v_lshlrev_b32 v{t}, 3, v{V_EX}', f's_add_u32 s{T1}, s{S_WA}, {KF}', f's_add_u32 s{T2}, s{S_WA}, {VF}',
                f'buffer_load_dword v{V_M2O}, v{t}, {WS}, s{T1} offen', f'buffer_load_dword v{V_M2O}, v{t}, {WS}, s{T2} offen']
    ones4 = [f'v_mov_b64 v[{VX}:{VX+1}], -1', f'v_mov_b64 v[{VX+2}:{VX+3}], -1']

    a.label(LE)
    em(prep())
    if knob('ea'):
        assert SCH
        if io: kvcheck(0, True, 20)
        a('s_barrier')
        kvloads()
        if io: em(warm(20)); kvcheck(1, True, 20)
        if red: em(f's_add_u32 s{S_CRD}, s{S_CR}, 294912')
        if red and PZ == 4: em(ones4)
        em(f's_branch {B1}')
    if io and not knob('ea'):
        kvcheck()
        if SCH: em(warm(9)); kvcheck(1)
    if not knob('ea'):
        srd(a, S_A, 8, 9216)
        a(f'v_lshrrev_b32 v21, 4, v{V_EX}')
        a('v_and_b32 v22, 7, v21'); a('v_mul_u32_u24 v22, 1152, v22')
        a('v_lshrrev_b32 v23, 3, v21'); a('v_lshl_add_u32 v22, v23, 4, v22')
        a('s_waitcnt lgkmcnt(0)')
        srd_fix(a, S_A)
        a('s_barrier')
        for c in range(nown):
            a(f'buffer_load_dwordx4 v[{SL(c)}:{SL(c)+3}], v22, s[{S_A}:{S_A+3}], 0 offen offset:{REAL[w][c]*128}')
    if not knob('ea'):
        if SCH: kvloads()
        if red: em(f's_add_u32 s{S_CRD}, s{S_CR}, 294912')
        if red and PZ == 4: em(ones4)
        em([awrite(c) for c in range(nown)])
        em(f's_branch {B1}')

    a.label(LS)
    prof(a, 12)
    prof(a, 0)
    if 'nocomm' in EXP:
        em(prep())
        if SCH: kvloads()
        if io: em(f's_mov_b32 s{S_WOK}, 1', f's_add_u32 s{T0}, s{S_S}, 3', f's_min_u32 s{T0}, s{T0}, 63', f's_lshl_b32 s{T0}, s{T0}, 5',
                  f's_add_u32 s{T0}, s{T0}, s{S_H}', f's_lshl_b32 s{S_WA}, s{T0}, 13')
        em([awrite(c) for c in range(nown)])
        em(f's_branch {B1}')
    if io:
        if 'steps' in EXP:
            em('s_memtime s[74:75]', f's_lshl_b32 s{T0}, s{S_H}, 6', f's_add_u32 s{T0}, s{T0}, s{S_S}', f's_lshl_b32 s{T0}, s{T0}, 3',
               f's_add_u32 s{T0}, s{T0}, {PROF + 0x10000}', 's_waitcnt lgkmcnt(0)', 'v_mov_b32 v8, s74', 'v_mov_b32 v9, s75', 'v_mov_b32 v10, 0',
               's_mov_b64 exec, 1', f'buffer_store_dwordx2 v[8:9], v10, {WS}, s{T0} offen', 's_mov_b64 exec, -1')
        em(prep())
        if SCH: kvloads(); kvcheck(1)
        else: kvcheck()
    elif not red:
        if SCH: kvloads()
    elif red:
        late = w == 1
        em(f's_xor_b32 s{S_CRD}, s{S_CP}, 294912', f's_add_u32 s{S_CRD}, s{S_CRD}, s{S_CR}')
        NS = knob('ns', 3)
        SETS = [8, 24, 64][:NS]
        SEL, RA, RT = 56, 60, 54
        def cload(b):
            return [f'buffer_load_dwordx4 v[{b+4*i}:{b+4*i+3}], v{V_EX}, {WS}, s{S_CRD} offen offset:{i*1024} sc1' for i in range(4)]
        selr = [f's_add_u32 s{T1}, s{S_MB}, s{S_O0}',
                f'v_and_b32 v{RT}, 64, v{V_EX}', f'v_lshrrev_b32 v{RT}, 2, v{RT}', f'v_mov_b32 v{RT+1}, 0x3f80', f'v_lshlrev_b32 v{RT}, v{RT}, v{RT+1}'] + \
               [f'v_cndmask_b32 v{SEL+r}, 0, v{RT}, s[{S_RM+2*r}:{S_RM+2*r+1}]' for r in range(4)]
        X4 = knob('x4') and role != 'r2'
        if X4:
            selr = [f's_add_u32 s{T1}, s{S_MB}, s{S_O0}',
                    f'v_and_b32 v{RT}, 16, v{V_EX}', f'v_mov_b32 v{RT+1}, 0x3f80', f'v_lshlrev_b32 v{RT}, v{RT}, v{RT+1}'] + \
                   [f'v_cndmask_b32 v{SEL+r}, 0, v{RT}, s[{S_RM+2*r}:{S_RM+2*r+1}]' for r in range(4)]
        zq = [zero(r) for r in range(QA, RT, 2)]
        if PZ == 4: zq = zq + ones4
        if PZ == 2:
            em('v_mov_b64 v[44:45], -1', 'v_mov_b64 v[46:47], -1', f's_add_u32 s{T2}, s{S_CR}, s{S_CP}', f's_add_u32 s{T3}, s{S_MB}, s{S_O1}')
            em(poison(44, T2, T3))
        if late:
            em(selr, zq)
            delay(a, knob('d1'))
            em(cload(SETS[0]))
            for b in SETS[1:]:
                delay(a, knob('g1', 16)); em(cload(b))
        else:
            delay(a, knob('d0'))
            em(cload(SETS[0]), selr)
            if NS > 1: delay(a, knob('g0', 8)); em(cload(SETS[1]))
            em(zq)
            if NS > 2: delay(a, knob('g0', 8)); em(cload(SETS[2]))
        if SCH: kvloads(T2, T3)
        def creduce(sb, first=False):
            mf = lambda i: f'v_mfma_f32_16x16x32_bf16 v[{RA}:{RA+3}], v[{SEL}:{SEL+3}], v[{sb+4*i}:{sb+4*i+3}], {"0" if i == 0 else f"v[{RA}:{RA+3}]"}'
            if PZ == 5 and X4:
                mf = lambda i: f'v_mfma_f32_16x16x32_bf16 v[{RA}:{RA+3}], v[{sb+4*i}:{sb+4*i+3}], v[{SEL}:{SEL+3}], {"0" if i == 0 else f"v[{RA}:{RA+3}]"}'
                xo = lambda d, x, y: f'v_bitop3_b32 v{d}, v{x}, v{y}, s{S_TR} bitop3:0x7e'
                em(mf(0), mf(1), xo(RT, sb, sb + 4), mf(2), mf(3), xo(RT + 1, sb + 8, sb + 12))
                em(f'v_bitop3_b32 v{RT}, v{RT}, v{RT+1}, 1 bitop3:0xa8', f'v_cmp_ne_u32 vcc, 0, v{RT}', 's_cmp_eq_u64 vcc, 0')
                return
            if PZ == 5:
                stp = 1 if role == 'r2' else 2
                xo = lambda d, x, y: f'v_bitop3_b32 v{d}, v{x}, v{y}, s{S_TR} bitop3:0x7e'
                for i in range(4):
                    b = sb + 4*i
                    a(mf(i))
                    if stp == 2:
                        if i == 0: em(xo(RT, b, b + 2))
                        elif i == 1: em(xo(RT + 1, b, b + 2))
                        elif i == 2: em(f'v_or_b32 v{RT}, v{RT}, v{RT+1}', xo(RT + 1, b, b + 2))
                        else: em(f'v_or_b32 v{RT}, v{RT}, v{RT+1}', xo(RT + 1, b, b + 2))
                    else:
                        if i == 0: em(xo(RT, b, b + 1), xo(RT + 1, b + 2, b + 3))
                        else: em(f'v_or_b32 v{RT}, v{RT}, v{RT+1}', xo(RT + 1, b, b + 1), f'v_or_b32 v{RT}, v{RT}, v{RT+1}', xo(RT + 1, b + 2, b + 3))
                em(f'v_bitop3_b32 v{RT}, v{RT}, v{RT+1}, 1 bitop3:0xa8', f'v_cmp_ne_u32 vcc, 0, v{RT}', 's_cmp_eq_u64 vcc, 0')
                return
            if first:
                b = sb
                em(f'v_max3_u32 v{RT}, v{b}, v{b+1}, v{b+2}', f'v_max3_u32 v{RT+1}, v{b+3}, v{b+4}, v{b+5}', mf(0),
                   f'v_max3_u32 v{RT}, v{RT}, v{b+6}, v{b+7}', mf(1),
                   f'v_max3_u32 v{RT+1}, v{RT+1}, v{b+8}, v{b+9}', f'v_max3_u32 v{RT}, v{RT}, v{b+10}, v{b+11}', mf(2),
                   f'v_max3_u32 v{RT+1}, v{RT+1}, v{b+12}, v{b+13}', f'v_max3_u32 v{RT}, v{RT}, v{b+14}, v{b+15}', mf(3))
            else:
                for i in range(4):
                    b = sb + 4*i
                    a(mf(i))
                    if i == 0: em(f'v_max3_u32 v{RT}, v{b}, v{b+1}, v{b+2}', f'v_mov_b32 v{RT+1}, v{b+3}')
                    else: em(f'v_max3_u32 v{RT}, v{RT}, v{b}, v{b+1}', f'v_max3_u32 v{RT+1}, v{RT+1}, v{b+2}, v{b+3}')
            em(f'v_max_u32 v{RT}, v{RT}, v{RT+1}', f'v_cmp_eq_u32 vcc, -1, v{RT}', 's_cmp_eq_u64 vcc, 0')
        RL, RD = f'L_rp{t_}', f'L_rpd{t_}'
        if knob('md') == 2:
            assert PZ == 5
            NB = knob('nb1' if late else 'nb0', 2)
            cregs = list(range(8, 24))
            RX = f'L_rx{t_}'
            if PROF_STEP is not None: em('s_waitcnt vmcnt(0)'); prof(a, 10)
            creduce(8); em(f's_cbranch_scc1 {RD}')
            a.retok(cregs, 'cstale')
            a.label(RL)
            em(f's_cmp_eq_u32 s{S_BUD}, 0', f's_cbranch_scc1 {RX}', f's_sub_u32 s{S_BUD}, s{S_BUD}, 1')
            if 'cnt' in EXP: em('s_add_u32 s98, s98, 1')
            em('s_mov_b64 exec, vcc', cload(8))
            a.retok(cregs, 'cstale')
            em(f's_waitcnt vmcnt({4*(NB-1)})')
            stp = 1 if role == 'r2' else 2
            xo = lambda d, x, y: f'v_bitop3_b32 v{d}, v{x}, v{y}, s{S_TR} bitop3:0x7e'
            mf = lambda i: f'v_mfma_f32_16x16x32_bf16 v[{RA}:{RA+3}], v[{SEL}:{SEL+3}], v[{8+4*i}:{8+4*i+3}], {"0" if i == 0 else f"v[{RA}:{RA+3}]"}'
            ml = knob('mlate')
            for i in range(4):
                b = 8 + 4*i
                if stp == 2:
                    if i == 0: em(xo(RT, b, b + 2))
                    else: em(xo(RT + 1, b, b + 2), f'v_or_b32 v{RT}, v{RT}, v{RT+1}')
                else:
                    if i == 0: em(xo(RT, b, b + 1), xo(RT + 1, b + 2, b + 3), f'v_or_b32 v{RT}, v{RT}, v{RT+1}')
                    else: em(xo(RT + 1, b, b + 1), f'v_or_b32 v{RT}, v{RT}, v{RT+1}', xo(RT + 1, b + 2, b + 3), f'v_or_b32 v{RT}, v{RT}, v{RT+1}')
                if not ml and i > 0: a(mf(i - 1))
            em(f'v_and_b32 v{RT}, 1, v{RT}', f'v_cmp_ne_u32 vcc, 0, v{RT}')
            if not ml: a(mf(3))
            em('s_cmp_eq_u64 vcc, 0', f's_cbranch_scc0 {RL}')
            a.label(RX)
            em('s_mov_b64 exec, -1')
            if knob('mlate'):
                for i in range(4): a(mf(i))
        elif knob('md'):
            NB = knob('nb1' if late else 'nb0', 1)
            cregs = list(range(8, 24))
            for j in range(1, NB):
                delay(a, knob('gb1' if late else 'gb0', 16)); em(cload(8))
            em(f's_waitcnt vmcnt({4*(NB-1)})'); a.retok(cregs, 'cstale')
            creduce(8, NB > 1); em(f's_cbranch_scc1 {RD}')
            RM = f'L_rm{t_}'
            a.label(RL)
            em(f's_cmp_eq_u32 s{S_BUD}, 0', f's_cbranch_scc1 {RM}', f's_sub_u32 s{S_BUD}, s{S_BUD}, 1')
            if 'cnt' in EXP: em('s_add_u32 s98, s98, 1')
            em('s_mov_b64 exec, vcc', cload(8), 's_mov_b64 exec, -1')
            em(f's_waitcnt vmcnt({4*(NB-1)})'); a.retok(cregs, 'cstale')
            em(f'v_max3_u32 v{RT}, v8, v9, v10', f'v_max3_u32 v{RT+1}, v11, v12, v13')
            for b in range(14, 22, 4): em(f'v_max3_u32 v{RT}, v{RT}, v{b}, v{b+1}', f'v_max3_u32 v{RT+1}, v{RT+1}, v{b+2}, v{b+3}')
            em(f'v_max3_u32 v{RT}, v{RT}, v22, v23', f'v_max_u32 v{RT}, v{RT}, v{RT+1}', f'v_cmp_eq_u32 vcc, -1, v{RT}', 's_cmp_eq_u64 vcc, 0')
            em(f's_cbranch_scc0 {RL}')
            a.label(RM)
            for i in range(4):
                b = 8 + 4*i
                a(f'v_mfma_f32_16x16x32_bf16 v[{RA}:{RA+3}], v[{SEL}:{SEL+3}], v[{b}:{b+3}], {"0" if i == 0 else f"v[{RA}:{RA+3}]"}')
        elif SCH:
            assert NS == 1
            if PROF_STEP is not None: a.needr(*range(8, 24)); prof(a, 10)
            creduce(8); em(f's_cbranch_scc1 {RD}')
            a.label(RL)
            em(f's_cmp_eq_u32 s{S_BUD}, 0', f's_cbranch_scc1 {RD}', f's_sub_u32 s{S_BUD}, s{S_BUD}, 1')
            if 'cnt' in EXP: em('s_add_u32 s98, s98, 1')
            em(cload(8))
            creduce(8); em(f's_cbranch_scc0 {RL}')
        else:
            if PROF_STEP is not None: em('s_waitcnt vmcnt(0)'); prof(a, 10)
            a.label(RL)
            for j, b in enumerate(SETS):
                creduce(b); em(f's_cbranch_scc1 {RD}')
                if j == NS - 1: em(f's_cmp_eq_u32 s{S_BUD}, 0', f's_cbranch_scc1 {RD}', f's_sub_u32 s{S_BUD}, s{S_BUD}, 1')
                if 'cnt' in EXP: em('s_add_u32 s98, s98, 1')
                em(cload(b))
            em(f's_branch {RL}')
        a.label(RD)
        if X4:
            em(f'v_permlane32_swap_b32 v{RA}, v{RA+2}', f'v_permlane32_swap_b32 v{RA+1}, v{RA+3}',
               f'v_add_f32 v{RA}, v{RA}, v{RA+2}', f'v_add_f32 v{RA+1}, v{RA+1}, v{RA+3}', cvt(RA, RA))
        else:
            em(f'v_add_f32_dpp v{RA}, v{RA}, v{RA} row_ror:8 row_mask:0xf bank_mask:0xf',
               f'v_add_f32_dpp v{RA+1}, v{RA+1}, v{RA+1} row_ror:8 row_mask:0xf bank_mask:0xf', cvt(RA, RA))
        em(f'buffer_store_dword v{RA}, v{V_M2O}, {WS}, s{T1} offen{sc}')
    prof(a, 9)
    a('s_barrier')
    real = REAL[w]
    em(f's_add_u32 s{T0}, s{S_O0}, {M2 + real[0]*1024}')
    if io: em(f's_add_u32 s{T1}, s{S_O0}, {M2 + real[2]*1024}')
    MS = knob('ms', 3)
    msets = ([[8, 12, 16], [64, 68, 72]] if io else [[8, 12], [64, 68], [72, 76]])[:MS]
    def mload(st):
        o = [f'buffer_load_dwordx4 v[{st[c]}:{st[c]+3}], v{V_EX}, {WS}, s{T0} offen offset:{(real[c]-real[0])*1024} sc1' for c in range(2)]
        if io: o.append(f'buffer_load_dwordx4 v[{st[2]}:{st[2]+3}], v{V_EX}, {WS}, s{T1} offen sc1')
        return o
    CT = 20 if io else 16
    def mcheck(st, first=False):
        x, y = st[0], st[1]
        aw = lambda c: f'ds_write_b128 v{V_EX}, v[{st[c]}:{st[c]+3}] offset:{X_MEM + REAL[w][c]*1024}'
        if first:
            em(f'v_max3_u32 v{CT}, v{x}, v{x+1}, v{x+2}', f'v_max3_u32 v{CT+1}, v{x+3}, v{y}, v{y+1}', aw(0),
               f'v_max3_u32 v{CT}, v{CT}, v{y+2}, v{y+3}', aw(1))
            if io:
                z = st[2]
                em(f'v_max3_u32 v{CT+1}, v{CT+1}, v{z}, v{z+1}', f'v_max3_u32 v{CT}, v{CT}, v{z+2}, v{z+3}', aw(2))
        else:
            em(aw(0), f'v_max3_u32 v{CT}, v{x}, v{x+1}, v{x+2}', aw(1),
               f'v_max3_u32 v{CT}, v{CT}, v{x+3}, v{y}', f'v_max3_u32 v{CT+1}, v{y+1}, v{y+2}, v{y+3}')
            if io:
                z = st[2]
                em(aw(2), f'v_max3_u32 v{CT}, v{CT}, v{z}, v{z+1}', f'v_max3_u32 v{CT+1}, v{CT+1}, v{z+2}, v{z+3}')
        em(f'v_max_u32 v{CT}, v{CT}, v{CT+1}', f'v_cmp_eq_u32 vcc, -1, v{CT}', 's_cmp_eq_u64 vcc, 0')
    fill = [] if io else ([zero(r) for r in range(RT if red else QA, QA + 24, 2)], lr(('Q', 0)))
    if fill and knob('pre02' if w in (0, 2) else 'pre1'):
        em(fill); fill = []
    delay(a, knob('d2' if w in (0, 2) else 'd3'))
    em(mload(msets[0]))
    if fill: em(fill[0])
    if len(msets) > 1:
        delay(a, knob('g2', 0 if fill else 16)); em(mload(msets[1]))
    if fill: em(fill[1])
    if red and PZ == 1:
        em('v_mov_b64 v[20:21], -1', 'v_mov_b64 v[22:23], -1', f's_add_u32 s{T2}, s{S_MB}, s{S_O2}')
        em(poison(20, S_CRD, T2))
    if len(msets) > 2:
        delay(a, knob('g3', 8)); em(mload(msets[2]))
    PL = f'L_pm{t_}'
    if knob('mm') == 2:
        MB_ = knob('mb02' if w in (0, 2) else ('mb1' if w == 1 else 'mb3'), 2)
        st = msets[0]
        mregs = list(range(8, 8 + 4 * len(st)))
        PX = f'L_px{t_}'
        if PROF_STEP is not None: em('s_waitcnt vmcnt(0)'); prof(a, 11, 0)
        mcheck(st); em(f's_cbranch_scc1 {B1}')
        a.retok(mregs, 'mstale')
        a.label(PL)
        em(f's_cmp_eq_u32 s{S_BUD}, 0', f's_cbranch_scc1 {PX}', f's_sub_u32 s{S_BUD}, s{S_BUD}, 1')
        if 'cnt' in EXP: em('s_add_u32 s99, s99, 1')
        em('s_mov_b64 exec, vcc', mload(st))
        a.retok(mregs, 'mstale')
        em(f's_waitcnt vmcnt({len(st)*(MB_-1)})')
        mcheck(st, True); em(f's_cbranch_scc0 {PL}')
        a.label(PX)
        em('s_mov_b64 exec, -1')
    elif knob('mm'):
        MB_ = knob('mb02' if w in (0, 2) else ('mb1' if w == 1 else 'mb3'), 1)
        st = msets[0]
        mregs = list(range(8, 8 + 4 * len(st)))
        for j in range(1, MB_):
            delay(a, knob('gm02' if w in (0, 2) else ('gm1' if w == 1 else 'gm3'), 16)); em(mload(st))
        em(f's_waitcnt vmcnt({len(st)*(MB_-1)})'); a.retok(mregs, 'mstale')
        mcheck(st, MB_ > 1); em(f's_cbranch_scc1 {B1}')
        a.label(PL)
        em(f's_cmp_eq_u32 s{S_BUD}, 0', f's_cbranch_scc1 {B1}', f's_sub_u32 s{S_BUD}, s{S_BUD}, 1')
        if 'cnt' in EXP: em('s_add_u32 s99, s99, 1')
        em('s_mov_b64 exec, vcc', mload(st), 's_mov_b64 exec, -1')
        em(f's_waitcnt vmcnt({len(st)*(MB_-1)})'); a.retok(mregs, 'mstale')
        mcheck(st, MB_ > 1); em(f's_cbranch_scc0 {PL}')
    else:
        if PROF_STEP is not None: em('s_waitcnt vmcnt(0)'); prof(a, 11, 0)
        a.label(PL)
        DL = [B1] + [f'L_pd{j}{t_}' for j in range(1, len(msets))]
        for j, st in enumerate(msets):
            mcheck(st); em(f's_cbranch_scc1 {DL[j]}')
            if j == len(msets) - 1: em(f's_cmp_eq_u32 s{S_BUD}, 0', f's_cbranch_scc1 {DL[j]}', f's_sub_u32 s{S_BUD}, s{S_BUD}, 1')
            if 'cnt' in EXP: em('s_add_u32 s99, s99, 1')
            em(mload(st))
        em(f's_branch {PL}')
        for j in range(len(msets) - 1, 0, -1):
            a.label(DL[j])
            regs = list(range(8, 8 + 4 * len(msets[j])))
            a.retok(regs, 'mstale')
            for c in range(len(msets[j])):
                em(f'v_mov_b64 v[{8+4*c}:{8+4*c+1}], v[{msets[j][c]}:{msets[j][c]+1}]', f'v_mov_b64 v[{8+4*c+2}:{8+4*c+3}], v[{msets[j][c]+2}:{msets[j][c]+3}]')
            if j > 1: em(f's_branch {B1}')
    a.label(B1)
    prof(a, 1)
    if SCH:
        sched1(a, locals()); return
    q = lambda c, t, sl: mm1('Q', c, t, sl)
    k = lambda c, t, sl: mm1('K', c, t, sl)
    v = lambda c, t, sl: mm1('V', c, t, sl)
    r2 = lr(('K', 2))
    em(q(0, 0, 0), q(0, 1, 0), r2[0], r2[1], q(1, 0, 1), r2[2], r2[3], q(1, 1, 1), k(0, 0, 0), k(0, 1, 0), k(1, 0, 1), k(1, 1, 1))
    a('s_waitcnt lgkmcnt(4)')
    a('s_barrier')
    prof(a, 2)
    if io:
        kvloads()
        em(f'v_lshlrev_b32 v20, 3, v{V_EX}', f'v_mov_b32 v21, s{S_S}')
        em(f's_lshl_b32 s{T2}, s{S_H}, 7', f's_add_u32 s{T2}, s{T2}, {F_CH}')
        em('s_mov_b64 exec, 1', f'buffer_store_dword v21, v20, {WS}, s{T2} offen sc1', 's_mov_b64 exec, -1')
        NW = f'L_nw{t_}'
        em(f's_cmp_eq_u32 s{S_WOK}, 0', f's_cbranch_scc1 {NW}')
        em(f's_add_u32 s{T1}, s{S_WA}, {KF}', f's_add_u32 s{T2}, s{S_WA}, {VF}')
        em(f'buffer_load_dword v{V_M2O}, v20, {WS}, s{T1} offen', f'buffer_load_dword v{V_M2O}, v20, {WS}, s{T2} offen')
        a.label(NW)
        em(aread(3, 3))
    else:
        em(aread(2, 2), aread(3, 3))
        if not (red and PZ == 4): kvloads()
    r3, r4, r5 = lr(('K', 4)), lr(('K', 5)), lr(('V', 5))
    X = [[] for _ in range(12)]
    if red and PZ == 4:
        kv = kvl()
        pz = poison(VX, S_CRD, T3)
        em(kv[0], f's_add_u32 s{T3}, s{S_MB}, s{S_O2}')
        seq = kv[1] + pz + kv[2]
        st0 = knob('x0', 0)
        if knob('xs', 1) == 1:
            for i, x in enumerate(seq): X[st0 + i].append(x)
        else:
            for i, x in enumerate(seq): X[st0 + i // 2].append(x)
    em(v(0, 0, 0), X[0], v(0, 1, 0), X[1])
    a.need('mstale')
    em(aread(4, 0), v(1, 0, 1), X[2], v(1, 1, 1), X[3], aread(5, 1))
    em(q(2, 0, 2), X[4], q(2, 1, 2), X[5], k(2, 0, 2), X[6], k(2, 1, 2), X[7], aread(6, 2), r3[0])
    em(q(3, 0, 3), X[8], r3[1], r3[2], q(3, 1, 3), X[9], r3[3], k(3, 0, 3), X[10], k(3, 1, 3), X[11], aread(7, 3))
    em(q(4, 0, 0), q(4, 1, 0), k(4, 0, 0), k(4, 1, 0), aread(8, 0), r4[0])
    em(q(5, 0, 1), r4[1], r4[2], q(5, 1, 1), r4[3], q(6, 0, 2), q(6, 1, 2), q(7, 0, 3), q(7, 1, 3), q(8, 0, 0), q(8, 1, 0))
    em(k(5, 0, 1), k(5, 1, 1), r5[0], r5[1], cvt(QA, QA), k(6, 0, 2), r5[2], r5[3], cvt(QA + 1, QA + 2), k(6, 1, 2), cvt(QB, QB),
       k(7, 0, 3), cvt(QB + 1, QB + 2), k(7, 1, 3), k(8, 0, 0), k(8, 1, 0))
    prof(a, 3)
    em(tr(QA), cvt(KA, KA), cvt(KA + 1, KA + 2))
    em(tr(QB), cvt(KB, KB), cvt(KB + 1, KB + 2))
    em(tr(KA), cvt(QA, QA), cvt(QA + 1, QA + 2))
    em(tr(KB), cvt(QA + 2, QB), cvt(QA + 3, QB + 2))
    em(f'v_mfma_f32_16x16x32_bf16 v[{KX}:{KX+3}], v[{KX}:{KX+3}], v[{QA}:{QA+3}], 0', cvt(KA, KA), cvt(KA + 1, KA + 2))
    em(f'v_mfma_f32_16x16x32_bf16 v[{KX+4}:{KX+7}], v[{KX+4}:{KX+7}], v[{QA}:{QA+3}], 0', cvt(KA + 2, KB), cvt(KA + 3, KB + 2))
    em(f'v_mfma_f32_16x16x32_bf16 v[{QB}:{QB+3}], v[{KA}:{KA+3}], v[{QA}:{QA+3}], 0')
    em(f's_add_u32 s{T0}, s{S_SEGO}, {KM}')
    em(f'buffer_store_dwordx4 v[{KA}:{KA+3}], v{V_EX}, {WS}, s{T0} offen sc1')
    for r in range(4):
        a(f'v_mov_b32_dpp v{KX+r}, v{KX+4+r} quad_perm:[0,1,2,3] row_mask:0xf bank_mask:0xc')
    NM, GM = f's[{S_NM}:{S_NM+1}]', f's[{S_GM}:{S_GM+1}]'
    em(f'v_cndmask_b32 v{KB}, v{QB+1}, v{QB}, {NM}', f'v_cndmask_b32 v{KB+1}, v{QB+3}, v{QB+2}, {NM}',
       f'v_cndmask_b32 v{KB}, v{KB}, v{KB+1}, {GM}')
    em(f'ds_write_b32 v{V_EX}, v{KB} offset:{X_SM + 4*w}', f'ds_write_b128 v{V_EX}, v[{KX}:{KX+3}] offset:{X_TOK + w*1024}')
    prof(a, 4)
    em(v(5, 0, 1), v(5, 1, 1), aread(2, 1), v(6, 0, 2), v(6, 1, 2), aread(3, 2), v(7, 0, 3), v(7, 1, 3), aread(4, 3))
    a('s_waitcnt lgkmcnt(3)')
    a('s_barrier')
    prof(a, 5)
    a(f'ds_read_b128 v[64:67], v{V_EX} offset:{X_SM}')
    for kk in range(4):
        a(f'ds_read_b128 v[{40+4*kk}:{43+4*kk}], v{V_EX} offset:{X_TOK + kk*1024}')
    em(v(8, 0, 0), v(8, 1, 0), v(2, 0, 1), v(2, 1, 1))
    em(v(3, 0, 2), 'v_add_f32 v64, v64, v65', v(3, 1, 2), 'v_add_f32 v66, v66, v67', 'v_add_f32 v64, v64, v66')
    em(pka(40, 40, 44), pka(42, 42, 46), pka(40, 40, 48), pka(42, 42, 50), pka(44, 40, 52), pka(46, 42, 54))
    pre = lread(5, 8) + lread(6, 24)
    em('v_max3_f32 v68, v44, v45, v46', 'v_max3_f32 v68, v68, v47, v64')
    em(v(4, 0, 3), pre[4])
    em('v_max_f32_dpp v68, v68, v68 row_ror:8 row_mask:0xf bank_mask:0xf', 'v_mov_b32 v69, v68')
    em(v(4, 1, 3), pre[5])
    em('v_permlane32_swap_b32 v68, v69', 'v_max_f32 v68, v68, v69', 'v_mov_b32 v69, v68')
    em(pre[6], pre[7])
    em('v_permlane16_swap_b32 v68, v69', 'v_max_f32 v68, v68, v69', f'v_mul_f32 v68, s{S_C}, v68')
    em(pre[0], f'v_fma_f32 v64, v64, s{S_C}, -v68', pre[1])
    for d in (44, 46):
        a(f'v_pk_fma_f32 v[{d}:{d+1}], v[{d}:{d+1}], s[{S_C}:{S_C+1}], v[68:69] op_sel_hi:[1,1,0] neg_lo:[0,0,1] neg_hi:[0,0,1]')
    em('v_exp_f32 v64, v64', cvt(VA, VA), 'v_exp_f32 v44, v44', cvt(VA + 1, VA + 2), 'v_exp_f32 v45, v45',
       'v_mov_b32_dpp v65, v64 row_ror:8 row_mask:0xf bank_mask:0xf', 'v_exp_f32 v46, v46', cvt(VA + 2, VB), 'v_exp_f32 v47, v47', cvt(VA + 3, VB + 2))
    em(cvt(41, 64), pre[2], cvt(42, 44), 'v_mov_b32 v40, v41', pre[3], cvt(43, 46))
    em('v_permlane32_swap_b32 v40, v41')
    em(f'v_mov_b64 v[48:49], s[{S_Q4}:{S_Q4+1}]', f'v_mov_b64 v[50:51], s[{S_ONE}:{S_ONE+1}]')
    em(f's_add_u32 s{T0}, s{S_SEGO}, {KM}')
    a(f'buffer_store_dwordx4 v[{VA}:{VA+3}], v{V_EX}, {WS}, s{T0} offen offset:1024 sc1', tok='kmvm')
    em(f's_cmp_eq_u32 s{S_S}, 63', 's_cbranch_scc1 L_chx')
    em('v_mov_b32_dpp v44, v42 row_ror:8 row_mask:0xf bank_mask:0xf', 'v_mov_b32_dpp v45, v43 row_ror:8 row_mask:0xf bank_mask:0xf')
    em('v_mfma_f32_16x16x32_bf16 v[52:55], v[48:51], v[40:43], 0')
    em(f'v_mfma_f32_16x16x16_bf16 v[64:67], v[{VA}:{VA+1}], v[40:41], 0')
    em(f'v_lshrrev_b32 v48, 1, v{V_EX}', 'v_and_b32 v48, 0x180, v48')
    em(f'v_mfma_f32_16x16x16_bf16 v[68:71], v[{VA+2}:{VA+3}], v[40:41], 0')
    em(f'v_and_b32 v49, 0x70, v{V_EX}', 'v_or_b32 v48, v48, v49')
    em(f'v_mfma_f32_16x16x32_bf16 v[64:67], v[{VX}:{VX+3}], v[42:45], v[64:67]')
    em('v_add_f32_dpp v52, v52, v52 row_ror:8 row_mask:0xf bank_mask:0xf', f'v_bfe_u32 v50, v{V_EX}, 7, 1')
    em(f'v_mfma_f32_16x16x32_bf16 v[68:71], v[{VX+4}:{VX+7}], v[42:45], v[68:71]')
    em('v_rcp_f32 v52, v52', 'v_lshl_add_u32 v49, v50, 3, v48', 'v_lshl_add_u32 v50, v50, 9, v48')
    for d in (64, 66, 68, 70):
        a(f'v_pk_mul_f32 v[{d}:{d+1}], v[{d}:{d+1}], v[52:53] op_sel_hi:[1,0]')
    em(cvt(68, 68), cvt(69, 70), cvt(64, 64), cvt(65, 66))
    em('v_mov_b32_dpp v64, v68 row_ror:8 row_mask:0xf bank_mask:0xc', 'v_mov_b32_dpp v65, v69 row_ror:8 row_mask:0xf bank_mask:0xc')
    em(f'ds_write_b64 v49, v[64:65] offset:{X_O + w*512}')
    prof(a, 6)
    if red and PZ == 3:
        em('v_mov_b64 v[60:61], -1', 'v_mov_b64 v[62:63], -1', f's_add_u32 s{T1}, s{S_MB}, s{S_O2}')
        em(poison(60, S_CRD, T1, range(5)[:knob('pa', 2)]))
        em([zero(r) for r in range(52, 60, 2)])
    elif red and PZ == 0: em([zero(r) for r in range(52, 60, 2)], 'v_mov_b64 v[60:61], -1', 'v_mov_b64 v[62:63], -1')
    elif red and PZ == 5: em([zero(r) for r in range(52, 60, 2)], 'v_mov_b64 v[60:61], -1', zero(62))
    else: em([zero(r) for r in range(52, 64, 2)])
    a('s_waitcnt lgkmcnt(0)')
    a('s_barrier')
    prof(a, 7)
    for jj in range(2):
        a(f'ds_read_b128 v[{40+4*jj}:{43+4*jj}], v50 offset:{X_O + jj*1024}')
    for e in range(4):
        a(f'ds_read_b128 v[{64+4*e}:{67+4*e}], v48 offset:{X_O + e*512}')
    em(zero(48), zero(50))
    if red and PZ in (0, 3):
        em(f's_add_u32 s{T1}, s{S_MB}, s{S_O2}')
        em(poison(60, S_CRD, T1, range(5)[(knob('pa', 2) if PZ == 3 else 0):]))
    if PZ == 5:
        if red: em(f's_add_u32 s{T1}, s{S_MB}, s{S_O2}', poison(60, S_CRD, T1, [4]))
        em(f's_lshl_b32 s{S_TO}, s{S_S}, 15', f's_and_b32 s{S_TO}, s{S_TO}, 0x10000', f's_xor_b32 s{S_TA}, s{S_TO}, 0x10000',
           f's_bfe_i32 s{S_TR}, s{S_TO}, 0x10010')
    em(f's_add_u32 s{T0}, s{S_CS}, s{S_CP}', f's_add_u32 s{T1}, s{S_CSS}, s{S_CP}')
    ring = [8, 16, 24, 32]
    nxt = lread(7, 8) + lread(8, 24)
    GS, GA, GB, GC, GD = 48, 52, 56, 60, 40
    VM = 44
    def tagv(t):
        return [f'v_add_u32 v{t}, s{S_TA}, v{t}', f'v_and_or_b32 v{t}, v{t}, v{VM}, s{S_TO}'] if PZ == 5 else []
    def epi(t, img):
        return [[tagv(t), cvt(t, t)], cvt(t + 1, t + 2), f's_add_u32 s{T2}, s{T0}, {img*65536}',
                f'buffer_store_dwordx2 v[{t}:{t+1}], v{V_C1}, {WS}, s{T2} offen{sc}']
    em([smf(GS, 40 + 4*jj, opreg(('S',), jj)) for jj in range(2)])
    ga = [smf(GA, 64 + 4*e, f'v[{ring[e]}:{ring[e]+7}]') for e in range(4)]
    gb = [smf(GB, 64 + 4*e, opreg(('O', 0, e >> 1), e & 1)) for e in range(4)]
    gc = [smf(GC, 64 + 4*e, opreg(('O', 1, e >> 1), e & 1)) for e in range(4)]
    gd = [smf(GD, 64 + 4*e, f'v[{ring[e]}:{ring[e]+7}]') for e in range(4)]
    em(ga[0], nxt[0], nxt[1], zero(GD), ga[1], nxt[2], nxt[3], zero(GD + 2))
    if PZ == 5: em(f'v_mov_b32 v{VM}, 0xfffe0000')
    em(ga[2], nxt[4], nxt[5], f'v_permlane32_swap_b32 v{GS}, v{GS+2}', ga[3], nxt[6], nxt[7], f'v_permlane32_swap_b32 v{GS+1}, v{GS+3}')
    zc = [zero(60), zero(62)] if red and PZ in (0, 3) else [zero(60) if red and PZ == 5 else [], []]
    em(gb[0], f'v_add_f32 v{GS}, v{GS}, v{GS+2}', zc[0], gb[1], f'v_add_f32 v{GS+1}, v{GS+1}, v{GS+3}', zc[1], tagv(GS), gb[2], cvt(GS, GS),
       f'buffer_store_dword v{GS}, v{V_CS}, {WS}, s{T1} offen{sc}')
    e = epi(GA, 2)
    em(gb[3], e[0], gc[0], e[1:], gc[1])
    e = epi(GB, 0)
    em(gc[2], e[0], gc[3], e[1:])
    em(gd[0], gd[1])
    e = epi(GC, 1)
    em(e[0], gd[2], e[1:], gd[3])
    em(f's_mov_b32 s{T3}, s{S_O0}', f's_mov_b32 s{S_O0}, s{S_O1}', f's_mov_b32 s{S_O1}, s{S_O2}', f's_mov_b32 s{S_O2}, s{T3}')
    em(f's_xor_b32 s{S_CP}, s{S_CP}, 294912', f's_add_u32 s{S_S}, s{S_S}, 1', f's_add_u32 s{S_SEGO}, s{S_SEGO}, {32*8192}')
    em(epi(GD, 3))
    prof2 = PROF_STEP is not None
    if prof2:
        sk = a.uid('L_pf')
        a(f's_cmp_lg_u32 s{S_S}, {PROF_STEP + 1}'); a(f's_cbranch_scc1 {sk}')
        a.rawins(f's_mem{"real" if PROF_REAL else ""}time s[{PS+16}:{PS+17}]')
        a.label(sk)
    a(f's_branch {LS}')

def sched1(a, L):
    em, mm1, lr, aread, cvt, tr, pka, zero, poison = (L[k] for k in ('em', 'mm1', 'lr', 'aread', 'cvt', 'tr', 'pka', 'zero', 'poison'))
    io, red, w, WS, sc, PZ, LS, t_, SL, warm = (L[k] for k in ('io', 'red', 'w', 'WS', 'sc', 'PZ', 'LS', 't_', 'SL', 'warm'))
    assert PZ == 5
    q = lambda c, t, sl: mm1('Q', c, t, sl)
    k = lambda c, t, sl: mm1('K', c, t, sl)
    v = lambda c, t, sl: mm1('V', c, t, sl)
    class Wt:
        def __init__(s, *r): s.r = r
    def slot(i): return Wt(*range(SL(i), SL(i) + 4))
    def lrw(*qs): return Wt(*[LR + 4*x + j for x in qs for j in range(4)])
    def st(*xs):
        for x in xs:
            if x is None: continue
            if isinstance(x, (list, tuple)): st(*x)
            elif isinstance(x, Wt): a.needr(*x.r)
            else: a(x)
    pkm = lambda d, s_: f'v_pk_mul_f32 v[{d}:{d+1}], v[{d}:{d+1}], s[{s_}:{s_+1}]'
    k2, k4, k5, v5 = lr(('K', 2)), lr(('K', 4)), lr(('K', 5)), lr(('V', 5))
    st(q(0, 0, 0), k2[0], q(0, 1, 0), k2[1], q(1, 0, 1), k2[2], q(1, 1, 1), k2[3])
    if io: st(q(2, 0, 2), q(2, 1, 2))
    a('s_waitcnt lgkmcnt(4)')
    a('s_barrier')
    prof(a, 2)
    X = [[] for _ in range(8)]
    if io:
        TV = 62
        X[0] = [f's_lshl_b32 s{T3}, s{S_H}, 7', f's_add_u32 s{T3}, s{T3}, {F_CH}', f'v_mov_b32 v{TV}, s{S_S}']
        X[2] = ['s_mov_b64 exec, 1', f'buffer_store_dword v{TV}, v{V_EX}, {WS}, s{T3} offen sc1', 's_mov_b64 exec, -1']
        wm = warm(TV + 1)
        X[3] = [wm[1], wm[2], wm[0]]
        X[4] = [wm[3]]
        X[5] = [wm[4]]
        X[6] = [zero(TV)]
        st(aread(3, 3))
    else:
        st(aread(2, 2), aread(3, 3))
    st(k(0, 0, 0), X[0], k(0, 1, 0), aread(4, 0), k(1, 0, 1), X[2], k(1, 1, 1), aread(5, 1))
    if io: st(X[3])
    else: st(slot(2), q(2, 0, 2), q(2, 1, 2))
    st(k(2, 0, 2), k5[0], X[4], k(2, 1, 2), aread(6, 2), slot(3))
    st(q(3, 0, 3), k5[1], X[5], q(3, 1, 3), aread(7, 3), slot(0))
    st(q(4, 0, 0), k5[2], X[6], q(4, 1, 0), aread(8, 0), slot(1))
    st(q(5, 0, 1), k5[3], q(5, 1, 1), slot(2), q(6, 0, 2), q(6, 1, 2), slot(3))
    st(q(7, 0, 3), slot(0), q(8, 0, 0), q(7, 1, 3), lrw(0, 1, 2, 3), q(8, 1, 0), pkm(QA, S_C))
    st(k(5, 0, 1), k4[0], pkm(QA + 2, S_C))
    st(k(5, 1, 1), aread(3, 1), cvt(QA, QA))
    st(k(6, 0, 2), k4[1], cvt(QA + 1, QA + 2))
    st(k(6, 1, 2), aread(4, 2), pkm(QB, S_C))
    st(tr(QA), k4[2], pkm(QB + 2, S_C))
    st(k(7, 0, 3), k4[3], cvt(QB, QB))
    st(k(8, 0, 0), slot(1), cvt(QB + 1, QB + 2))
    st(k(3, 0, 1), cvt(QA, QA))
    st(tr(QB), cvt(QA + 1, QA + 2))
    st(k(7, 1, 3), slot(2), lrw(0, 1))
    st(k(4, 0, 2), v5[0], cvt(QA + 2, QB))
    st(k(8, 1, 0), v5[1], cvt(QA + 3, QB + 2))
    st(k(3, 1, 1), lrw(2, 3), cvt(KA, KA))
    KXr = Wt(*range(KX, KX + 8))
    st(k(4, 1, 2), v5[2], KXr, cvt(KA + 1, KA + 2))
    prof(a, 3)
    sc0 = f'v_mfma_f32_16x16x32_bf16 v[{KX}:{KX+3}], v[{KX}:{KX+3}], v[{QA}:{QA+3}], 0'
    sc1_ = f'v_mfma_f32_16x16x32_bf16 v[{KX+4}:{KX+7}], v[{KX+4}:{KX+7}], v[{QA}:{QA+3}], 0'
    scm = f'v_mfma_f32_16x16x32_bf16 v[{QB}:{QB+3}], v[{KA}:{KA+3}], v[{QA}:{QA+3}], 0'
    dm = [f'v_mov_b32_dpp v{KX+r}, v{KX+4+r} quad_perm:[0,1,2,3] row_mask:0xf bank_mask:0xc' for r in range(4)]
    NM, GM = f's[{S_NM}:{S_NM+1}]', f's[{S_GM}:{S_GM+1}]'
    wtok = f'ds_write_b128 v{V_EX}, v[{KX}:{KX+3}] offset:{X_TOK + w*1024}'
    cnd = [f'v_cndmask_b32 v{KB}, v{QB+1}, v{QB}, {NM}', f'v_cndmask_b32 v{KB+1}, v{QB+3}, v{QB+2}, {NM}', f'v_cndmask_b32 v{KB}, v{KB}, v{KB+1}, {GM}']
    wsm = f'ds_write_b32 v{V_EX}, v{KB} offset:{X_SM + 4*w}'
    kmst = f'buffer_store_dwordx4 v[{KA}:{KA+3}], v{V_EX}, {WS}, s{T0} offen sc1'
    P2N = knob('p2n')
    if P2N:
        st(v5[3], f's_add_u32 s{T0}, s{S_SEGO}, {KM}')
        st(tr(KA))
        st(sc0, cvt(KB, KB), cvt(KB + 1, KB + 2))
        st(sc1_)
        st(tr(KB), cvt(KA, KA), cvt(KA + 1, KA + 2))
        st(v(7, 0, 3), dm[0], dm[1])
        st(v(7, 1, 3), aread(0, 3), cvt(KA + 2, KB), cvt(KA + 3, KB + 2), dm[2], dm[3])
        st(scm, wtok)
        st(v(8, 0, 0), kmst, v(8, 1, 0), aread(1, 0), cnd, wsm)
        prof(a, 4)
        if P2N == 1:
            st(v(3, 0, 1), v(3, 1, 1), aread(2, 1), v(4, 0, 2), v(4, 1, 2), aread(5, 2))
            a('s_waitcnt lgkmcnt(2)')
        else:
            st(v(3, 0, 1), v(3, 1, 1), aread(2, 1), v(4, 0, 2))
            a('s_waitcnt lgkmcnt(1)')
        a('s_barrier')
    else:
        st(v5[3], f's_add_u32 s{T0}, s{S_SEGO}, {KM}')
        st(tr(KA), cvt(KB, KB), cvt(KB + 1, KB + 2))
        st(sc0)
        st(tr(KB), cvt(KA, KA), cvt(KA + 1, KA + 2))
        st(sc1_)
        st(cvt(KA + 2, KB), cvt(KA + 3, KB + 2))
        st(scm)
        st(dm, v(7, 0, 3), wtok)
        st(cnd)
        st(wsm)
        prof(a, 4)
        st(v(7, 1, 3), aread(0, 3), v(8, 0, 0), kmst,
           v(8, 1, 0), aread(1, 0), v(3, 0, 1), v(3, 1, 1), aread(2, 1))
        a('s_waitcnt lgkmcnt(3)')
        a('s_barrier')
    prof(a, 5); mark(a, 'P3start')
    a(f'ds_read_b128 v[64:67], v{V_EX} offset:{X_SM}')
    for kk in range(4):
        a(f'ds_read_b128 v[{40+4*kk}:{43+4*kk}], v{V_EX} offset:{X_TOK + kk*1024}')
    pre = lread(5, 8) + lread(6, 24)
    P5N = knob('p5n')
    cst = [f'v_mov_b64 v[48:49], s[{S_Q4}:{S_Q4+1}]', f'v_mov_b64 v[50:51], s[{S_ONE}:{S_ONE+1}]']
    if P2N:
        if P2N == 2: st(v(4, 1, 2), aread(5, 2))
        st(slot(3), v(0, 0, 3), v(0, 1, 3), aread(6, 3), slot(0), v(1, 0, 0), v(1, 1, 0), slot(1), Wt(64, 65, 66, 67))
        st(v(2, 0, 1), 'v_add_f32 v64, v64, v65', v(2, 1, 1), slot(2), lrw(0, 1, 2, 3), Wt(*range(40, 48)), 'v_add_f32 v66, v66, v67')
        st(v(5, 0, 2), pka(40, 40, 44), v(5, 1, 2), Wt(*range(48, 52)), pka(42, 42, 46))
        mark(a, 'P3a')
        st(pka(40, 40, 48), pka(42, 42, 50), 'v_add_f32 v64, v64, v66', Wt(*range(52, 56)), pka(44, 40, 52), pka(46, 42, 54))
        mark(a, 'P3b')
        st(slot(3), v(6, 0, 3), 'v_max3_f32 v68, v44, v45, v46', cst[0], v(6, 1, 3), pre[4], 'v_max3_f32 v68, v68, v47, v64')
        st(cst[1], pre[5],
           'v_max_f32_dpp v69, v68, v68 row_ror:8 row_mask:0xf bank_mask:0xf', 'v_max_f32_dpp v68, v68, v68 row_ror:8 row_mask:0xf bank_mask:0xf')
        st(pre[6], pre[7], 'v_permlane32_swap_b32 v68, v69')
        mark(a, 'P3c')
        st('v_max_f32 v70, v68, v69', 'v_max_f32 v71, v68, v69', pre[0], pre[1], 'v_permlane16_swap_b32 v70, v71')
        st(pre[2], 'v_max_f32 v68, v70, v71')
        st('v_sub_f32 v64, v64, v68')
        for d in (44, 46):
            a(f'v_pk_add_f32 v[{d}:{d+1}], v[{d}:{d+1}], v[68:69] op_sel_hi:[1,0] neg_lo:[0,1] neg_hi:[0,1]')
        mark(a, 'P3d')
        st('v_exp_f32 v64, v64', pre[3], 'v_exp_f32 v44, v44', 'v_mov_b32_dpp v65, v64 row_ror:8 row_mask:0xf bank_mask:0xf', 'v_exp_f32 v45, v45',
           cvt(VA, VA), 'v_exp_f32 v46, v46', cvt(40, 64), cvt(41, 64), 'v_exp_f32 v47, v47', cvt(VA + 1, VA + 2))
        st(cvt(42, 44), 'v_permlane32_swap_b32 v40, v41', cvt(VA + 2, VB), cvt(43, 46), cvt(VA + 3, VB + 2))
        mark(a, 'P3e')
    else:
        st(v(4, 0, 2), v(4, 1, 2), aread(5, 2), slot(3), v(0, 0, 3), v(0, 1, 3), aread(6, 3), slot(0), Wt(64, 65, 66, 67))
        st(v(1, 0, 0), 'v_add_f32 v64, v64, v65', v(1, 1, 0), slot(1), Wt(*range(40, 48)), 'v_add_f32 v66, v66, v67')
        st(v(2, 0, 1), pka(40, 40, 44), v(2, 1, 1), Wt(*range(48, 52)), pka(42, 42, 46))
        mark(a, 'P3a')
        st(pka(40, 40, 48), pka(42, 42, 50), 'v_add_f32 v64, v64, v66', Wt(*range(52, 56)), pka(44, 40, 52), pka(46, 42, 54))
        mark(a, 'P3b')
        st(slot(2), lrw(0, 1, 2, 3), v(5, 0, 2), 'v_max3_f32 v68, v44, v45, v46', v(5, 1, 2), 'v_max3_f32 v68, v68, v47, v64')
        st(slot(3), v(6, 0, 3),
           'v_max_f32_dpp v69, v68, v68 row_ror:8 row_mask:0xf bank_mask:0xf', 'v_max_f32_dpp v68, v68, v68 row_ror:8 row_mask:0xf bank_mask:0xf')
        st(v(6, 1, 3), pre[4], 'v_permlane32_swap_b32 v68, v69')
        mark(a, 'P3c')
        st('v_max_f32 v70, v68, v69', 'v_max_f32 v71, v68, v69', pre[5], pre[6], 'v_permlane16_swap_b32 v70, v71')
        st(pre[7], 'v_max_f32 v68, v70, v71')
        st('v_sub_f32 v64, v64, v68')
        for d in (44, 46):
            a(f'v_pk_add_f32 v[{d}:{d+1}], v[{d}:{d+1}], v[68:69] op_sel_hi:[1,0] neg_lo:[0,1] neg_hi:[0,1]')
        mark(a, 'P3d')
        st('v_exp_f32 v64, v64', pre[0], 'v_exp_f32 v44, v44', 'v_mov_b32_dpp v65, v64 row_ror:8 row_mask:0xf bank_mask:0xf', 'v_exp_f32 v45, v45',
           pre[1], cvt(VA, VA), 'v_exp_f32 v46, v46', cvt(40, 64), cvt(41, 64), 'v_exp_f32 v47, v47', cvt(VA + 1, VA + 2), pre[2])
        st(cvt(42, 44), 'v_permlane32_swap_b32 v40, v41', cvt(VA + 2, VB), pre[3], cvt(43, 46), cvt(VA + 3, VB + 2))
        mark(a, 'P3e')
        st(cst)
    st(f's_add_u32 s{T0}, s{S_SEGO}, {KM}')
    LAST = f'L_last{t_}'
    st('v_mov_b32_dpp v44, v42 row_ror:8 row_mask:0xf bank_mask:0xf', f's_cmp_eq_u32 s{S_S}, 63',
       'v_mov_b32_dpp v45, v43 row_ror:8 row_mask:0xf bank_mask:0xf', f's_cbranch_scc1 {LAST}')
    vmst = f'buffer_store_dwordx4 v[{VA}:{VA+3}], v{V_EX}, {WS}, s{T0} offen offset:1024 sc1'
    mark(a, 'P3f')
    ring = [8, 16, 24, 32]
    nxt = lread(7, 8) + lread(8, 24)
    tag = lambda t: f'v_and_or_b32 v{t}, v{t}, -2, s{S_TO}'
    adr = lambda img: f's_add_u32 s{T2}, s{T0}, {img*65536}'
    sto = lambda t: f'buffer_store_dwordx2 v[{t}:{t+1}], v{V_C1}, {WS}, s{T2} offen{sc}'
    RG = lambda e: Wt(*range(ring[e], ring[e] + 8))
    rot = [f's_mov_b32 s{T3}, s{S_O0}', f's_mov_b32 s{S_O0}, s{S_O1}', f's_mov_b32 s{S_O1}, s{S_O2}', f's_mov_b32 s{S_O2}, s{T3}',
           f's_xor_b32 s{S_CP}, s{S_CP}, 294912', f's_add_u32 s{S_S}, s{S_S}, 1', f's_add_u32 s{S_SEGO}, s{S_SEGO}, {32*8192}']
    if P5N:
        GS, GA, GB, GC, GD = 52, 48, 56, 60, 40
        AX, AY = 46, 47
        ER = {w: 64}
        others = [e for e in range(4) if e != w]
        for j, e in enumerate(others): ER[e] = 68 + 4*j
        E = lambda e: Wt(*range(ER[e], ER[e] + 4))
        S_ = [smf(GS, 40 + 4*jj, opreg(('S',), jj)) for jj in range(2)]
        ga = [smf(GA, ER[e], f'v[{ring[e]}:{ring[e]+7}]') for e in range(4)]
        gb = [smf(GB, ER[e], opreg(('O', 0, e >> 1), e & 1)) for e in range(4)]
        gc = [smf(GC, ER[e], opreg(('O', 1, e >> 1), e & 1)) for e in range(4)]
        gd = [smf(GD, ER[e], f'v[{ring[e]}:{ring[e]+7}]') for e in range(4)]
        st('v_mfma_f32_16x16x32_bf16 v[52:55], v[48:51], v[40:43], 0', f'v_lshrrev_b32 v{AX}, 1, v{V_EX}', f'v_and_b32 v{AY}, 0x70, v{V_EX}')
        st(f'v_mfma_f32_16x16x16_bf16 v[64:67], v[{VA}:{VA+1}], v[40:41], 0', f'v_and_b32 v{AX}, 0x180, v{AX}', zero(60))
        st(f'v_mfma_f32_16x16x16_bf16 v[68:71], v[{VA+2}:{VA+3}], v[40:41], 0', f'v_or_b32 v{AX}, v{AX}, v{AY}', zero(62))
        a(vmst, tok='kmvm')
        st(f'v_mfma_f32_16x16x32_bf16 v[64:67], v[{VX}:{VX+3}], v[42:45], v[64:67]',
           'v_add_f32_dpp v52, v52, v52 row_ror:8 row_mask:0xf bank_mask:0xf', f'v_bfe_u32 v{AY}, v{V_EX}, 7, 1')
        st(f'v_mfma_f32_16x16x32_bf16 v[68:71], v[{VX+4}:{VX+7}], v[42:45], v[68:71]',
           'v_rcp_f32 v52, v52', f'v_lshl_add_u32 v{AY}, v{AY}, 9, v{AX}', zero(48), zero(50), zero(56), zero(58))
        mark(a, 'P3g')
        for d in (64, 66, 68, 70):
            a(f'v_pk_mul_f32 v[{d}:{d+1}], v[{d}:{d+1}], v[52:53] op_sel_hi:[1,0]')
        st(cvt(64, 64), cvt(65, 66), cvt(66, 68), cvt(67, 70))
        st(f's_mov_b64 exec, s[{S_NM}:{S_NM+1}]', f'ds_write_b128 v{AX}, v[64:67] offset:{X_O + w*512}', 's_mov_b64 exec, -1')
        st([f'v_mov_b32_dpp v{64+r}, v{64+r} row_ror:8 row_mask:0xf bank_mask:0xc' for r in range(4)])
        prof(a, 6); mark(a, 'P3i')
        st(f's_bfe_u32 s{S_TO}, s{S_S}, 0x10001', f's_sub_u32 s{S_TR}, 0, s{S_TO}')
        st(RG(w), ga[w], nxt[2*w], nxt[2*w+1], zero(52))
        if red: st(gb[w], f's_add_u32 s{T1}, s{S_MB}, s{S_O2}', 'v_mov_b32 v44, -1', gc[w], poison(44, None, T1, [4]), zero(54))
        else: st(gb[w], zero(54), gc[w])
        st(f's_add_u32 s{T0}, s{S_CS}, s{S_CP}', f's_add_u32 s{T1}, s{S_CSS}, s{S_CP}')
        a('s_waitcnt lgkmcnt(2)')
        a('s_barrier')
        prof(a, 7); mark(a, 'P3j')
        for e in others:
            a(f'ds_read_b128 v[{ER[e]}:{ER[e]+3}], v{AX} offset:{X_O + e*512}')
        for jj in range(2):
            a(f'ds_read_b128 v[{40+4*jj}:{43+4*jj}], v{AY} offset:{X_O + jj*1024}')
        e1, e2, e3 = others
        nx = lambda e: [nxt[2*e], nxt[2*e+1]]
        if knob('x4'):
            sw = lambda x, y: f'v_permlane16_swap_b32 v{x}, v{y}'
            st4 = lambda t: f'buffer_store_dwordx4 v[{t}:{t+3}], v{V_C1}, {WS}, s{T2} offen{sc}'
            st(E(e1), ga[e1], nx(e1)[0], E(e2), ga[e2], nx(e1)[1], E(e3), ga[e3], nx(e2)[0], Wt(40, 41, 42, 43))
            st(gb[e1], nx(e2)[1], gb[e2], nx(e3)[0], cvt(48, 48))
            st(gb[e3], nx(e3)[1], cvt(49, 50))
            st(S_[0], adr(0), zero(GD), Wt(44, 45, 46, 47))
            st(S_[1], cvt(50, 56))
            st(gc[e1], cvt(51, 58), zero(GD + 2))
            st(gc[e2], sw(48, 50), f'v_permlane32_swap_b32 v{GS}, v{GS+2}')
            st(gc[e3], sw(49, 51), f'v_permlane32_swap_b32 v{GS+1}, v{GS+3}')
            st(RG(w), gd[w], tag(48), f'v_add_f32 v{GS}, v{GS}, v{GS+2}')
            st(RG(e1), gd[e1], st4(48), f'v_add_f32 v{GS+1}, v{GS+1}, v{GS+3}', cvt(63, 62))
            st(RG(e2), gd[e2], adr(1), cvt(GS, GS), cvt(62, 60))
            st(RG(e3), gd[e3], tag(GS), f'buffer_store_dword v{GS}, v{V_CS}, {WS}, s{T1} offen{sc}')
            st(rot[:5])
            st(cvt(60, 40), cvt(61, 42), rot[5:], sw(60, 62), sw(61, 63), tag(60), st4(60))
        else:
            st(E(e1), ga[e1], nx(e1)[0], E(e2), ga[e2], nx(e1)[1], E(e3), ga[e3], nx(e2)[0], Wt(40, 41, 42, 43))
            st(S_[0], nx(e2)[1], Wt(44, 45, 46, 47), S_[1], nx(e3)[0], cvt(GA, GA))
            st(gb[e1], nx(e3)[1], adr(2), cvt(GA + 1, GA + 2))
            st(gb[e2], tag(GA), f'v_permlane32_swap_b32 v{GS}, v{GS+2}')
            st(gb[e3], sto(GA), f'v_permlane32_swap_b32 v{GS+1}, v{GS+3}')
            st(gc[e1], zero(GD), f'v_add_f32 v{GS}, v{GS}, v{GS+2}')
            st(gc[e2], zero(GD + 2), f'v_add_f32 v{GS+1}, v{GS+1}, v{GS+3}')
            st(gc[e3], adr(0), cvt(GB, GB), cvt(GS, GS))
            st(RG(w), gd[w], cvt(GB + 1, GB + 2), tag(GS))
            st(RG(e1), gd[e1], f'buffer_store_dword v{GS}, v{V_CS}, {WS}, s{T1} offen{sc}', tag(GB), cvt(GC, GC))
            st(RG(e2), gd[e2], sto(GB), adr(1), cvt(GC + 1, GC + 2))
            st(RG(e3), gd[e3], tag(GC), sto(GC), adr(3))
            st(rot)
            st(cvt(GD, GD), cvt(GD + 1, GD + 2), tag(GD), sto(GD))
    else:
        sched1_p5(a, locals(), L)
    if PROF_STEP is not None:
        sk = a.uid('L_pf')
        a(f's_cmp_lg_u32 s{S_S}, {PROF_STEP + 1}'); a(f's_cbranch_scc1 {sk}')
        a.rawins(f's_mem{"real" if PROF_REAL else ""}time s[{PS+16}:{PS+17}]')
        a.label(sk)
    a(f's_branch {LS}')
    a.label(LAST)
    a(vmst, tok='kmvm')
    a('s_branch L_chx')

def sched1_p5(a, M, L):
    st, Wt, vmst, tag, adr, sto, RG, ring, nxt, rot, cvt, zero, poison, red, w, WS, sc = (M[k] for k in
        ('st', 'Wt', 'vmst', 'tag', 'adr', 'sto', 'RG', 'ring', 'nxt', 'rot', 'cvt', 'zero', 'poison', 'red', 'w', 'WS', 'sc'))
    st('v_mfma_f32_16x16x32_bf16 v[52:55], v[48:51], v[40:43], 0')
    st(f'v_mfma_f32_16x16x16_bf16 v[64:67], v[{VA}:{VA+1}], v[40:41], 0')
    st(f'v_lshrrev_b32 v48, 1, v{V_EX}', 'v_and_b32 v48, 0x180, v48')
    st(f'v_mfma_f32_16x16x16_bf16 v[68:71], v[{VA+2}:{VA+3}], v[40:41], 0')
    st(f'v_and_b32 v49, 0x70, v{V_EX}', 'v_or_b32 v48, v48, v49')
    st(f'v_mfma_f32_16x16x32_bf16 v[64:67], v[{VX}:{VX+3}], v[42:45], v[64:67]')
    st('v_add_f32_dpp v52, v52, v52 row_ror:8 row_mask:0xf bank_mask:0xf', f'v_bfe_u32 v50, v{V_EX}, 7, 1')
    st(f'v_mfma_f32_16x16x32_bf16 v[68:71], v[{VX+4}:{VX+7}], v[42:45], v[68:71]')
    st('v_rcp_f32 v52, v52', 'v_lshl_add_u32 v49, v50, 3, v48', 'v_lshl_add_u32 v50, v50, 9, v48')
    mark(a, 'P3g')
    a(vmst, tok='kmvm')
    mark(a, 'P3h')
    for d in (64, 66, 68, 70):
        a(f'v_pk_mul_f32 v[{d}:{d+1}], v[{d}:{d+1}], v[52:53] op_sel_hi:[1,0]')
    st(cvt(68, 68), cvt(69, 70), cvt(64, 64), cvt(65, 66))
    st('v_mov_b32_dpp v64, v68 row_ror:8 row_mask:0xf bank_mask:0xc', 'v_mov_b32_dpp v65, v69 row_ror:8 row_mask:0xf bank_mask:0xc')
    st(f'ds_write_b64 v49, v[64:65] offset:{X_O + w*512}')
    prof(a, 6); mark(a, 'P3i')
    if red:
        st(f's_add_u32 s{T1}, s{S_MB}, s{S_O2}', 'v_mov_b32 v60, -1', poison(60, None, T1, [4]))
    st([zero(r) for r in range(52, 64, 2)])
    st(f's_bfe_u32 s{S_TO}, s{S_S}, 0x10001', f's_sub_u32 s{S_TR}, 0, s{S_TO}')
    st(f's_add_u32 s{T0}, s{S_CS}, s{S_CP}', f's_add_u32 s{T1}, s{S_CSS}, s{S_CP}')
    a('s_waitcnt lgkmcnt(0)')
    a('s_barrier')
    prof(a, 7); mark(a, 'P3j')
    for jj in range(2):
        a(f'ds_read_b128 v[{40+4*jj}:{43+4*jj}], v50 offset:{X_O + jj*1024}')
    for e in range(4):
        a(f'ds_read_b128 v[{64+4*e}:{67+4*e}], v48 offset:{X_O + e*512}')
    st(zero(48), zero(50))
    GS, GA, GB, GC, GD = 48, 52, 56, 60, 40
    E = lambda e: Wt(*range(64 + 4*e, 68 + 4*e))
    S_ = [smf(GS, 40 + 4*jj, opreg(('S',), jj)) for jj in range(2)]
    ga = [smf(GA, 64 + 4*e, f'v[{ring[e]}:{ring[e]+7}]') for e in range(4)]
    gb = [smf(GB, 64 + 4*e, opreg(('O', 0, e >> 1), e & 1)) for e in range(4)]
    gc = [smf(GC, 64 + 4*e, opreg(('O', 1, e >> 1), e & 1)) for e in range(4)]
    gd = [smf(GD, 64 + 4*e, f'v[{ring[e]}:{ring[e]+7}]') for e in range(4)]
    st(S_[0], Wt(44, 45, 46, 47), S_[1], E(0), zero(GD))
    st(ga[0], nxt[0], E(1), zero(GD + 2))
    st(ga[1], nxt[1], E(2), f'v_permlane32_swap_b32 v{GS}, v{GS+2}')
    st(ga[2], nxt[2], E(3), f'v_permlane32_swap_b32 v{GS+1}, v{GS+3}')
    st(ga[3], nxt[3], f'v_add_f32 v{GS}, v{GS}, v{GS+2}')
    st(gb[0], nxt[4], f'v_add_f32 v{GS+1}, v{GS+1}, v{GS+3}')
    st(gb[1], nxt[5], cvt(GS, GS))
    st(gb[2], nxt[6], tag(GS))
    st(gb[3], f'buffer_store_dword v{GS}, v{V_CS}, {WS}, s{T1} offen{sc}', cvt(GA, GA))
    st(gc[0], nxt[7], adr(2), cvt(GA + 1, GA + 2))
    st(gc[1], tag(GA))
    st(gc[2], sto(GA), cvt(GB, GB))
    st(gc[3], adr(0), RG(0), cvt(GB + 1, GB + 2))
    st(gd[0], RG(1), tag(GB))
    st(gd[1], sto(GB), RG(2), cvt(GC, GC))
    st(gd[2], adr(1), RG(3), cvt(GC + 1, GC + 2))
    st(gd[3], tag(GC), sto(GC), adr(3))
    st(rot)
    st(cvt(GD, GD), cvt(GD + 1, GD + 2), tag(GD), sto(GD))

def chain_role(a):
    stamp(a, 1)
    setup(a)
    stamp(a, 2)
    if not knob('ea'): team_barrier(a)
    stamp(a, 3)
    if 'setuponly' in EXP or 'so2' in EXP:
        a('s_branch L_exit')
    a(f's_mov_b32 s{S_S}, 0'); a(f's_mov_b32 s{S_O0}, 0'); a(f's_mov_b32 s{S_O1}, 9216'); a(f's_mov_b32 s{S_O2}, 18432')
    a(f's_mov_b32 s{S_CP}, 0')
    if 'cnt' in EXP: a('s_mov_b32 s98, 0'); a('s_mov_b32 s99, 0')
    variants = getattr(chain_role, 'variants', 'both')
    vs = {'both': [('', 'l'), (' sc1', 'f')], 'loc': [('', 'l')], 'for': [(' sc1', 'f')]}[variants]
    if variants == 'both':
        a(f's_cmp_lg_u32 s{S_FOREIGN}, 0'); a('s_cbranch_scc1 L_cdf')
    for sc, tag in vs:
        a.label(f'L_cd{tag}')
        a(f's_cmp_eq_u32 s{S_W}, 3'); a(f's_cbranch_scc1 L_ce{tag}io')
        a(f's_cmp_eq_u32 s{S_W}, 1'); a(f's_cbranch_scc1 L_ce{tag}r1')
        a(f's_cmp_eq_u32 s{S_W}, 0'); a(f's_cbranch_scc1 L_ce{tag}r0')
        a(f's_cmp_lt_u32 s{S_H}, 8'); a(f's_cbranch_scc1 L_ce{tag}r2')
        a(f's_branch L_ce{tag}n2')
        for role in ('r0', 'r1', 'r2', 'n2', 'io'):
            loop(a, sc, tag, role)
    a.label('L_chx')
    WS = f's[{S_WS}:{S_WS+3}]'
    a('s_waitcnt vmcnt(0)')
    a('s_barrier')
    sk = a.uid('L_x')
    a(f's_cmp_lg_u32 s{S_W}, 3'); a(f's_cbranch_scc1 {sk}')
    a(f'v_lshlrev_b32 v60, 3, v{V_EX}'); a('v_mov_b32 v61, 64')
    a(f's_lshl_b32 s{T2}, s{S_H}, 7'); a(f's_add_u32 s{T2}, s{T2}, {F_CH}')
    a('s_mov_b64 exec, 1')
    a(f'buffer_store_dword v61, v60, {WS}, s{T2} offen sc1')
    a('s_mov_b64 exec, -1')
    a.label(sk)
    if knob('wb'):
        sk2 = a.uid('L_wb')
        a(f's_cmp_lg_u32 s{S_H}, 0'); a(f's_cbranch_scc1 {sk2}')
        a(f's_cmp_lg_u32 s{S_W}, 0'); a(f's_cbranch_scc1 {sk2}')
        if knob('wb') == 2:
            a(f'v_lshlrev_b32 v60, 3, v{V_EX}'); a(f's_mov_b32 s{T2}, {F_CH}')
            a('s_mov_b32 exec_lo, -1'); a('s_mov_b32 exec_hi, 0')
            poll(a, f'buffer_load_dword v61, v60, {WS}, s{T2} offen sc1', 'v_cmp_le_u32 vcc, 64, v61', 'L_wbp')
            a('s_mov_b64 exec, -1')
        a('buffer_wbl2 sc1')
        a('s_waitcnt vmcnt(0)')
        a.label(sk2)
    if 'cnt' in EXP:
        a(f's_lshl_b32 s{T0}, s{S_H}, 2'); a(f's_add_u32 s{T0}, s{T0}, s{S_W}'); a(f's_lshl_b32 s{T0}, s{T0}, 7'); a(f's_add_u32 s{T0}, s{T0}, {PROF}')
        a('v_mov_b32 v10, 0'); a('v_mov_b32 v8, s98'); a('v_mov_b32 v9, s99'); a('s_mov_b64 exec, 1')
        a(f'buffer_store_dwordx2 v[8:9], v10, {WS}, s{T0} offen')
        a('s_mov_b64 exec, -1')
    if PROF_STEP is not None:
        a('s_waitcnt lgkmcnt(0)')
        a(f's_lshl_b32 s{T0}, s{S_H}, 2'); a(f's_add_u32 s{T0}, s{T0}, s{S_W}'); a(f's_lshl_b32 s{T0}, s{T0}, 7'); a(f's_add_u32 s{T0}, s{T0}, {PROF}')
        a('v_mov_b32 v10, 0'); a('s_mov_b64 exec, 1')
        for k in range(13):
            a(f'v_mov_b32 v8, s{PS+2*k}'); a(f'v_mov_b32 v9, s{PS+2*k+1}')
            a(f'buffer_store_dwordx2 v[8:9], v10, {WS}, s{T0} offen offset:{8*k}')
        a('s_mov_b64 exec, -1')
    stamp(a, 4)
```
